```python
import torch

def _softmax(x, axis=-1):
    return torch.softmax(x, dim=axis)
def _gelu(x):
    return torch.nn.functional.gelu(x, approximate="tanh")
def _silu(x):
    return torch.nn.functional.silu(x)
def _sigmoid(x):
    return torch.sigmoid(x)
def _layernorm(x, axis=-1, eps=1e-5):
    m = x.mean(dim=axis, keepdim=True)
    v = x.var(dim=axis, keepdim=True, unbiased=False)
    return (x - m) / torch.sqrt(v + eps)
def _scatter_add(tgt, idx, src, axis=0):
    return tgt.clone().index_add_(axis, idx, src)
def _segment_sum(src, seg, n):
    out = torch.zeros((n,) + src.shape[1:], dtype=src.dtype)
    return out.index_add_(0, seg, src)
def _pad(x, pw):
    flat = tuple(v for pair in reversed(pw) for v in pair)
    return torch.nn.functional.pad(x, flat)

kernel_name = 'interleave_layers__grouped_kv_mqa__dense_activation_mish__prompt'

def setup_inputs():

    _w = (lambda a: (lambda t: t.to(torch.bfloat16) if t.is_floating_point() else t)(torch.as_tensor(a)))
    def _A_setup():
        B, S, D, H = 1, 2048, 640, 32
        Dh = D // H
        return {
            "x": _w((lambda *s: torch.randn(*s, dtype=torch.bfloat16) * 0.05)(B, S, D)),
            "wq": _w((lambda *s: torch.randn(*s, dtype=torch.bfloat16) * 0.05)(D, H * Dh)),
            "wk": _w((lambda *s: torch.randn(*s, dtype=torch.bfloat16) * 0.05)(D, Dh)),
            "wv": _w((lambda *s: torch.randn(*s, dtype=torch.bfloat16) * 0.05)(D, Dh)),
            "wo": _w((lambda *s: torch.randn(*s, dtype=torch.bfloat16) * 0.05)(H * Dh, D)),
        }
    _A_in = _A_setup()

    def _B_setup():
        B, S, D, F = 1, 2048, 640, 1728
        return {
            "x": _w((lambda *s: torch.randn(*s, dtype=torch.bfloat16) * 0.05)(B, S, D)),
            "w1": _w((lambda *s: torch.randn(*s, dtype=torch.bfloat16) * 1.6)(D, F) * (D ** -0.5)),
            "b1": _w((lambda *s: torch.randn(*s, dtype=torch.bfloat16) * 0.2)(F)),
            "w2": _w((lambda *s: torch.randn(*s, dtype=torch.bfloat16) * 0.2)(F, D) * (F ** -0.5)),
        }
    _B_in = _B_setup()

    return {
        "A_x": _A_in["x"],
        "A_wq": _A_in["wq"],
        "A_wk": _A_in["wk"],
        "A_wv": _A_in["wv"],
        "A_wo": _A_in["wo"],
        "B_x": _B_in["x"],
        "B_w1": _B_in["w1"],
        "B_b1": _B_in["b1"],
        "B_w2": _B_in["w2"],
    }

def reference(A_x, A_wq, A_wk, A_wv, A_wo, B_x, B_w1, B_b1, B_w2):
    def _A_ref(x, wq, wk, wv, wo):
        B, S, D = x.shape
        H = 32
        Dh = D // H
        q = (lambda x, *d: x.permute(*d))((x @ wq).reshape(B, S, H, Dh), 0, 2, 1, 3)
        k = x @ wk
        v = x @ wv
        scores = torch.einsum("bhqd,bkd->bhqk", q, k) * (Dh ** -0.5)
        p = _softmax(scores, axis=-1)
        o = torch.einsum("bhqk,bkd->bhqd", p, v)
        return (lambda x, *d: x.permute(*d))(o, 0, 2, 1, 3).reshape(B, S, H * Dh) @ wo

    def _B_ref(x, w1, b1, w2):
        h = torch.einsum("bsd,df->bsf", x, w1) + b1
        sp = torch.log1p(torch.exp(-torch.abs(h))) + torch.where(h > 0, h, torch.zeros_like(h))
        act = h * torch.tanh(sp)
        return torch.einsum("bsf,fd->bsd", act, w2)

    x = A_x
    x = x + _A_ref(_layernorm(x, axis=-1), A_wq, A_wk, A_wv, A_wo)
    x = x + _B_ref(_layernorm(x, axis=-1), B_w1, B_b1, B_w2)
    x = x + _A_ref(_layernorm(x, axis=-1), A_wq, A_wk, A_wv, A_wo)
    x = x + _B_ref(_layernorm(x, axis=-1), B_w1, B_b1, B_w2)
    return x
```

```python
import re

def v(n, c=1): return f"v{n}" if c == 1 else f"v[{n}:{n+c-1}]"
def a(n, c=1): return f"a{n}" if c == 1 else f"a[{n}:{n+c-1}]"
def s(n, c=1): return f"s{n}" if c == 1 else f"s[{n}:{n+c-1}]"
def R(n, c=1):
    if n >= 256:
        return a(n - 256, c)
    assert n + c <= 256, (n, c)
    return v(n, c)

_reg_re = re.compile(r"^(-?)(abs\()?([vas])(\d+)\)?$")
_rng_re = re.compile(r"^(-?)([vas])\[(\d+):(\d+)\]$")

def parse_reg(tok):
    tok = tok.strip()
    if tok.startswith("|") and tok.endswith("|"):
        tok = tok[1:-1]
    if tok.startswith("-|") and tok.endswith("|"):
        tok = tok[2:-1]
    m = _reg_re.match(tok)
    if m:
        k, i = m.group(3), int(m.group(4))
        if k == 'a': return {('v', 256 + i)}
        return {(k, i)}
    m = _rng_re.match(tok)
    if m:
        k, lo, hi = m.group(2), int(m.group(3)), int(m.group(4))
        if k == 'a': return {('v', 256 + i) for i in range(lo, hi + 1)}
        return {(k, i) for i in range(lo, hi + 1)}
    if tok in ("vcc", "vcc_lo", "vcc_hi"): return {('s', 'vcc')}
    if tok in ("exec", "exec_lo", "exec_hi"): return {('s', 'exec')}
    if tok == "m0": return {('s', 'm0')}
    if tok == "scc": return {('s', 'scc')}
    return set()

TRANS = ("v_exp_f32", "v_log_f32", "v_rcp_f32", "v_rsq_f32", "v_sqrt_f32", "v_sin_f32", "v_cos_f32",
         "v_exp_f16", "v_rcp_f16", "v_rcp_iflag_f32")

class Inst:
    __slots__ = ("text", "op", "ops", "mods", "kind", "rd", "wr", "passes", "tag", "srcc", "srcab", "dst",
                 "is_label", "label", "target", "data", "lds_dma", "nstates", "dpp", "sdwa")
    def __init__(self, text, tag=None):
        self.text = text; self.tag = tag
        self.is_label = False; self.label = None; self.target = None
        self.rd = set(); self.wr = set(); self.kind = "other"; self.passes = 0
        self.srcc = set(); self.srcab = set(); self.dst = set(); self.data = set()
        self.lds_dma = False; self.nstates = 1; self.dpp = False; self.sdwa = False
        t = text.split(";")[0].strip()
        if t.endswith(":"):
            self.is_label = True; self.label = t[:-1]; self.kind = "label"; self.nstates = 0; self.op = ""
            return
        if t.startswith(".") or t == "":
            self.kind = "directive"; self.nstates = 0; self.op = ""
            return
        parts = t.split(None, 1)
        op = parts[0]; self.op = op
        rest = parts[1] if len(parts) > 1 else ""
        ops = []; cur = ""; depth = 0
        for ch in rest:
            if ch == "[": depth += 1
            if ch == "]": depth -= 1
            if ch == "," and depth == 0:
                ops.append(cur.strip()); cur = ""
            else:
                cur += ch
        if cur.strip(): ops.append(cur.strip())
        mods = ""
        if ops:
            lp = ops[-1].split(None, 1)
            if len(lp) > 1:
                ops[-1] = lp[0]; mods = lp[1]
        self.ops = ops; self.mods = mods
        P = [parse_reg(o) for o in ops]
        base = op.replace("_e32", "").replace("_e64", "").replace("_dpp", "").replace("_sdwa", "")
        if "_dpp" in op or "row_" in mods or "quad_perm" in mods or "wave_" in mods: self.dpp = True
        if "_sdwa" in op: self.sdwa = True
        if op.startswith("v_mfma"):
            self.kind = "mfma"
            self.dst = P[0]; self.srcab = P[1] | P[2]; self.srcc = P[3]
            self.wr = set(P[0]); self.rd = P[1] | P[2] | P[3]
            if "32x32x16" in op or "32x32x8" in op: self.passes = 8
            elif "16x16x32" in op or "16x16x16" in op: self.passes = 4
            else: raise ValueError(op)
        elif op.startswith("v_"):
            self.kind = "valu"
            if base in TRANS: self.kind = "trans"
            if base.startswith("v_cmp"):
                self.wr = set(P[0]); self.rd = set().union(*P[1:])
                if base.startswith("v_cmpx"): self.wr |= {('s', 'exec')}
            elif base in ("v_readfirstlane_b32", "v_readlane_b32"):
                self.wr = set(P[0]); self.rd = set().union(*P[1:])
            elif base.startswith("v_permlane") and "swap" in base:
                self.wr = P[0] | P[1]; self.rd = P[0] | P[1]
            elif base in ("v_add_co_u32", "v_sub_co_u32", "v_addc_co_u32", "v_subb_co_u32", "v_subrev_co_u32", "v_mad_u64_u32", "v_div_scale_f32"):
                self.wr = P[0] | P[1]; self.rd = set().union(*P[2:])
            elif base == "v_nop":
                pass
            else:
                self.wr = set(P[0]); self.rd = set().union(*P[1:]) if len(P) > 1 else set()
                if base in ("v_fmac_f32", "v_dot2c_f32_bf16", "v_pk_fmac_f16", "v_writelane_b32", "v_fmac_f16") or self.sdwa or self.dpp or "mixlo" in base or "mixhi" in base:
                    self.rd |= P[0]
                if base == "v_cndmask_b32" and len(ops) == 3: self.rd |= {('s', 'vcc')}
            self.rd |= {('s', 'exec')}
        elif op.startswith("ds_"):
            self.kind = "ds"
            if op.startswith("ds_read") or op.startswith("ds_bpermute") or op.startswith("ds_permute") or op.startswith("ds_swizzle"):
                self.wr = set(P[0]); self.rd = set().union(*P[1:])
            else:
                self.rd = set().union(*P); self.data = set().union(*P[1:])
        elif op.startswith("buffer_") or op.startswith("global_"):
            self.kind = "vmem"
            allm = " " + mods + " "
            if op in ("buffer_wbl2", "buffer_inv"):
                pass
            elif " lds " in allm or "load_lds" in op:
                self.lds_dma = True; self.rd = set().union(*P) | {('s', 'm0')}
            elif "load" in op:
                self.wr = set(P[0]); self.rd = set().union(*P[1:])
                if "d16" in op: self.rd |= P[0]
            elif "store" in op:
                self.rd = set().union(*P)
                self.data = P[0] if op.startswith("buffer_") else P[1]
            elif "atomic" in op:
                if op.startswith("global_") and " sc0 " in allm:
                    self.wr = set(P[0]); self.rd = set().union(*P[1:])
                else:
                    self.rd = set().union(*P)
                    if " sc0 " in allm: self.wr = set(P[0])
            else:
                raise ValueError(op)
        elif op.startswith("s_"):
            self.kind = "salu"
            if op == "s_nop":
                self.nstates = int(ops[0], 0) + 1
            elif op.startswith("s_load") or op.startswith("s_buffer_load") or op in ("s_memtime", "s_memrealtime"):
                self.kind = "smem"; self.wr = set(P[0]); self.rd = set().union(*P[1:]) if len(P) > 1 else set()
            elif op == "s_waitcnt":
                self.kind = "wait"
            elif op.startswith("s_cbranch") or op == "s_branch":
                self.kind = "branch"; self.target = ops[0]
                if "vcc" in op: self.rd = {('s', 'vcc')}
                if "exec" in op: self.rd = {('s', 'exec')}
            elif op in ("s_barrier", "s_endpgm", "s_sleep", "s_setprio", "s_sethalt"):
                pass
            elif op.startswith("s_cmp") or op.startswith("s_bitcmp"):
                self.rd = set().union(*P)
            elif "saveexec" in op:
                self.wr = P[0] | {('s', 'exec')}; self.rd = P[1] | {('s', 'exec')}
            else:
                self.wr = set(P[0]); self.rd = set().union(*P[1:]) if len(P) > 1 else set()
        else:
            raise ValueError("unknown op " + text)

def vregs(S): return {r for r in S if r[0] == 'v'}
def sregs(S): return {r for r in S if r[0] == 's'}

def required_states(p, c):
    need = 0
    is_valu_p = p.kind in ("valu", "trans")
    is_valu_c = c.kind in ("valu", "trans")
    if is_valu_p:
        pw = vregs(p.wr); psw = sregs(p.wr)
        if c.kind == "mfma" and (pw & c.rd): need = max(need, 2)
        if p.kind == "trans" and (is_valu_c or c.kind == "mfma") and (pw & c.rd): need = max(need, 1)
        if is_valu_c:
            if c.op.startswith("v_permlane") and (pw & c.rd): need = max(need, 2)
            if c.dpp and (pw & c.rd): need = max(need, 2)
            if (c.op.startswith("v_readfirstlane") or c.op.startswith("v_readlane")) and (pw & c.rd): need = max(need, 1)
            if p.sdwa and (pw & (c.rd | c.wr)): need = max(need, 1)
            x = psw - {('s', 'exec')}
            if x & c.rd:
                need = max(need, 2)
                if c.op.startswith("v_readlane") or c.op.startswith("v_writelane"): need = max(need, 4)
            if ('s', 'exec') in psw:
                if c.dpp: need = max(need, 5)
                if c.op.startswith("v_read") or c.op.startswith("v_writelane") or c.op.startswith("v_permlane"): need = max(need, 4)
        if p.op.startswith("v_dot"):
            if c.op == p.op:
                if pw & (c.rd - c.wr): need = max(need, 3)
            elif (is_valu_c or c.kind in ("mfma", "vmem", "ds")) and (pw & (c.rd | c.wr)): need = max(need, 3)
        if c.kind == "mfma" and ('s', 'exec') in psw: need = max(need, 4)
        if c.kind in ("vmem",) and (psw & c.rd): need = max(need, 5)
        if c.kind == "branch" and (psw & c.rd): need = max(need, 5)
        if c.kind in ("salu", "smem") and (psw & c.rd): need = max(need, 2)
    if p.kind == "mfma":
        n = p.passes
        tbl_ab = {4: 8, 8: 12}[n]; tbl_c = {4: 6, 8: 10}[n]; war = {4: 3, 8: 7}[n]
        if c.kind == "mfma":
            if p.dst & c.srcab: need = max(need, tbl_ab)
            if p.dst & c.srcc:
                if not (p.dst == c.srcc and p.passes == c.passes): need = max(need, tbl_c)
            elif p.dst & c.dst:
                need = max(need, tbl_c)
        elif is_valu_c:
            if p.dst & (c.rd | c.wr): need = max(need, tbl_ab)
            if p.srcc & c.wr: need = max(need, war)
        elif c.kind in ("vmem", "ds"):
            if p.dst & (c.rd | c.wr): need = max(need, tbl_ab)
            if p.srcc & c.wr: need = max(need, war)
    if p.kind == "vmem" and p.data and len(p.data) >= 3:
        if (is_valu_c or c.kind == "mfma") and (p.data & c.wr): need = max(need, 2)
        elif p.data & c.wr: need = max(need, 1)
    if p.kind == "ds" and p.data and len(p.data) >= 3:
        if (is_valu_c or c.kind == "mfma") and (p.data & c.wr): need = max(need, 2)
    if p.kind == "salu" and ('s', 'm0') in p.wr:
        if c.lds_dma: need = max(need, 1)
    if p.kind == "salu" and ('s', 'exec') in p.wr:
        if c.dpp or c.op.startswith("v_permlane") : need = max(need, 1)
    return need

MAXW = 13

class Asm:
    def __init__(self):
        self.ins = []
        self.uid = 0
    def I(self, text, tag=None):
        for line in text.split("\n"):
            line = line.strip()
            if not line or line.startswith(";"):
                continue
            self.ins.append(Inst(line, tag))
        return self.ins[-1] if self.ins else None
    def L(self, name):
        self.ins.append(Inst(name + ":"))
    def newlabel(self, base):
        self.uid += 1
        return f"L_{base}_{self.uid}"
    def pad_hazards(self, verbose=False):
        total = 0
        while True:
            ins = self.ins
            labels = {x.label: i for i, x in enumerate(ins) if x.is_label}
            fixes = {}
            for i, p in enumerate(ins):
                if p.kind not in ("valu", "trans", "mfma", "vmem", "ds", "salu"): continue
                if p.kind == "salu" and not (('s', 'm0') in p.wr or ('s', 'exec') in p.wr): continue
                if p.kind in ("vmem", "ds") and len(p.data) < 3: continue
                stack = [(i + 1, 0)]
                seen = {}
                while stack:
                    j, d = stack.pop()
                    while j < len(ins) and d < MAXW:
                        if seen.get(j, 99) <= d: break
                        seen[j] = d
                        c = ins[j]
                        if c.nstates:
                            need = required_states(p, c)
                            if need > d:
                                fixes[j] = max(fixes.get(j, 0), need - d)
                            d += c.nstates
                            if c.kind == "branch":
                                if c.target in labels: stack.append((labels[c.target], d))
                                if c.op == "s_branch": break
                            if c.op == "s_endpgm": break
                        j += 1
            if not fixes: break
            js = sorted(fixes)
            apply = []; last = -999
            for j in js:
                if j - last > MAXW + 2:
                    apply.append(j); last = j
            for j in reversed(apply):
                n = fixes[j]
                if verbose: print("pad", n, "before", ins[j].text)
                ins.insert(j, Inst(f"s_nop {n-1}"))
                total += n
        return total
    def text(self):
        out = []
        for x in self.ins:
            out.append(x.text if x.is_label or x.kind == "directive" else "    " + x.text)
        return "\n".join(out) + "\n"

def trace_of(ins, loop_counts=None, taken=None):
    loop_counts = dict(loop_counts or {}); taken = set(taken or ())
    labels = {x.label: i for i, x in enumerate(ins) if x.is_label}
    tr = []; j = 0; left = {}
    steps = 0
    while j < len(ins):
        steps += 1
        assert steps < 5_000_000
        c = ins[j]; tr.append(c)
        if c.op == "s_endpgm": break
        if c.kind == "branch":
            t = labels[c.target]
            if c.op == "s_branch":
                j = t; continue
            if t <= j:
                k = left.get(j, loop_counts.get(c.target, 1))
                if k > 0:
                    left[j] = k - 1; j = t; continue
                left.pop(j, None)
            elif c.target in taken:
                j = t; continue
        j += 1
    return tr

def check_waits(tr, name=""):
    vm = []
    lg = []
    errs = 0
    for c in tr:
        if c.nstates == 0: continue
        if c.kind == "wait":
            m = re.search(r"vmcnt\((\d+)\)", c.text)
            if m:
                n = int(m.group(1))
                while len(vm) > n: vm.pop(0)
            m = re.search(r"lgkmcnt\((\d+)\)", c.text)
            if m:
                n = int(m.group(1))
                if any(x.kind == "smem" for x in lg):
                    if n == 0: lg.clear()
                else:
                    while len(lg) > n: lg.pop(0)
            continue
        touched = c.rd | c.wr
        for q in (vm, lg):
            for x in q:
                if x.wr & touched:
                    if x.kind == c.kind and (x.wr & c.wr) and not (x.wr & c.rd) and x.kind in ("vmem", "ds"):
                        continue
                    print(f"[{name}] WAIT ERROR: '{c.text}' touches {sorted(x.wr & touched)[:4]} pending from '{x.text}'")
                    errs += 1
        if c.kind == "vmem":
            vm.append(c)
            if len(vm) > 63: print(f"[{name}] note: >63 vmem outstanding at '{c.text}'"); vm.pop(0)
        elif c.kind in ("ds", "smem"):
            lg.append(c)
        if errs > 20: break
    return errs

class VmTracker:
    def __init__(self, asm):
        self.asm = asm; self.q = []
    def issue(self, text, tag=None):
        if len(self.q) >= 60:
            self.asm.I("s_waitcnt vmcnt(48)"); self.q = self.q[-48:]
        self.asm.I(text, tag); self.q.append(tag)
    def wait(self, tag):
        idx = [i for i, t in enumerate(self.q) if t == tag]
        if not idx: return
        n = len(self.q) - 1 - idx[-1]
        self.asm.I(f"s_waitcnt vmcnt({min(n,63)})")
        self.q = self.q[idx[-1] + 1:]
    def wait_all(self):
        self.asm.I("s_waitcnt vmcnt(0)"); self.q = []

KD = """.section .rodata,"a"
.p2align 6
.amdhsa_kernel {name}
  .amdhsa_next_free_vgpr {vgpr}
  .amdhsa_next_free_sgpr {sgpr}
  .amdhsa_accum_offset {acc}
  .amdhsa_group_segment_fixed_size 0
  .amdhsa_kernarg_size 96
  .amdhsa_user_sgpr_count 2
  .amdhsa_user_sgpr_kernarg_segment_ptr 1
  .amdhsa_system_sgpr_workgroup_id_x 1
.end_amdhsa_kernel
"""
def wrap_kernel(name, body, vgpr=512, acc=256, sgpr=102):
    return (f".text\n.globl {name}\n.p2align 8\n.type {name},@function\n{name}:\n" + body +
            KD.format(name=name, vgpr=vgpr, sgpr=sgpr, acc=acc))
```

```python
from asmlib import *
import os
XF = os.environ.get('XF', '')

KVT = 2816
NT = 16
QST_Q = 1536
RED_Q = 3072

class AttRegs:
    def __init__(self, base, kvbase=256):
        b = base
        def take(n, al=1):
            nonlocal b
            b = (b + al - 1) // al * al
            r = b; b += n; return r
        self.S = [take(16, 4), take(16, 4)]
        self.O = [take(16, 4), take(16, 4)]
        self.P = [take(8, 4), take(8, 4)]
        self.Q1 = [take(4, 4), take(4, 4)]
        self.Q2 = [take(2, 2), take(2, 2)]
        self.aQ1 = take(1); self.aQ2 = take(1); self.aR = take(1)
        self.t = take(8, 4)
        self.end = b
        self.kv = kvbase
    def K1(self, t): return self.kv + 12 * t
    def V1(self, t): return self.kv + 12 * t + 4
    def V2(self, t): return self.kv + 12 * t + 8
    def K2(self, t): return self.kv + 192 + 2 * t

def emit_kv_loads(A, vm, r, lane, wave_s, srd, flags="", base_s=None, first=0, last=NT, collect=None):
    t = r.t
    if first == 0:
        A.I(f"s_mul_i32 s60, {s(wave_s)}, {NT*KVT}")
        if base_s is not None: A.I(f"s_add_u32 s60, s60, {s(base_s)}")
        A.I(f"v_lshlrev_b32 {v(t)}, 4, {v(lane)}")
        A.I(f"v_and_b32 {v(t+3)}, 31, {v(lane)}")
        A.I(f"v_lshrrev_b32 {v(t+4)}, 5, {v(lane)}")
        A.I(f"v_lshlrev_b32 {v(t+1)}, 3, {v(t+3)}")
        A.I(f"v_lshl_add_u32 {v(t+1)}, {v(t+4)}, 2, {v(t+1)}")
        A.I(f"v_min_u32 {v(t+3)}, 23, {v(t+3)}")
        A.I(f"v_lshlrev_b32 {v(t+2)}, 4, {v(t+3)}")
        A.I(f"v_mad_u32_u24 {v(t+2)}, {v(t+4)}, s59, {v(t+2)}")
    for k in range(first, last):
        vm.issue(f"buffer_load_dwordx4 {R(r.K1(k),4)}, {v(t)}, {s(srd,4)}, s60 offen {flags}", ("kv", k))
        vm.issue(f"buffer_load_dword {R(r.K2(k))}, {v(t+1)}, {s(srd,4)}, s60 offen offset:1024 {flags}", ("kv", k))
        vm.issue(f"buffer_load_dwordx4 {R(r.V1(k),4)}, {v(t+2)}, {s(srd,4)}, s60 offen offset:1280 {flags}", ("kv", k))
        vm.issue(f"buffer_load_dwordx4 {R(r.V2(k),4)}, {v(t+2)}, {s(srd,4)}, s60 offen offset:2048 {flags}", ("kv", k))
        A.I(f"s_add_u32 s60, s60, {KVT}")

def half_step(A, r, X, kS, kV2, kV1, fill, zeroO=False, doPV2=True):
    Y = 1 - X
    S, P = r.S[X], r.P[X]
    def ex(i):
        A.I(f"v_exp_f32 {v(S+i)}, {v(S+i)}")
        for x in fill.get(i, []): A.I(x)
    def cv(i):
        A.I(f"v_cvt_pk_bf16_f32 {v(P+i)}, {v(S+2*i)}, {v(S+2*i+1)}")
    for x in fill.get('pre0', []): A.I(x)
    A.I(f"v_mfma_f32_32x32x16_bf16 {v(r.S[Y],16)}, {R(r.K1(kS),4)}, {v(r.Q1[Y],4)}, 0")
    for i in range(0, 4): ex(i)
    A.I(f"v_mfma_f32_32x32x8_bf16 {v(r.S[Y],16)}, {R(r.K2(kS),2)}, {v(r.Q2[Y],2)}, {v(r.S[Y],16)}")
    for i in range(4, 8): ex(i)
    cv(0); cv(1)
    if doPV2:
        A.I(f"v_mfma_f32_32x32x16_bf16 {v(r.O[Y],16)}, {R(r.V2(kV2),4)}, {v(r.P[Y]+4,4)}, {v(r.O[Y],16)}")
    cv(2); cv(3)
    for i in range(8, 12): ex(i)
    for x in fill.get('pre3', []): A.I(x)
    A.I(f"v_mfma_f32_32x32x16_bf16 {v(r.O[X],16)}, {R(r.V1(kV1),4)}, {v(P,4)}, {'0' if zeroO else v(r.O[X],16)}")
    for i in range(12, 16): ex(i)
    for i in range(4, 8): cv(i)

def q_reads(r, X):
    return [f"ds_read_b128 {v(r.Q1[X],4)}, {v(r.aQ1)} offset:{X*QST_Q}",
            f"ds_read_b64 {v(r.Q2[X],2)}, {v(r.aQ2)} offset:{X*QST_Q + 1024}"]

def emit_att_main(A, vm, r, lane, wave_s, qst, red, late_loads=None, name="att", kvsrd=None, kvflags="", nfirst=NT):
    A.I(f"s_add_u32 s63, {s(wave_s)}, 1\ns_and_b32 s63, s63, 3")
    A.I(f"s_mul_i32 s61, s63, {2*QST_Q}\ns_add_u32 s61, s61, {qst}")
    A.I(f"v_lshl_add_u32 {v(r.aQ1)}, {v(lane)}, 4, s61")
    A.I(f"v_lshl_add_u32 {v(r.aQ2)}, {v(lane)}, 3, s61")
    for x in q_reads(r, 0) + q_reads(r, 1): A.I(x)
    for k in range(NT):
        A.I(f"v_accvgpr_write_b32 {R(r.K2(k)+1)}, s58" if r.K2(k) >= 256 else f"v_mov_b32 {R(r.K2(k)+1)}, s58")
    def next_q_addr():
        return [f"s_mul_i32 s61, s63, {6*RED_Q}", f"s_add_u32 s61, s61, s57",
                f"v_lshl_add_u32 {v(r.aR)}, {v(lane)}, 4, s61",
                f"s_add_u32 s57, s57, {2*RED_Q}",
                f"s_add_u32 s63, s63, 1", f"s_and_b32 s63, s63, 3",
                f"s_mul_i32 s61, s63, {2*QST_Q}", f"s_add_u32 s61, s61, {qst}",
                f"v_lshl_add_u32 {v(r.aQ1)}, {v(lane)}, 4, s61",
                f"v_lshl_add_u32 {v(r.aQ2)}, {v(lane)}, 3, s61"]
    A.I(f"s_mov_b32 s57, {red}")
    vm.wait(("kv", 0))
    if late_loads: late_loads()
    A.I("s_waitcnt lgkmcnt(0)")
    A.I(f"v_mfma_f32_32x32x16_bf16 {v(r.S[0],16)}, {R(r.K1(0),4)}, {v(r.Q1[0],4)}, 0")
    A.I(f"v_mfma_f32_32x32x8_bf16 {v(r.S[0],16)}, {R(r.K2(0),2)}, {v(r.Q2[0],2)}, {v(r.S[0],16)}")
    def sends(X):
        return [f"ds_write_b128 {v(r.aR)}, {v(r.O[X]+4*i,4)} offset:{X*RED_Q + i*1024}" for i in range(3)]
    def one_pass(first):
        for t in range(NT):
            fa = {}; fb = {}
            if t == 0 and not first:
                w = sends(0); fa[5] = [w[0]]; fa[7] = [w[1]]; fa[9] = [w[2]]
                w = sends(1); fb[1] = [w[0]]; fb[5] = [w[1]]; fb[9] = [w[2]]
                fa['pre0'] = ["s_waitcnt lgkmcnt(0)"]
            if t == NT - 1:
                n = next_q_addr()
                fa[0] = n[0:3]; fa[1] = n[3:6]; fa[2] = n[6:10]
                q = q_reads(r, 0); fa[3] = [q[0]]; fa[4] = [q[1]]
                q = q_reads(r, 1); fa[6] = [q[0]]; fa[8] = [q[1]]
                fb['pre0'] = ["s_waitcnt lgkmcnt(2)"]
            if first and t + nfirst < NT:
                A2 = Asm(); vm.asm, keep = A2, vm.asm
                emit_kv_loads(A2, vm, r, lane, wave_s, kvsrd, flags=kvflags, first=t + nfirst, last=t + nfirst + 1); vm.asm = keep
                x = [y.text for y in A2.ins]
                fa[1] = [x[0]]; fa[5] = [x[1]]; fa[9] = [x[2]]; fa[13] = x[3:]
            half_step(A, r, 0, t, (t - 1) % NT, t, fa, zeroO=(t == 0), doPV2=not (first and t == 0))
            if first and t + 1 < NT:
                A2 = Asm(); vm.asm, keep = A2, vm.asm
                vm.wait(("kv", t + 1)); vm.asm = keep
                fb['pre0'] = fb.get('pre0', []) + [x.text for x in A2.ins]
            half_step(A, r, 1, (t + 1) % NT, t, t, fb, zeroO=(t == 0))
    A.I("s_nop 7\ns_nop 2")
    one_pass(True)
    lab = A.newlabel(name)
    A.I(f"s_mov_b32 s62, 3")
    A.I(".p2align 6")
    A.L(lab)
    one_pass(False)
    A.I("s_sub_u32 s62, s62, 1")
    A.I("s_cmp_lg_u32 s62, 0")
    A.I(f"s_cbranch_scc1 {lab}")
    A.I(f"v_mfma_f32_32x32x16_bf16 {v(r.O[1],16)}, {R(r.V2(NT-1),4)}, {v(r.P[1]+4,4)}, {v(r.O[1],16)}")
    return lab

def emit_att_reduce(A, r, lane, wave_s, red):
    A.I("s_waitcnt lgkmcnt(0)")
    A.I("s_barrier")
    A.I(f"s_mul_i32 s61, {s(wave_s)}, {6*RED_Q}\ns_add_u32 s61, s61, {red}")
    A.I(f"v_lshl_add_u32 {v(r.aR)}, {v(lane)}, 4, s61")
    st = r.S[0]
    assert r.S[1] == r.S[0] + 16
    stage = [st, st + 12, r.P[0]]
    for X in range(2):
        for p in range(3):
            for i in range(3):
                A.I(f"ds_read_b128 {v(stage[p]+4*i,4)}, {v(r.aR)} offset:{p*2*RED_Q + X*RED_Q + i*1024}")
        for p in range(3):
            A.I(f"s_waitcnt lgkmcnt({6-3*p})")
            for i in range(0, 12, 2):
                A.I(f"v_pk_add_f32 {v(r.O[X]+i,2)}, {v(r.O[X]+i,2)}, {v(stage[p]+i,2)}")

def emit_att_finish(A, r, lane, osrd, ooff_v, ooff2_v, stflags="", vm=None):
    t = r.t
    for X in range(2):
        O = r.O[X]
        A.I(f"v_mov_b32 {v(t)}, {v(O+8)}")
        A.I(f"v_mov_b32 {v(t+1)}, {v(O+8)}")
        A.I(f"v_permlane32_swap_b32 {v(t)}, {v(t+1)}")
        A.I(f"v_rcp_f32 {v(t+1)}, {v(t+1)}")
        for i in range(12):
            A.I(f"v_mul_f32 {v(O+i)}, {v(O+i)}, {v(t+1)}")
        for i in range(6):
            A.I(f"v_cvt_pk_bf16_f32 {v(r.P[X]+i)}, {v(O+2*i)}, {v(O+2*i+1)}")
        A.I(f"s_mov_b32 s61, {X*2*20480}")
        st = (vm.issue if vm else A.I)
        st(f"buffer_store_dwordx4 {v(r.P[X],4)}, {v(ooff_v)}, {s(osrd,4)}, s61 offen {stflags}")
        A.I(f"s_mov_b64 exec, 0xffffffff")
        st(f"buffer_store_dwordx2 {v(r.P[X]+4,2)}, {v(ooff2_v)}, {s(osrd,4)}, s61 offen {stflags}")
        A.I(f"s_mov_b64 exec, -1")
```

```python
import numpy as np
T, D, F, H, DH = 2048, 640, 1728, 32, 20
KB = 1024
_off = 0
def _alloc(n, al=4096):
    global _off
    _off = (_off + al - 1) // al * al
    r = _off; _off += n; return r
EPOCH = _alloc(4096)
WQF = _alloc(800 * KB)
WKVF = _alloc(80 * KB)
WOF = _alloc(800 * KB)
W2F = _alloc(2240 * KB)
W1F = _alloc(2240 * KB)
CSQ = _alloc(8 * 5 * 16 * 4)
CSKV = _alloc(2 * 2 * 16 * 4)
CS1 = _alloc(16 * 7 * 16 * 4)
XTS = 20 * KB
HTS = 56 * KB
KVT = 2816
PROF = _alloc(256 * 4 * 128)
LBASE = _alloc(0)
XIN = _alloc(128 * XTS)
STATIN = _alloc(32 * 8 * 64 * 8)
KVB = _alloc(64 * KVT)
OFB = _alloc(128 * XTS)
XMID = _alloc(128 * XTS)
STATMID = _alloc(32 * 8 * 64 * 8)
HFB = _alloc(128 * HTS)
FL_KV = _alloc(4096); FL_O = _alloc(4096); FL_X1 = _alloc(4096); FL_H = _alloc(4096); FL_XIN = _alloc(4096)
LS = _alloc(0) - LBASE
WS_USED = LBASE + 2 * LS
XF = [XIN, XMID, XIN + LS, XMID + LS]
STAT = [STATIN, STATMID, STATIN + LS, STATMID + LS]
OF = [OFB, OFB + LS]; HF = [HFB, HFB + LS]; KV = [KVB, KVB + LS]

def realtile(sl, t):
    if sl < 12: return 7 * sl + t
    return 84 + 6 * (sl - 12) + t if t < 6 else -1

def xk(w, s, u):
    if s < 2: return 160 * w + 16 * (2 * s + u)
    if s == 2: return 160 * w + 80 * u + 64
    return 160 * w + 80 + 16 * (2 * (s - 3) + u)

def ok_row(w, s, u, g):
    if s < 2: return 20 * (8 * w + 2 * s + (g >> 1)) + 8 * u + 4 * (g & 1)
    if s == 2: return 20 * (4 * (2 * w + u) + g) + 16
    return 20 * (8 * w + 4 + 2 * (s - 3) + (g >> 1)) + 8 * u + 4 * (g & 1)

def hk_tile(w, s, u):
    q = 2 * w + (1 if s >= 7 else 0); sp = s % 7
    if sp < 3: return realtile(2 * q, 2 * sp + u)
    if sp == 3: return realtile(2 * q + u, 6)
    return realtile(2 * q + 1, 2 * (sp - 4) + u)

def bf16_round(x):
    x = np.ascontiguousarray(x, dtype=np.float32)
    u = x.view(np.uint32)
    return ((u + 0x7FFF + ((u >> 16) & 1)) >> 16).astype(np.uint16)
def bf16_to_f32(u):
    return (np.asarray(u).astype(np.uint32) << 16).view(np.float32)

def frag(W, rows, cols):
    out = np.zeros((64, 8), dtype=np.uint16)
    for l in range(64):
        rho, g = l & 15, l >> 4
        if cols[rho] < 0: continue
        for u in range(2):
            if rows[u][g] < 0: continue
            out[l, 4*u:4*u+4] = W[rows[u][g]:rows[u][g] + 4, cols[rho]]
    return out

def q_cols(j, ft): return [20 * (4 * j + (r >> 2)) + 4 * ft + (r & 3) for r in range(16)]
def k_cols(ft):
    o = []
    for r in range(16):
        ga, rr = r >> 2, r & 3
        if ga < 2: o.append(8 * ga + 4 * ft + rr)
        elif ga == 2 and ft == 0: o.append(16 + rr)
        else: o.append(-1)
    return o
def v_cols(ft): return [r if ft == 0 else (16 + r if r < 4 else -1) for r in range(16)]
def f_cols(jp, ft):
    rt = realtile(jp, ft)
    return [16 * rt + r if rt >= 0 else -1 for r in range(16)]

def exp_wqf(wq):
    o = np.zeros((8, 4, 5, 5, 64, 8), dtype=np.uint16)
    for j in range(8):
        for w in range(4):
            for s in range(5):
                rows = [[xk(w, s, u) + 4 * g for g in range(4)] for u in range(2)]
                for ft in range(5): o[j, w, s, ft] = frag(wq, rows, q_cols(j, ft))
    return o
def exp_wkvf(wk, wv):
    o = np.zeros((2, 4, 5, 2, 64, 8), dtype=np.uint16)
    for w in range(4):
        for s in range(5):
            rows = [[xk(w, s, u) + 4 * g for g in range(4)] for u in range(2)]
            for ft in range(2):
                o[0, w, s, ft] = frag(wk, rows, k_cols(ft)); o[1, w, s, ft] = frag(wv, rows, v_cols(ft))
    return o
def exp_wof(wo):
    o = np.zeros((8, 4, 5, 5, 64, 8), dtype=np.uint16)
    for j in range(8):
        for w in range(4):
            for s in range(5):
                rows = [[ok_row(w, s, u, g) for g in range(4)] for u in range(2)]
                for ft in range(5): o[j, w, s, ft] = frag(wo, rows, [80 * j + 16 * ft + r for r in range(16)])
    return o
def exp_w2f(w2):
    o = np.zeros((8, 4, 14, 5, 64, 8), dtype=np.uint16)
    for j in range(8):
        for w in range(4):
            for s in range(14):
                rows = [[(16 * hk_tile(w, s, u) + 4 * g) if hk_tile(w, s, u) >= 0 else -1 for g in range(4)] for u in range(2)]
                for ft in range(5): o[j, w, s, ft] = frag(w2, rows, [80 * j + 16 * ft + r for r in range(16)])
    return o
def exp_w1f(w1):
    o = np.zeros((16, 4, 5, 7, 64, 8), dtype=np.uint16)
    for jp in range(16):
        for w in range(4):
            for s in range(5):
                rows = [[xk(w, s, u) + 4 * g for g in range(4)] for u in range(2)]
                for ft in range(7): o[jp, w, s, ft] = frag(w1, rows, f_cols(jp, ft))
    return o

def x_index():
    idx = np.zeros((T, D), dtype=np.int64)
    tok = np.arange(T); base = (tok >> 4) * XTS; t16 = tok & 15
    for f in range(D):
        j, rem = divmod(f, 80); ft, rr = divmod(rem, 16); g, r = divmod(rr, 4)
        m = j >> 1
        if ft < 4:
            off = base + (5 * m + (3 if j & 1 else 0) + (ft >> 1)) * 1024 + (g * 16 + t16) * 16 + ((ft & 1) * 4 + r) * 2
        else:
            off = base + (5 * m + 2) * 1024 + (j & 1) * 512 + (g * 16 + t16) * 8 + r * 2
        idx[:, f] = off // 2
    return idx
def o_index():
    idx = np.zeros((T, D), dtype=np.int64)
    tok = np.arange(T); tt = tok >> 4; t16 = tok & 15
    for head in range(32):
        j = head >> 2; hh = head & 3; m = j >> 1
        for dh in range(20):
            if dh < 16:
                jj = dh >> 3; h = (dh >> 2) & 1; i = dh & 3
                off = tt*XTS + (5*m + (3 if j & 1 else 0) + (hh >> 1))*1024 + ((2*(hh & 1) + h)*16 + t16)*16 + (jj*4 + i)*2
            else:
                off = tt*XTS + (5*m + 2)*1024 + (j & 1)*512 + (hh*16 + t16)*8 + (dh - 16)*2
            idx[:, head*20 + dh] = off // 2
    return idx
def h_index():
    idx = np.zeros((T, F), dtype=np.int64)
    tok = np.arange(T); base = (tok >> 4) * HTS; t16 = tok & 15
    for sl in range(16):
        q = sl >> 1
        for t in range(7):
            rt = realtile(sl, t)
            if rt < 0: continue
            for rr in range(16):
                g, r = divmod(rr, 4)
                if t < 6:
                    off = base + (7 * q + (4 if sl & 1 else 0) + (t >> 1)) * 1024 + (g * 16 + t16) * 16 + ((t & 1) * 4 + r) * 2
                else:
                    off = base + (7 * q + 3) * 1024 + (sl & 1) * 512 + (g * 16 + t16) * 8 + r * 2
                idx[:, 16 * rt + rr] = off // 2
    return idx
def kv_decode(img):
    K = np.zeros((T, 20), dtype=np.uint16); V = np.zeros((T, 21), dtype=np.uint16)
    for t in range(64):
        for key in range(32):
            for h in range(2):
                l = h * 32 + key
                K[32*t+key, 8*h:8*h+8] = img[t, l*8:l*8+8]
                K[32*t+key, 16+2*h:18+2*h] = img[t, 512 + key*4 + h*2: 512 + key*4 + h*2 + 2]
        for mf in range(2):
            for h in range(2):
                for dh in range(21):
                    base = 640 + mf*384 + h*192 + dh*8
                    for sl in range(8):
                        V[32*t + 16*mf + 8*(sl >> 2) + 4*h + (sl & 3), dh] = img[t, base + sl]
    return K, V
if __name__ == "__main__":
    print("ws used", WS_USED)
```

```python
from asmlib import *
import layout as L

BIG = 0x40000000
PREP_WGS = 569

def srd(A, d, ptr, size):
    A.I(f"s_mov_b32 {s(d)}, {s(ptr)}\ns_mov_b32 {s(d+1)}, {s(ptr+1)}\ns_mov_b32 {s(d+2)}, {size}\ns_mov_b32 {s(d+3)}, 0x20000")

HI = 64
def gather(A, dst, a0, a1, src, pitch2_s, pitch, imm=0):
    for u, ad in enumerate((a0, a1)):
        for r in range(4):
            so = s(pitch2_s) if r >= 2 else "0"
            off = imm + (pitch if r & 1 else 0)
            assert off < 4096
            A.I(f"buffer_load_ushort {v(dst + 2*u + (r >> 1) + (HI if r & 1 else 0))}, {v(ad)}, {s(src,4)}, {so} offen offset:{off}")
def pack(A, dst, n):
    for i in range(n): A.I(f"v_lshl_or_b32 {v(dst+i)}, {v(dst+i+HI)}, 16, {v(dst+i)}")

def emit_xk(A, w, sidx, base, du):
    A.I(f"s_mul_i32 {s(base)}, {s(w)}, 160")
    A.I(f"s_lshl_b32 {s(du)}, {s(sidx)}, 5")
    A.I(f"s_add_u32 {s(base)}, {s(base)}, {s(du)}")
    A.I(f"s_cmp_gt_u32 {s(sidx)}, 2")
    A.I(f"s_cselect_b32 {s(du)}, 16, 0")
    A.I(f"s_sub_u32 {s(base)}, {s(base)}, {s(du)}")
    A.I(f"s_cmp_eq_u32 {s(sidx)}, 2")
    A.I(f"s_cselect_b32 {s(du)}, 80, 16")

def emit_realtile(A, sl, t, out, inv, tmp):
    A.I(f"s_mul_i32 {s(out)}, {s(sl)}, 7")
    A.I(f"s_mul_i32 {s(tmp)}, {s(sl)}, 6")
    A.I(f"s_add_u32 {s(tmp)}, {s(tmp)}, 12")
    A.I(f"s_cmp_lt_u32 {s(sl)}, 12")
    A.I(f"s_cselect_b32 {s(out)}, {s(out)}, {s(tmp)}")
    A.I(f"s_cselect_b32 {s(tmp)}, 7, 6")
    A.I(f"s_add_u32 {s(out)}, {s(out)}, {s(t)}")
    A.I(f"s_cmp_lt_u32 {s(t)}, {s(tmp)}")
    A.I(f"s_cselect_b32 {s(inv)}, 0, {BIG}")

def build_prep():
    A = Asm()
    A.I("""
    s_load_dwordx8 s[36:43], s[0:1], 0
    s_load_dwordx2 s[44:45], s[0:1], 32       ; wo
    s_load_dwordx2 s[46:47], s[0:1], 48       ; w1
    s_load_dwordx2 s[48:49], s[0:1], 64       ; w2
    s_load_dwordx2 s[50:51], s[0:1], 88       ; ws
    v_lshrrev_b32 v2, 6, v0
    v_and_b32 v0, 63, v0
    v_readfirstlane_b32 s20, v2
    v_lshlrev_b32 v1, 4, v0                   ; lane*16
    v_and_b32 v3, 15, v0                      ; rho
    v_lshrrev_b32 v4, 4, v0                   ; g
    s_lshl_b32 s21, s2, 2
    s_add_u32 s21, s21, s20                   ; unit
    s_waitcnt lgkmcnt(0)
    """)
    srd(A, 4, 50, L.WS_USED)
    srd(A, 16, 38, 640 * 640 * 2)
    END = "L_prep_end"
    def store_frags(n, dst_s, first=8):
        A.I("s_waitcnt vmcnt(0)")
        pack(A, first, 4 * n)
        for ft in range(n):
            if ft and ft % 4 == 0: A.I(f"s_add_u32 {s(dst_s)}, {s(dst_s)}, 4096")
            A.I(f"buffer_store_dwordx4 {v(first+4*ft,4)}, v1, s[4:7], {s(dst_s)} offen offset:{(ft%4)*1024}")
        A.I(f"s_branch {END}")
    def rows_addr(pitch, base, du, colv, inv0=None, inv1=None, lanepart=None):
        if lanepart is None:
            A.I("v_lshlrev_b32 v7, 2, v4"); lanepart = 7
        A.I(f"v_add_u32 v5, {s(base)}, {v(lanepart)}")
        A.I(f"s_mov_b32 s33, {pitch}")
        A.I(f"v_mul_lo_u32 v5, v5, s33")
        A.I(f"v_add_u32 v5, v5, {v(colv)}")
        A.I(f"s_mul_i32 s33, {s(du)}, {pitch}")
        A.I(f"v_add_u32 v6, s33, v5")
        if inv0 is not None: A.I(f"v_add_u32 v5, {s(inv0)}, v5")
        if inv1 is not None: A.I(f"v_add_u32 v6, {s(inv1)}, v6")
        A.I(f"s_mov_b32 s34, {2*pitch}")
    def dec3(sub, sh_hi, sbits, smax):
        A.I(f"s_sub_u32 s22, s21, {sub}")
        A.I(f"s_lshr_b32 s23, s22, {sh_hi}")
        A.I(f"s_lshr_b32 s24, s22, {sbits}\ns_and_b32 s24, s24, 3")
        A.I(f"s_and_b32 s25, s22, {(1 << sbits) - 1}")
        A.I(f"s_cmp_ge_u32 s25, {smax}")
        A.I(f"s_cbranch_scc1 {END}")
    for lim, lab in ((256, "wq"), (512, "wo"), (1024, "w2"), (1536, "w1"), (2048, "x"), (2080, "wkv"), (2144, "csq"), (2272, "cs1"), (2276, "cskv")):
        A.I(f"s_cmp_lt_u32 s21, {lim}\ns_cbranch_scc1 L_prep_{lab}")
    A.I(f"s_branch {END}")
    A.L("L_prep_wq")
    dec3(0, 5, 3, 5)
    srd(A, 16, 38, 640 * 640 * 2)
    emit_xk(A, 24, 25, 26, 27)
    A.I("""v_lshrrev_b32 v40, 2, v3
    v_mul_u32_u24 v40, 20, v40
    v_and_b32 v41, 3, v3
    v_add_u32 v40, v40, v41
    s_mul_i32 s28, s23, 80
    v_add_u32 v40, s28, v40
    v_lshlrev_b32 v40, 1, v40""")
    rows_addr(1280, 26, 27, 40)
    for ft in range(5): gather(A, 8 + 4 * ft, 5, 6, 16, 34, 1280, imm=8 * ft)
    A.I(f"s_lshl_b32 s29, s23, 2\ns_add_u32 s29, s29, s24\ns_mul_i32 s29, s29, 5\ns_add_u32 s29, s29, s25\ns_mul_i32 s29, s29, 5120\ns_add_u32 s29, s29, {L.WQF}")
    store_frags(5, 29)
    A.L("L_prep_wo")
    dec3(256, 5, 3, 5)
    srd(A, 16, 44, 640 * 640 * 2)
    A.I("""s_mul_i32 s26, s24, 160
    s_mul_i32 s27, s25, 40
    s_cmp_gt_u32 s25, 2
    s_cselect_b32 s28, 40, 0
    s_sub_u32 s27, s27, s28
    s_cmp_eq_u32 s25, 2
    s_cselect_b32 s27, 16, s27
    s_add_u32 s26, s26, s27
    s_cmp_eq_u32 s25, 2
    s_cselect_b32 s27, 80, 8
    s_cselect_b64 s[30:31], -1, 0
    v_lshrrev_b32 v42, 1, v4
    v_mul_u32_u24 v42, 20, v42
    v_and_b32 v43, 1, v4
    v_lshl_add_u32 v42, v43, 2, v42
    v_mul_u32_u24 v43, 20, v4
    v_cndmask_b32 v42, v42, v43, s[30:31]
    s_mul_i32 s28, s23, 80
    v_add_u32 v40, s28, v3
    v_lshlrev_b32 v40, 1, v40""")
    rows_addr(1280, 26, 27, 40, lanepart=42)
    for ft in range(5): gather(A, 8 + 4 * ft, 5, 6, 16, 34, 1280, imm=32 * ft)
    A.I(f"s_lshl_b32 s29, s23, 2\ns_add_u32 s29, s29, s24\ns_mul_i32 s29, s29, 5\ns_add_u32 s29, s29, s25\ns_mul_i32 s29, s29, 5120\ns_add_u32 s29, s29, {L.WOF}")
    store_frags(5, 29)
    A.L("L_prep_w2")
    dec3(512, 6, 4, 14)
    srd(A, 16, 48, 1728 * 640 * 2)
    A.I("""s_cmp_ge_u32 s25, 7
    s_cselect_b32 s26, 1, 0
    s_cselect_b32 s27, 7, 0
    s_sub_u32 s27, s25, s27            ; sp
    s_lshl_b32 s28, s24, 1
    s_add_u32 s26, s26, s28            ; q
    s_lshl_b32 s26, s26, 1             ; 2q""")
    for u in range(2):
        A.I(f"""s_cmp_gt_u32 s27, 3
        s_cselect_b32 s52, 1, 0
        s_cselect_b32 s53, 4, 0
        s_sub_u32 s53, s27, s53
        s_lshl_b32 s53, s53, 1
        s_add_u32 s53, s53, {u}
        s_cmp_eq_u32 s27, 3
        s_cselect_b32 s52, {u}, s52
        s_cselect_b32 s53, 6, s53
        s_add_u32 s52, s52, s26""")
        emit_realtile(A, 52, 53, 54 + u, 56 + u, 58)
    A.I("""s_lshl_b32 s54, s54, 4
    s_lshl_b32 s55, s55, 4
    s_sub_u32 s55, s55, s54
    s_mul_i32 s28, s23, 80
    v_add_u32 v40, s28, v3
    v_lshlrev_b32 v40, 1, v40""")
    rows_addr(1280, 54, 55, 40, inv0=56, inv1=57)
    for ft in range(5): gather(A, 8 + 4 * ft, 5, 6, 16, 34, 1280, imm=32 * ft)
    A.I(f"s_lshl_b32 s29, s23, 2\ns_add_u32 s29, s29, s24\ns_mul_i32 s29, s29, 14\ns_add_u32 s29, s29, s25\ns_mul_i32 s29, s29, 5120\ns_add_u32 s29, s29, {L.W2F}")
    store_frags(5, 29)
    A.L("L_prep_w1")
    dec3(1024, 5, 3, 5)
    srd(A, 16, 46, 640 * 1728 * 2)
    emit_xk(A, 24, 25, 26, 27)
    A.I("s_mov_b32 s53, 0")
    emit_realtile(A, 23, 53, 54, 56, 58)
    A.I("s_mov_b32 s53, 6")
    emit_realtile(A, 23, 53, 55, 57, 58)
    A.I("s_lshl_b32 s54, s54, 4\nv_add_u32 v40, s54, v3\nv_lshlrev_b32 v40, 1, v40")
    rows_addr(3456, 26, 27, 40)
    for ft in range(6): gather(A, 8 + 4 * ft, 5, 6, 16, 34, 3456, imm=32 * ft)
    A.I("v_add_u32 v44, s57, v5\nv_add_u32 v45, s57, v6")
    gather(A, 8 + 24, 44, 45, 16, 34, 3456, imm=32 * 6)
    A.I(f"s_lshl_b32 s29, s23, 2\ns_add_u32 s29, s29, s24\ns_mul_i32 s29, s29, 5\ns_add_u32 s29, s29, s25\ns_mul_i32 s29, s29, 7168\ns_add_u32 s29, s29, {L.W1F}")
    store_frags(7, 29)
    def kv_cols():
        A.I(f"""v_lshrrev_b32 v42, 2, v3
        v_and_b32 v43, 3, v3
        v_lshl_add_u32 v46, v42, 3, v43
        v_add_u32 v47, 4, v46
        v_lshlrev_b32 v46, 1, v46
        v_lshlrev_b32 v47, 1, v47
        v_mov_b32 v50, {BIG}
        v_cmp_lt_u32 vcc, 2, v42
        v_cndmask_b32 v46, v46, v50, vcc
        v_cmp_lt_u32 vcc, 1, v42
        v_cndmask_b32 v47, v47, v50, vcc
        v_lshlrev_b32 v48, 1, v3
        v_add_u32 v49, 32, v48
        v_cmp_lt_u32 vcc, 3, v3
        v_cndmask_b32 v49, v49, v50, vcc""")
    A.L("L_prep_wkv")
    dec3(2048, 5, 3, 5)
    emit_xk(A, 24, 25, 26, 27)
    kv_cols()
    for mat in range(2):
        srd(A, 16, 40 + 2 * mat, 640 * 20 * 2)
        for ft in range(2):
            rows_addr(40, 26, 27, 46 + 2 * mat + ft)
            gather(A, 8 + 8 * mat + 4 * ft, 5, 6, 16, 34, 40)
    A.I(f"s_mul_i32 s29, s24, 5\ns_add_u32 s29, s29, s25\ns_lshl_b32 s29, s29, 11\ns_add_u32 s29, s29, {L.WKVF}")
    A.I("s_waitcnt vmcnt(0)")
    pack(A, 8, 16)
    for mat in range(2):
        for ft in range(2):
            A.I(f"buffer_store_dwordx4 {v(8+8*mat+4*ft,4)}, v1, s[4:7], s29 offen offset:{ft*1024}")
        A.I(f"s_add_u32 s29, s29, {40*1024}")
    A.I(f"s_branch {END}")
    A.L("L_prep_x")
    srd(A, 16, 36, 2048 * 640 * 2)
    A.I("""s_sub_u32 s22, s21, 1536
    s_lshr_b32 s23, s22, 2             ; tt
    s_and_b32 s24, s22, 3              ; m
    s_lshl_b32 s25, s23, 4
    v_add_u32 v5, s25, v3              ; token
    s_movk_i32 s33, 1280
    v_mul_lo_u32 v5, v5, s33
    v_lshl_add_u32 v5, v4, 3, v5       ; + 4g*2
    s_mul_i32 s26, s24, 320""")
    for e in range(2):
        for ft in range(5):
            A.I(f"buffer_load_dwordx2 {v(8+12*e+2*ft,2)}, v5, s[16:19], s26 offen offset:{e*160+ft*32}")
    A.I(f"s_mul_i32 s29, s23, {L.XTS}\ns_mul_i32 s27, s24, 5120\ns_add_u32 s29, s29, s27\ns_add_u32 s29, s29, {L.XF[0]}")
    A.I("v_lshlrev_b32 v2, 3, v0\ns_add_u32 s28, s29, 3072")
    A.I("s_waitcnt vmcnt(0)")
    for e in range(2):
        b = 8 + 12 * e; so = "s28" if e else "s29"
        A.I(f"buffer_store_dwordx4 {v(b,4)}, v1, s[4:7], {so} offen")
        A.I(f"buffer_store_dwordx4 {v(b+4,4)}, v1, s[4:7], {so} offen offset:1024")
        A.I(f"buffer_store_dwordx2 {v(b+8,2)}, v2, s[4:7], s29 offen offset:{2048+512*e}")
    A.I(f"""s_lshr_b32 s25, s23, 2
    s_lshl_b32 s25, s25, 3
    s_lshl_b32 s27, s24, 1
    s_add_u32 s25, s25, s27            ; i*8 + 2m
    s_lshl_b32 s25, s25, 9
    s_and_b32 s27, s23, 3
    s_lshl_b32 s27, s27, 7
    s_add_u32 s25, s25, s27
    s_add_u32 s25, s25, {L.STAT[0]}""")
    for e in range(2):
        b = 8 + 12 * e
        emit_stats_packed(A, b, 10, 40, 44)
        A.I("s_mov_b64 exec, 0xffff")
        A.I(f"buffer_store_dwordx2 v[40:41], v2, s[4:7], s25 offen offset:{512*e}")
        A.I("s_mov_b64 exec, -1")
    A.I(f"s_branch {END}")
    def colsum(pitch, colv, dst_s):
        A.I("v_lshlrev_b32 v7, 3, v4\ns_mov_b32 s26, 0\ns_mov_b32 s27, 4")
        rows_addr(pitch, 26, 27, colv, lanepart=7)
        A.I("v_mov_b32 v116, 0x3f803f80\nv_mov_b32 v117, 0x3f803f80\nv_mov_b32 v118, 0x3f803f80\nv_mov_b32 v119, 0x3f803f80")
        for half in range(4):
            for k in range(5):
                gather(A, 8 + 4 * k, 5, 6, 16, 34, pitch)
                A.I(f"v_add_u32 v5, {32*pitch}, v5\nv_add_u32 v6, {32*pitch}, v6")
            A.I("s_waitcnt vmcnt(0)")
            pack(A, 8, 20)
            for k in range(5):
                A.I(f"v_mfma_f32_16x16x32_bf16 v[112:115], {v(8+4*k,4)}, v[116:119], {'0' if half == 0 and k == 0 else 'v[112:115]'}")
        A.I("v_lshlrev_b32 v7, 4, v4")
        A.I("s_mov_b32 s30, 0x00010001\ns_mov_b32 s31, 0x00010001\ns_mov_b64 exec, s[30:31]")
        A.I(f"buffer_store_dwordx4 v[112:115], v7, s[4:7], {s(dst_s)} offen")
        A.I(f"s_branch {END}")
    A.L("L_prep_csq")
    srd(A, 16, 38, 640 * 640 * 2)
    A.I(f"""s_sub_u32 s22, s21, 2080
    s_lshr_b32 s23, s22, 3
    s_and_b32 s25, s22, 7
    s_cmp_ge_u32 s25, 5
    s_cbranch_scc1 {END}
    v_lshrrev_b32 v40, 2, v3
    v_mul_u32_u24 v40, 20, v40
    v_and_b32 v41, 3, v3
    v_add_u32 v40, v40, v41
    s_mul_i32 s28, s23, 80
    s_lshl_b32 s29, s25, 2
    s_add_u32 s28, s28, s29
    v_add_u32 v40, s28, v40
    v_lshlrev_b32 v40, 1, v40
    s_mul_i32 s29, s23, 5
    s_add_u32 s29, s29, s25
    s_lshl_b32 s29, s29, 6
    s_add_u32 s29, s29, {L.CSQ}""")
    colsum(1280, 40, 29)
    A.L("L_prep_cs1")
    srd(A, 16, 46, 640 * 1728 * 2)
    A.I(f"""s_sub_u32 s22, s21, 2144
    s_lshr_b32 s23, s22, 3
    s_and_b32 s25, s22, 7
    s_cmp_ge_u32 s25, 7
    s_cbranch_scc1 {END}""")
    emit_realtile(A, 23, 25, 54, 56, 58)
    A.I(f"""s_lshl_b32 s54, s54, 4
    v_add_u32 v40, s54, v3
    v_lshlrev_b32 v40, 1, v40
    v_add_u32 v40, s56, v40
    s_mul_i32 s29, s23, 7
    s_add_u32 s29, s29, s25
    s_lshl_b32 s29, s29, 6
    s_add_u32 s29, s29, {L.CS1}""")
    colsum(3456, 40, 29)
    A.L("L_prep_cskv")
    kv_cols()
    A.I(f"""s_sub_u32 s22, s21, 2272
    s_cmp_ge_u32 s22, 2
    s_cselect_b32 s16, s42, s40
    s_cselect_b32 s17, s43, s41
    s_mov_b32 s18, {640*20*2}
    s_mov_b32 s19, 0x20000
    s_cselect_b64 s[30:31], -1, 0
    v_cndmask_b32 v46, v46, v48, s[30:31]
    v_cndmask_b32 v47, v47, v49, s[30:31]
    s_bitcmp1_b32 s22, 0
    s_cselect_b64 s[30:31], -1, 0
    v_cndmask_b32 v40, v46, v47, s[30:31]
    s_lshl_b32 s29, s22, 6
    s_add_u32 s29, s29, {L.CSKV}""")
    colsum(40, 40, 29)
    A.L(END)
    A.I("s_endpgm")
    A.pad_hazards()
    return A.text()

def emit_stats_packed(A, b, n, out, tmp):
    A.I(f"v_mov_b32 {v(out)}, 0\nv_mov_b32 {v(out+1)}, 0\nv_mov_b32 {v(tmp)}, 0x3f803f80")
    for i in range(n):
        A.I(f"v_dot2c_f32_bf16 {v(out)}, {v(b+i)}, {v(tmp)}")
        A.I(f"v_dot2c_f32_bf16 {v(out+1)}, {v(b+i)}, {v(b+i)}")
    emit_xg_reduce(A, [out, out + 1], tmp)

def emit_xg_reduce(A, regs, tmp):
    for op in ("v_permlane16_swap_b32", "v_permlane32_swap_b32"):
        for i, r in enumerate(regs): A.I(f"v_mov_b32 {v(tmp+i)}, {v(r)}")
        for i, r in enumerate(regs): A.I(f"{op} {v(r)}, {v(tmp+i)}")
        for i, r in enumerate(regs): A.I(f"v_add_f32 {v(r)}, {v(r)}, {v(tmp+i)}")

if __name__ == "__main__":
    t = build_prep()
    print(len(t.splitlines()), "lines")
```

```python
from asmlib import *
import layout as L
import attn2 as AT
from prep import srd, emit_stats_packed, emit_xg_reduce, emit_realtile, build_prep, PREP_WGS
import math, os

W1_LDS = 0
QST = 71680
RED_A = QST + 8 * AT.QST_Q
RED_K = RED_A
RED_KV = RED_K + 61440
MISC = 157696
LDS_BYTES = 163840

S_WAVE, S_G, S_C, S_I, S_J, S_IP, S_JP, S_EPOCH, S_L = 20, 21, 22, 23, 24, 25, 26, 27, 28
V_LANE, V_L16, V_L8, V_TOK, V_G = 0, 1, 2, 3, 4
XRES = 8
WS = "s[4:7]"

class Cfg:
    st = "sc1"
    ld = "sc1"
    fl = "sc1"
    prof = False
    stop_after = None

class Gen:
    def __init__(self, cfg):
        self.A = Asm(); self.vm = VmTracker(self.A); self.cfg = cfg
        self.nstamp = 0
        self.loops = {}
        self.taken = set()
    def I(self, t): return self.A.I(t)
    def stamp(self):
        if self.cfg.prof:
            self.I(f"s_memtime s[{78}:{79}]\ns_waitcnt lgkmcnt(0)")
            n = self.nstamp; self.nstamp += 1
            assert n < 10
            self.I(f"s_cmp_eq_u32 {s(S_L)}, 0\ns_cselect_b32 s{80+n}, s78, s{80+n}\ns_cselect_b32 s{90+n}, s{90+n}, s78")
    def signal(self, off_s):
        self.I(f"v_mov_b32 v5, {s(S_EPOCH)}\ns_mov_b64 exec, 1")
        self.vm.issue(f"buffer_store_dword v5, off, {WS}, {s(off_s)} {self.cfg.fl}", "flag")
        self.I("s_mov_b64 exec, -1")
    def poll(self, voff, off_s):
        lab = self.A.newlabel("poll"); out = self.A.newlabel("pollx")
        self.I("s_mov_b32 s35, 0")
        self.A.L(lab)
        self.I(f"""buffer_load_dword v5, {v(voff)}, {WS}, {s(off_s)} offen sc1
        s_add_u32 s35, s35, 1
        s_cmp_gt_u32 s35, 0x40000
        s_cbranch_scc1 {out}
        s_waitcnt vmcnt(0)
        v_cmp_ne_u32 vcc, {s(S_EPOCH)}, v5
        s_cbranch_vccnz {lab}""")
        self.A.L(out)
        self.I("s_waitcnt vmcnt(0)")
        self.loops[lab] = 0
        self.vm.q = []
    def flag_x_off(self, base, out):
        self.I(f"""s_lshl_b32 {s(out)}, {s(S_I)}, 2
        s_lshr_b32 s36, {s(S_J)}, 1
        s_add_u32 {s(out)}, {s(out)}, s36
        s_lshl_b32 {s(out)}, {s(out)}, 3
        s_lshl_b32 s36, {s(S_WAVE)}, 1
        s_add_u32 {s(out)}, {s(out)}, s36
        s_and_b32 s36, {s(S_J)}, 1
        s_add_u32 {s(out)}, {s(out)}, s36
        s_lshl_b32 {s(out)}, {s(out)}, 2
        s_add_u32 {s(out)}, {s(out)}, {s(S_L)}
        s_add_u32 {s(out)}, {s(out)}, {base}""")
    def poll_x8(self, base):
        self.I(f"""s_lshl_b32 s37, {s(S_I)}, 2
        s_add_u32 s37, s37, {s(S_WAVE)}
        s_lshl_b32 s37, s37, 5
        s_add_u32 s37, s37, {s(S_L)}
        s_add_u32 s37, s37, {base}
        v_and_b32 v6, 7, v0
        v_lshlrev_b32 v6, 2, v6""")
        self.poll(6, 37)
    def xtile_off(self, buf, out, extra_layer=0):
        self.I(f"""s_lshl_b32 {s(out)}, {s(S_I)}, 2
        s_add_u32 {s(out)}, {s(out)}, {s(S_WAVE)}
        s_mul_i32 {s(out)}, {s(out)}, {L.XTS}
        s_lshr_b32 s36, {s(S_J)}, 1
        s_mul_i32 s36, s36, 5120
        s_add_u32 {s(out)}, {s(out)}, s36
        s_add_u32 {s(out)}, {s(out)}, {s(S_L)}
        s_add_u32 {s(out)}, {s(out)}, {buf + extra_layer}
        s_and_b32 s36, {s(S_J)}, 1
        s_mul_i32 {s(out+1)}, s36, 3072
        s_add_u32 {s(out+1)}, {s(out+1)}, {s(out)}
        s_lshl_b32 s36, s36, 9
        s_add_u32 {s(out)}, {s(out)}, s36
        s_add_u32 {s(out)}, {s(out)}, 2048""")
    def load_xres(self, buf):
        self.xtile_off(buf, 38)
        ld = self.cfg.ld
        self.vm.issue(f"buffer_load_dwordx4 {v(XRES,4)}, v1, {WS}, s39 offen {ld}", "xres")
        self.vm.issue(f"buffer_load_dwordx4 {v(XRES+4,4)}, v1, {WS}, s39 offen offset:1024 {ld}", "xres")
        self.vm.issue(f"buffer_load_dwordx2 {v(XRES+8,2)}, v2, {WS}, s38 offen {ld}", "xres")
    def load_wfrags(self, regs, soff, tag):
        out = []
        for k, r in enumerate(regs):
            if k and k % 4 == 0: out.append(("s", f"s_add_u32 {s(soff)}, {s(soff)}, 4096"))
            out.append(("v", f"buffer_load_dwordx4 {R(r,4)}, v1, {WS}, {s(soff)} offen offset:{(k%4)*1024}", tag))
        return out
    def emit_list(self, items):
        for it in items:
            if it[0] == "s": self.I(it[1])
            else: self.vm.issue(it[1], it[2])
    def ksplit(self, NS, splits, wreg, xbuf, TS, xring, nring, accs, stage, PD=10, hook=None, pre_wait=None, post_bar=None):
        A, vm, ld = self.A, self.vm, self.cfg.ld
        for p in range(4):
            self.I(f"""s_add_u32 s36, {s(S_WAVE)}, {p+1}
            s_and_b32 s36, s36, 3
            s_mul_i32 s{44+p}, s36, 15360
            s_add_u32 s{44+p}, s{44+p}, {RED_K + p*5120}
            s_lshl_b32 s37, {s(S_I)}, 2
            s_add_u32 s36, s36, s37
            s_mul_i32 s{30+p}, s36, {TS}
            s_mul_i32 s36, {s(S_WAVE)}, {NS*1024}
            s_add_u32 s{30+p}, s{30+p}, s36
            s_add_u32 s{30+p}, s{30+p}, {s(S_L)}
            s_add_u32 s{30+p}, s{30+p}, {xbuf}""")
        items = [(p, st) for p in range(4) for st in range(NS)]
        def xr(k): return xring + 4 * (k % nring)
        def load(k):
            p, st = items[k]
            if st % 4 == 0:
                self.I(f"s_add_u32 s34, s{30+p}, {(st//4)*4096}")
            im = (st % 4) * 1024
            if st in splits:
                vm.issue(f"buffer_load_dwordx2 {R(xr(k),2)}, v2, {WS}, s34 offen offset:{im} {ld}", ("x", k))
                vm.issue(f"buffer_load_dwordx2 {R(xr(k)+2,2)}, v2, {WS}, s34 offen offset:{im+512} {ld}", ("x", k))
            else:
                vm.issue(f"buffer_load_dwordx4 {R(xr(k),4)}, v1, {WS}, s34 offen offset:{im} {ld}", ("x", k))
        PD = min(PD, nring)
        for k in range(PD): load(k)
        if pre_wait: pre_wait()
        pend = []
        bar_step = 1 if NS == 5 else 2
        for k, (p, st) in enumerate(items):
            acc = accs[p % 2]
            if st == 0 and p > 0:
                prev = accs[(p - 1) % 2]
                pend = [None, None, f"v_add_u32 v7, s{44+p-1}, v1"] + [f"ds_write_b128 v7, {v(prev+4*ft,4)} offset:{ft*1024}" for ft in range(5)]
            if p == 3 and st == bar_step + 1:
                assert not pend
                self.I("s_waitcnt lgkmcnt(0)\ns_barrier")
                if post_bar: post_bar()
                self.I(f"s_mul_i32 s36, {s(S_WAVE)}, 15360\ns_add_u32 s36, s36, {RED_K}\nv_add_u32 v7, s36, v1")
                pend = [f"ds_read_b128 {v(stage+20*q+4*ft,4)}, v7 offset:{q*5120+ft*1024}" for q in range(3) for ft in range(5)]
            vm.wait(("x", k))
            for ft in range(5):
                c = "0" if st == 0 else v(acc + 4 * ft, 4)
                self.I(f"v_mfma_f32_16x16x32_bf16 {v(acc+4*ft,4)}, {R(wreg(st,ft),4)}, {R(xr(k),4)}, {c}")
                for _ in range(2 if p == 3 and st > bar_step else 1):
                    if pend:
                        x = pend.pop(0)
                        if x: self.I(x)
            if st == NS - 1 and hook: hook(p, lambda s_: xr(p * NS + s_))
            if k + PD < len(items): load(k + PD)
        assert not pend
        acc = accs[1]
        self.I("s_waitcnt lgkmcnt(0)")
        for i in range(0, 20, 2): self.I(f"v_pk_add_f32 {v(stage+i,2)}, {v(stage+i,2)}, {v(stage+20+i,2)}")
        for i in range(0, 20, 2): self.I(f"v_pk_add_f32 {v(stage+i,2)}, {v(stage+i,2)}, {v(stage+40+i,2)}")
        for i in range(0, 20, 2): self.I(f"v_pk_add_f32 {v(acc+i,2)}, {v(acc+i,2)}, {v(stage+i,2)}")
    def stat_loads(self, buf, rowtile_s, tok64_s, dst, tag):
        self.I(f"""s_lshl_b32 s36, {s(rowtile_s)}, 12
        s_lshl_b32 s37, {s(tok64_s)}, 3
        s_add_u32 s36, s36, s37
        s_add_u32 s36, s36, {s(S_L)}
        s_add_u32 s36, s36, {buf}
        v_lshlrev_b32 v6, 10, v4
        v_lshl_add_u32 v6, v3, 3, v6""")
        self.vm.issue(f"buffer_load_dwordx2 {v(dst,2)}, v6, {WS}, s36 offen {self.cfg.ld}", tag)
        self.vm.issue(f"buffer_load_dwordx2 {v(dst+2,2)}, v6, {WS}, s36 offen offset:512 {self.cfg.ld}", tag)
    def stat_finish(self, dst):
        self.I(f"v_pk_add_f32 {v(dst,2)}, {v(dst,2)}, {v(dst+2,2)}")
        emit_xg_reduce(self.A, [dst, dst + 1], dst + 2)
        self.I(f"""v_mul_f32 {v(dst)}, {hexf(-1.0/640)}, {v(dst)}
        v_mul_f32 {v(dst+2)}, {v(dst)}, {v(dst)}
        v_mov_b32 {v(dst+3)}, {hexf(1.0/640)}
        v_fma_f32 {v(dst+1)}, {v(dst+1)}, {v(dst+3)}, -{v(dst+2)}
        v_max_f32 {v(dst+1)}, 0, {v(dst+1)}
        v_add_f32 {v(dst+1)}, {hexf(1e-5)}, {v(dst+1)}
        v_rsq_f32 {v(dst+1)}, {v(dst+1)}""")
    def resid_epilogue(self, acc, tmp):
        self.vm.wait("xres")
        for i in range(10):
            self.I(f"v_lshlrev_b32 {v(tmp)}, 16, {v(XRES+i)}\nv_and_b32 {v(tmp+1)}, 0xffff0000, {v(XRES+i)}")
            self.I(f"v_pk_add_f32 {v(acc+2*i,2)}, {v(acc+2*i,2)}, {v(tmp,2)}")
            self.I(f"v_cvt_pk_bf16_f32 {v(XRES+i)}, {v(acc+2*i)}, {v(acc+2*i+1)}")
    def store_xtile(self, xbuf, statbuf, flagbuf, tmp, extra_layer=0):
        st = self.cfg.st
        self.xtile_off(xbuf, 38, extra_layer)
        self.vm.issue(f"buffer_store_dwordx4 {v(XRES,4)}, v1, {WS}, s39 offen {st}", "st")
        self.vm.issue(f"buffer_store_dwordx4 {v(XRES+4,4)}, v1, {WS}, s39 offen offset:1024 {st}", "st")
        self.vm.issue(f"buffer_store_dwordx2 {v(XRES+8,2)}, v2, {WS}, s38 offen {st}", "st")
        emit_stats_packed(self.A, XRES, 10, tmp, tmp + 2)
        self.I(f"""s_lshl_b32 s36, {s(S_I)}, 3
        s_add_u32 s36, s36, {s(S_J)}
        s_lshl_b32 s36, s36, 9
        s_lshl_b32 s37, {s(S_WAVE)}, 7
        s_add_u32 s36, s36, s37
        s_add_u32 s36, s36, {s(S_L)}
        s_add_u32 s36, s36, {statbuf + extra_layer}
        s_mov_b64 exec, 0xffff""")
        self.vm.issue(f"buffer_store_dwordx2 {v(tmp,2)}, v2, {WS}, s36 offen {st}", "st")
        self.I("s_mov_b64 exec, -1")
        self.flag_x_off(flagbuf + extra_layer, 40)
        self.vm.wait("st")
        self.signal(40)

    def phase_qkv(self):
        A, vm = self.A, self.vm
        X, ACC, KVA, KVS, CS, ST = 20, [100, 120], 140, 148, 172, 200
        WQ, WKV = 256, 356
        self.I(f"s_lshl_b32 s41, {s(S_J)}, 2\ns_add_u32 s41, s41, {s(S_WAVE)}\ns_mul_i32 s41, s41, 25600\ns_add_u32 s41, s41, {L.WQF}")
        self.emit_list(self.load_wfrags([WQ + 4 * k for k in range(25)], 41, "w"))
        self.I(f"s_lshr_b32 s41, {s(S_J)}, 2\ns_lshl_b32 s41, s41, 2\ns_add_u32 s41, s41, {s(S_WAVE)}\ns_mul_i32 s41, s41, 10240\ns_add_u32 s41, s41, {L.WKVF}")
        self.emit_list(self.load_wfrags([WKV + 4 * k for k in range(10)], 41, "w"))
        self.I(f"s_mul_i32 s41, {s(S_J)}, 320\ns_add_u32 s41, s41, {L.CSQ}\nv_lshlrev_b32 v6, 4, v4")
        for ft in range(5): vm.issue(f"buffer_load_dwordx4 {v(CS+4*ft,4)}, v6, {WS}, s41 offen offset:{ft*64}", "w")
        self.I(f"s_mov_b32 s41, {L.CSKV}\nv_lshlrev_b32 v7, 2, v3")
        for ft in range(2): vm.issue(f"buffer_load_dwordx4 {v(CS+20+4*ft,4)}, v6, {WS}, s41 offen offset:{ft*64}", "w")
        for ft in range(2): vm.issue(f"buffer_load_dword {v(ST+8+ft)}, v7, {WS}, s41 offen offset:{128+ft*64}", "w")
        return dict(X=X, ACC=ACC, KVA=KVA, KVS=KVS, CS=CS, ST=ST, WQ=WQ, WKV=WKV)
    def phase_qkv_main(self, r):
        A, vm, st = self.A, self.vm, "sc1"
        X, ACC, KVA, KVS, CS, ST, WQ, WKV = (r[k] for k in ("X", "ACC", "KVA", "KVS", "CS", "ST", "WQ", "WKV"))
        def post_bar():
            self.I(f"s_lshl_b32 s42, {s(S_WAVE)}, 4")
            self.stat_loads(L.STATIN, S_I, 42, ST, "stat")
        self.I(f"s_and_b32 s48, {s(S_J)}, 3\ns_sub_u32 s49, s48, {s(S_WAVE)}\ns_sub_u32 s49, s49, 1\ns_and_b32 s49, s49, 3")
        def hook(p, xr):
            skip = A.newlabel("kvskip"); vt = A.newlabel("kvv"); jn = A.newlabel("kvj")
            self.I(f"s_cmp_lg_u32 s49, {p}\ns_cbranch_scc1 {skip}")
            self.I(f"s_cmp_ge_u32 {s(S_J)}, 4\ns_cbranch_scc1 {vt}")
            for s_ in range(5):
                for ft in range(2):
                    self.I(f"v_mfma_f32_16x16x32_bf16 {v(KVA+4*ft,4)}, {R(WKV+8*s_+4*ft,4)}, {R(xr(s_),4)}, {'0' if s_ == 0 else v(KVA+4*ft,4)}")
            self.I(f"s_branch {jn}")
            A.L(vt)
            for s_ in range(5):
                for ft in range(2):
                    self.I(f"v_mfma_f32_16x16x32_bf16 {v(KVA+4*ft,4)}, {R(xr(s_),4)}, {R(WKV+8*s_+4*ft,4)}, {'0' if s_ == 0 else v(KVA+4*ft,4)}")
            A.L(jn)
            if p < 3:
                self.I(f"v_add_u32 v6, {RED_KV + p*2048}, v1")
                for ft in range(2): self.I(f"ds_write_b128 v6, {v(KVA+4*ft,4)} offset:{ft*1024}")
            A.L(skip)
        self.ksplit(5, (2,), lambda s_, ft: WQ + 20 * s_ + 4 * ft, L.XIN, L.XTS, X, 20, ACC, X, hook=hook, post_bar=post_bar)
        acc = ACC[1]
        vm.wait("stat")
        self.stat_finish(ST)
        c = math.log2(math.e) / math.sqrt(20.0)
        self.I(f"v_mul_f32 {v(ST+2)}, {hexf(c)}, {v(ST+1)}")
        for i in range(20):
            self.I(f"v_fma_f32 {v(acc+i)}, {v(ST)}, {v(CS+i)}, {v(acc+i)}")
        for i in range(20):
            self.I(f"v_mul_f32 {v(acc+i)}, {v(ST+2)}, {v(acc+i)}")
        P = X
        for i in range(8): self.I(f"v_cvt_pk_bf16_f32 {v(P+i)}, {v(acc+2*i)}, {v(acc+2*i+1)}")
        self.I(f"v_cvt_pk_bf16_f32 {v(P+8)}, {v(acc+16)}, {v(acc+17)}\nv_mov_b32 {v(P+9)}, 0")
        self.I(f"v_cvt_pk_bf16_f32 {v(P+10)}, {v(acc+18)}, {v(acc+19)}\nv_mov_b32 {v(P+11)}, 0")
        self.I(f"""s_lshr_b32 s36, {s(S_WAVE)}, 1
        s_mul_i32 s36, s36, {AT.QST_Q}
        s_add_u32 s36, s36, {QST}
        s_and_b32 s37, {s(S_WAVE)}, 1
        s_lshl_b32 s37, s37, 4
        v_add_u32 v6, s37, v3
        v_mul_u32_u24 v7, {2*AT.QST_Q}, v4
        v_add_u32 v7, s36, v7
        v_lshl_add_u32 v5, v6, 4, v7
        v_lshl_add_u32 v6, v6, 3, v7
        ds_write_b128 v5, {v(P,4)}
        ds_write_b128 v5, {v(P+4,4)} offset:512
        ds_write_b64 v6, {v(P+8,2)} offset:1024
        ds_write_b64 v6, {v(P+10,2)} offset:{1024+256}""")
        done = A.newlabel("kvdone"); vt = A.newlabel("kvfv"); jn = A.newlabel("kvfj")
        self.I(f"s_cmp_lg_u32 s48, {s(S_WAVE)}\ns_cbranch_scc1 {done}")
        self.I(f"v_add_u32 v6, {RED_KV}, v1")
        for q in range(3):
            for ft in range(2): self.I(f"ds_read_b128 {v(KVS+8*q+4*ft,4)}, v6 offset:{q*2048+ft*1024}")
        self.I(f"""s_lshl_b32 s36, {s(S_I)}, 1
        s_lshr_b32 s37, {s(S_WAVE)}, 1
        s_add_u32 s36, s36, s37
        s_mul_i32 s36, s36, {L.KVT}
        s_add_u32 s36, s36, {s(S_L)}
        s_add_u32 s36, s36, {L.KVB}
        s_and_b32 s37, {s(S_WAVE)}, 1
        s_waitcnt lgkmcnt(0)""")
        for q in range(3):
            for i in range(0, 8, 2): self.I(f"v_pk_add_f32 {v(KVA+i,2)}, {v(KVA+i,2)}, {v(KVS+8*q+i,2)}")
        self.I(f"s_cmp_ge_u32 {s(S_J)}, 4\ns_cbranch_scc1 {vt}")
        for i in range(8): self.I(f"v_fma_f32 {v(KVA+i)}, {v(ST)}, {v(CS+20+i)}, {v(KVA+i)}")
        for i in range(8): self.I(f"v_mul_f32 {v(KVA+i)}, {v(ST+1)}, {v(KVA+i)}")
        for i in range(4): self.I(f"v_cvt_pk_bf16_f32 {v(KVS+i)}, {v(KVA+2*i)}, {v(KVA+2*i+1)}")
        self.I(f"""s_lshl_b32 s37, s37, 4
        v_add_u32 v6, s37, v3                 ; key
        v_lshlrev_b32 v7, 9, v4
        v_lshl_add_u32 v7, v6, 4, v7          ; (g*32+key)*16
        v_lshlrev_b32 v6, 3, v6
        s_mov_b64 exec, 0xffffffff
        buffer_store_dwordx4 {v(KVS,4)}, v7, {WS}, s36 offen {st}
        s_mov_b32 exec_lo, 0
        s_mov_b32 exec_hi, 0xffff
        buffer_store_dwordx2 {v(KVS,2)}, v6, {WS}, s36 offen offset:1024 {st}
        s_mov_b64 exec, -1
        s_branch {jn}""")
        A.L(vt)
        self.I(f"""v_lshlrev_b32 v6, 2, v3
        v_add_u32 v6, {MISC}, v6
        ds_write_b32 v6, {v(ST)}
        ds_write_b32 v6, {v(ST+1)} offset:64
        v_lshlrev_b32 v6, 4, v4
        v_add_u32 v6, {MISC}, v6
        s_waitcnt lgkmcnt(0)
        ds_read_b128 {v(KVS,4)}, v6
        ds_read_b128 {v(KVS+4,4)}, v6 offset:64
        v_cmp_eq_u32 vcc, 4, v3
        v_cndmask_b32 v5, 0, 1.0, vcc
        s_waitcnt lgkmcnt(0)""")
        for ft in range(2):
            for r_ in range(4):
                self.I(f"v_fma_f32 {v(KVA+4*ft+r_)}, {v(KVS+r_)}, {v(ST+8+ft)}, {v(KVA+4*ft+r_)}")
        for r_ in range(4): self.I(f"v_mul_f32 {v(KVA+r_)}, {v(KVS+4+r_)}, {v(KVA+r_)}")
        for r_ in range(4): self.I(f"v_fma_f32 {v(KVA+4+r_)}, {v(KVS+4+r_)}, {v(KVA+4+r_)}, v5")
        for i in range(4): self.I(f"v_cvt_pk_bf16_f32 {v(KVS+8+i)}, {v(KVA+2*i)}, {v(KVA+2*i+1)}")
        self.I(f"""s_mul_i32 s37, s37, 768
        s_add_u32 s36, s36, s37
        v_and_b32 v6, 1, v4
        v_mul_u32_u24 v6, 384, v6
        v_lshl_add_u32 v6, v3, 4, v6
        v_lshrrev_b32 v7, 1, v4
        v_lshl_add_u32 v6, v7, 3, v6
        buffer_store_dwordx2 {v(KVS+8,2)}, v6, {WS}, s36 offen offset:1280 {st}
        s_mov_b32 exec_lo, 0x00ff00ff
        s_mov_b32 exec_hi, 0x00ff00ff
        buffer_store_dwordx2 {v(KVS+10,2)}, v6, {WS}, s36 offen offset:{1280+256} {st}
        s_mov_b64 exec, -1""")
        A.L(jn)
        self.I(f"""s_lshl_b32 s40, {s(S_I)}, 3
        s_add_u32 s40, s40, {s(S_J)}
        s_lshl_b32 s40, s40, 2
        s_add_u32 s40, s40, {s(S_L)}
        s_add_u32 s40, s40, {L.FL_KV}
        s_waitcnt vmcnt(0)
        v_mov_b32 v5, {s(S_EPOCH)}
        s_mov_b64 exec, 1
        buffer_store_dword v5, off, {WS}, s40 sc1
        s_mov_b64 exec, -1""")
        A.L(done)
        self.I("s_waitcnt lgkmcnt(0)\ns_barrier")

    def phase_att(self):
        A, vm = self.A, self.vm
        r = AT.AttRegs(20, 256)
        self.I(f"s_lshl_b32 s37, {s(S_WAVE)}, 8\ns_add_u32 s37, s37, {s(S_L)}\ns_add_u32 s37, s37, {L.FL_KV}\nv_lshlrev_b32 v6, 2, v0")
        self.poll(6, 37)
        self.stamp()
        self.I("s_mov_b32 s59, 384\ns_mov_b32 s58, 0x3f803f80")
        self.I(f"s_add_u32 s56, {s(S_L)}, {L.KVB}")
        AT.emit_kv_loads(A, vm, r, V_LANE, S_WAVE, 4, flags="sc1", base_s=56, first=0, last=3)
        lab = AT.emit_att_main(A, vm, r, V_LANE, S_WAVE, QST, RED_A, kvsrd=4, kvflags="sc1", nfirst=3)
        self.loops[lab] = 2
        AT.emit_att_reduce(A, r, V_LANE, S_WAVE, RED_A)
        self.I(f"""s_lshr_b32 s46, {s(S_J)}, 1
        s_and_b32 s47, {s(S_J)}, 1
        s_mul_i32 s48, {s(S_I)}, {4*L.XTS}
        s_mul_i32 s49, s46, 5120
        s_add_u32 s48, s48, s49
        s_add_u32 s48, s48, {s(S_L)}
        s_add_u32 s48, s48, {L.OFB}
        v_bfe_u32 v5, v0, 4, 1
        v_lshrrev_b32 v6, 5, v0
        v_mul_u32_u24 v5, {L.XTS}, v5
        s_lshl_b32 s49, s47, 9
        s_add_u32 s49, s49, s48
        s_add_u32 s49, s49, 2048
        s_lshl_b32 s50, {s(S_WAVE)}, 7
        s_add_u32 s49, s49, s50
        v_lshlrev_b32 v7, 3, v3
        v_add3_u32 v7, v7, v5, s49
        s_mul_i32 s49, s47, 3
        s_lshr_b32 s50, {s(S_WAVE)}, 1
        s_add_u32 s49, s49, s50
        s_lshl_b32 s49, s49, 10
        s_add_u32 s49, s49, s48
        s_and_b32 s50, {s(S_WAVE)}, 1
        s_lshl_b32 s50, s50, 9
        s_add_u32 s49, s49, s50
        v_lshlrev_b32 v6, 8, v6
        v_lshl_add_u32 v6, v3, 4, v6
        v_add3_u32 v6, v6, v5, s49""")
        AT.emit_att_finish(A, r, V_LANE, 4, 6, 7, stflags=self.cfg.st, vm=vm)
        self.flag_x_off(L.FL_O, 40)
        vm.wait_all()
        self.signal(40)

    def phase_oproj(self):
        WO = 256
        self.I(f"s_lshl_b32 s41, {s(S_J)}, 2\ns_add_u32 s41, s41, {s(S_WAVE)}\ns_mul_i32 s41, s41, 25600\ns_add_u32 s41, s41, {L.WOF}")
        self.emit_list(self.load_wfrags([WO + 4 * k for k in range(25)], 41, "w"))
        self.load_xres(L.XIN)
        self.I("s_barrier")
        self.poll_x8(L.FL_O)
        self.stamp()
        self.ksplit(5, (2,), lambda s_, ft: WO + 20 * s_ + 4 * ft, L.OFB, L.XTS, 20, 20, [100, 120], 20)
        self.resid_epilogue(120, 18)
        self.store_xtile(L.XMID, L.STATMID, L.FL_X1, 20)

    def phase_mlp1(self):
        A, vm = self.A, self.vm
        XR, NXR, ACC, WB, ST = 20, 12, 116, 172, 228
        self.I("s_barrier")
        self.I(f"s_mul_i32 s41, {s(S_JP)}, {140*1024}\ns_mul_i32 s42, {s(S_WAVE)}, {35*1024}\ns_add_u32 s41, s41, s42\ns_add_u32 s41, s41, {L.W1F}")
        for k in range(35):
            if k % 4 == 0:
                if k: self.I("s_add_u32 s41, s41, 4096\ns_add_u32 s42, s42, 4096")
                self.I(f"s_add_u32 m0, s42, {W1_LDS}")
            vm.issue(f"buffer_load_dwordx4 v1, {WS}, s41 offen offset:{(k%4)*1024} lds", "w1")
        self.I(f"""s_lshl_b32 s43, {s(S_IP)}, 1
        s_lshr_b32 s36, {s(S_WAVE)}, 1
        s_add_u32 s43, s43, s36              ; i*
        s_and_b32 s44, {s(S_WAVE)}, 1        ; tau0/2
        s_lshl_b32 s37, s43, 7
        s_lshl_b32 s36, s44, 4
        s_add_u32 s37, s37, s36
        s_add_u32 s37, s37, {s(S_L)}
        s_add_u32 s37, s37, {L.FL_X1}
        v_bfe_u32 v6, v0, 2, 2
        v_lshlrev_b32 v6, 5, v6
        v_and_b32 v7, 3, v0
        v_lshl_add_u32 v6, v7, 2, v6""")
        self.poll(6, 37)
        self.I("s_barrier")
        self.stamp()
        ld = self.cfg.ld
        for e in range(2):
            self.I(f"s_lshl_b32 s45, s44, 5\ns_add_u32 s45, s45, {16*e}")
            self.stat_loads(L.STATMID, 43, 45, ST + 4 * e, "stat")
            self.I(f"""s_lshl_b32 s{30+e}, {s(S_IP)}, 3
            s_lshl_b32 s36, {s(S_WAVE)}, 1
            s_add_u32 s{30+e}, s{30+e}, s36
            s_add_u32 s{30+e}, s{30+e}, {e}
            s_mul_i32 s{32+e}, s{30+e}, {L.HTS}
            s_mul_i32 s{30+e}, s{30+e}, {L.XTS}
            s_add_u32 s{30+e}, s{30+e}, {s(S_L)}
            s_add_u32 s{30+e}, s{30+e}, {L.XMID}""")
        def xr(k, e): return XR + 8 * (k % NXR) + 4 * e
        def load(k):
            for e in range(2):
                if k and k % 4 == 0: self.I(f"s_add_u32 s{30+e}, s{30+e}, 4096")
                im = (k % 4) * 1024
                if k % 5 == 2:
                    vm.issue(f"buffer_load_dwordx2 {v(xr(k,e),2)}, v2, {WS}, s{30+e} offen offset:{im} {ld}", ("x", k))
                    vm.issue(f"buffer_load_dwordx2 {v(xr(k,e)+2,2)}, v2, {WS}, s{30+e} offen offset:{im+512} {ld}", ("x", k))
                else:
                    vm.issue(f"buffer_load_dwordx4 {v(xr(k,e),4)}, v1, {WS}, s{30+e} offen offset:{im} {ld}", ("x", k))
        self.I(f"v_add_u32 v5, {W1_LDS}, v1\nv_add_u32 v6, {W1_LDS + 8*7168}, v1\nv_add_u32 v7, {W1_LDS + 16*7168}, v1")
        def wread(k, ft): return f"ds_read_b128 {v(WB + 28*(k%2) + 4*ft, 4)}, v{5 + k//8} offset:{(k%8)*7168 + ft*1024}"
        PD = 6
        for k in range(PD): load(k)
        for ft in range(7): self.I(wread(0, ft))
        for k in range(20):
            vm.wait(("x", k))
            self.I("s_waitcnt lgkmcnt(0)")
            n = 0
            for ft in range(7):
                for e in range(2):
                    d = ACC + 28 * e + 4 * ft
                    self.I(f"v_mfma_f32_16x16x32_bf16 {v(d,4)}, {v(WB+28*(k%2)+4*ft,4)}, {v(xr(k,e),4)}, {'0' if k == 0 else v(d,4)}")
                    if k + 1 < 20 and n % 2 == 0: self.I(wread(k + 1, n // 2))
                    n += 1
            if k + PD < 20: load(k + PD)
            if k == 14:
                pass
        CS, BI = 20, 48
        self.I(f"s_mul_i32 s41, {s(S_JP)}, 448\ns_add_u32 s41, s41, {L.CS1}\nv_lshlrev_b32 v6, 4, v4")
        for ft in range(7): vm.issue(f"buffer_load_dwordx4 {v(CS+4*ft,4)}, v6, {WS}, s41 offen offset:{ft*64}", "cs")
        self.I("s_mov_b32 s53, 0"); emit_realtile(A, S_JP, 53, 54, 56, 58)
        self.I("s_mov_b32 s53, 6"); emit_realtile(A, S_JP, 53, 55, 57, 58)
        self.I("s_lshl_b32 s54, s54, 5\nv_lshlrev_b32 v6, 3, v4\nv_add_u32 v7, s57, v6")
        for ft in range(7): vm.issue(f"buffer_load_dwordx2 {v(BI+28+2*ft,2)}, v{7 if ft == 6 else 6}, s[12:15], s54 offen offset:{ft*32}", "cs")
        vm.wait("stat")
        for e in range(2): self.stat_finish(ST + 4 * e)
        vm.wait("cs")
        for i in range(14):
            self.I(f"v_lshlrev_b32 {v(BI+2*i)}, 16, {v(BI+28+i)}\nv_and_b32 {v(BI+2*i+1)}, 0xffff0000, {v(BI+28+i)}")
        self.I(f"s_mov_b32 s66, {hexf(math.log2(math.e))}\ns_mov_b32 s67, s66")
        T = 92; PK = WB
        for e in range(2):
            nm, rs = ST + 4 * e, ST + 4 * e + 1
            self.I(f"v_mov_b32 {v(ST+4*e+2)}, {v(rs)}")
            for pr in range(14):
                d = ACC + 28 * e + 2 * pr; t = T + 2 * (pr % 4)
                self.I(f"v_pk_fma_f32 {v(d,2)}, {v(nm,2)}, {v(CS+2*pr,2)}, {v(d,2)} op_sel_hi:[0,1,1]")
                self.I(f"v_pk_fma_f32 {v(d,2)}, {v(d,2)}, {v(ST+4*e+2,2)}, {v(BI+2*pr,2)} op_sel_hi:[1,0,1]")
                self.I(f"v_pk_mul_f32 {v(t,2)}, {v(d,2)}, s[66:67]")
                self.I(f"v_exp_f32 {v(t)}, {v(t)}\nv_exp_f32 {v(t+1)}, {v(t+1)}")
                self.I(f"v_pk_add_f32 {v(t,2)}, {v(t,2)}, 1.0 op_sel_hi:[1,0]")
                self.I(f"v_pk_fma_f32 {v(t,2)}, {v(t,2)}, {v(t,2)}, 1.0 op_sel_hi:[1,1,0]")
                self.I(f"v_rcp_f32 {v(t)}, {v(t)}\nv_rcp_f32 {v(t+1)}, {v(t+1)}")
                self.I(f"v_pk_fma_f32 {v(t,2)}, {v(t,2)}, -2.0, 1.0 op_sel_hi:[1,0,0]")
                self.I(f"v_pk_mul_f32 {v(d,2)}, {v(d,2)}, {v(t,2)}")
                self.I(f"v_cvt_pk_bf16_f32 {v(PK+16*e+pr)}, {v(d)}, {v(d+1)}")
            self.I(f"""s_lshr_b32 s36, {s(S_JP)}, 1
            s_mul_i32 s36, s36, 7168
            s_add_u32 s36, s36, s{32+e}
            s_add_u32 s36, s36, {s(S_L)}
            s_add_u32 s36, s36, {L.HFB}
            s_and_b32 s37, {s(S_JP)}, 1
            s_lshl_b32 s38, s37, 12
            s_add_u32 s38, s38, s36
            s_lshl_b32 s37, s37, 9
            s_add_u32 s36, s36, s37""")
            for q in range(3):
                vm.issue(f"buffer_store_dwordx4 {v(PK+16*e+4*q,4)}, v1, {WS}, s38 offen offset:{q*1024} {self.cfg.st}", "st")
            vm.issue(f"buffer_store_dwordx2 {v(PK+16*e+12,2)}, v2, {WS}, s36 offen offset:3072 {self.cfg.st}", "st")
        self.I(f"""s_lshl_b32 s40, {s(S_IP)}, 1
        s_lshr_b32 s36, {s(S_WAVE)}, 1
        s_add_u32 s40, s40, s36
        s_lshl_b32 s40, s40, 4
        s_add_u32 s40, s40, {s(S_JP)}
        s_lshl_b32 s40, s40, 1
        s_and_b32 s36, {s(S_WAVE)}, 1
        s_add_u32 s40, s40, s36
        s_lshl_b32 s40, s40, 2
        s_add_u32 s40, s40, {s(S_L)}
        s_add_u32 s40, s40, {L.FL_H}""")
        vm.wait("st")
        self.signal(40)

    def phase_mlp2(self):
        def wreg(s_, ft):
            k = 5 * s_ + ft
            return 256 + 4 * k if k < 64 else 232 + 4 * (k - 64)
        self.I(f"s_lshl_b32 s41, {s(S_J)}, 2\ns_add_u32 s41, s41, {s(S_WAVE)}\ns_mul_i32 s41, s41, {70*1024}\ns_add_u32 s41, s41, {L.W2F}")
        self.emit_list(self.load_wfrags([wreg(k // 5, k % 5) for k in range(70)], 41, "w"))
        self.load_xres(L.XMID)
        self.I("s_barrier")
        self.poll_x8(L.FL_H)
        self.stamp()
        self.ksplit(14, (3, 10), wreg, L.HFB, L.HTS, 20, 20, [100, 120], 140)
        self.resid_epilogue(120, 18)

def hexf(x):
    import struct
    return "0x%08x" % struct.unpack("<I", struct.pack("<f", x))[0]

def build_main(cfg):
    G = Gen(cfg); A = G.A
    G.I(f"""
    s_cmp_ge_u32 s2, 256
    s_cbranch_scc1 L_end
    s_load_dwordx2 s[44:45], s[0:1], 56       ; b1
    s_load_dwordx2 s[46:47], s[0:1], 72       ; out
    s_load_dwordx2 s[50:51], s[0:1], 88       ; ws
    v_lshrrev_b32 v2, 6, v0
    v_and_b32 v0, 63, v0
    v_readfirstlane_b32 {s(S_WAVE)}, v2
    v_lshlrev_b32 v1, 4, v0
    v_lshlrev_b32 v2, 3, v0
    v_and_b32 v3, 15, v0
    v_lshrrev_b32 v4, 4, v0
    s_and_b32 {s(S_G)}, s2, 7
    s_lshr_b32 {s(S_C)}, s2, 3
    s_lshl_b32 {s(S_I)}, {s(S_G)}, 2
    s_lshr_b32 s30, {s(S_C)}, 3
    s_add_u32 {s(S_I)}, {s(S_I)}, s30
    s_and_b32 {s(S_J)}, {s(S_C)}, 7
    s_lshl_b32 {s(S_IP)}, {s(S_G)}, 1
    s_lshr_b32 s30, {s(S_C)}, 4
    s_add_u32 {s(S_IP)}, {s(S_IP)}, s30
    s_and_b32 {s(S_JP)}, {s(S_C)}, 15
    s_mov_b32 {s(S_L)}, 0
    s_waitcnt lgkmcnt(0)
    s_load_dword {s(S_EPOCH)}, s[50:51], {L.EPOCH}
    """)
    srd(A, 4, 50, L.WS_USED); srd(A, 8, 46, 2048 * 640 * 2); srd(A, 12, 44, 1728 * 2)
    G.I(f"s_waitcnt lgkmcnt(0)\ns_mul_i32 {s(S_EPOCH)}, {s(S_EPOCH)}, 1664525\ns_add_u32 {s(S_EPOCH)}, {s(S_EPOCH)}, 1013904223")
    if cfg.prof:
        for n in range(80, 100): G.I(f"s_mov_b32 s{n}, 0")
    A.L("L_layer")
    G.stamp()
    r = G.phase_qkv()
    G.I(f"s_cmp_eq_u32 {s(S_L)}, 0\ns_cbranch_scc1 L_noxin")
    G.poll_x8(L.FL_XIN)
    A.L("L_noxin")
    G.vm.wait_all()
    G.stamp()
    G.phase_qkv_main(r)
    G.phase_att()
    G.I(f"s_cmp_lg_u32 s2, 0\ns_cbranch_scc1 L_noep\nv_mov_b32 v5, {s(S_EPOCH)}\ns_mov_b32 s36, {L.EPOCH}\ns_mov_b64 exec, 1\nbuffer_store_dword v5, off, {WS}, s36\ns_mov_b64 exec, -1")
    A.L("L_noep")
    G.phase_oproj()
    G.phase_mlp1()
    G.phase_mlp2()
    G.I(f"s_cmp_lg_u32 {s(S_L)}, 0\ns_cbranch_scc1 L_final")
    G.store_xtile(L.XIN, L.STATIN, L.FL_XIN, 20, extra_layer=L.LS)
    G.stamp()
    G.I(f"s_mov_b32 {s(S_L)}, {L.LS}\ns_barrier\ns_branch L_layer")
    A.L("L_final")
    G.I(f"""s_lshl_b32 s36, {s(S_I)}, 2
    s_add_u32 s36, s36, {s(S_WAVE)}
    s_mul_i32 s36, s36, {16*1280}
    s_mul_i32 s37, {s(S_J)}, 160
    s_add_u32 s36, s36, s37
    v_mul_u32_u24 v6, 1280, v3
    v_lshl_add_u32 v6, v4, 3, v6""")
    for ft in range(5): G.I(f"buffer_store_dwordx2 {v(XRES+2*ft,2)}, v6, s[8:11], s36 offen offset:{ft*32}")
    if cfg.prof:
        G.nstamp -= 1; G.I("s_waitcnt vmcnt(0)"); G.stamp()
        for n in range(20): G.I(f"v_mov_b32 v{20+n}, s{80+n}")
        G.I(f"s_lshl_b32 s36, s2, 2\ns_add_u32 s36, s36, {s(S_WAVE)}\ns_lshl_b32 s36, s36, 7\ns_add_u32 s36, s36, {L.PROF}\ns_mov_b64 exec, 1")
        for q in range(5): G.I(f"buffer_store_dwordx4 {v(20+4*q,4)}, off, {WS}, s36 offset:{16*q}")
    A.L("L_end")
    G.I("s_endpgm")
    npad = A.pad_hazards()
    for taken in (set(), ):
        tr = trace_two_layers(A.ins, G.loops)
        errs = check_waits([x for x in tr if x.op != "s_memtime"], "main")
        assert errs == 0
    return A.text(), npad

def trace_two_layers(ins, loops):
    labels = {x.label: i for i, x in enumerate(ins) if x.is_label}
    tr = []; j = 0; left = {}; layer = 0
    while j < len(ins):
        c = ins[j]; tr.append(c)
        if c.op == "s_endpgm": break
        if c.kind == "branch":
            t = labels[c.target]
            if c.op == "s_branch":
                if c.target == "L_layer": layer = 1
                j = t; continue
            if t <= j:
                k = left.get(j, loops.get(c.target, 1))
                if k > 0: left[j] = k - 1; j = t; continue
                left.pop(j, None)
            elif (c.target == "L_noxin" and layer == 0) or (c.target == "L_final" and layer == 1):
                j = t; continue
        j += 1
    return tr

HEADER = open("interleave_layers__grouped_kv_mqa__dense_activation_mish__prompt.s.ref").read().split("; Override launch")[0]

def build_all(cfg):
    body, npad = build_main(cfg)
    asm = HEADER
    asm += f"; @launch kernel=prep_kernel grid=({PREP_WGS},1,1) block=(256,1,1) lds=0\n"
    asm += f"; @launch kernel=main_kernel grid=(256,1,1) block=(256,1,1) lds={LDS_BYTES}\n"
    asm += '.amdgcn_target "amdgcn-amd-amdhsa--gfx950"\n'
    asm += wrap_kernel("prep_kernel", build_prep(), vgpr=128, acc=128)
    asm += wrap_kernel("main_kernel", body, vgpr=512, acc=256)
    return asm, npad

if __name__ == "__main__":
    cfg = Cfg()
    cfg.prof = "prof" in os.environ.get("XF", "")
    asm, npad = build_all(cfg)
    open("out.s", "w").write(asm)
    print("lines", len(asm.splitlines()), "bytes", len(asm), "pad", npad)
```

```python
from asmlib import *

KVT = 2816
NT = 16
QST_Q = 1536
RED_Q = 3072

class AttRegs:
    def __init__(self, base, kvbase=256):
        b = base
        def take(n, al=1):
            nonlocal b
            b = (b + al - 1) // al * al
            r = b; b += n; return r
        self.S = [take(16, 4), take(16, 4)]
        self.O = [take(16, 4), take(16, 4)]
        self.P = [take(8, 4), take(8, 4)]
        self.Q1 = [take(4, 4), take(4, 4)]
        self.Q2 = [take(2, 2), take(2, 2)]
        self.aQ1 = take(1); self.aQ2 = take(1); self.aR = take(1); self.pf = take(1)
        self.t = take(8, 4)
        self.end = b
        self.kv = kvbase
    def K1(self, t): return self.kv + 12 * t
    def V1(self, t): return self.kv + 12 * t + 4
    def V2(self, t): return self.kv + 12 * t + 8
    def K2(self, t): return self.kv + 192 + 2 * t

def emit_kv_addr(A, r, lane, wave_s, base_s):
    t = r.t
    A.I(f"s_mul_i32 s60, {s(wave_s)}, {NT*KVT}")
    A.I(f"s_add_u32 s60, s60, {s(base_s)}")
    A.I(f"v_lshlrev_b32 {v(t)}, 4, {v(lane)}")
    A.I(f"v_and_b32 {v(t+3)}, 31, {v(lane)}")
    A.I(f"v_lshrrev_b32 {v(t+4)}, 5, {v(lane)}")
    A.I(f"v_lshlrev_b32 {v(t+1)}, 3, {v(t+3)}")
    A.I(f"v_lshl_add_u32 {v(t+1)}, {v(t+4)}, 2, {v(t+1)}")
    A.I(f"v_min_u32 {v(t+3)}, 23, {v(t+3)}")
    A.I(f"v_lshlrev_b32 {v(t+2)}, 4, {v(t+3)}")
    A.I(f"v_mad_u32_u24 {v(t+2)}, {v(t+4)}, s59, {v(t+2)}")

def kv_items(r, srd, flags, k):
    t = r.t
    return [("v", f"buffer_load_dwordx4 {R(r.K1(k),4)}, {v(t)}, {s(srd,4)}, s60 offen {flags}", ("kv", k)),
            ("v", f"buffer_load_dword {R(r.K2(k))}, {v(t+1)}, {s(srd,4)}, s60 offen offset:1024 {flags}", ("kv", k)),
            ("v", f"buffer_load_dwordx4 {R(r.V1(k),4)}, {v(t+2)}, {s(srd,4)}, s60 offen offset:1280 {flags}", ("kv", k)),
            ("v", f"buffer_load_dwordx4 {R(r.V2(k),4)}, {v(t+2)}, {s(srd,4)}, s60 offen offset:2048 {flags}", ("kv", k)),
            ("s", f"s_add_u32 s60, s60, {KVT}")]

def half_step(G, r, X, kS, kV2, kV1, fill, zeroO=False, doPV2=True):
    Y = 1 - X
    S, P = r.S[X], r.P[X]
    I = G.I
    def ex(i): I(f"v_exp_f32 {v(S+i)}, {v(S+i)}")
    def cv(i): I(f"v_cvt_pk_bf16_f32 {v(P+i)}, {v(S+2*i)}, {v(S+2*i+1)}")
    G.emit_list(fill.get('pre0', []))
    I(f"v_mfma_f32_32x32x16_bf16 {v(r.S[Y],16)}, {R(r.K1(kS),4)}, {v(r.Q1[Y],4)}, 0")
    G.emit_list(fill.get(0, []))
    for i in range(0, 4): ex(i)
    I(f"v_mfma_f32_32x32x8_bf16 {v(r.S[Y],16)}, {R(r.K2(kS),2)}, {v(r.Q2[Y],2)}, {v(r.S[Y],16)}")
    G.emit_list(fill.get(1, []))
    for i in range(4, 8): ex(i)
    cv(0); cv(1)
    if doPV2:
        I(f"v_mfma_f32_32x32x16_bf16 {v(r.O[Y],16)}, {R(r.V2(kV2),4)}, {v(r.P[Y]+4,4)}, {v(r.O[Y],16)}")
    G.emit_list(fill.get(2, []))
    cv(2); cv(3)
    for i in range(8, 12): ex(i)
    I(f"v_mfma_f32_32x32x16_bf16 {v(r.O[X],16)}, {R(r.V1(kV1),4)}, {v(P,4)}, {'0' if zeroO else v(r.O[X],16)}")
    G.emit_list(fill.get(3, []))
    for i in range(12, 16): ex(i)
    for i in range(4, 8): cv(i)

def place(fa, fb, items, slots):
    items = list(items)
    n = len(slots)
    per = -(-len(items) // n)
    k = 0
    for sl in slots:
        cnt = len(items) - (n - 1 - k) * per if False else min(per, len(items))
        tgt = (fa if sl[0] == 0 else fb).setdefault(sl[1], [])
        take = []
        while items and len(take) < per:
            take.append(items.pop(0))
        tgt.extend(take)
        k += 1
    assert not items

FULL = [(0, 0), (0, 2), (0, 3), (1, 0), (1, 2), (1, 3), (0, 1), (1, 1)]
ORD = [(0, 0), (0, 1), (0, 2), (0, 3), (1, 0), (1, 1), (1, 2), (1, 3)]

def S_(txt): return [("s", x.strip()) for x in txt.split("\n") if x.strip()]

def q_reads(r, X):
    return [f"ds_read_b128 {v(r.Q1[X],4)}, {v(r.aQ1)} offset:{X*QST_Q}",
            f"ds_read_b64 {v(r.Q2[X],2)}, {v(r.aQ2)} offset:{X*QST_Q + 1024}"]

def emit_att_pre(G, r, lane, wave_s, qst, red):
    I = G.I
    I(f"s_add_u32 s63, {s(wave_s)}, 1\ns_and_b32 s63, s63, 3")
    I(f"s_mul_i32 s61, s63, {2*QST_Q}\ns_add_u32 s61, s61, {qst}")
    I(f"v_lshl_add_u32 {v(r.aQ1)}, {v(lane)}, 4, s61")
    I(f"v_lshl_add_u32 {v(r.aQ2)}, {v(lane)}, 3, s61")
    for x in q_reads(r, 0) + q_reads(r, 1): I(x)
    for k in range(NT): I(f"v_accvgpr_write_b32 {R(r.K2(k)+1)}, s58")
    I(f"s_mov_b32 s57, {red}")

def emit_att_main(G, r, lane, wave_s, qst, kvsrd, kvflags, nfirst, p0_tail, p1_items, loop_extras, between01=None):
    I = G.I; vm = G.vm
    def next_q_addr():
        return [f"s_mul_i32 s61, s63, {6*RED_Q}", "s_add_u32 s61, s61, s57",
                f"v_lshl_add_u32 {v(r.aR)}, {v(lane)}, 4, s61",
                f"s_add_u32 s57, s57, {2*RED_Q}",
                "s_add_u32 s63, s63, 1", "s_and_b32 s63, s63, 3",
                f"s_mul_i32 s61, s63, {2*QST_Q}", f"s_add_u32 s61, s61, {qst}",
                f"v_lshl_add_u32 {v(r.aQ1)}, {v(lane)}, 4, s61",
                f"v_lshl_add_u32 {v(r.aQ2)}, {v(lane)}, 3, s61"]
    for k in range(nfirst): G.emit_list(kv_items(r, kvsrd, kvflags, k))
    vm.wait(("kv", 0))
    I("s_waitcnt lgkmcnt(0)")
    I(f"v_mfma_f32_32x32x16_bf16 {v(r.S[0],16)}, {R(r.K1(0),4)}, {v(r.Q1[0],4)}, 0")
    I(f"v_mfma_f32_32x32x8_bf16 {v(r.S[0],16)}, {R(r.K2(0),2)}, {v(r.Q2[0],2)}, {v(r.S[0],16)}")
    def sends(X):
        return [f"ds_write_b128 {v(r.aR)}, {v(r.O[X]+4*i,4)} offset:{X*RED_Q + i*1024}" for i in range(3)]
    def one_pass(pn):
        first = pn == 0
        for t in range(NT):
            fa = {}; fb = {}
            if t == 0 and not first:
                w = sends(0); fa[0] = S_(w[0]); fa[1] = S_(w[1]); fa[2] = S_(w[2])
                w = sends(1); fb[0] = S_(w[0]); fb[1] = S_(w[1]); fb[2] = S_(w[2])
                fa['pre0'] = S_("s_waitcnt lgkmcnt(0)")
            if t == NT - 2:
                n = next_q_addr()
                place(fa, fb, S_("\n".join(n)), ORD[2:])
            if t == NT - 1:
                q = q_reads(r, 0); fa[0] = S_(q[0]); fa[1] = S_(q[1])
                q = q_reads(r, 1); fa[2] = S_(q[0]); fa[3] = S_(q[1])
                fb['pre0'] = S_("s_waitcnt lgkmcnt(2)")
            if first and t + nfirst < NT:
                it = kv_items(r, kvsrd, kvflags, t + nfirst)
                place(fa, fb, it, [(0, 0), (0, 1), (0, 2), (0, 3), (1, 0)])
            if first and t + 1 < NT: fb['pre0'] = fb.get('pre0', []) + [("w", ("kv", t + 1))]
            if first and t in p0_tail: place(fa, fb, p0_tail[t], ORD)
            if pn == 1 and 1 <= t < NT - 2 and p1_items:
                left = NT - 2 - t
                nv = sum(1 for it in p1_items if it[0] == "v")
                place(fa, fb, G.take(p1_items, -(-nv // left)), ORD[:4] if t in loop_extras else [(0, 0), (0, 2), (0, 3), (1, 0), (1, 2)])
            if not first and t in loop_extras:
                place(fa, fb, S_("\n".join(loop_extras[t])), ORD[4:] if pn == 1 else ORD)
            half_step(G, r, 0, t, (t - 1) % NT, t, fa, zeroO=(t == 0), doPV2=not (first and t == 0))
            half_step(G, r, 1, (t + 1) % NT, t, t, fb, zeroO=(t == 0))
    I("s_nop 7\ns_nop 2")
    one_pass(0)
    if between01: between01()
    one_pass(1)
    lab = G.A.newlabel("att")
    I("s_mov_b32 s62, 2")
    I(".p2align 6")
    G.A.L(lab)
    one_pass(2)
    I(f"s_sub_u32 s62, s62, 1\ns_cmp_lg_u32 s62, 0\ns_cbranch_scc1 {lab}")
    I(f"v_mfma_f32_32x32x16_bf16 {v(r.O[1],16)}, {R(r.V2(NT-1),4)}, {v(r.P[1]+4,4)}, {v(r.O[1],16)}")
    return lab

def emit_att_reduce(G, r, lane, wave_s, red):
    I = G.I
    I(f"s_mul_i32 s61, {s(wave_s)}, {6*RED_Q}\ns_add_u32 s61, s61, {red}")
    I(f"v_lshl_add_u32 {v(r.aR)}, {v(lane)}, 4, s61")
    I("s_waitcnt lgkmcnt(0)\ns_barrier")
    st = r.S[0]
    assert r.S[1] == r.S[0] + 16
    stage = [st, st + 12, r.P[0]]
    for X in range(2):
        for p in range(3):
            for i in range(3):
                I(f"ds_read_b128 {v(stage[p]+4*i,4)}, {v(r.aR)} offset:{p*2*RED_Q + X*RED_Q + i*1024}")
        for p in range(3):
            I(f"s_waitcnt lgkmcnt({6-3*p})")
            for i in range(0, 12, 2):
                I(f"v_pk_add_f32 {v(r.O[X]+i,2)}, {v(r.O[X]+i,2)}, {v(stage[p]+i,2)}")

def emit_att_finish(G, r, osrd, ooff_v, ooff2_v, stflags, qstride):
    I = G.I; t = r.t
    I("s_mov_b64 s[64:65], 0")
    for X in range(2):
        O = r.O[X]
        I(f"v_mov_b32 {v(t)}, {v(O+8)}\nv_mov_b32 {v(t+1)}, {v(O+8)}")
        I(f"v_permlane32_swap_b32 {v(t)}, {v(t+1)}")
        I(f"v_med3_f32 {v(t+2)}, {v(t+1)}, s66, {v(t+7)}")
        I(f"v_rcp_f32 {v(t)}, {v(t+1)}")
        I(f"v_cmp_neq_f32 vcc, {v(t+2)}, {v(t+1)}")
        for i in range(0, 12, 2):
            I(f"v_pk_mul_f32 {v(O+i,2)}, {v(t,2)}, {v(O+i,2)} op_sel_hi:[0,1]")
        I("s_or_b64 s[64:65], s[64:65], vcc")
        for i in range(6):
            I(f"v_cvt_pk_bf16_f32 {v(r.P[X]+i)}, {v(O+2*i)}, {v(O+2*i+1)}")
        I(f"s_mov_b32 s61, {X*qstride}")
        G.vm.issue(f"buffer_store_dwordx4 {v(r.P[X],4)}, {v(ooff_v)}, {s(osrd,4)}, s61 offen {stflags}", "st")
        I("s_mov_b64 exec, 0xffffffff")
        G.vm.issue(f"buffer_store_dwordx2 {v(r.P[X]+4,2)}, {v(ooff2_v)}, {s(osrd,4)}, s61 offen {stflags}", "st")
        I("s_mov_b64 exec, -1")
        I(f"v_add_f32 {v(t+2)}, abs({v(O)}), abs({v(O+1)})")
        for i in range(2, 8): I(f"v_add_f32 {v(t+2)}, {v(t+2)}, abs({v(O+i)})")
        I(f"v_add_f32 {v(t+3)}, abs({v(O+8)}), abs({v(O+9)})")
        I(f"v_add_f32 {v(t+4)}, abs({v(O+10)}), abs({v(O+11)})")
        I(f"v_add_f32 {v(t+3)}, {v(t+3)}, {v(t+4)}")
        I(f"v_cmp_class_f32 vcc, {v(t+2)}, {v(t+6)}")
        I("s_or_b64 s[64:65], s[64:65], vcc")
        I(f"v_cmp_class_f32 vcc, {v(t+3)}, {v(t+6)}")
        I("s_or_b32 s64, s64, vcc_lo")

def emit_att_truemax(G, r, lane, wave_s, qst, mx):
    I = G.I; t = r.t
    lab = G.A.newlabel("mx")
    I(f"s_mov_b32 s62, 0")
    G.A.L(lab)
    I(f"s_mul_i32 s61, s62, {QST_Q}\ns_add_u32 s61, s61, {qst}")
    I(f"v_lshl_add_u32 {v(r.aQ1)}, {v(lane)}, 4, s61\nv_lshl_add_u32 {v(r.aQ2)}, {v(lane)}, 3, s61")
    for x in q_reads(r, 0): I(x)
    I(f"v_mov_b32 {v(t)}, 0xff800000")
    I("s_waitcnt lgkmcnt(0)")
    for k in range(NT):
        S = r.S[k % 2]
        I(f"v_mfma_f32_32x32x16_bf16 {v(S,16)}, {R(r.K1(k),4)}, {v(r.Q1[0],4)}, 0")
        I(f"v_mfma_f32_32x32x8_bf16 {v(S,16)}, {R(r.K2(k),2)}, {v(r.Q2[0],2)}, {v(S,16)}")
        for i in range(0, 16, 2): I(f"v_max3_f32 {v(t)}, {v(t)}, {v(S+i)}, {v(S+i+1)}")
    I(f"v_mov_b32 {v(t+1)}, {v(t)}\nv_permlane32_swap_b32 {v(t)}, {v(t+1)}\nv_max_f32 {v(t)}, {v(t)}, {v(t+1)}")
    I(f"s_lshl_b32 s61, s62, 2\ns_add_u32 s61, s61, {s(wave_s)}\ns_lshl_b32 s61, s61, 8\ns_add_u32 s61, s61, {mx}")
    I(f"v_lshl_add_u32 {v(t+2)}, {v(lane)}, 2, s61\nds_write_b32 {v(t+2)}, {v(t)}")
    I(f"s_add_u32 s62, s62, 1\ns_cmp_lt_u32 s62, 8\ns_cbranch_scc1 {lab}")
    G.loops[lab] = 1
    I("s_waitcnt lgkmcnt(0)\ns_barrier")
    I(f"s_lshl_b32 s61, {s(wave_s)}, 11\ns_add_u32 s61, s61, {mx}\nv_lshl_add_u32 {v(t+2)}, {v(lane)}, 2, s61")
    I(f"s_mul_i32 s61, {s(wave_s)}, {2*QST_Q}\ns_add_u32 s61, s61, {qst + 1024 + 4}\nv_lshl_add_u32 {v(r.aQ2)}, {v(lane)}, 3, s61")
    I(f"v_cmp_lt_u32 s[64:65], 31, {v(lane)}")
    S = r.S[0]
    for X in range(2):
        for w in range(4): I(f"ds_read_b32 {v(S+w)}, {v(t+2)} offset:{X*1024 + w*256}")
        I("s_waitcnt lgkmcnt(0)")
        I(f"""v_max_f32 {v(S)}, {v(S)}, {v(S+1)}
        v_max3_f32 {v(S)}, {v(S)}, {v(S+2)}, {v(S+3)}
        v_sub_f32 {v(S)}, 0, {v(S)}
        v_and_b32 {v(S+1)}, 0xffff0000, {v(S)}
        v_sub_f32 {v(S)}, {v(S)}, {v(S+1)}
        v_and_b32 {v(S+2)}, 0xffff0000, {v(S)}
        v_sub_f32 {v(S)}, {v(S)}, {v(S+2)}
        v_lshrrev_b32 {v(S+1)}, 16, {v(S+1)}
        v_or_b32 {v(S+1)}, {v(S+1)}, {v(S+2)}
        v_lshrrev_b32 {v(S)}, 16, {v(S)}
        v_cndmask_b32 {v(S)}, {v(S+1)}, {v(S)}, s[64:65]
        ds_write_b32 {v(r.aQ2)}, {v(S)} offset:{X*QST_Q}""")
    I("s_waitcnt lgkmcnt(0)\ns_barrier")
```

```python
import numpy as np
T, D, F, H, DH = 2048, 640, 1728, 32, 20
KB = 1024
_off = 0
def _alloc(n, al=4096):
    global _off
    _off = (_off + al - 1) // al * al
    r = _off; _off += n; return r
EPOCH = _alloc(4096)
XCCW = _alloc(4096)
FL_PREP = _alloc(4096)
FL_WQ = _alloc(4096)
WQF = _alloc(8 * 120 * KB)
CSQP = _alloc(8 * 20 * 384)
WOF = _alloc(800 * KB)
W2F = _alloc(2240 * KB)
W1F = _alloc(2240 * KB)
CS1P = _alloc(16 * 20 * 448)
XTS = 20 * KB
HTS = 56 * KB
KVT = 2816
PROF = _alloc(256 * 4 * 256)
LBASE = _alloc(0)
KVB = _alloc(64 * KVT)
FL_KV = _alloc(4096); FL_O = _alloc(4096); FL_X1 = _alloc(4096); FL_H = _alloc(4096); FL_XIN = _alloc(4096)
LS = _alloc(0) - LBASE
_alloc(LS)
GBASE = _alloc(0)
OFB = _alloc(16 * XTS)
XMID = _alloc(16 * XTS)
HFB = _alloc(16 * HTS)
STATIN = _alloc(16 * 4096)
STATMID = _alloc(16 * 4096)
GS = _alloc(0) - GBASE
XIN = OFB
WS_USED = GBASE + 8 * GS
KV = [KVB, KVB + LS]
def gather_groups(read, base, ts):
    return np.concatenate([read(base + g * GS, 16 * ts) for g in range(8)])

def realtile(sl, t):
    if sl < 12: return 7 * sl + t
    return 84 + 6 * (sl - 12) + t if t < 6 else -1

def xk(w, s, u):
    if s < 2: return 160 * w + 16 * (2 * s + u)
    if s == 2: return 160 * w + 80 * u + 64
    return 160 * w + 80 + 16 * (2 * (s - 3) + u)

def ok_row(w, s, u, g):
    if s < 2: return 20 * (8 * w + 2 * s + (g >> 1)) + 8 * u + 4 * (g & 1)
    if s == 2: return 20 * (4 * (2 * w + u) + g) + 16
    return 20 * (8 * w + 4 + 2 * (s - 3) + (g >> 1)) + 8 * u + 4 * (g & 1)

def hk_tile(w, s, u):
    q = 2 * w + (1 if s >= 7 else 0); sp = s % 7
    if sp < 3: return realtile(2 * q, 2 * sp + u)
    if sp == 3: return realtile(2 * q + u, 6)
    return realtile(2 * q + 1, 2 * (sp - 4) + u)

def bf16_round(x):
    x = np.ascontiguousarray(x, dtype=np.float32)
    u = x.view(np.uint32)
    return ((u + 0x7FFF + ((u >> 16) & 1)) >> 16).astype(np.uint16)
def bf16_to_f32(u):
    return (np.asarray(u).astype(np.uint32) << 16).view(np.float32)

def frag(W, rows, cols):
    out = np.zeros((64, 8), dtype=np.uint16)
    for l in range(64):
        rho, g = l & 15, l >> 4
        if cols[rho] < 0: continue
        for u in range(2):
            if rows[u][g] < 0: continue
            out[l, 4*u:4*u+4] = W[rows[u][g]:rows[u][g] + 4, cols[rho]]
    return out

def q_cols(j, ft): return [20 * (4 * j + (r >> 2)) + 4 * ft + (r & 3) for r in range(16)]
def k_cols(ft):
    o = []
    for r in range(16):
        ga, rr = r >> 2, r & 3
        if ga < 2: o.append(8 * ga + 4 * ft + rr)
        elif ga == 2 and ft == 0: o.append(16 + rr)
        else: o.append(-1)
    return o
def v_cols(ft): return [r if ft == 0 else (16 + r if r < 4 else -1) for r in range(16)]
def f_cols(jp, ft):
    rt = realtile(jp, ft)
    return [16 * rt + r if rt >= 0 else -1 for r in range(16)]

def exp_wqf(wq):
    o = np.zeros((8, 4, 5, 5, 64, 8), dtype=np.uint16)
    for j in range(8):
        for w in range(4):
            for s in range(5):
                rows = [[xk(w, s, u) + 4 * g for g in range(4)] for u in range(2)]
                for ft in range(5): o[j, w, s, ft] = frag(wq, rows, q_cols(j, ft))
    return o
def exp_wqf6(wq, wk, wv):
    o = np.zeros((8, 4, 5, 6, 64, 8), dtype=np.uint16)
    for j in range(8):
        for w in range(4):
            for s in range(5):
                rows = [[xk(w, s, u) + 4 * g for g in range(4)] for u in range(2)]
                for ft in range(5): o[j, w, s, ft] = frag(wq, rows, q_cols(j, ft))
                o[j, w, s, 5] = frag(wv if j & 2 else wk, rows, v_cols(j & 1))
    return o
def exp_wkvf(wk, wv):
    o = np.zeros((2, 4, 5, 2, 64, 8), dtype=np.uint16)
    for w in range(4):
        for s in range(5):
            rows = [[xk(w, s, u) + 4 * g for g in range(4)] for u in range(2)]
            for ft in range(2):
                o[0, w, s, ft] = frag(wk, rows, k_cols(ft)); o[1, w, s, ft] = frag(wv, rows, v_cols(ft))
    return o
def exp_wof(wo):
    o = np.zeros((8, 4, 5, 5, 64, 8), dtype=np.uint16)
    for j in range(8):
        for w in range(4):
            for s in range(5):
                rows = [[ok_row(w, s, u, g) for g in range(4)] for u in range(2)]
                for ft in range(5): o[j, w, s, ft] = frag(wo, rows, [80 * j + 16 * ft + r for r in range(16)])
    return o
def exp_w2f(w2):
    o = np.zeros((8, 4, 14, 5, 64, 8), dtype=np.uint16)
    for j in range(8):
        for w in range(4):
            for s in range(14):
                rows = [[(16 * hk_tile(w, s, u) + 4 * g) if hk_tile(w, s, u) >= 0 else -1 for g in range(4)] for u in range(2)]
                for ft in range(5): o[j, w, s, ft] = frag(w2, rows, [80 * j + 16 * ft + r for r in range(16)])
    return o
def exp_w1f(w1):
    o = np.zeros((16, 4, 5, 7, 64, 8), dtype=np.uint16)
    for jp in range(16):
        for w in range(4):
            for s in range(5):
                rows = [[xk(w, s, u) + 4 * g for g in range(4)] for u in range(2)]
                for ft in range(7): o[jp, w, s, ft] = frag(w1, rows, f_cols(jp, ft))
    return o

def x_index():
    idx = np.zeros((T, D), dtype=np.int64)
    tok = np.arange(T); base = (tok >> 4) * XTS; t16 = tok & 15
    for f in range(D):
        j, rem = divmod(f, 80); ft, rr = divmod(rem, 16); g, r = divmod(rr, 4)
        m = j >> 1
        if ft < 4:
            off = base + (5 * m + (3 if j & 1 else 0) + (ft >> 1)) * 1024 + (g * 16 + t16) * 16 + ((ft & 1) * 4 + r) * 2
        else:
            off = base + (5 * m + 2) * 1024 + (g * 16 + t16) * 16 + (j & 1) * 8 + r * 2
        idx[:, f] = off // 2
    return idx
def o_index():
    idx = np.zeros((T, D), dtype=np.int64)
    tok = np.arange(T); tt = tok >> 4; t16 = tok & 15
    for head in range(32):
        j = head >> 2; hh = head & 3; m = j >> 1
        for dh in range(20):
            if dh < 16:
                jj = dh >> 3; h = (dh >> 2) & 1; i = dh & 3
                off = tt*XTS + (5*m + (3 if j & 1 else 0) + (hh >> 1))*1024 + ((2*(hh & 1) + h)*16 + t16)*16 + (jj*4 + i)*2
            else:
                off = tt*XTS + (5*m + 2)*1024 + (hh*16 + t16)*16 + (j & 1)*8 + (dh - 16)*2
            idx[:, head*20 + dh] = off // 2
    return idx
def h_index():
    idx = np.zeros((T, F), dtype=np.int64)
    tok = np.arange(T); base = (tok >> 4) * HTS; t16 = tok & 15
    for sl in range(16):
        q = sl >> 1
        for t in range(7):
            rt = realtile(sl, t)
            if rt < 0: continue
            for rr in range(16):
                g, r = divmod(rr, 4)
                if t < 6:
                    off = base + (7 * q + (4 if sl & 1 else 0) + (t >> 1)) * 1024 + (g * 16 + t16) * 16 + ((t & 1) * 4 + r) * 2
                else:
                    off = base + (7 * q + 3) * 1024 + (g * 16 + t16) * 16 + (sl & 1) * 8 + r * 2
                idx[:, 16 * rt + rr] = off // 2
    return idx
def kv_decode(img):
    K = np.zeros((T, 20), dtype=np.uint16); V = np.zeros((T, 21), dtype=np.uint16)
    for t in range(64):
        for key in range(32):
            for h in range(2):
                l = h * 32 + key
                K[32*t+key, 8*h:8*h+8] = img[t, l*8:l*8+8]
                K[32*t+key, 16+2*h:18+2*h] = img[t, 512 + key*4 + h*2: 512 + key*4 + h*2 + 2]
        for mf in range(2):
            for h in range(2):
                for dh in range(21):
                    base = 640 + mf*384 + h*192 + dh*8
                    for sl in range(8):
                        V[32*t + 16*mf + 8*(sl >> 2) + 4*h + (sl & 3), dh] = img[t, base + sl]
    return K, V
if __name__ == "__main__":
    print("ws used", WS_USED)
```

```python
from asmlib import *
import layout as L

BIG = 0x40000000
PREP_WGS = 569

def srd(A, d, ptr, size):
    A.I(f"s_mov_b32 {s(d)}, {s(ptr)}\ns_mov_b32 {s(d+1)}, {s(ptr+1)}\ns_mov_b32 {s(d+2)}, {size}\ns_mov_b32 {s(d+3)}, 0x20000")

HI = 64
def gather(A, dst, a0, a1, src, pitch2_s, pitch, imm=0):
    for u, ad in enumerate((a0, a1)):
        for r in range(4):
            so = s(pitch2_s) if r >= 2 else "0"
            off = imm + (pitch if r & 1 else 0)
            assert off < 4096
            A.I(f"buffer_load_ushort {v(dst + 2*u + (r >> 1) + (HI if r & 1 else 0))}, {v(ad)}, {s(src,4)}, {so} offen offset:{off}")
def pack(A, dst, n):
    for i in range(n): A.I(f"v_lshl_or_b32 {v(dst+i)}, {v(dst+i+HI)}, 16, {v(dst+i)}")

def emit_xk(A, w, sidx, base, du):
    A.I(f"s_mul_i32 {s(base)}, {s(w)}, 160")
    A.I(f"s_lshl_b32 {s(du)}, {s(sidx)}, 5")
    A.I(f"s_add_u32 {s(base)}, {s(base)}, {s(du)}")
    A.I(f"s_cmp_gt_u32 {s(sidx)}, 2")
    A.I(f"s_cselect_b32 {s(du)}, 16, 0")
    A.I(f"s_sub_u32 {s(base)}, {s(base)}, {s(du)}")
    A.I(f"s_cmp_eq_u32 {s(sidx)}, 2")
    A.I(f"s_cselect_b32 {s(du)}, 80, 16")

def emit_realtile(A, sl, t, out, inv, tmp):
    A.I(f"s_mul_i32 {s(out)}, {s(sl)}, 7")
    A.I(f"s_mul_i32 {s(tmp)}, {s(sl)}, 6")
    A.I(f"s_add_u32 {s(tmp)}, {s(tmp)}, 12")
    A.I(f"s_cmp_lt_u32 {s(sl)}, 12")
    A.I(f"s_cselect_b32 {s(out)}, {s(out)}, {s(tmp)}")
    A.I(f"s_cselect_b32 {s(tmp)}, 7, 6")
    A.I(f"s_add_u32 {s(out)}, {s(out)}, {s(t)}")
    A.I(f"s_cmp_lt_u32 {s(t)}, {s(tmp)}")
    A.I(f"s_cselect_b32 {s(inv)}, 0, {BIG}")

def build_prep():
    A = Asm()
    A.I("""
    s_load_dwordx8 s[36:43], s[0:1], 0
    s_load_dwordx2 s[44:45], s[0:1], 32       ; wo
    s_load_dwordx2 s[46:47], s[0:1], 48       ; w1
    s_load_dwordx2 s[48:49], s[0:1], 64       ; w2
    s_load_dwordx2 s[50:51], s[0:1], 88       ; ws
    v_lshrrev_b32 v2, 6, v0
    v_and_b32 v0, 63, v0
    v_readfirstlane_b32 s20, v2
    v_lshlrev_b32 v1, 4, v0                   ; lane*16
    v_and_b32 v3, 15, v0                      ; rho
    v_lshrrev_b32 v4, 4, v0                   ; g
    s_lshl_b32 s21, s2, 2
    s_add_u32 s21, s21, s20                   ; unit
    s_waitcnt lgkmcnt(0)
    """)
    srd(A, 4, 50, L.WS_USED)
    srd(A, 16, 38, 640 * 640 * 2)
    END = "L_prep_end"
    def store_frags(n, dst_s, first=8):
        A.I("s_waitcnt vmcnt(0)")
        pack(A, first, 4 * n)
        for ft in range(n):
            if ft and ft % 4 == 0: A.I(f"s_add_u32 {s(dst_s)}, {s(dst_s)}, 4096")
            A.I(f"buffer_store_dwordx4 {v(first+4*ft,4)}, v1, s[4:7], {s(dst_s)} offen offset:{(ft%4)*1024}")
        A.I(f"s_branch {END}")
    def rows_addr(pitch, base, du, colv, inv0=None, inv1=None, lanepart=None):
        if lanepart is None:
            A.I("v_lshlrev_b32 v7, 2, v4"); lanepart = 7
        A.I(f"v_add_u32 v5, {s(base)}, {v(lanepart)}")
        A.I(f"s_mov_b32 s33, {pitch}")
        A.I(f"v_mul_lo_u32 v5, v5, s33")
        A.I(f"v_add_u32 v5, v5, {v(colv)}")
        A.I(f"s_mul_i32 s33, {s(du)}, {pitch}")
        A.I(f"v_add_u32 v6, s33, v5")
        if inv0 is not None: A.I(f"v_add_u32 v5, {s(inv0)}, v5")
        if inv1 is not None: A.I(f"v_add_u32 v6, {s(inv1)}, v6")
        A.I(f"s_mov_b32 s34, {2*pitch}")
    def dec3(sub, sh_hi, sbits, smax):
        A.I(f"s_sub_u32 s22, s21, {sub}")
        A.I(f"s_lshr_b32 s23, s22, {sh_hi}")
        A.I(f"s_lshr_b32 s24, s22, {sbits}\ns_and_b32 s24, s24, 3")
        A.I(f"s_and_b32 s25, s22, {(1 << sbits) - 1}")
        A.I(f"s_cmp_ge_u32 s25, {smax}")
        A.I(f"s_cbranch_scc1 {END}")
    for lim, lab in ((256, "wq"), (512, "wo"), (1024, "w2"), (1536, "w1"), (2048, "x"), (2080, "wkv"), (2144, "csq"), (2272, "cs1"), (2276, "cskv")):
        A.I(f"s_cmp_lt_u32 s21, {lim}\ns_cbranch_scc1 L_prep_{lab}")
    A.I(f"s_branch {END}")
    A.L("L_prep_wq")
    dec3(0, 5, 3, 5)
    srd(A, 16, 38, 640 * 640 * 2)
    emit_xk(A, 24, 25, 26, 27)
    A.I("""v_lshrrev_b32 v40, 2, v3
    v_mul_u32_u24 v40, 20, v40
    v_and_b32 v41, 3, v3
    v_add_u32 v40, v40, v41
    s_mul_i32 s28, s23, 80
    v_add_u32 v40, s28, v40
    v_lshlrev_b32 v40, 1, v40""")
    rows_addr(1280, 26, 27, 40)
    for ft in range(5): gather(A, 8 + 4 * ft, 5, 6, 16, 34, 1280, imm=8 * ft)
    A.I(f"s_lshl_b32 s29, s23, 2\ns_add_u32 s29, s29, s24\ns_mul_i32 s29, s29, 5\ns_add_u32 s29, s29, s25\ns_mul_i32 s29, s29, 5120\ns_add_u32 s29, s29, {L.WQF}")
    store_frags(5, 29)
    A.L("L_prep_wo")
    dec3(256, 5, 3, 5)
    srd(A, 16, 44, 640 * 640 * 2)
    A.I("""s_mul_i32 s26, s24, 160
    s_mul_i32 s27, s25, 40
    s_cmp_gt_u32 s25, 2
    s_cselect_b32 s28, 40, 0
    s_sub_u32 s27, s27, s28
    s_cmp_eq_u32 s25, 2
    s_cselect_b32 s27, 16, s27
    s_add_u32 s26, s26, s27
    s_cmp_eq_u32 s25, 2
    s_cselect_b32 s27, 80, 8
    s_cselect_b64 s[30:31], -1, 0
    v_lshrrev_b32 v42, 1, v4
    v_mul_u32_u24 v42, 20, v42
    v_and_b32 v43, 1, v4
    v_lshl_add_u32 v42, v43, 2, v42
    v_mul_u32_u24 v43, 20, v4
    v_cndmask_b32 v42, v42, v43, s[30:31]
    s_mul_i32 s28, s23, 80
    v_add_u32 v40, s28, v3
    v_lshlrev_b32 v40, 1, v40""")
    rows_addr(1280, 26, 27, 40, lanepart=42)
    for ft in range(5): gather(A, 8 + 4 * ft, 5, 6, 16, 34, 1280, imm=32 * ft)
    A.I(f"s_lshl_b32 s29, s23, 2\ns_add_u32 s29, s29, s24\ns_mul_i32 s29, s29, 5\ns_add_u32 s29, s29, s25\ns_mul_i32 s29, s29, 5120\ns_add_u32 s29, s29, {L.WOF}")
    store_frags(5, 29)
    A.L("L_prep_w2")
    dec3(512, 6, 4, 14)
    srd(A, 16, 48, 1728 * 640 * 2)
    A.I("""s_cmp_ge_u32 s25, 7
    s_cselect_b32 s26, 1, 0
    s_cselect_b32 s27, 7, 0
    s_sub_u32 s27, s25, s27            ; sp
    s_lshl_b32 s28, s24, 1
    s_add_u32 s26, s26, s28            ; q
    s_lshl_b32 s26, s26, 1             ; 2q""")
    for u in range(2):
        A.I(f"""s_cmp_gt_u32 s27, 3
        s_cselect_b32 s52, 1, 0
        s_cselect_b32 s53, 4, 0
        s_sub_u32 s53, s27, s53
        s_lshl_b32 s53, s53, 1
        s_add_u32 s53, s53, {u}
        s_cmp_eq_u32 s27, 3
        s_cselect_b32 s52, {u}, s52
        s_cselect_b32 s53, 6, s53
        s_add_u32 s52, s52, s26""")
        emit_realtile(A, 52, 53, 54 + u, 56 + u, 58)
    A.I("""s_lshl_b32 s54, s54, 4
    s_lshl_b32 s55, s55, 4
    s_sub_u32 s55, s55, s54
    s_mul_i32 s28, s23, 80
    v_add_u32 v40, s28, v3
    v_lshlrev_b32 v40, 1, v40""")
    rows_addr(1280, 54, 55, 40, inv0=56, inv1=57)
    for ft in range(5): gather(A, 8 + 4 * ft, 5, 6, 16, 34, 1280, imm=32 * ft)
    A.I(f"s_lshl_b32 s29, s23, 2\ns_add_u32 s29, s29, s24\ns_mul_i32 s29, s29, 14\ns_add_u32 s29, s29, s25\ns_mul_i32 s29, s29, 5120\ns_add_u32 s29, s29, {L.W2F}")
    store_frags(5, 29)
    A.L("L_prep_w1")
    dec3(1024, 5, 3, 5)
    srd(A, 16, 46, 640 * 1728 * 2)
    emit_xk(A, 24, 25, 26, 27)
    A.I("s_mov_b32 s53, 0")
    emit_realtile(A, 23, 53, 54, 56, 58)
    A.I("s_mov_b32 s53, 6")
    emit_realtile(A, 23, 53, 55, 57, 58)
    A.I("s_lshl_b32 s54, s54, 4\nv_add_u32 v40, s54, v3\nv_lshlrev_b32 v40, 1, v40")
    rows_addr(3456, 26, 27, 40)
    for ft in range(6): gather(A, 8 + 4 * ft, 5, 6, 16, 34, 3456, imm=32 * ft)
    A.I("v_add_u32 v44, s57, v5\nv_add_u32 v45, s57, v6")
    gather(A, 8 + 24, 44, 45, 16, 34, 3456, imm=32 * 6)
    A.I(f"s_lshl_b32 s29, s23, 2\ns_add_u32 s29, s29, s24\ns_mul_i32 s29, s29, 5\ns_add_u32 s29, s29, s25\ns_mul_i32 s29, s29, 7168\ns_add_u32 s29, s29, {L.W1F}")
    store_frags(7, 29)
    def kv_cols():
        A.I(f"""v_lshrrev_b32 v42, 2, v3
        v_and_b32 v43, 3, v3
        v_lshl_add_u32 v46, v42, 3, v43
        v_add_u32 v47, 4, v46
        v_lshlrev_b32 v46, 1, v46
        v_lshlrev_b32 v47, 1, v47
        v_mov_b32 v50, {BIG}
        v_cmp_lt_u32 vcc, 2, v42
        v_cndmask_b32 v46, v46, v50, vcc
        v_cmp_lt_u32 vcc, 1, v42
        v_cndmask_b32 v47, v47, v50, vcc
        v_lshlrev_b32 v48, 1, v3
        v_add_u32 v49, 32, v48
        v_cmp_lt_u32 vcc, 3, v3
        v_cndmask_b32 v49, v49, v50, vcc""")
    A.L("L_prep_wkv")
    dec3(2048, 5, 3, 5)
    emit_xk(A, 24, 25, 26, 27)
    kv_cols()
    for mat in range(2):
        srd(A, 16, 40 + 2 * mat, 640 * 20 * 2)
        for ft in range(2):
            rows_addr(40, 26, 27, 46 + 2 * mat + ft)
            gather(A, 8 + 8 * mat + 4 * ft, 5, 6, 16, 34, 40)
    A.I(f"s_mul_i32 s29, s24, 5\ns_add_u32 s29, s29, s25\ns_lshl_b32 s29, s29, 11\ns_add_u32 s29, s29, {L.WKVF}")
    A.I("s_waitcnt vmcnt(0)")
    pack(A, 8, 16)
    for mat in range(2):
        for ft in range(2):
            A.I(f"buffer_store_dwordx4 {v(8+8*mat+4*ft,4)}, v1, s[4:7], s29 offen offset:{ft*1024}")
        A.I(f"s_add_u32 s29, s29, {40*1024}")
    A.I(f"s_branch {END}")
    A.L("L_prep_x")
    srd(A, 16, 36, 2048 * 640 * 2)
    A.I("""s_sub_u32 s22, s21, 1536
    s_lshr_b32 s23, s22, 2             ; tt
    s_and_b32 s24, s22, 3              ; m
    s_lshl_b32 s25, s23, 4
    v_add_u32 v5, s25, v3              ; token
    s_movk_i32 s33, 1280
    v_mul_lo_u32 v5, v5, s33
    v_lshl_add_u32 v5, v4, 3, v5       ; + 4g*2
    s_mul_i32 s26, s24, 320""")
    for e in range(2):
        for ft in range(5):
            A.I(f"buffer_load_dwordx2 {v(8+12*e+2*ft,2)}, v5, s[16:19], s26 offen offset:{e*160+ft*32}")
    A.I(f"s_mul_i32 s29, s23, {L.XTS}\ns_mul_i32 s27, s24, 5120\ns_add_u32 s29, s29, s27\ns_add_u32 s29, s29, {L.XF[0]}")
    A.I("v_lshlrev_b32 v2, 3, v0\ns_add_u32 s28, s29, 3072")
    A.I("s_waitcnt vmcnt(0)")
    for e in range(2):
        b = 8 + 12 * e; so = "s28" if e else "s29"
        A.I(f"buffer_store_dwordx4 {v(b,4)}, v1, s[4:7], {so} offen")
        A.I(f"buffer_store_dwordx4 {v(b+4,4)}, v1, s[4:7], {so} offen offset:1024")
        A.I(f"buffer_store_dwordx2 {v(b+8,2)}, v2, s[4:7], s29 offen offset:{2048+512*e}")
    A.I(f"""s_lshl_b32 s25, s23, 3
    s_lshl_b32 s27, s24, 1
    s_add_u32 s25, s25, s27            ; tt*8 + 2m
    s_lshl_b32 s25, s25, 9
    s_add_u32 s25, s25, {L.STAT[0]}
    v_lshlrev_b32 v42, 5, v3
    v_lshl_add_u32 v42, v4, 3, v42""")
    for e in range(2):
        b = 8 + 12 * e
        emit_stats_packed(A, b, 10, 40, 44)
        A.I(f"buffer_store_dwordx2 v[40:41], v42, s[4:7], s25 offen offset:{512*e}")
        A.I("s_nop 1")
    A.I(f"s_branch {END}")
    def colsum(pitch, colv, dst_s):
        A.I("v_lshlrev_b32 v7, 3, v4\ns_mov_b32 s26, 0\ns_mov_b32 s27, 4")
        rows_addr(pitch, 26, 27, colv, lanepart=7)
        A.I("v_mov_b32 v116, 0x3f803f80\nv_mov_b32 v117, 0x3f803f80\nv_mov_b32 v118, 0x3f803f80\nv_mov_b32 v119, 0x3f803f80")
        for half in range(4):
            for k in range(5):
                gather(A, 8 + 4 * k, 5, 6, 16, 34, pitch)
                A.I(f"v_add_u32 v5, {32*pitch}, v5\nv_add_u32 v6, {32*pitch}, v6")
            A.I("s_waitcnt vmcnt(0)")
            pack(A, 8, 20)
            for k in range(5):
                A.I(f"v_mfma_f32_16x16x32_bf16 v[112:115], {v(8+4*k,4)}, v[116:119], {'0' if half == 0 and k == 0 else 'v[112:115]'}")
        A.I("v_lshlrev_b32 v7, 4, v4")
        A.I("s_mov_b32 s30, 0x00010001\ns_mov_b32 s31, 0x00010001\ns_mov_b64 exec, s[30:31]")
        A.I(f"buffer_store_dwordx4 v[112:115], v7, s[4:7], {s(dst_s)} offen")
        A.I(f"s_branch {END}")
    A.L("L_prep_csq")
    srd(A, 16, 38, 640 * 640 * 2)
    A.I(f"""s_sub_u32 s22, s21, 2080
    s_lshr_b32 s23, s22, 3
    s_and_b32 s25, s22, 7
    s_cmp_ge_u32 s25, 5
    s_cbranch_scc1 {END}
    v_lshrrev_b32 v40, 2, v3
    v_mul_u32_u24 v40, 20, v40
    v_and_b32 v41, 3, v3
    v_add_u32 v40, v40, v41
    s_mul_i32 s28, s23, 80
    s_lshl_b32 s29, s25, 2
    s_add_u32 s28, s28, s29
    v_add_u32 v40, s28, v40
    v_lshlrev_b32 v40, 1, v40
    s_mul_i32 s29, s23, 5
    s_add_u32 s29, s29, s25
    s_lshl_b32 s29, s29, 6
    s_add_u32 s29, s29, {L.CSQ}""")
    colsum(1280, 40, 29)
    A.L("L_prep_cs1")
    srd(A, 16, 46, 640 * 1728 * 2)
    A.I(f"""s_sub_u32 s22, s21, 2144
    s_lshr_b32 s23, s22, 3
    s_and_b32 s25, s22, 7
    s_cmp_ge_u32 s25, 7
    s_cbranch_scc1 {END}""")
    emit_realtile(A, 23, 25, 54, 56, 58)
    A.I(f"""s_lshl_b32 s54, s54, 4
    v_add_u32 v40, s54, v3
    v_lshlrev_b32 v40, 1, v40
    v_add_u32 v40, s56, v40
    s_mul_i32 s29, s23, 7
    s_add_u32 s29, s29, s25
    s_lshl_b32 s29, s29, 6
    s_add_u32 s29, s29, {L.CS1}""")
    colsum(3456, 40, 29)
    A.L("L_prep_cskv")
    kv_cols()
    A.I(f"""s_sub_u32 s22, s21, 2272
    s_cmp_ge_u32 s22, 2
    s_cselect_b32 s16, s42, s40
    s_cselect_b32 s17, s43, s41
    s_mov_b32 s18, {640*20*2}
    s_mov_b32 s19, 0x20000
    s_cselect_b64 s[30:31], -1, 0
    v_cndmask_b32 v46, v46, v48, s[30:31]
    v_cndmask_b32 v47, v47, v49, s[30:31]
    s_bitcmp1_b32 s22, 0
    s_cselect_b64 s[30:31], -1, 0
    v_cndmask_b32 v40, v46, v47, s[30:31]
    s_lshl_b32 s29, s22, 6
    s_add_u32 s29, s29, {L.CSKV}""")
    colsum(40, 40, 29)
    A.L(END)
    A.I("s_endpgm")
    A.pad_hazards()
    return A.text()

def emit_stats_packed(A, b, n, out, tmp):
    A.I(f"v_mov_b32 {v(out)}, 0\nv_mov_b32 {v(out+1)}, 0\nv_mov_b32 {v(tmp)}, 0x3f803f80")
    for i in range(n):
        A.I(f"v_dot2c_f32_bf16 {v(out)}, {v(b+i)}, {v(tmp)}")
        A.I(f"v_dot2c_f32_bf16 {v(out+1)}, {v(b+i)}, {v(b+i)}")

def emit_xg_reduce(A, regs, tmp):
    for op in ("v_permlane16_swap_b32", "v_permlane32_swap_b32"):
        for i, r in enumerate(regs): A.I(f"v_mov_b32 {v(tmp+i)}, {v(r)}")
        for i, r in enumerate(regs): A.I(f"{op} {v(r)}, {v(tmp+i)}")
        for i, r in enumerate(regs): A.I(f"v_add_f32 {v(r)}, {v(r)}, {v(tmp+i)}")

if __name__ == "__main__":
    t = build_prep()
    print(len(t.splitlines()), "lines")
```

```python
import numpy as np
T, D, F, H, DH = 2048, 640, 1728, 32, 20
KB = 1024
_off = 0
def _alloc(n, al=4096):
    global _off
    _off = (_off + al - 1) // al * al
    r = _off; _off += n; return r
EPOCH = _alloc(4096)
WQF = _alloc(800 * KB)
WKVF = _alloc(80 * KB)
WOF = _alloc(800 * KB)
W2F = _alloc(2240 * KB)
W1F = _alloc(2240 * KB)
CSQ = _alloc(8 * 5 * 16 * 4)
CSKV = _alloc(2 * 2 * 16 * 4)
CS1 = _alloc(16 * 7 * 16 * 4)
XTS = 20 * KB
HTS = 56 * KB
KVT = 2816
PROF = _alloc(256 * 4 * 256)
LBASE = _alloc(0)
XIN = _alloc(128 * XTS)
STATIN = _alloc(128 * 8 * 512)
KVB = _alloc(64 * KVT)
OFB = _alloc(128 * XTS)
XMID = _alloc(128 * XTS)
STATMID = _alloc(128 * 8 * 512)
HFB = _alloc(128 * HTS)
FL_KV = _alloc(4096); FL_O = _alloc(4096); FL_X1 = _alloc(4096); FL_H = _alloc(4096); FL_XIN = _alloc(4096)
LS = _alloc(0) - LBASE
WS_USED = LBASE + 2 * LS
XF = [XIN, XMID, XIN + LS, XMID + LS]
STAT = [STATIN, STATMID, STATIN + LS, STATMID + LS]
OF = [OFB, OFB + LS]; HF = [HFB, HFB + LS]; KV = [KVB, KVB + LS]

def realtile(sl, t):
    if sl < 12: return 7 * sl + t
    return 84 + 6 * (sl - 12) + t if t < 6 else -1

def xk(w, s, u):
    if s < 2: return 160 * w + 16 * (2 * s + u)
    if s == 2: return 160 * w + 80 * u + 64
    return 160 * w + 80 + 16 * (2 * (s - 3) + u)

def ok_row(w, s, u, g):
    if s < 2: return 20 * (8 * w + 2 * s + (g >> 1)) + 8 * u + 4 * (g & 1)
    if s == 2: return 20 * (4 * (2 * w + u) + g) + 16
    return 20 * (8 * w + 4 + 2 * (s - 3) + (g >> 1)) + 8 * u + 4 * (g & 1)

def hk_tile(w, s, u):
    q = 2 * w + (1 if s >= 7 else 0); sp = s % 7
    if sp < 3: return realtile(2 * q, 2 * sp + u)
    if sp == 3: return realtile(2 * q + u, 6)
    return realtile(2 * q + 1, 2 * (sp - 4) + u)

def bf16_round(x):
    x = np.ascontiguousarray(x, dtype=np.float32)
    u = x.view(np.uint32)
    return ((u + 0x7FFF + ((u >> 16) & 1)) >> 16).astype(np.uint16)
def bf16_to_f32(u):
    return (np.asarray(u).astype(np.uint32) << 16).view(np.float32)

def frag(W, rows, cols):
    out = np.zeros((64, 8), dtype=np.uint16)
    for l in range(64):
        rho, g = l & 15, l >> 4
        if cols[rho] < 0: continue
        for u in range(2):
            if rows[u][g] < 0: continue
            out[l, 4*u:4*u+4] = W[rows[u][g]:rows[u][g] + 4, cols[rho]]
    return out

def q_cols(j, ft): return [20 * (4 * j + (r >> 2)) + 4 * ft + (r & 3) for r in range(16)]
def k_cols(ft):
    o = []
    for r in range(16):
        ga, rr = r >> 2, r & 3
        if ga < 2: o.append(8 * ga + 4 * ft + rr)
        elif ga == 2 and ft == 0: o.append(16 + rr)
        else: o.append(-1)
    return o
def v_cols(ft): return [r if ft == 0 else (16 + r if r < 4 else -1) for r in range(16)]
def f_cols(jp, ft):
    rt = realtile(jp, ft)
    return [16 * rt + r if rt >= 0 else -1 for r in range(16)]

def exp_wqf(wq):
    o = np.zeros((8, 4, 5, 5, 64, 8), dtype=np.uint16)
    for j in range(8):
        for w in range(4):
            for s in range(5):
                rows = [[xk(w, s, u) + 4 * g for g in range(4)] for u in range(2)]
                for ft in range(5): o[j, w, s, ft] = frag(wq, rows, q_cols(j, ft))
    return o
def exp_wkvf(wk, wv):
    o = np.zeros((2, 4, 5, 2, 64, 8), dtype=np.uint16)
    for w in range(4):
        for s in range(5):
            rows = [[xk(w, s, u) + 4 * g for g in range(4)] for u in range(2)]
            for ft in range(2):
                o[0, w, s, ft] = frag(wk, rows, k_cols(ft)); o[1, w, s, ft] = frag(wv, rows, v_cols(ft))
    return o
def exp_wof(wo):
    o = np.zeros((8, 4, 5, 5, 64, 8), dtype=np.uint16)
    for j in range(8):
        for w in range(4):
            for s in range(5):
                rows = [[ok_row(w, s, u, g) for g in range(4)] for u in range(2)]
                for ft in range(5): o[j, w, s, ft] = frag(wo, rows, [80 * j + 16 * ft + r for r in range(16)])
    return o
def exp_w2f(w2):
    o = np.zeros((8, 4, 14, 5, 64, 8), dtype=np.uint16)
    for j in range(8):
        for w in range(4):
            for s in range(14):
                rows = [[(16 * hk_tile(w, s, u) + 4 * g) if hk_tile(w, s, u) >= 0 else -1 for g in range(4)] for u in range(2)]
                for ft in range(5): o[j, w, s, ft] = frag(w2, rows, [80 * j + 16 * ft + r for r in range(16)])
    return o
def exp_w1f(w1):
    o = np.zeros((16, 4, 5, 7, 64, 8), dtype=np.uint16)
    for jp in range(16):
        for w in range(4):
            for s in range(5):
                rows = [[xk(w, s, u) + 4 * g for g in range(4)] for u in range(2)]
                for ft in range(7): o[jp, w, s, ft] = frag(w1, rows, f_cols(jp, ft))
    return o

def x_index():
    idx = np.zeros((T, D), dtype=np.int64)
    tok = np.arange(T); base = (tok >> 4) * XTS; t16 = tok & 15
    for f in range(D):
        j, rem = divmod(f, 80); ft, rr = divmod(rem, 16); g, r = divmod(rr, 4)
        m = j >> 1
        if ft < 4:
            off = base + (5 * m + (3 if j & 1 else 0) + (ft >> 1)) * 1024 + (g * 16 + t16) * 16 + ((ft & 1) * 4 + r) * 2
        else:
            off = base + (5 * m + 2) * 1024 + (j & 1) * 512 + (g * 16 + t16) * 8 + r * 2
        idx[:, f] = off // 2
    return idx
def o_index():
    idx = np.zeros((T, D), dtype=np.int64)
    tok = np.arange(T); tt = tok >> 4; t16 = tok & 15
    for head in range(32):
        j = head >> 2; hh = head & 3; m = j >> 1
        for dh in range(20):
            if dh < 16:
                jj = dh >> 3; h = (dh >> 2) & 1; i = dh & 3
                off = tt*XTS + (5*m + (3 if j & 1 else 0) + (hh >> 1))*1024 + ((2*(hh & 1) + h)*16 + t16)*16 + (jj*4 + i)*2
            else:
                off = tt*XTS + (5*m + 2)*1024 + (j & 1)*512 + (hh*16 + t16)*8 + (dh - 16)*2
            idx[:, head*20 + dh] = off // 2
    return idx
def h_index():
    idx = np.zeros((T, F), dtype=np.int64)
    tok = np.arange(T); base = (tok >> 4) * HTS; t16 = tok & 15
    for sl in range(16):
        q = sl >> 1
        for t in range(7):
            rt = realtile(sl, t)
            if rt < 0: continue
            for rr in range(16):
                g, r = divmod(rr, 4)
                if t < 6:
                    off = base + (7 * q + (4 if sl & 1 else 0) + (t >> 1)) * 1024 + (g * 16 + t16) * 16 + ((t & 1) * 4 + r) * 2
                else:
                    off = base + (7 * q + 3) * 1024 + (sl & 1) * 512 + (g * 16 + t16) * 8 + r * 2
                idx[:, 16 * rt + rr] = off // 2
    return idx
def kv_decode(img):
    K = np.zeros((T, 20), dtype=np.uint16); V = np.zeros((T, 21), dtype=np.uint16)
    for t in range(64):
        for key in range(32):
            for h in range(2):
                l = h * 32 + key
                K[32*t+key, 8*h:8*h+8] = img[t, l*8:l*8+8]
                K[32*t+key, 16+2*h:18+2*h] = img[t, 512 + key*4 + h*2: 512 + key*4 + h*2 + 2]
        for mf in range(2):
            for h in range(2):
                for dh in range(21):
                    base = 640 + mf*384 + h*192 + dh*8
                    for sl in range(8):
                        V[32*t + 16*mf + 8*(sl >> 2) + 4*h + (sl & 3), dh] = img[t, base + sl]
    return K, V
if __name__ == "__main__":
    print("ws used", WS_USED)
```

```python
from asmlib import *
import layout as L
import attn3 as AT
from attn3 import S_
from prep import srd, emit_xg_reduce, emit_realtile, emit_xk, BIG
import math, os, struct

NAME = "interleave_layers__grouped_kv_mqa__dense_activation_mish__prompt"
WQ_LDS = 0
X0_LDS = 0
WQP_LDS = 86016
PREP_LDS = 131072
RED_A = 73728
QST = 147456
WO_LDS = 0
WO1 = 72
W1A_LDS, W1B_LDS = 102400, 0
RED_K = 98304
MISC = 159744
M_CS1, M_B1, M_CSQ, M_BAD = MISC, MISC + 448, MISC + 896, MISC + 1280
M_VT = MISC + 1344
M_CSQP = MISC + 2368
M_CS1P = MISC + 1344
LDS_BYTES = 163840

S_WAVE, S_G, S_C, S_I, S_J, S_IP, S_JP, S_EPOCH, S_L, S_MODE, S_RETRY, S_TAG = 20, 21, 22, 23, 24, 25, 26, 27, 28, 29, 76, 75
XRES = 8
WS = "s[4:7]"
SRD_X, SRD_WQ, SRD_KV, SRD_SRC = 80, 84, 88, 92

def hexf(x): return "0x%08x" % struct.unpack("<I", struct.pack("<f", x))[0]
def w2_reg(k):
    if k < 31: return 132 + 4 * k
    if k < 39: return 480 + 4 * (k - 31)
    if k < 65: return 376 + 4 * (k - 39)
    return 256 + 4 * (k - 65)

TOUCH = (1, 5, 9)
class Cfg:
    prof = False; fine = None; skip = (); force_global = False; force_bad = False

class Gen:
    def __init__(self, cfg):
        self.A = Asm(); self.vm = VmTracker(self.A); self.cfg = cfg
        self.names = []; self.loops = {}
    def I(self, t): return self.A.I(t)
    def stamp(self, name=""):
        if self.cfg.prof:
            self.I("s_memtime s[78:79]\ns_waitcnt lgkmcnt(0)\ns_mov_b32 m0, s77\nv_writelane_b32 v19, s78, m0\ns_add_u32 s77, s77, 1")
            self.names.append(name)
    def lin(self, out, terms, const=0, layer=True, tmp=36):
        first = True
        for t in terms:
            sreg, mul = t[0], t[1]
            src = s(sreg); dst = s(out) if first else s(tmp)
            if len(t) > 2:
                shr, mask = t[2], t[3]
                if shr: self.I(f"s_lshr_b32 {dst}, {src}, {shr}"); src = dst
                if mask is not None: self.I(f"s_and_b32 {dst}, {src}, {mask}"); src = dst
            if mul != 1: self.I(f"s_mul_i32 {dst}, {src}, {mul}"); src = dst
            if first:
                if src != dst: self.I(f"s_mov_b32 {dst}, {src}")
            else:
                self.I(f"s_add_u32 {s(out)}, {s(out)}, {src}")
            first = False
        if layer: self.I(f"s_add_u32 {s(out)}, {s(out)}, {s(S_L)}")
        if const: self.I(f"s_add_u32 {s(out)}, {s(out)}, {const}")
    def signal(self, off_s, dev=False, val=S_EPOCH):
        self.I(f"v_mov_b32 v5, {s(val)}\ns_mov_b64 exec, 1")
        if dev:
            self.vm.issue(f"buffer_store_dword v5, off, {WS}, {s(off_s)} sc1", "flag")
        else:
            g = self.A.newlabel("sg"); j = self.A.newlabel("sj")
            self.I(f"s_cmp_lg_u32 {s(S_MODE)}, 0\ns_cbranch_scc1 {g}")
            self.vm.issue(f"buffer_store_dword v5, off, {WS}, {s(off_s)}", "flag")
            self.A.L(j)
            self.cold.append((g, j, f"buffer_wbl2 sc1\ns_waitcnt vmcnt(0)\nbuffer_store_dword v5, off, {WS}, {s(off_s)} sc1"))
        self.I("s_mov_b64 exec, -1")
    def poll(self, voff, off_s, dev=False, wide=False):
        lab = self.A.newlabel("poll"); out = self.A.newlabel("pollx")
        self.I("s_mov_b32 s35, 0")
        self.A.L(lab)
        if wide:
            self.I(f"buffer_load_dwordx4 v[132:135], {v(voff)}, {WS}, {s(off_s)} offen sc1")
        else:
            self.I(f"buffer_load_dword v5, {v(voff)}, {WS}, {s(off_s)} offen sc1")
        self.I(f"s_add_u32 s35, s35, 1\ns_cmp_gt_u32 s35, 0x40000\ns_cbranch_scc1 {out}\ns_waitcnt vmcnt(0)")
        if wide:
            for k in range(4): self.I(f"v_xor_b32 v{132+k}, {s(S_EPOCH)}, v{132+k}")
            self.I("v_or3_b32 v132, v132, v133, v134\nv_or_b32 v132, v132, v135\nv_cmp_ne_u32 vcc, 0, v132")
        else:
            self.I(f"v_cmp_ne_u32 vcc, {s(S_EPOCH)}, v5")
        self.I(f"s_cbranch_vccnz {lab}")
        self.A.L(out)
        if not dev:
            g = self.A.newlabel("pg"); j = self.A.newlabel("pj")
            self.I(f"s_cmp_lg_u32 {s(S_MODE)}, 0\ns_cbranch_scc1 {g}")
            self.A.L(j)
            self.cold.append((g, j, "s_waitcnt vmcnt(0)\nbuffer_inv sc1\ns_waitcnt vmcnt(0)"))
        self.I("s_waitcnt vmcnt(0)")
        self.loops[lab] = 0
        self.vm.q = []
    cold = []
    def flag_x_off(self, base, out):
        self.lin(out, [(S_I, 128), (S_J, 32, 1, None), (S_WAVE, 8), (S_J, 4, 0, 1)], base)
    def window(self, win, n1=6):
        win = win if win is not None else []
        self.emit_list(self.take(win, n1))
        self.vm.wait("st")
        self.signal(40)
        self.emit_list(win)
    @staticmethod
    def take(items, n):
        out = []
        while items and n > 0:
            it = items.pop(0); out.append(it)
            if it[0] == "v": n -= 1
        return out
    def emit_list(self, items):
        for it in items:
            if it[0] == "s": self.I(it[1])
            elif it[0] == "w": self.vm.wait(it[1])
            elif it[2] in self.cfg.skip: pass
            else: self.vm.issue(it[1], it[2])
    def collect(self, fn):
        keep = self.A; A2 = Asm(); self.A = A2
        fn(); self.A = keep
        return [("s", x.text) for x in A2.ins]
    def load_wfrags(self, regs, soff, tag):
        out = []
        for k, r in enumerate(regs):
            if k and k % 4 == 0: out.append(("s", f"s_add_u32 {s(soff)}, {s(soff)}, 4096"))
            out.append(("v", f"buffer_load_dwordx4 {R(r,4)}, v1, {WS}, {s(soff)} offen offset:{(k%4)*1024}", tag))
        return out
    def lin_dma(self, src_term, src_base, lds_base, n, sg, sl, tag):
        it = self.collect(lambda: (self.lin(sl, [(S_WAVE, n * 1024)], lds_base, layer=False, tmp=54),
                                   self.lin(sg, [src_term, (sl, 1)], src_base - lds_base + (1 << 32) if src_base < lds_base else src_base - lds_base, layer=False, tmp=54)))
        for k in range(n):
            if k and k % 4 == 0: it += [("s", f"s_add_u32 {s(sg)}, {s(sg)}, 4096"), ("s", f"s_add_u32 {s(sl)}, {s(sl)}, 4096")]
            it.append(("s", f"s_mov_b32 m0, {s(sl)}"))
            it.append(("v", f"buffer_load_dwordx4 v1, {WS}, {s(sg)} offen offset:{(k%4)*1024} lds", tag))
        return it
    def resid_setup(self, xbuf, statbuf, flagbuf):
        self.lin(38, [(S_G, L.GS), (S_I, 4 * L.XTS, 0, 3), (S_WAVE, L.XTS), (S_J, 5120, 1, None)], xbuf, layer=False)
        self.lin(39, [(S_J, 3072, 0, 1), (38, 1)], 0, layer=False)
        self.I(f"s_and_b32 s36, {s(S_J)}, 1\ns_lshl_b32 s36, s36, 3\ns_add_u32 s38, s38, s36")
        self.lin(41, [(S_G, L.GS), (S_I, 4 * 4096, 0, 3), (S_WAVE, 4096), (S_J, 512)], statbuf, layer=False)
        self.flag_x_off(flagbuf, 40)
        self.I("s_mov_b32 s66, 0x00003f80\ns_mov_b32 s67, 0x3f800000\ns_mov_b32 s68, 0x3f803f80")
        self.I("v_lshlrev_b32 v18, 5, v3\nv_lshl_add_u32 v18, v4, 3, v18")
    def resid_epilogue(self, acc, store=True, statreg=20):
        for i in range(10):
            self.I(f"v_dot2c_f32_bf16 {v(acc+2*i)}, s66, {v(XRES+i)}\nv_dot2c_f32_bf16 {v(acc+2*i+1)}, s67, {v(XRES+i)}")
        if store: self.I(f"v_mov_b32 {v(statreg)}, 0\nv_mov_b32 {v(statreg+1)}, 0")
        for i in range(10):
            self.I(f"v_cvt_pk_bf16_f32 {v(XRES+i)}, {v(acc+2*i)}, {v(acc+2*i+1)}")
            if store and i == 3: self.vm.issue(f"buffer_store_dwordx4 {v(XRES,4)}, v1, {WS}, s39 offen", "st")
            if store and i == 7: self.vm.issue(f"buffer_store_dwordx4 {v(XRES+4,4)}, v1, {WS}, s39 offen offset:1024", "st")
        if not store: return
        self.vm.issue(f"buffer_store_dwordx2 {v(XRES+8,2)}, v1, {WS}, s38 offen offset:2048", "st")
        for i in range(10):
            self.I(f"v_dot2c_f32_bf16 {v(statreg)}, s68, {v(XRES+i)}\nv_dot2c_f32_bf16 {v(statreg+1)}, {v(XRES+i)}, {v(XRES+i)}")
        self.vm.issue(f"buffer_store_dwordx2 {v(statreg,2)}, v18, {WS}, s41 offen", "st")
    def stat_loads(self, soff, voff, dst, tag):
        for n in range(4):
            self.vm.issue(f"buffer_load_dwordx4 {v(dst+4*n,4)}, {v(voff)}, {WS}, {s(soff)} offen offset:{(n//2)*512+(n%2)*16} sc1", tag)
    def stat_finish(self, src, dst, presummed=False):
        if not presummed:
            for n in range(4): self.I(f"v_pk_add_f32 {v(src+2*n,2)}, {v(src+2*n,2)}, {v(src+8+2*n,2)}")
            for n in range(2): self.I(f"v_pk_add_f32 {v(src+2*n,2)}, {v(src+2*n,2)}, {v(src+4+2*n,2)}")
            self.I(f"v_pk_add_f32 {v(src,2)}, {v(src,2)}, {v(src+2,2)}")
        emit_xg_reduce(self.A, [src, src + 1], src + 2)
        self.I(f"""v_mul_f32 {v(dst)}, {hexf(-1.0/640)}, {v(src)}
        v_mul_f32 {v(src+2)}, {v(dst)}, {v(dst)}
        v_mov_b32 {v(src+3)}, {hexf(1.0/640)}
        v_fma_f32 {v(src+1)}, {v(src+1)}, {v(src+3)}, -{v(src+2)}
        v_max_f32 {v(src+1)}, 0, {v(src+1)}
        v_add_f32 {v(src+1)}, {hexf(1e-5)}, {v(src+1)}
        v_rsq_f32 {v(dst+1)}, {v(src+1)}""")

    def csum_loads(self, reg, term, base, row, mask, tag):
        self.lin(36, [term, (S_WAVE, 5 * row)], base, layer=False, tmp=37)
        self.I(f"s_mov_b64 exec, {mask:#x}")
        for k in range(5): self.vm.issue(f"buffer_load_dwordx4 {v(reg+4*k,4)}, v1, {WS}, s36 offen offset:{k*row} sc1", tag)
        self.I("s_mov_b64 exec, -1")
    def csum_part(self, reg, slots, row, mask):
        for a_, b_ in ((0, 1), (2, 3), (0, 2), (0, 4)):
            for i in range(4): self.I(f"v_add_f32 {v(reg+4*a_+i)}, {v(reg+4*a_+i)}, {v(reg+4*b_+i)}")
        self.lin(36, [(S_WAVE, row)], slots, layer=False)
        self.I(f"v_add_u32 v7, s36, v1\ns_mov_b64 exec, {mask:#x}\nds_write_b128 v7, {v(reg,4)}\ns_mov_b64 exec, -1\ns_waitcnt lgkmcnt(0)")
    def csum_final(self, reg, slots, row, dst, mask):
        self.I(f"v_add_u32 v7, {slots}, v1\ns_mov_b64 exec, {mask:#x}")
        for w in range(4): self.I(f"ds_read_b128 {v(reg+4*w,4)}, v7 offset:{w*row}")
        self.I("s_waitcnt lgkmcnt(0)")
        for a_, b_ in ((0, 1), (2, 3), (0, 2)):
            for i in range(4): self.I(f"v_add_f32 {v(reg+4*a_+i)}, {v(reg+4*a_+i)}, {v(reg+4*b_+i)}")
        self.I(f"v_add_u32 v7, {dst}, v1\nds_write_b128 v7, {v(reg,4)}\ns_mov_b64 exec, -1\ns_waitcnt lgkmcnt(0)")
    def qkv_setup(self, l0):
        self.lin(43, [(S_I, 2 * L.KVT), (S_WAVE, L.KVT, 1, None)], L.KVB)
        self.lin(40, [(S_I, 32), (S_J, 4)], L.FL_KV)
        self.I(f"v_add_u32 v240, {WQ_LDS}, v1\nv_add_u32 v241, {WQ_LDS + 61440}, v1")
        if not l0:
            self.lin(30, [(S_G, L.GS), (S_I, 4 * L.XTS, 0, 3), (S_WAVE, L.XTS)], L.XIN, layer=False)
            self.lin(42, [(S_G, L.GS), (S_I, 4 * 4096, 0, 3), (S_WAVE, 4096)], L.STATIN, layer=False)
            self.I("v_lshlrev_b32 v18, 10, v4\nv_lshl_add_u32 v18, v3, 5, v18")
    def wq_round(self, n):
        it = self.collect(lambda: (self.lin(53, [(S_WAVE, 6144)], WQ_LDS + n * 24576, layer=False),
                                   self.lin(52, [(S_J, 120 * 1024), (53, 1)], L.WQF - WQ_LDS, layer=False)))
        for k in range(6):
            if k == 4: it += S_("s_add_u32 s52, s52, 4096\ns_add_u32 s53, s53, 4096")
            if k % 4 == 0: it.append(("s", "s_mov_b32 m0, s53"))
            it.append(("v", f"buffer_load_dwordx4 v1, {WS}, s52 offen offset:{(k%4)*1024} sc1 lds", ("r", n)))
        return it
    def phase_qkv(self, l0):
        A, vm = self.A, self.vm
        X, WB, ACC, SL, ST, CS = 20, 100, 148, 196, 212, 216
        def wread(k, ft): return f"ds_read_b128 {v(WB+24*(k%2)+4*ft,4)}, v{240 + k//10} offset:{((k%10)*6+ft)*1024}"
        if not l0:
            nl = 0
            def load(k):
                if k and k % 4 == 0: self.I("s_add_u32 s30, s30, 4096")
                vm.issue(f"buffer_load_dwordx4 {v(X+4*k,4)}, v1, {WS}, s30 offen offset:{(k%4)*1024} sc1", ("x", k))
            while nl < 7: load(nl); nl += 1
            self.I("s_barrier")
            for ft in range(6): self.I(wread(0, ft))
        for k in range(20):
            fresh = l0 and k % 4 == 0
            if fresh:
                vm.wait(("r", k // 4))
                self.I("s_barrier")
                for ft in range(6): self.I(wread(k, ft))
            if not l0: vm.wait(("x", k))
            more = k + 1 < 20 and not (l0 and (k + 1) % 4 == 0)
            for ft in range(6):
                self.I(f"s_waitcnt lgkmcnt({5 if more else 5 - ft})")
                d = ACC + 4 * ft
                self.I(f"v_mfma_f32_16x16x32_bf16 {v(d,4)}, {v(WB+24*(k%2)+4*ft,4)}, {v(X+4*k,4)}, {'0' if k == 0 else v(d,4)}")
                if more: self.I(wread(k + 1, ft))
                if not l0 and ft in (1, 4) and nl < 20: load(nl); nl += 1
            if not l0 and k == 7: self.stat_loads(42, 18, SL, "stat")
            if l0 and k == 1: self.csum_part(172, M_CSQP, 384, 0xffffff)
            if l0 and k == 9: self.csum_final(172, M_CSQP, 384, M_CSQ, 0xffffff)
        self.stamp("qkv.mm")
        self.I(f"v_lshlrev_b32 v6, 4, v4\nv_add_u32 v6, {M_CSQ}, v6")
        for ft in range(6): self.I(f"ds_read_b128 {v(CS+4*ft,4)}, v6 offset:{ft*64}")
        if not l0:
            vm.wait("stat")
            self.stat_finish(SL, ST)
        self.I(f"v_mov_b32 {v(ST+2)}, {v(ST+1)}\ns_waitcnt lgkmcnt(0)")
        KA = ACC + 20; KP = WB
        done = A.newlabel("kvdone"); vt = A.newlabel("kvv"); k1 = A.newlabel("kvk1"); jn = A.newlabel("kvj")
        self.I(f"s_lshr_b32 s36, {s(S_J)}, 2\ns_xor_b32 s48, s36, {s(S_WAVE)}\ns_and_b32 s48, s48, 1\ns_cbranch_scc1 {done}")
        for i in (0, 2): self.I(f"v_pk_fma_f32 {v(KA+i,2)}, {v(ST,2)}, {v(CS+20+i,2)}, {v(KA+i,2)} op_sel_hi:[0,1,1]")
        for i in (0, 2): self.I(f"v_pk_mul_f32 {v(KA+i,2)}, {v(ST+2,2)}, {v(KA+i,2)} op_sel_hi:[0,1]")
        self.I(f"v_cvt_pk_bf16_f32 {v(KP)}, {v(KA)}, {v(KA+1)}\nv_cvt_pk_bf16_f32 {v(KP+1)}, {v(KA+2)}, {v(KA+3)}")
        self.I(f"s_and_b32 s37, {s(S_WAVE)}, 1\ns_bitcmp1_b32 {s(S_J)}, 1\ns_cbranch_scc1 {vt}")
        self.I(f"s_lshl_b32 s37, s37, 4\nv_add_u32 v6, s37, v3\ns_bitcmp1_b32 {s(S_J)}, 0\ns_cbranch_scc1 {k1}")
        self.I(f"""v_lshrrev_b32 v7, 1, v4
        v_lshlrev_b32 v7, 9, v7
        v_lshl_add_u32 v7, v6, 4, v7
        v_and_b32 v6, 1, v4
        v_lshl_add_u32 v7, v6, 3, v7
        buffer_store_dwordx2 {v(KP,2)}, v7, {WS}, s43 offen sc1
        s_branch {jn}""")
        A.L(k1)
        self.I(f"""v_lshlrev_b32 v6, 3, v6
        s_mov_b64 exec, 0xffff
        buffer_store_dwordx2 {v(KP,2)}, v6, {WS}, s43 offen offset:1024 sc1
        s_mov_b64 exec, -1
        s_branch {jn}""")
        A.L(vt)
        self.I(f"""s_lshr_b32 s36, {s(S_WAVE)}, 1
        s_lshl_b32 s36, s36, 9
        s_add_u32 s36, s36, {M_VT}
        v_lshlrev_b32 v6, 7, v4
        v_lshl_add_u32 v6, v3, 1, v6
        v_add_u32 v6, s36, v6
        ds_write_b16 v6, {v(KP)}
        ds_write_b16_d16_hi v6, {v(KP)} offset:32
        ds_write_b16 v6, {v(KP+1)} offset:64
        ds_write_b16_d16_hi v6, {v(KP+1)} offset:96
        v_lshlrev_b32 v6, 5, v3
        v_lshl_add_u32 v6, v4, 3, v6
        v_add_u32 v6, s36, v6
        ds_read_b64 {v(KP+2,2)}, v6
        s_mul_i32 s37, s37, 768
        s_add_u32 s37, s43, s37
        s_and_b32 s36, {s(S_J)}, 1
        s_lshl_b32 s36, s36, 8
        s_add_u32 s37, s37, s36
        v_and_b32 v6, 1, v4
        v_mul_u32_u24 v6, 384, v6
        v_lshl_add_u32 v6, v3, 4, v6
        v_lshrrev_b32 v7, 1, v4
        v_lshl_add_u32 v6, v7, 3, v6
        s_cmp_lg_u32 s36, 0
        s_cselect_b32 s36, 4, 99
        s_cselect_b32 exec_lo, 0x00ff00ff, -1
        v_cmp_eq_u32 vcc, s36, v3
        v_mov_b32 v7, 0x3f803f80
        s_mov_b32 exec_hi, exec_lo
        s_waitcnt lgkmcnt(0)
        v_cndmask_b32 {v(KP+2)}, {v(KP+2)}, v7, vcc
        v_cndmask_b32 {v(KP+3)}, {v(KP+3)}, v7, vcc
        buffer_store_dwordx2 {v(KP+2,2)}, v6, {WS}, s37 offen offset:1280 sc1
        s_mov_b64 exec, -1""")
        A.L(jn)
        A.L(done)
        c = math.log2(math.e) / math.sqrt(20.0)
        self.I(f"v_mul_f32 {v(ST+2)}, {hexf(c)}, {v(ST+1)}")
        for i in range(0, 20, 2): self.I(f"v_pk_fma_f32 {v(ACC+i,2)}, {v(ST,2)}, {v(CS+i,2)}, {v(ACC+i,2)} op_sel_hi:[0,1,1]")
        for i in range(0, 20, 2): self.I(f"v_pk_mul_f32 {v(ACC+i,2)}, {v(ST+2,2)}, {v(ACC+i,2)} op_sel_hi:[0,1]")
        P = WB + 8
        for i in range(8): self.I(f"v_cvt_pk_bf16_f32 {v(P+i)}, {v(ACC+2*i)}, {v(ACC+2*i+1)}")
        self.I(f"v_cvt_pk_bf16_f32 {v(P+8)}, {v(ACC+16)}, {v(ACC+17)}\nv_mov_b32 {v(P+9)}, 0")
        self.I(f"v_cvt_pk_bf16_f32 {v(P+10)}, {v(ACC+18)}, {v(ACC+19)}\nv_mov_b32 {v(P+11)}, 0")
        self.lin(36, [(S_WAVE, AT.QST_Q, 1, None)], QST, layer=False, tmp=37)
        self.I(f"""s_and_b32 s37, {s(S_WAVE)}, 1
        s_lshl_b32 s37, s37, 4
        v_add_u32 v6, s37, v3
        v_mul_u32_u24 v7, {2*AT.QST_Q}, v4
        v_add_u32 v7, s36, v7
        v_lshl_add_u32 v5, v6, 4, v7
        v_lshl_add_u32 v6, v6, 3, v7""")
        self.qs = f"""ds_write_b128 v128, {v(P,4)}
        ds_write_b128 v128, {v(P+4,4)} offset:512
        ds_write_b64 v129, {v(P+8,2)} offset:1024
        ds_write_b64 v129, {v(P+10,2)} offset:{1024+256}"""
        self.I("v_mov_b32 v128, v5\nv_mov_b32 v129, v6")
        if not l0: self.I(self.qs)
        self.I("s_waitcnt vmcnt(0) lgkmcnt(0)\ns_barrier"); vm.q = []
        sk = A.newlabel("kvsig")
        self.I(f"s_cmp_lg_u32 {s(S_WAVE)}, 0\ns_cbranch_scc1 {sk}")
        self.signal(40, dev=True)
        A.L(sk)
        self.stamp("qkv.epi")

    def pieces(self, n16, magic, pitch, cmax=None, srd_=SRD_SRC):
        self.I(f"s_movk_i32 s52, {magic}\ns_movk_i32 s53, {pitch}\ns_sub_u32 s45, s45, s44")
        for q in range(n16 // 2):
            self.I(f"""v_add_u32 v5, {64*q}, v0
            v_mul_lo_u32 v6, v5, s52
            v_lshrrev_b32 v6, 16, v6
            v_mul_u32_u24 v7, {n16}, v6
            v_sub_u32 v5, v5, v7
            v_lshrrev_b32 v7, 4, v6
            v_mul_lo_u32 v18, v7, s32
            v_mul_lo_u32 v7, v7, s45
            v_bfe_u32 v130, v6, 3, 1
            v_mad_u32_u24 v18, v130, s33, v18
            v_bfe_u32 v130, v6, 2, 1
            v_mad_u32_u24 v18, v130, s34, v18
            v_and_b32 v6, 3, v6
            v_add3_u32 v18, v18, v6, s31
            v_mul_lo_u32 v18, v18, s53
            v_lshl_add_u32 v18, v5, 4, v18
            v_add3_u32 v18, v18, v7, s46""")
            if cmax is not None:
                self.I(f"v_cmp_le_u32 vcc, {s(cmax)}, v5\nv_mov_b32 v7, {BIG}\nv_cndmask_b32 v7, 0, v7, vcc\nv_add_u32 v18, v18, v7")
            self.I(f"s_add_u32 m0, s72, {q*1024}")
            self.I(f"buffer_load_dwordx4 v18, {s(srd_,4)}, s44 offen lds")
    def prep_issue(self):
        A = self.A
        lab = {k: A.newlabel("pp" + k) for k in ("w2", "w1", "none", "n10", "end", "pad")}
        self.I(f"s_lshl_b32 s30, s2, 2\ns_add_u32 s30, s30, {s(S_WAVE)}")
        self.lin(72, [(S_WAVE, 7168)], PREP_LDS, layer=False)
        self.I(f"s_cmp_ge_u32 s30, 928\ns_cbranch_scc1 {lab['none']}\ns_cmp_ge_u32 s30, 608\ns_cbranch_scc1 {lab['w1']}\ns_cmp_ge_u32 s30, 160\ns_cbranch_scc1 {lab['w2']}")
        self.I(f"""s_lshr_b32 s47, s30, 3          ; ks
        s_and_b32 s48, s30, 7           ; j
        s_mul_i32 s49, s47, 52
        s_lshr_b32 s49, s49, 8          ; w = ks/5
        s_mul_i32 s50, s49, 5
        s_sub_u32 s50, s47, s50         ; s
        s_mul_i32 s31, s49, 160
        s_mul_i32 s32, s50, 40
        s_cmp_gt_u32 s50, 2
        s_cselect_b32 s33, 40, 0
        s_sub_u32 s32, s32, s33
        s_cmp_eq_u32 s50, 2
        s_cselect_b32 s32, 16, s32
        s_add_u32 s31, s31, s32
        s_cmp_eq_u32 s50, 2
        s_cselect_b32 s32, 80, 8
        s_cselect_b32 s33, 40, 20
        s_cselect_b32 s34, 20, 4
        s_mov_b32 s44, 0
        s_mov_b32 s45, 0
        s_mul_i32 s46, s48, 160
        s_mul_i32 s70, s48, 20
        s_add_u32 s70, s70, s47
        s_mul_i32 s70, s70, 5120
        s_add_u32 s70, s70, {L.WOF}
        s_mov_b32 {s(SRD_SRC)}, s96
        s_mov_b32 {s(SRD_SRC+1)}, s97
        s_mov_b32 {s(SRD_SRC+2)}, {640*640*2}
        s_branch {lab['n10']}""")
        A.L(lab['w2'])
        self.I(f"""s_sub_u32 s30, s30, 160
        s_lshr_b32 s47, s30, 3          ; r = w*14+s
        s_and_b32 s48, s30, 7           ; j
        s_mul_i32 s49, s47, 37
        s_lshr_b32 s49, s49, 8
        s_mul_i32 s50, s49, 7
        s_sub_u32 s50, s47, s50         ; sp
        s_lshl_b32 s49, s49, 1          ; 2q""")
        for u in range(2):
            self.I(f"""s_cmp_gt_u32 s50, 3
            s_cselect_b32 s52, 1, 0
            s_cselect_b32 s53, 4, 0
            s_sub_u32 s53, s50, s53
            s_lshl_b32 s53, s53, 1
            s_add_u32 s53, s53, {u}
            s_cmp_eq_u32 s50, 3
            s_cselect_b32 s52, {u}, s52
            s_cselect_b32 s53, 6, s53
            s_add_u32 s52, s52, s49""")
            emit_realtile(A, 52, 53, 31 + u, 44 + u, 54)
        self.I(f"""s_lshl_b32 s31, s31, 4
        s_lshl_b32 s32, s32, 4
        s_sub_u32 s32, s32, s31
        s_mov_b32 s33, 8
        s_mov_b32 s34, 4
        s_mul_i32 s46, s48, 160
        s_mul_i32 s70, s48, 56
        s_add_u32 s70, s70, s47
        s_mul_i32 s70, s70, 5120
        s_add_u32 s70, s70, {L.W2F}
        s_mov_b32 {s(SRD_SRC)}, s100
        s_mov_b32 {s(SRD_SRC+1)}, s101
        s_mov_b32 {s(SRD_SRC+2)}, {1728*640*2}""")
        A.L(lab['n10'])
        pieces = self.pieces
        pieces(10, 6554, 1280)
        self.I(f"s_mov_b32 s69, 5\ns_mov_b32 s35, 2\ns_branch {lab['pad']}")
        A.L(lab['w1'])
        self.I(f"""s_sub_u32 s30, s30, 608
        s_lshr_b32 s47, s30, 4          ; ks
        s_and_b32 s48, s30, 15          ; j'
        s_mul_i32 s49, s47, 52
        s_lshr_b32 s49, s49, 8
        s_mul_i32 s50, s49, 5
        s_sub_u32 s50, s47, s50""")
        emit_xk(A, 49, 50, 31, 32)
        self.I("s_mov_b32 s53, 0"); emit_realtile(A, 48, 53, 46, 44, 54)
        self.I(f"""s_lshl_b32 s46, s46, 5
        s_mov_b32 s33, 8
        s_mov_b32 s34, 4
        s_mov_b32 s44, 0
        s_mov_b32 s45, 0
        s_cmp_lt_u32 s48, 12
        s_cselect_b32 s54, 14, 12
        s_mul_i32 s70, s48, 20
        s_add_u32 s70, s70, s47
        s_mul_i32 s71, s70, 448
        s_add_u32 s71, s71, {L.CS1P}
        s_mul_i32 s70, s70, 7168
        s_add_u32 s70, s70, {L.W1F}
        s_mov_b32 {s(SRD_SRC)}, s98
        s_mov_b32 {s(SRD_SRC+1)}, s99
        s_mov_b32 {s(SRD_SRC+2)}, {640*1728*2}""")
        pieces(14, 4682, 3456, cmax=54)
        self.I(f"s_mov_b32 s69, 7\ns_branch {lab['end']}")
        A.L(lab['none'])
        self.I("s_mov_b32 s69, 0\ns_mov_b32 s35, 7")
        A.L(lab['pad'])
        self.I(f"v_mov_b32 v18, {BIG}\ns_add_u32 m0, s72, 6144")
        pl = A.newlabel("ppl")
        A.L(pl)
        self.I(f"buffer_load_dwordx4 v18, {s(SRD_SRC,4)}, 0 offen lds\ns_sub_u32 s35, s35, 1\ns_cmp_lg_u32 s35, 0\ns_cbranch_scc1 {pl}")
        self.loops[pl] = 1
        A.L(lab['end'])
        self.vm.q += ["prep"] * 7
    def prep_finish(self):
        A = self.A
        l7 = A.newlabel("pf7"); end = A.newlabel("pfe")
        self.I(f"s_cmp_eq_u32 s69, 0\ns_cbranch_scc1 {end}\ns_cmp_eq_u32 s69, 7\ns_cbranch_scc1 {l7}")
        def body(n, P):
            self.I(f"v_lshrrev_b32 v5, 2, v0\nv_and_b32 v6, 3, v0\nv_mul_u32_u24 v5, {P}, v5\nv_lshl_add_u32 v5, v6, 3, v5\nv_add_u32 v5, s72, v5")
            for ft in range(n):
                for u in range(2): self.I(f"ds_read_b64_tr_b16 {v(20+4*ft+2*u,2)}, v5 offset:{u*16*P + ft*32}")
            for ft in range(n):
                self.I(f"s_waitcnt lgkmcnt({min(15, 2*(n-1-ft))})")
                if ft == 4: self.I("s_add_u32 s70, s70, 4096")
                self.I(f"buffer_store_dwordx4 {v(20+4*ft,4)}, v1, {WS}, s70 offen offset:{(ft%4)*1024} sc1")
        body(5, 160)
        self.I(f"s_branch {end}")
        A.L(l7)
        body(7, 224)
        for ft in range(7): self.I(f"v_mfma_f32_16x16x32_bf16 {v(52+4*ft,4)}, {v(20+4*ft,4)}, v[192:195], 0")
        self.I("v_lshlrev_b32 v5, 4, v4\ns_mov_b32 exec_lo, 0x00010001\ns_mov_b32 exec_hi, 0x00010001")
        for ft in range(7): self.I(f"buffer_store_dwordx4 {v(52+4*ft,4)}, v5, {WS}, s71 offen offset:{ft*64} sc1")
        self.I("s_mov_b64 exec, -1")
        A.L(end)

    def wq_unit_issue(self):
        self.I(f"""s_lshr_b32 s47, s2, 3
        s_and_b32 s48, s2, 7
        s_mul_i32 s49, s47, 52
        s_lshr_b32 s49, s49, 8
        s_mul_i32 s50, s49, 5
        s_sub_u32 s50, s47, s50""")
        emit_xk(self.A, 49, 50, 31, 32)
        self.I(f"""s_mov_b32 s33, 8
        s_mov_b32 s34, 4
        s_mov_b32 s44, 0
        s_mov_b32 s45, 0
        s_mul_i32 s46, s48, 160
        s_mov_b32 s72, {WQP_LDS}
        s_mul_i32 s70, s48, 20
        s_add_u32 s70, s70, s47
        s_mul_i32 s71, s70, 384
        s_add_u32 s71, s71, {L.CSQP}
        s_mul_i32 s70, s70, 6144
        s_add_u32 s70, s70, {L.WQF}
        s_lshl_b32 s69, s48, 5
        s_add_u32 s69, s69, s47
        s_lshl_b32 s69, s69, 2
        s_add_u32 s69, s69, {L.FL_WQ}""")
        self.pieces(10, 6554, 1280, srd_=SRD_WQ)
        self.I(f"""s_mul_i32 s31, s31, 40
        s_mul_i32 s32, s32, 40
        s_add_u32 s32, s32, s31
        s_mov_b32 m0, {WQP_LDS + 5120}
        s_nop 0
        buffer_load_dwordx4 v1, {s(SRD_KV,4)}, s31 offen lds
        s_mov_b32 m0, {WQP_LDS + 6144}
        s_nop 0
        buffer_load_dwordx4 v1, {s(SRD_KV,4)}, s32 offen lds""")
    def wq_unit_finish(self):
        F = 132
        self.I(f"""v_lshrrev_b32 v5, 2, v0
        v_and_b32 v6, 3, v0
        v_mul_u32_u24 v7, 160, v5
        v_mad_u32_u24 v7, v6, 40, v7
        v_add_u32 v7, {WQP_LDS}, v7
        v_mul_u32_u24 v5, 40, v5
        v_lshl_add_u32 v5, v6, 3, v5
        s_and_b32 s36, s2, 1
        s_lshl_b32 s36, s36, 5
        s_add_u32 s36, s36, {WQP_LDS + 5120}
        v_add_u32 v5, s36, v5""")
        for ft in range(5):
            for u in range(2): self.I(f"ds_read_b64_tr_b16 {v(F+4*ft+2*u,2)}, v7 offset:{u*16*160 + ft*8}")
        for u in range(2): self.I(f"ds_read_b64_tr_b16 {v(F+20+2*u,2)}, v5 offset:{u*1024}")
        for ft in range(6):
            self.I(f"s_waitcnt lgkmcnt({2*(5-ft)})")
            if ft == 4: self.I("s_add_u32 s70, s70, 4096")
            self.I(f"buffer_store_dwordx4 {v(F+4*ft,4)}, v1, {WS}, s70 offen offset:{(ft%4)*1024} sc1")
        for ft in range(6): self.I(f"v_mfma_f32_16x16x32_bf16 {v(F+24+4*ft,4)}, {v(F+4*ft,4)}, v[192:195], 0")
        self.I("v_lshlrev_b32 v5, 4, v4\ns_mov_b32 exec_lo, 0x00010001\ns_mov_b32 exec_hi, 0x00010001")
        for ft in range(6): self.I(f"buffer_store_dwordx4 {v(F+24+4*ft,4)}, v5, {WS}, s71 offen offset:{ft*64} sc1")
        self.I("s_mov_b64 exec, -1")
    def x0_issue(self):
        self.lin(30, [(S_I, 64 * 1280), (S_WAVE, 16 * 1280)], 0, layer=False)
        self.lin(31, [(S_WAVE, 20480)], X0_LDS, layer=False)
        for a_ in range(4):
            self.I(f"v_add_u32 v5, {4*a_}, v4\nv_xor_b32 v5, v5, v3\nv_lshlrev_b32 v5, 4, v5\nv_mad_u32_u24 {v(100+a_)}, v4, s54, v5")
        for a_ in range(4):
            for b_ in range(5):
                self.I(f"s_add_u32 m0, s31, {(a_*5+b_)*1024}\ns_add_u32 s32, s30, {a_*5120 + b_*256}")
                self.vm.issue(f"buffer_load_dwordx4 {v(100+a_)}, {s(SRD_X,4)}, s32 offen lds", "x0")
    def x0_read(self, X, SL):
        self.I(f"""v_lshrrev_b32 v5, 1, v4
        v_xor_b32 v5, v5, v3
        v_lshlrev_b32 v5, 4, v5
        v_and_b32 v6, 1, v4
        v_lshl_add_u32 v5, v6, 3, v5
        v_lshrrev_b32 v6, 2, v3
        v_mul_u32_u24 v6, 5120, v6
        v_and_b32 v7, 3, v3
        v_lshl_add_u32 v6, v7, 8, v6
        v_add3_u32 v104, v5, v6, s31""")
        for c in range(1, 8): self.I(f"v_xor_b32 {v(104+c)}, {c*32}, v104")
        for k in range(20):
            for u in range(2):
                x = 2 * L.xk(k // 5, k % 5, u)
                self.I(f"ds_read_b64 {v(X+4*k+2*u,2)}, {v(104 + ((x >> 5) & 7))} offset:{(x >> 8) * 1024}")
        for ft in range(5):
            self.I(f"""s_mul_i32 s36, {s(S_J)}, 160
            s_add_u32 s36, s36, {32*ft}
            s_and_b32 s37, s36, 0xe0
            s_lshr_b32 s36, s36, 8
            s_lshl_b32 s36, s36, 10
            v_xor_b32 v5, s37, v104
            v_add_u32 v5, s36, v5
            ds_read_b64 {v(XRES+2*ft,2)}, v5""")
        self.I(f"v_mov_b32 {v(SL)}, 0\nv_mov_b32 {v(SL+1)}, 0\nv_mov_b32 {v(SL+2)}, 0\nv_mov_b32 {v(SL+3)}, 0\ns_waitcnt lgkmcnt(0)")
        for i in range(0, 80, 2):
            self.I(f"""v_dot2c_f32_bf16 {v(SL)}, v192, {v(X+i)}
            v_dot2c_f32_bf16 {v(SL+1)}, {v(X+i)}, {v(X+i)}
            v_dot2c_f32_bf16 {v(SL+2)}, v192, {v(X+i+1)}
            v_dot2c_f32_bf16 {v(SL+3)}, {v(X+i+1)}, {v(X+i+1)}""")
        self.I(f"v_pk_add_f32 {v(SL,2)}, {v(SL,2)}, {v(SL+2,2)}")

    def phase_att(self):
        A, vm = self.A, self.vm
        r = AT.AttRegs(20, 256)
        assert r.end <= 132
        A.L("L_att")
        self.I("s_mov_b32 s59, 384\ns_mov_b32 s58, 0x3f803f80")
        self.I(f"s_add_u32 s56, {s(S_L)}, {L.KVB}")
        self.lin(53, [(S_WAVE, 18 * 1024)], WO_LDS, layer=False)
        self.lin(52, [(S_J, 100 * 1024), (S_WAVE, 18 * 1024)], L.WOF, layer=False)
        self.lin(51, [(S_JP, 140 * 1024), (S_C, 4 * 17920, 4, 1), (S_WAVE, 17920)], L.W1F, layer=False, tmp=54)
        self.lin(55, [(S_J, 280 * 1024), (S_WAVE, 70 * 1024), (S_C, 7936, 3, 3)], L.W2F + 39 * 1024, layer=False, tmp=54)
        self.lin(49, [(S_J, 100 * 1024), (S_WAVE, 7168)], L.WOF + WO1 * 1024, layer=False, tmp=54)
        self.lin(50, [(S_J, 280 * 1024), (S_WAVE, 70 * 1024)], L.W2F, layer=False, tmp=54)
        assert L.GS <= 128 * 9 * 2048 and L.GS % (128 * 128) == 0
        self.lin(47, [(S_G, L.GS), (S_C, 4 * (L.GS // 128)), (S_WAVE, L.GS // 128)], L.GBASE, layer=False)
        self.I(f"v_lshrrev_b32 v5, 2, v0\nv_lshlrev_b32 v5, 7, v5\nv_and_b32 v6, 3, v0\nv_lshl_add_u32 {v(r.t+5)}, v6, 2, v5")
        self.I(f"s_mov_b32 s48, {L.FL_PREP}")
        self.I(f"v_lshlrev_b32 {v(r.pf)}, 7, v0")
        dma = ["s_mov_b32 m0, s53"] + [f"buffer_load_dwordx4 v1, {WS}, s52 offen offset:{k*1024} lds" for k in range(3)]
        adv = ["s_add_u32 s53, s53, 3072", "s_add_u32 s52, s52, 3072"]
        pf = lambda sg: f"buffer_load_dword v18, {v(r.pf)}, {WS}, s{sg} offen"
        lex = {3: dma, 4: adv, 7: dma, 8: adv, 10: [pf(51), "s_add_u32 s51, s51, 8192"], 12: [pf(55), "s_mov_b32 s55, s49"]}
        for t_ in (TOUCH):
            lex[t_] = [f"buffer_load_dword v18, {v(r.t+5)}, {WS}, s47 offen", "s_add_u32 s47, s47, 2048"]
        self.w2_items = self.load_wfrags([w2_reg(k) for k in range(70)], 50, "w2")
        p1 = self.take(self.w2_items, 39)
        AT.emit_kv_addr(A, r, 0, S_WAVE, 56)
        AT.emit_att_pre(self, r, 0, S_WAVE, QST, RED_A)
        self.I(f"s_add_u32 s37, {s(S_L)}, {L.FL_KV}")
        pk = A.newlabel("kvp")
        self.I(f"s_cmp_lg_u32 {s(S_WAVE)}, 0\ns_cbranch_scc1 {pk}")
        self.poll(1, 37, dev=True, wide=True)
        A.L(pk)
        self.I("s_barrier")
        self.stamp("kv.poll")
        tail = {13: [("v", f"buffer_load_dwordx4 v[132:135], v1, {WS}, s48 offen sc1", "prepfl")]}
        def between():
            ok = A.newlabel("prepok"); again = A.newlabel("prepagain")
            self.I(f"s_mov_b32 s35, 0")
            A.L(again)
            self.I("s_waitcnt vmcnt(0)"); vm.q = []
            for k in range(4): self.I(f"v_xor_b32 v{132+k}, {s(S_TAG)}, v{132+k}")
            self.I(f"""v_or3_b32 v18, v132, v133, v134
            v_or_b32 v18, v18, v135
            v_cmp_lt_u32 vcc, 7, v18
            s_add_u32 s35, s35, 1
            s_cmp_gt_u32 s35, 0x40000
            s_cbranch_scc1 {ok}
            s_cbranch_vccz {ok}
            buffer_load_dwordx4 v[132:135], v1, {WS}, s48 offen sc1
            s_branch {again}""")
            A.L(ok)
            self.I(f"""s_bitcmp1_b32 {s(S_G)}, 0
            s_cselect_b64 s[64:65], -1, 0
            v_cndmask_b32 v132, v132, v133, s[64:65]
            v_cndmask_b32 v134, v134, v135, s[64:65]
            s_bitcmp1_b32 {s(S_G)}, 1
            s_cselect_b64 s[64:65], -1, 0
            v_cndmask_b32 v132, v132, v134, s[64:65]
            s_mov_b32 s65, 0x55555555
            s_bitcmp1_b32 {s(S_G)}, 2
            s_cselect_b32 s64, 0xaaaaaaaa, s65
            v_cmp_ne_u32 vcc, 0, v132
            s_mov_b32 s65, s64
            s_and_b64 s[64:65], s[64:65], vcc
            s_cselect_b32 {s(S_MODE)}, 1, {1 if self.cfg.force_global else 0}""")
            self.loops[again] = 0
        lab = AT.emit_att_main(self, r, 0, S_WAVE, QST, 4, "sc1", 4, tail, p1, lex, between01=between)
        self.loops[lab] = 1
        vm.wait_all()
        self.stamp("att.main")
        self.lin(48, [(S_G, L.GS), (S_I, 4 * L.XTS, 0, 3), (S_J, 5120, 1, None)], L.OFB, layer=False)
        self.lin(49, [(S_J, 8, 0, 1), (S_WAVE, 256), (48, 1)], 2048, layer=False)
        self.I(f"v_bfe_u32 v5, v0, 4, 1\nv_lshrrev_b32 v6, 5, v0\nv_mul_u32_u24 v5, {L.XTS}, v5\nv_lshlrev_b32 v7, 4, v3\nv_add3_u32 v7, v7, v5, s49")
        self.lin(49, [(S_J, 3072, 0, 1), (S_WAVE, 1024, 1, None), (S_WAVE, 512, 0, 1), (48, 1)], 0, layer=False)
        self.I("v_lshlrev_b32 v6, 8, v6\nv_lshl_add_u32 v6, v3, 4, v6\nv_add3_u32 v6, v6, v5, s49")
        self.flag_x_off(L.FL_O, 40)
        self.I(f"s_mov_b32 s66, {hexf(2.0**-60)}\nv_mov_b32 {v(r.t+7)}, {hexf(2.0**60)}\nv_mov_b32 {v(r.t+6)}, 0x203")
        AT.emit_att_reduce(self, r, 0, S_WAVE, RED_A)
        AT.emit_att_finish(self, r, 4, 6, 7, "", 2 * L.XTS)
        nb = A.newlabel("nobad")
        if self.cfg.force_bad: self.I(f"s_mov_b64 s[64:65], 1")
        self.I(f"""s_cmp_eq_u64 s[64:65], 0
        v_mov_b32 v6, {M_BAD}
        s_cbranch_scc1 {nb}
        s_cmp_lg_u32 {s(S_RETRY)}, 0
        s_cbranch_scc1 {nb}
        ds_write_b32 v6, v6""")
        A.L(nb)
        self.I(f"s_waitcnt lgkmcnt(0)\ns_barrier\nds_read_b32 v7, v6")
        self.stamp("att.fin")
        wo2 = self.lin_dma((S_J, 100 * 1024), L.WOF + WO1 * 1024, WO_LDS + WO1 * 1024, 7, 52, 53, "wo")
        self.w1a = self.lin_dma((S_JP, 140 * 1024), L.W1F, W1A_LDS, 14, 46, 47, "w1")
        self.I(f"s_waitcnt lgkmcnt(0)\nv_readfirstlane_b32 s36, v7\ns_cmp_lg_u32 s36, 0\ns_cbranch_scc1 L_slow")
        self.I(f"s_mov_b32 {s(S_RETRY)}, 0")
        keep = self.A; A2 = Asm(); A2.uid = 100000; self.A = A2
        A2.L("L_slow")
        self.I(f"s_mov_b32 {s(S_RETRY)}, 1\ns_waitcnt vmcnt(0)\ns_barrier\nv_mov_b32 v7, 0\nds_write_b32 v6, v7")
        AT.emit_att_truemax(self, r, 0, S_WAVE, QST, RED_A)
        self.I("s_branch L_att")
        self.A = keep; self.slow = A2.ins
        self.window(wo2 + self.take(self.w1a, 5), n1=7)

    def phase_oproj(self):
        vm = self.vm
        X, WB, ACC = 256, 68, 108
        self.lin(30, [(S_G, L.GS), (S_I, 4 * L.XTS, 0, 3), (S_WAVE, L.XTS)], L.OFB, layer=False)
        self.resid_setup(L.XMID, L.STATMID, L.FL_X1)
        sk = self.A.newlabel("cs1a")
        self.I(f"s_cmp_lg_u32 {s(S_L)}, 0\ns_cbranch_scc1 {sk}")
        self.csum_loads(20, (S_JP, 20 * 448), L.CS1P, 448, 0xfffffff, "cs")
        vm.wait("cs")
        self.csum_part(20, M_CS1P, 448, 0xfffffff)
        self.A.L(sk)
        self.I(f"v_add_u32 v64, {WO_LDS}, v1\nv_add_u32 v65, {WO_LDS + 51200}, v1")
        self.lin(37, [(S_I, 128)], L.FL_O)
        self.I("v_and_b32 v6, 31, v0\nv_lshlrev_b32 v6, 2, v6")
        self.poll(6, 37)
        def load(k):
            if k and k % 4 == 0: self.I("s_add_u32 s30, s30, 4096")
            vm.issue(f"buffer_load_dwordx4 {R(X+4*k,4)}, v1, {WS}, s30 offen offset:{(k%4)*1024} sc1", ("x", k))
        nl = 0
        while nl < 7: load(nl); nl += 1
        self.I("s_barrier")
        self.stamp("o.poll")
        def wread(k, ft): return f"ds_read_b128 {v(WB+20*(k%2)+4*ft,4)}, v{64 + k//10} offset:{((k%10)*5+ft)*1024}"
        for ft in range(5): self.I(wread(0, ft))
        for k in range(20):
            vm.wait(("x", k))
            for ft in range(5):
                self.I(f"s_waitcnt lgkmcnt({4 if k + 1 < 20 else 4 - ft})")
                d = ACC + 4 * ft
                self.I(f"v_mfma_f32_16x16x32_bf16 {v(d,4)}, {v(WB+20*(k%2)+4*ft,4)}, {R(X+4*k,4)}, {'0' if k == 0 else v(d,4)}")
                if k + 1 < 20: self.I(wread(k + 1, ft))
                if ft in (1, 3) and nl < 20: load(nl); nl += 1
            if nl == 20 and k >= 8: self.emit_list(self.take(self.w1a, 1))
        self.emit_list(self.w1a)
        self.stamp("o.mm")
        self.resid_epilogue(ACC)
        self.I("s_barrier")
        self.w1b = self.lin_dma((S_JP, 140 * 1024), L.W1F + 56 * 1024, W1B_LDS, 21, 52, 53, "w1b")
        self.window(self.take(self.w1b, 12))
        sk = self.A.newlabel("cs1b")
        self.I(f"s_cmp_lg_u32 {s(S_L)}, 0\ns_cbranch_scc1 {sk}")
        self.csum_final(20, M_CS1P, 448, M_CS1, 0xfffffff)
        self.A.L(sk)
        self.stamp("o.epi")

    def phase_mlp1(self):
        A, vm = self.A, self.vm
        ACC, SL, ST, AD, XR, NXR, WB = 20, 76, 108, 116, 256, 8, 320
        for e in range(2):
            self.lin(42 + e, [(S_IP, 8, 0, 1), (S_WAVE, 2)], e, layer=False)
            self.lin(30 + e, [(42 + e, L.XTS), (S_G, L.GS)], L.XMID, layer=False)
            self.lin(32 + e, [(42 + e, L.HTS), (S_G, L.GS), (S_JP, 7168, 1, None)], L.HFB, layer=False)
            self.lin(44 + e, [(S_JP, 4096, 0, 1), (32 + e, 1)], 0, layer=False)
            self.I(f"s_and_b32 s36, {s(S_JP)}, 1\ns_lshl_b32 s36, s36, 3\ns_add_u32 s{32+e}, s{32+e}, s36")
            self.lin(42 + e, [(42 + e, 4096), (S_G, L.GS)], L.STATMID, layer=False)
        self.lin(40, [(S_IP, 256), (S_WAVE, 128, 1, None), (S_JP, 8), (S_WAVE, 4, 0, 1)], L.FL_H)
        self.lin(37, [(S_IP, 256), (S_WAVE, 128, 1, None), (S_WAVE, 16, 0, 1)], L.FL_X1)
        self.I(f"""v_lshlrev_b32 v18, 10, v4
        v_lshl_add_u32 v18, v3, 5, v18
        v_add_u32 {v(AD)}, {W1A_LDS}, v1
        v_add_u32 {v(AD+1)}, {W1B_LDS}, v1
        v_add_u32 {v(AD+2)}, {W1B_LDS + 8*7168}, v1
        v_lshlrev_b32 {v(AD+3)}, 4, v4
        v_add_u32 {v(AD+3)}, {M_CS1}, {v(AD+3)}
        v_bfe_u32 v6, v0, 2, 2
        v_lshlrev_b32 v6, 5, v6
        v_and_b32 v7, 3, v0
        v_lshl_add_u32 v6, v7, 2, v6""")
        self.poll(6, 37)
        def xr(k, e): return XR + 8 * (k % NXR) + 4 * e
        def load(k):
            for e in range(2):
                if k and k % 4 == 0: self.I(f"s_add_u32 s{30+e}, s{30+e}, 4096")
                vm.issue(f"buffer_load_dwordx4 {R(xr(k,e),4)}, v1, {WS}, s{30+e} offen offset:{(k%4)*1024} sc1", ("x", k))
        def wread(k, ft): return f"ds_read_b128 {R(WB + 28*(k%2) + 4*ft, 4)}, {v(AD + k//8)} offset:{(k%8)*7168 + ft*1024}"
        PD = 5
        nl = 0
        while nl < 4: load(nl); nl += 1
        self.I("s_barrier")
        self.stamp("x1.poll")
        w2_in_loop = self.take(self.w2_items, 26)
        for ft in range(7): self.I(wread(0, ft))
        for k in range(20):
            vm.wait(("x", k))
            if k == 7:
                vm.wait("w1b"); self.I("s_barrier")
            self.I("s_waitcnt lgkmcnt(0)")
            n = 0
            for ft in range(7):
                for e in range(2):
                    d = ACC + 28 * e + 4 * ft
                    self.I(f"v_mfma_f32_16x16x32_bf16 {v(d,4)}, {R(WB+28*(k%2)+4*ft,4)}, {R(xr(k,e),4)}, {'0' if k == 0 else v(d,4)}")
                    if k + 1 < 20 and n < 7: self.I(wread(k + 1, n))
                    if n == 7 and nl < min(k + PD, 20): load(nl); nl += 1
                    if n == 9 and nl < min(k + 1 + PD, 20): load(nl); nl += 1
                    if k < 5 and n in (8, 11): self.emit_list(self.take(self.w1b, 1))
                    if k >= 6 and (n == 12 or (nl == 20 and n == 8)): self.emit_list(self.take(w2_in_loop, 1))
                    n += 1
            assert k < 5 or not self.w1b
            if self.cfg.fine == "m" and k in (0, 4, 9, 14): self.stamp(f"m1.k{k}")
            if k == 15: self.stat_loads(42, 18, SL, "stat")
            if k == 16: self.stat_loads(43, 18, SL + 16, "stat")
        self.w2_items = w2_in_loop + self.w2_items
        self.stamp("m1.mm")
        vm.wait("stat")
        for e in range(2):
            self.stat_finish(SL + 16 * e, ST + 4 * e)
            self.I(f"v_mov_b32 {v(ST+4*e+2)}, {v(ST+4*e+1)}")
        CB = SL; T = 120; PK = [128, 116]
        def cbread(n):
            g0 = 4 * (n % 4); b = CB + 16 * (n % 2)
            for h in range(2 if g0 < 12 else 1):
                self.I(f"ds_read_b128 {v(b+4*h,4)}, v7 offset:{(g0//2+h)*64}\nds_read_b128 {v(b+8+4*h,4)}, v7 offset:{448+(g0//2+h)*64}")
        self.I(f"v_mov_b32 v7, {v(AD+3)}")
        cbread(0)
        self.I(f"s_mov_b32 s66, {hexf(math.log2(math.e))}\ns_mov_b32 s67, s66\ns_mov_b32 s68, {hexf(math.sqrt(0.5))}\ns_mov_b32 s69, s68")
        if self.cfg.fine == "m": self.stamp("m1.stat")
        for n in range(8):
            e, g0 = n // 4, 4 * (n % 4)
            nm, rs = ST + 4 * e, ST + 4 * e + 2
            prs = list(range(g0, min(g0 + 4, 14)))
            D = lambda pr: ACC + 28 * e + 2 * pr
            Tt = lambda pr: T + 2 * (pr % 4)
            b = CB + 16 * (n % 2); pk = PK[n % 2]
            self.I("s_waitcnt lgkmcnt(0)")
            if n + 1 < 8: cbread(n + 1)
            for pr in prs: self.I(f"v_pk_fma_f32 {v(D(pr),2)}, {v(nm,2)}, {v(b+2*(pr-g0),2)}, {v(D(pr),2)} op_sel_hi:[0,1,1]")
            for pr in prs: self.I(f"v_pk_fma_f32 {v(D(pr),2)}, {v(D(pr),2)}, {v(rs,2)}, {v(b+8+2*(pr-g0),2)} op_sel_hi:[1,0,1]")
            for pr in prs: self.I(f"v_pk_fma_f32 {v(Tt(pr),2)}, {v(D(pr),2)}, s[66:67], -0.5 op_sel_hi:[1,1,0]")
            for pr in prs: self.I(f"v_exp_f32 {v(Tt(pr))}, {v(Tt(pr))}\nv_exp_f32 {v(Tt(pr)+1)}, {v(Tt(pr)+1)}")
            for pr in prs: self.I(f"v_pk_add_f32 {v(Tt(pr),2)}, {v(Tt(pr),2)}, s[68:69]")
            for pr in prs: self.I(f"v_pk_fma_f32 {v(Tt(pr),2)}, {v(Tt(pr),2)}, {v(Tt(pr),2)}, 0.5 op_sel_hi:[1,1,0]")
            for pr in prs: self.I(f"v_rcp_f32 {v(Tt(pr))}, {v(Tt(pr))}\nv_rcp_f32 {v(Tt(pr)+1)}, {v(Tt(pr)+1)}")
            for pr in prs: self.I(f"v_pk_fma_f32 {v(D(pr),2)}, {v(D(pr),2)}, {v(Tt(pr),2)}, {v(D(pr),2)} neg_lo:[1,0,0] neg_hi:[1,0,0]")
            for pr in prs: self.I(f"v_cvt_pk_bf16_f32 {v(pk+pr-g0)}, {v(D(pr))}, {v(D(pr)+1)}")
            q = g0 // 4
            if q < 3: vm.issue(f"buffer_store_dwordx4 {v(pk,4)}, v1, {WS}, s{44+e} offen offset:{q*1024}", "st")
            else: vm.issue(f"buffer_store_dwordx2 {v(pk,2)}, v1, {WS}, s{32+e} offen offset:3072", "st")
            if n < 5: self.emit_list(self.take(self.w2_items, 1))
        if self.cfg.fine == "m": self.stamp("m1.mish")
        self.window(self.w2_items)
        self.stamp("m1.epi")

    def phase_mlp2(self):
        A, vm = self.A, self.vm
        NS, XR, NR, accs, stage, PD, P0 = 14, 276, 25, [20, 40], 60, 10, 6
        fine = self.cfg.fine == "h"
        for p in range(4):
            self.I(f"s_add_u32 s37, {s(S_WAVE)}, {p+1}\ns_and_b32 s37, s37, 3")
            if p < 3: self.lin(44 + p, [(37, 15360)], RED_K + p * 5120, layer=False)
            self.lin(30 + p, [(37, L.HTS), (S_G, L.GS), (S_I, 4 * L.HTS, 0, 3), (S_WAVE, NS * 1024)], L.HFB, layer=False)
        self.lin(47, [(S_WAVE, 15360)], RED_K, layer=False)
        self.resid_setup(L.XIN, L.STATIN, L.FL_XIN + L.LS)
        self.lin(37, [(S_I, 128), (S_WAVE, 32)], L.FL_H)
        self.I("v_and_b32 v120, 7, v0\nv_lshlrev_b32 v120, 2, v120")
        self.I("s_barrier")
        self.poll(120, 37)
        self.stamp("h.poll")
        self.wqa = self.lin_dma((S_J, 120 * 1024), L.WQF, WQ_LDS, 24, 52, 53, "wq")
        items = [(p, st) for p in range(4) for st in range(NS)]
        def xr(k): return XR + 4 * (k % NR)
        def load(k):
            p, st = items[k]
            if st % 4 == 0: self.I(f"s_add_u32 s34, s{30+p}, {(st//4)*4096}")
            vm.issue(f"buffer_load_dwordx4 {R(xr(k),4)}, v1, {WS}, s34 offen offset:{(st%4)*1024} sc1", ("x", k))
        nl = 0
        while nl < P0: load(nl); nl += 1
        NM = 5 * NS
        for k, (p, st) in enumerate(items):
            acc = accs[p % 2]
            if st == 0:
                fill = {}
                if p > 0:
                    prev = accs[(p - 1) % 2]
                    span = NM if p < 3 else NM // 2
                    lo = 3 if p < 3 else 12
                    fill.setdefault(0, []).append(f"v_add_u32 v7, s{44+p-1}, v1")
                    for ft in range(5):
                        fill.setdefault(lo + ft * (span - lo) // 5, []).append(f"ds_write_b128 v7, {v(prev+4*ft,4)} offset:{ft*1024}")
                if p == 3:
                    self.I("s_waitcnt lgkmcnt(0)\ns_barrier\nv_add_u32 v6, s47, v1")
                    for n in range(10):
                        fill.setdefault(n, []).append(f"ds_read_b128 {v(stage+4*n,4)}, v6 offset:{(n//5)*5120+(n%5)*1024}")
                    b2 = NM // 2 + 6
                    fill.setdefault(b2, []).append("s_waitcnt lgkmcnt(0)\ns_barrier")
                    for n in range(5):
                        fill.setdefault(b2 + 1 + n, []).append(f"ds_read_b128 {v(stage+40+4*n,4)}, v6 offset:{2*5120+n*1024}")
                    for n in range(20):
                        fill.setdefault(b2 + 1 + n // 2, []).append(f"v_add_f32 {v(stage+n)}, {v(stage+n)}, {v(stage+20+n)}")
                    fill.setdefault(b2 + 12, []).append("s_waitcnt lgkmcnt(0)")
                    for n in range(20):
                        fill.setdefault(b2 + 12 + n // 2, []).append(f"v_add_f32 {v(stage+n)}, {v(stage+n)}, {v(stage+40+n)}")
            vm.wait(("x", k))
            if fine and st == 0: self.stamp(f"k.g{p}")
            for ft in range(5):
                c = "0" if st == 0 else v(acc + 4 * ft, 4)
                self.I(f"v_mfma_f32_16x16x32_bf16 {v(acc+4*ft,4)}, {R(w2_reg(5*st+ft),4)}, {R(xr(k),4)}, {c}")
                for x in fill.get(5 * st + ft, []): self.I(x)
                if ft == 1 and k % 2 == 0 and nl < min(k + PD, len(items)): load(nl); nl += 1
            if nl < min(k + 1 + PD, len(items)): load(nl); nl += 1
            elif nl == len(items): self.emit_list(self.take(self.wqa, 2))
        if fine: self.stamp("k.mend")
        for i in range(0, 20, 2): self.I(f"v_pk_add_f32 {v(accs[1]+i,2)}, {v(accs[1]+i,2)}, {v(stage+i,2)}")
        self.stamp("m2.mm")

    def init_lds_consts(self):
        A, vm = self.A, self.vm
        self.I("s_mov_b32 s53, 0"); emit_realtile(A, S_JP, 53, 54, 56, 58)
        self.I("s_mov_b32 s53, 6"); emit_realtile(A, S_JP, 53, 55, 57, 58)
        self.I(f"""s_lshl_b32 s54, s54, 5
        v_mov_b32 v6, s57
        v_cmp_lt_u32 vcc, 23, v0
        v_cndmask_b32 v6, 0, v6, vcc
        v_add_u32 v6, v6, v2""")
        vm.issue(f"buffer_load_dwordx2 v[250:251], v6, s[12:15], s54 offen", "b1")
    def init_lds_finish(self):
        self.I(f"""v_lshlrev_b32 v20, 16, v250
        v_and_b32 v21, 0xffff0000, v250
        v_lshlrev_b32 v22, 16, v251
        v_and_b32 v23, 0xffff0000, v251
        v_add_u32 v6, {M_B1}, v1
        s_mov_b64 exec, 0x0fffffff
        ds_write_b128 v6, v[20:23]
        s_mov_b64 exec, -1
        v_mov_b32 v6, {M_BAD}
        v_mov_b32 v7, 0
        ds_write_b32 v6, v7""")

def build_main(cfg):
    G = Gen(cfg); A = G.A; vm = G.vm
    Gen.cold = []
    G.I(f"""
    s_cmp_ge_u32 s2, 256
    s_cbranch_scc1 L_end
    s_load_dwordx8 s[36:43], s[0:1], 0
    s_load_dwordx2 s[96:97], s[0:1], 32       ; wo
    s_load_dwordx2 s[98:99], s[0:1], 48       ; w1
    s_load_dwordx2 s[44:45], s[0:1], 56       ; b1
    s_load_dwordx2 s[100:101], s[0:1], 64     ; w2
    s_load_dwordx2 s[46:47], s[0:1], 72       ; out
    s_load_dwordx2 s[50:51], s[0:1], 88       ; ws
    v_lshrrev_b32 v2, 6, v0
    v_and_b32 v0, 63, v0
    v_readfirstlane_b32 {s(S_WAVE)}, v2
    v_lshlrev_b32 v1, 4, v0
    v_lshlrev_b32 v2, 3, v0
    v_and_b32 v3, 15, v0
    v_lshrrev_b32 v4, 4, v0
    s_and_b32 {s(S_G)}, s2, 7
    s_lshr_b32 {s(S_C)}, s2, 3
    s_lshl_b32 {s(S_I)}, {s(S_G)}, 2
    s_lshr_b32 s30, {s(S_C)}, 3
    s_add_u32 {s(S_I)}, {s(S_I)}, s30
    s_and_b32 {s(S_J)}, {s(S_C)}, 7
    s_lshl_b32 {s(S_IP)}, {s(S_G)}, 1
    s_lshr_b32 s30, {s(S_C)}, 4
    s_add_u32 {s(S_IP)}, {s(S_IP)}, s30
    s_and_b32 {s(S_JP)}, {s(S_C)}, 15
    s_mov_b32 {s(S_L)}, 0
    s_mov_b32 {s(S_MODE)}, 1
    s_mov_b32 {s(S_RETRY)}, 0
    s_getreg_b32 {s(S_TAG)}, hwreg(HW_REG_XCC_ID, 0, 3)
    """)
    if cfg.prof: G.I("s_mov_b32 s77, 0\nv_mov_b32 v19, 0")
    G.stamp("start")
    G.I("s_waitcnt lgkmcnt(0)")
    srd(A, SRD_X, 36, 2048 * 640 * 2); srd(A, SRD_WQ, 38, 640 * 640 * 2)
    G.I(f"""s_bitcmp1_b32 s2, 1
    s_cselect_b32 {s(SRD_KV)}, s42, s40
    s_cselect_b32 {s(SRD_KV+1)}, s43, s41
    s_mov_b32 {s(SRD_KV+2)}, {640*20*2}
    s_mov_b32 {s(SRD_KV+3)}, 0x20000
    s_load_dword {s(S_EPOCH)}, s[50:51], {L.EPOCH}""")
    srd(A, 4, 50, L.WS_USED); srd(A, 8, 46, 2048 * 640 * 2); srd(A, 12, 44, 1728 * 2); srd(A, SRD_SRC, 96, 640 * 640 * 2)
    G.I("v_mov_b32 v192, 0x3f803f80\nv_mov_b32 v193, 0x3f803f80\nv_mov_b32 v194, 0x3f803f80\nv_mov_b32 v195, 0x3f803f80")
    G.I(f"s_cmp_lt_u32 s2, 160\ns_cselect_b32 s73, 0, 1\ns_or_b32 s73, s73, {s(S_WAVE)}\ns_cbranch_scc1 L_nowq1")
    G.wq_unit_issue()
    A.L("L_nowq1")
    G.I("s_movk_i32 s54, 1280")
    G.x0_issue()
    G.I(f"""s_cmp_ge_u32 s2, 160
    s_cselect_b32 s36, 0, 1
    s_or_b32 s36, s36, {s(S_WAVE)}
    s_cbranch_scc1 L_notouch
    s_sub_u32 s36, s2, 160
    s_lshl_b32 s37, s36, 13
    s_add_u32 s37, s37, {L.KVB}
    s_cmp_eq_u32 s36, {2 * L.LS // 8192 + 1}
    s_cselect_b32 s37, {L.FL_PREP}, s37
    s_cmp_gt_u32 s36, {2 * L.LS // 8192 + 1}
    s_cbranch_scc1 L_notouch
    v_lshlrev_b32 v5, 7, v0
    buffer_load_dword v18, v5, {WS}, s37 offen""")
    A.L("L_notouch")
    G.init_lds_consts()
    G.I(f"s_waitcnt lgkmcnt(0)\ns_mul_i32 {s(S_EPOCH)}, {s(S_EPOCH)}, 1664525\ns_add_u32 {s(S_EPOCH)}, {s(S_EPOCH)}, 1013904223")
    G.I(f"s_and_b32 s36, {s(S_EPOCH)}, 0xfffffff8\ns_or_b32 {s(S_TAG)}, {s(S_TAG)}, s36")
    G.stamp("p0.issue")
    G.I("s_cmp_lg_u32 s73, 0\ns_cbranch_scc1 L_nowq2\ns_waitcnt vmcnt(21)")
    G.wq_unit_finish()
    G.I("s_waitcnt vmcnt(0)")
    G.signal(69, dev=True)
    G.I("s_branch L_wq3")
    A.L("L_nowq2")
    G.I("s_waitcnt vmcnt(0)")
    A.L("L_wq3")
    vm.q = []
    G.stamp("p0.x")
    G.init_lds_finish()
    G.x0_read(20, 196)
    G.stat_finish(196, 212, presummed=True)
    G.qkv_setup(True)
    G.lin(37, [(S_J, 128)], L.FL_WQ, layer=False)
    G.I("v_min_u32 v6, 19, v0\nv_lshlrev_b32 v6, 2, v6\ns_barrier")
    G.stamp("p0.stat")
    G.poll(6, 37, dev=True)
    G.stamp("p0.wq")
    G.csum_loads(172, (S_J, 20 * 384), L.CSQP, 384, 0xffffff, "cs")
    for n in range(5): G.emit_list(G.wq_round(n))
    G.prep_issue()
    G.phase_qkv(True)
    G.prep_finish()
    G.I("s_waitcnt vmcnt(0) lgkmcnt(0)\ns_barrier"); vm.q = []
    G.I(G.qs)
    G.lin(40, [(2, 4)], L.FL_PREP, layer=False)
    sk = A.newlabel("pfl")
    G.I(f"s_cmp_lg_u32 {s(S_WAVE)}, 0\ns_cbranch_scc1 {sk}")
    G.signal(40, dev=True, val=S_TAG)
    A.L(sk)
    G.I("s_waitcnt lgkmcnt(0)\ns_barrier")
    G.stamp("prep")
    A.L("L_layer")
    G.phase_att()
    G.I(f"s_cmp_lg_u32 s2, 0\ns_cbranch_scc1 L_noep\nv_mov_b32 v5, {s(S_EPOCH)}\ns_mov_b32 s36, {L.EPOCH}\ns_mov_b64 exec, 1\nbuffer_store_dword v5, off, {WS}, s36\ns_mov_b64 exec, -1")
    A.L("L_noep")
    G.phase_oproj()
    G.phase_mlp1()
    G.phase_mlp2()
    G.I(f"s_cmp_lg_u32 {s(S_L)}, 0\ns_cbranch_scc1 L_final")
    q0 = list(vm.q)
    G.resid_epilogue(40, statreg=60)
    G.I("s_barrier")
    G.window(G.wqa + G.lin_dma((S_J, 120 * 1024), L.WQF + 96 * 1024, WQ_LDS + 96 * 1024, 6, 52, 53, "wq"))
    G.stamp("m2.epi")
    G.I(f"s_mov_b32 {s(S_L)}, {L.LS}")
    G.qkv_setup(False)
    G.lin(37, [(S_I, 128), (S_WAVE, 8)], L.FL_XIN)
    G.I("v_bfe_u32 v6, v0, 1, 2\nv_lshlrev_b32 v6, 5, v6\nv_and_b32 v7, 1, v0\nv_lshl_add_u32 v6, v7, 2, v6")
    G.poll(6, 37)
    G.stamp("xin.poll")
    G.phase_qkv(False)
    G.I("s_branch L_layer")
    A.L("L_final")
    vm.q = q0
    G.lin(36, [(S_I, 64 * 1280), (S_WAVE, 16 * 1280), (S_J, 160)], 0, layer=False, tmp=37)
    G.I("v_mul_u32_u24 v6, 1280, v3\nv_lshl_add_u32 v6, v4, 3, v6")
    G.resid_epilogue(40, store=False)
    for ft in range(5): G.I(f"buffer_store_dwordx2 {v(XRES+2*ft,2)}, v6, s[8:11], s36 offen offset:{ft*32}")
    if cfg.prof:
        G.I("s_waitcnt vmcnt(0)"); G.stamp("end")
        G.I(f"s_lshl_b32 s36, s2, 2\ns_add_u32 s36, s36, {s(S_WAVE)}\ns_lshl_b32 s36, s36, 8\ns_add_u32 s36, s36, {L.PROF}\nv_lshlrev_b32 v6, 2, v0")
        G.I(f"buffer_store_dword v19, v6, {WS}, s36 offen")
        cfg.names = G.names
    A.L("L_end")
    G.I("s_endpgm")
    for g, j, code in Gen.cold:
        A.L(g); G.I(code); G.I(f"s_branch {j}")
    A.ins += G.slow
    npad = A.pad_hazards()
    tr = trace_two_layers(A.ins, G.loops)
    errs = check_waits([x for x in tr if x.op != "s_memtime"], "main")
    assert errs == 0 or cfg.skip != ("",) and cfg.skip
    return A.text(), npad

def trace_two_layers(ins, loops):
    labels = {x.label: i for i, x in enumerate(ins) if x.is_label}
    tr = []; j = 0; left = {}; layer = 0
    while j < len(ins):
        c = ins[j]; tr.append(c)
        if c.op == "s_endpgm": break
        if c.kind == "branch":
            t = labels[c.target]
            if c.op == "s_branch":
                if c.target == "L_layer": layer = 1
                j = t; continue
            if t <= j:
                k = left.get(j, loops.get(c.target, 1))
                if k > 0: left[j] = k - 1; j = t; continue
                left.pop(j, None)
            elif (c.target == "L_final" and layer == 1) or c.target.startswith("L_prepok"):
                j = t; continue
        j += 1
    return tr

HEADER = open(f"cdna_kernels/{NAME}.s.ref").read().split("; Override launch")[0]

def build_all(cfg):
    body, npad = build_main(cfg)
    asm = HEADER
    asm += f"; @launch grid=(256,1,1) block=(256,1,1) lds={LDS_BYTES}\n"
    asm += '.amdgcn_target "amdgcn-amd-amdhsa--gfx950"\n'
    asm += wrap_kernel(NAME + "_kernel", body, vgpr=512, acc=256)
    return asm, npad

if __name__ == "__main__":
    cfg = Cfg()
    cfg.prof = "prof" in os.environ.get("XF", "")
    asm, npad = build_all(cfg)
    open("out.s", "w").write(asm)
    print("lines", len(asm.splitlines()), "bytes", len(asm), "pad", npad)
```

```python
from asmlib import *

KVT = 2816
NT = 16
QST_Q = 1536
RED_Q = 3072

class AttRegs:
    def __init__(self, base, kvbase=256):
        b = base
        def take(n, al=1):
            nonlocal b
            b = (b + al - 1) // al * al
            r = b; b += n; return r
        self.S = [take(16, 4), take(16, 4)]
        self.O = [take(16, 4), take(16, 4)]
        self.P = [take(8, 4), take(8, 4)]
        self.Q1 = [take(4, 4), take(4, 4)]
        self.Q2 = [take(2, 2), take(2, 2)]
        self.aQ1 = take(1); self.aQ2 = take(1); self.aR = take(1); self.pf = take(1)
        self.t = take(8, 4)
        self.end = b
        self.kv = kvbase
    def K1(self, t): return self.kv + 12 * t
    def V1(self, t): return self.kv + 12 * t + 4
    def V2(self, t): return self.kv + 12 * t + 8
    def K2(self, t): return self.kv + 192 + 2 * t

def emit_kv_addr(A, r, lane, wave_s, base_s):
    t = r.t
    A.I(f"s_mul_i32 s60, {s(wave_s)}, {NT*KVT}")
    A.I(f"s_add_u32 s60, s60, {s(base_s)}")
    A.I(f"v_lshlrev_b32 {v(t)}, 4, {v(lane)}")
    A.I(f"v_and_b32 {v(t+3)}, 31, {v(lane)}")
    A.I(f"v_lshrrev_b32 {v(t+4)}, 5, {v(lane)}")
    A.I(f"v_lshlrev_b32 {v(t+1)}, 3, {v(t+3)}")
    A.I(f"v_lshl_add_u32 {v(t+1)}, {v(t+4)}, 2, {v(t+1)}")
    A.I(f"v_lshlrev_b32 {v(t+2)}, 4, {v(t+3)}")
    A.I(f"v_mad_u32_u24 {v(t+2)}, {v(t+4)}, s59, {v(t+2)}")
    A.I(f"v_cmp_lt_u32 vcc, 20, {v(t+3)}\nv_mov_b32 {v(t+4)}, 0x40000000\nv_cndmask_b32 {v(t+2)}, {v(t+2)}, {v(t+4)}, vcc")

def kv_items(r, srd, flags, k):
    t = r.t
    return [("v", f"buffer_load_dwordx4 {R(r.K1(k),4)}, {v(t)}, {s(srd,4)}, s60 offen {flags}", ("kv", k)),
            ("v", f"buffer_load_dword {R(r.K2(k))}, {v(t+1)}, {s(srd,4)}, s60 offen offset:1024 {flags}", ("kv", k)),
            ("v", f"buffer_load_dwordx4 {R(r.V1(k),4)}, {v(t+2)}, {s(srd,4)}, s60 offen offset:1280 {flags}", ("kv", k)),
            ("v", f"buffer_load_dwordx4 {R(r.V2(k),4)}, {v(t+2)}, {s(srd,4)}, s60 offen offset:2048 {flags}", ("kv", k)),
            ("s", f"s_add_u32 s60, s60, {KVT}")]

def half_step(G, r, X, kS, kV2, kV1, fill, zeroO=False, doPV2=True):
    Y = 1 - X
    S, P = r.S[X], r.P[X]
    I = G.I
    def ex(i): I(f"v_exp_f32 {v(S+i)}, {v(S+i)}")
    def cv(i): I(f"v_cvt_pk_bf16_f32 {v(P+i)}, {v(S+2*i)}, {v(S+2*i+1)}")
    G.emit_list(fill.get('pre0', []))
    I(f"v_mfma_f32_32x32x16_bf16 {v(r.S[Y],16)}, {R(r.K1(kS),4)}, {v(r.Q1[Y],4)}, 0")
    G.emit_list(fill.get(0, []))
    for i in range(0, 4): ex(i)
    I(f"v_mfma_f32_32x32x8_bf16 {v(r.S[Y],16)}, {R(r.K2(kS),2)}, {v(r.Q2[Y],2)}, {v(r.S[Y],16)}")
    G.emit_list(fill.get(1, []))
    for i in range(4, 8): ex(i)
    cv(0); cv(1)
    if doPV2:
        I(f"v_mfma_f32_32x32x16_bf16 {v(r.O[Y],16)}, {R(r.V2(kV2),4)}, {v(r.P[Y]+4,4)}, {v(r.O[Y],16)}")
    G.emit_list(fill.get(2, []))
    cv(2); cv(3)
    for i in range(8, 12): ex(i)
    I(f"v_mfma_f32_32x32x16_bf16 {v(r.O[X],16)}, {R(r.V1(kV1),4)}, {v(P,4)}, {'0' if zeroO else v(r.O[X],16)}")
    G.emit_list(fill.get(3, []))
    for i in range(12, 16): ex(i)
    for i in range(4, 8): cv(i)

def place(fa, fb, items, slots):
    items = list(items)
    n = len(slots)
    per = -(-len(items) // n)
    k = 0
    for sl in slots:
        cnt = len(items) - (n - 1 - k) * per if False else min(per, len(items))
        tgt = (fa if sl[0] == 0 else fb).setdefault(sl[1], [])
        take = []
        while items and len(take) < per:
            take.append(items.pop(0))
        tgt.extend(take)
        k += 1
    assert not items

FULL = [(0, 0), (0, 2), (0, 3), (1, 0), (1, 2), (1, 3), (0, 1), (1, 1)]
ORD = [(0, 0), (0, 1), (0, 2), (0, 3), (1, 0), (1, 1), (1, 2), (1, 3)]

def S_(txt): return [("s", x.strip()) for x in txt.split("\n") if x.strip()]

def q_reads(r, X):
    return [f"ds_read_b128 {v(r.Q1[X],4)}, {v(r.aQ1)} offset:{X*QST_Q}",
            f"ds_read_b64 {v(r.Q2[X],2)}, {v(r.aQ2)} offset:{X*QST_Q + 1024}"]

def emit_att_pre(G, r, lane, wave_s, qst, red):
    I = G.I
    I(f"s_add_u32 s63, {s(wave_s)}, 1\ns_and_b32 s63, s63, 3")
    I(f"s_mul_i32 s61, s63, {2*QST_Q}\ns_add_u32 s61, s61, {qst}")
    I(f"v_lshl_add_u32 {v(r.aQ1)}, {v(lane)}, 4, s61")
    I(f"v_lshl_add_u32 {v(r.aQ2)}, {v(lane)}, 3, s61")
    for x in q_reads(r, 0) + q_reads(r, 1): I(x)
    for k in range(NT): I(f"v_accvgpr_write_b32 {R(r.K2(k)+1)}, s58")
    I(f"s_mov_b32 s57, {red}")

def emit_att_main(G, r, lane, wave_s, qst, kvsrd, kvflags, nfirst, events, p1_items, start, between01=None):
    I = G.I; vm = G.vm
    def next_q_addr():
        return [f"s_mul_i32 s61, s63, {6*RED_Q}", "s_add_u32 s61, s61, s57",
                f"v_lshl_add_u32 {v(r.aR)}, {v(lane)}, 4, s61",
                f"s_add_u32 s57, s57, {2*RED_Q}",
                "s_add_u32 s63, s63, 1", "s_and_b32 s63, s63, 3",
                f"s_mul_i32 s61, s63, {2*QST_Q}", f"s_add_u32 s61, s61, {qst}",
                f"v_lshl_add_u32 {v(r.aQ1)}, {v(lane)}, 4, s61",
                f"v_lshl_add_u32 {v(r.aQ2)}, {v(lane)}, 3, s61"]
    for k in range(nfirst): G.emit_list(kv_items(r, kvsrd, kvflags, k))
    fine = G.cfg.fine == "a"
    if fine: G.stamp("a.issue")
    vm.wait(("kv", 0))
    I("s_waitcnt lgkmcnt(0)")
    if fine: G.stamp("a.kv0")
    I(f"v_mfma_f32_32x32x16_bf16 {v(r.S[0],16)}, {R(r.K1(0),4)}, {v(r.Q1[0],4)}, 0")
    I(f"v_mfma_f32_32x32x8_bf16 {v(r.S[0],16)}, {R(r.K2(0),2)}, {v(r.Q2[0],2)}, {v(r.S[0],16)}")
    def sends(X):
        return [f"ds_write_b128 {v(r.aR)}, {v(r.O[X]+4*i,4)} offset:{X*RED_Q + i*1024}" for i in range(3)]
    def one_pass(pn):
        first = pn == 0
        for t in range(NT):
            fa = {}; fb = {}
            if t == 0 and not first:
                w = sends(0); fa[0] = S_(w[0]); fa[1] = S_(w[1]); fa[2] = S_(w[2])
                w = sends(1); fb[0] = S_(w[0]); fb[1] = S_(w[1]); fb[2] = S_(w[2])
                fa['pre0'] = S_("s_waitcnt lgkmcnt(0)")
            if t == NT - 2 and pn < 3:
                n = next_q_addr()
                place(fa, fb, S_("\n".join(n)), ORD[2:])
            if t == NT - 1 and pn < 3:
                q = q_reads(r, 0); fa[0] = S_(q[0]); fa[1] = S_(q[1])
                q = q_reads(r, 1); fa[2] = S_(q[0]); fa[3] = S_(q[1])
                fb['pre0'] = S_("s_waitcnt lgkmcnt(2)")
            if first and t + nfirst < NT:
                it = kv_items(r, kvsrd, kvflags, t + nfirst)
                place(fa, fb, it, [(0, 0), (0, 1), (0, 2), (0, 3), (1, 0)])
            if first and t + 1 < NT: fb['pre0'] = fb.get('pre0', []) + [("w", ("kv", t + 1))]
            if (pn, t) in events: fb.setdefault(3, []).extend(events[(pn, t)])
            if (pn, t) >= start and 1 <= t < NT - 2:
                left = (3 - pn) * (NT - 3) + (NT - 2 - t)
                nv = sum(1 for it in p1_items if it[0] == "v")
                it = G.take(p1_items, -(-nv // left))
                if it: place(fa, fb, it, [(0, 0), (0, 2), (0, 3), (1, 0), (1, 2), (1, 3)][:max(len(it), 1)] if len(it) <= 6 else ORD)
            half_step(G, r, 0, t, (t - 1) % NT, t, fa, zeroO=(t == 0), doPV2=not (first and t == 0))
            half_step(G, r, 1, (t + 1) % NT, t, t, fb, zeroO=(t == 0))
    I("s_nop 7\ns_nop 2")
    one_pass(0)
    if fine: G.stamp("a.p0")
    if between01: between01()
    one_pass(1)
    if fine: G.stamp("a.p1")
    one_pass(2)
    if fine: G.stamp("a.p2")
    one_pass(3)
    assert not p1_items
    I(f"v_mfma_f32_32x32x16_bf16 {v(r.O[1],16)}, {R(r.V2(NT-1),4)}, {v(r.P[1]+4,4)}, {v(r.O[1],16)}")

def emit_att_reduce(G, r, lane, wave_s, red, extra):
    I = G.I
    I(f"s_mul_i32 s61, {s(wave_s)}, {6*RED_Q}\ns_add_u32 s61, s61, {red}")
    I(f"v_lshl_add_u32 {v(r.aR)}, {v(lane)}, 4, s61")
    G.emit_list(G.take(extra, 3))
    I("s_waitcnt lgkmcnt(0)\ns_barrier")
    st = r.S[0]
    assert r.S[1] == r.S[0] + 16
    stage = [st, st + 12, r.P[0]]
    for X in range(2):
        for p in range(3):
            for i in range(3):
                I(f"ds_read_b128 {v(stage[p]+4*i,4)}, {v(r.aR)} offset:{p*2*RED_Q + X*RED_Q + i*1024}")
        G.emit_list(G.take(extra, 2))
        for p in range(3):
            if p: G.emit_list(G.take(extra, 1))
            I(f"s_waitcnt lgkmcnt({6-3*p})")
            for i in range(0, 12, 2):
                I(f"v_pk_add_f32 {v(r.O[X]+i,2)}, {v(r.O[X]+i,2)}, {v(stage[p]+i,2)}")
    G.emit_list(extra)

def emit_att_finish(G, r, osrd, ooff_v, ooff2_v, stflags, qstride):
    I = G.I; t = r.t
    I("s_mov_b64 s[64:65], 0")
    for X in range(2):
        O = r.O[X]
        I(f"v_mov_b32 {v(t)}, {v(O+8)}\nv_mov_b32 {v(t+1)}, {v(O+8)}")
        I(f"v_permlane32_swap_b32 {v(t)}, {v(t+1)}")
        I(f"v_med3_f32 {v(t+2)}, {v(t+1)}, s66, {v(t+7)}")
        I(f"v_rcp_f32 {v(t)}, {v(t+1)}")
        I(f"v_cmp_neq_f32 vcc, {v(t+2)}, {v(t+1)}")
        for i in range(0, 12, 2):
            I(f"v_pk_mul_f32 {v(O+i,2)}, {v(t,2)}, {v(O+i,2)} op_sel_hi:[0,1]")
        I("s_or_b64 s[64:65], s[64:65], vcc")
        for i in range(6):
            I(f"v_cvt_pk_bf16_f32 {v(r.P[X]+i)}, {v(O+2*i)}, {v(O+2*i+1)}")
        I(f"s_mov_b32 s61, {X*qstride}")
        G.vm.issue(f"buffer_store_dwordx4 {v(r.P[X],4)}, {v(ooff_v)}, {s(osrd,4)}, s61 offen {stflags}", "st")
        I("s_mov_b64 exec, 0xffffffff")
        G.vm.issue(f"buffer_store_dwordx2 {v(r.P[X]+4,2)}, {v(ooff2_v)}, {s(osrd,4)}, s61 offen {stflags}", "st")
        I("s_mov_b64 exec, -1")
        I(f"v_add_f32 {v(t+2)}, abs({v(O)}), abs({v(O+1)})")
        for i in range(2, 8): I(f"v_add_f32 {v(t+2)}, {v(t+2)}, abs({v(O+i)})")
        I(f"v_add_f32 {v(t+3)}, abs({v(O+8)}), abs({v(O+9)})")
        I(f"v_add_f32 {v(t+4)}, abs({v(O+10)}), abs({v(O+11)})")
        I(f"v_add_f32 {v(t+3)}, {v(t+3)}, {v(t+4)}")
        I(f"v_cmp_class_f32 vcc, {v(t+2)}, {v(t+6)}")
        I("s_or_b64 s[64:65], s[64:65], vcc")
        I(f"v_cmp_class_f32 vcc, {v(t+3)}, {v(t+6)}")
        I("s_or_b32 s64, s64, vcc_lo")

def emit_att_truemax(G, r, lane, wave_s, qst, mx):
    I = G.I; t = r.t
    lab = G.A.newlabel("mx")
    I(f"s_mov_b32 s62, 0")
    G.A.L(lab)
    I(f"s_mul_i32 s61, s62, {QST_Q}\ns_add_u32 s61, s61, {qst}")
    I(f"v_lshl_add_u32 {v(r.aQ1)}, {v(lane)}, 4, s61\nv_lshl_add_u32 {v(r.aQ2)}, {v(lane)}, 3, s61")
    for x in q_reads(r, 0): I(x)
    I(f"v_mov_b32 {v(t)}, 0xff800000")
    I("s_waitcnt lgkmcnt(0)")
    for k in range(NT):
        S = r.S[k % 2]
        I(f"v_mfma_f32_32x32x16_bf16 {v(S,16)}, {R(r.K1(k),4)}, {v(r.Q1[0],4)}, 0")
        I(f"v_mfma_f32_32x32x8_bf16 {v(S,16)}, {R(r.K2(k),2)}, {v(r.Q2[0],2)}, {v(S,16)}")
        for i in range(0, 16, 2): I(f"v_max3_f32 {v(t)}, {v(t)}, {v(S+i)}, {v(S+i+1)}")
    I(f"v_mov_b32 {v(t+1)}, {v(t)}\nv_permlane32_swap_b32 {v(t)}, {v(t+1)}\nv_max_f32 {v(t)}, {v(t)}, {v(t+1)}")
    I(f"s_lshl_b32 s61, s62, 2\ns_add_u32 s61, s61, {s(wave_s)}\ns_lshl_b32 s61, s61, 8\ns_add_u32 s61, s61, {mx}")
    I(f"v_lshl_add_u32 {v(t+2)}, {v(lane)}, 2, s61\nds_write_b32 {v(t+2)}, {v(t)}")
    I(f"s_add_u32 s62, s62, 1\ns_cmp_lt_u32 s62, 8\ns_cbranch_scc1 {lab}")
    G.loops[lab] = 1
    I("s_waitcnt lgkmcnt(0)\ns_barrier")
    I(f"s_lshl_b32 s61, {s(wave_s)}, 11\ns_add_u32 s61, s61, {mx}\nv_lshl_add_u32 {v(t+2)}, {v(lane)}, 2, s61")
    I(f"s_mul_i32 s61, {s(wave_s)}, {2*QST_Q}\ns_add_u32 s61, s61, {qst + 1024 + 4}\nv_lshl_add_u32 {v(r.aQ2)}, {v(lane)}, 3, s61")
    I(f"v_cmp_lt_u32 s[64:65], 31, {v(lane)}")
    S = r.S[0]
    for X in range(2):
        for w in range(4): I(f"ds_read_b32 {v(S+w)}, {v(t+2)} offset:{X*1024 + w*256}")
        I("s_waitcnt lgkmcnt(0)")
        I(f"""v_max_f32 {v(S)}, {v(S)}, {v(S+1)}
        v_max3_f32 {v(S)}, {v(S)}, {v(S+2)}, {v(S+3)}
        v_sub_f32 {v(S)}, 0, {v(S)}
        v_and_b32 {v(S+1)}, 0xffff0000, {v(S)}
        v_sub_f32 {v(S)}, {v(S)}, {v(S+1)}
        v_and_b32 {v(S+2)}, 0xffff0000, {v(S)}
        v_sub_f32 {v(S)}, {v(S)}, {v(S+2)}
        v_lshrrev_b32 {v(S+1)}, 16, {v(S+1)}
        v_or_b32 {v(S+1)}, {v(S+1)}, {v(S+2)}
        v_lshrrev_b32 {v(S)}, 16, {v(S)}
        v_cndmask_b32 {v(S)}, {v(S+1)}, {v(S)}, s[64:65]
        ds_write_b32 {v(r.aQ2)}, {v(S)} offset:{X*QST_Q}""")
    I("s_waitcnt lgkmcnt(0)\ns_barrier")
```

```python
from asmlib import *
import layout as L
import attn3 as AT
from attn3 import S_
from prep import srd, emit_xg_reduce, emit_realtile, emit_xk, BIG
import math, os, struct

NAME = "interleave_layers__grouped_kv_mqa__dense_activation_mish__prompt"
WQ_LDS = 0
X0_LDS = 0
WQP_LDS = 86016
PREP_LDS = 122880
RED_A = 73728
QST = 147456
WO_LDS = 0
WO1 = 72
W1A_LDS, W1B_LDS = 102400, 0
RED_K = 98304
MISC = 159744
M_CS1, M_B1, M_CSQ, M_BAD = MISC, MISC + 448, MISC + 896, MISC + 1280
M_MODE = MISC + 1284
M_VT = MISC + 1344
M_CSQP = MISC + 2368
M_CS1P = MISC + 1344
LDS_BYTES = 163840

S_WAVE, S_G, S_C, S_I, S_J, S_IP, S_JP, S_EPOCH, S_L, S_MODE, S_RETRY, S_TAG = 20, 21, 22, 23, 24, 25, 26, 27, 28, 29, 76, 75
XRES = 8
WS = "s[4:7]"
SRD_X, SRD_WQ, SRD_KV, SRD_SRC = 80, 84, 88, 92

def hexf(x): return "0x%08x" % struct.unpack("<I", struct.pack("<f", x))[0]
def w2_reg(k):
    if k < 31: return 132 + 4 * k
    if k < 39: return 480 + 4 * (k - 31)
    if k < 65: return 376 + 4 * (k - 39)
    return 256 + 4 * (k - 65)

NFIRST = int(os.environ.get('NF', 3))
class Cfg:
    fin_w2 = 10; s1_w1a = 3; s2 = 12; odepth = 8; m1sh = True
    wq3 = 3
    ptouch = False; pst = 1; pflag = (0, 13); pchk = 6; wb = 0
    prof = False; rt = False; fine = None; skip = (); force_global = False; force_bad = False

class Gen:
    def __init__(self, cfg):
        self.A = Asm(); self.vm = VmTracker(self.A); self.cfg = cfg
        self.names = []; self.loops = {}
    def I(self, t): return self.A.I(t)
    def stamp(self, name=""):
        if self.cfg.prof:
            if self.cfg.rt:
                self.I("s_memrealtime s[78:79]\ns_waitcnt lgkmcnt(0)\ns_lshl_b32 s74, s78, 18\ns_memtime s[78:79]\ns_waitcnt lgkmcnt(0)\ns_and_b32 s78, s78, 0x3ffff\ns_or_b32 s78, s78, s74")
            else:
                self.I("s_memtime s[78:79]\ns_waitcnt lgkmcnt(0)")
            self.I("s_mov_b32 m0, s77\nv_writelane_b32 v19, s78, m0\ns_add_u32 s77, s77, 1")
            self.names.append(name)
    def lin(self, out, terms, const=0, layer=True, tmp=36):
        first = True
        for t in terms:
            sreg, mul = t[0], t[1]
            src = s(sreg); dst = s(out) if first else s(tmp)
            if len(t) > 2:
                shr, mask = t[2], t[3]
                if shr: self.I(f"s_lshr_b32 {dst}, {src}, {shr}"); src = dst
                if mask is not None: self.I(f"s_and_b32 {dst}, {src}, {mask}"); src = dst
            if mul != 1: self.I(f"s_mul_i32 {dst}, {src}, {mul}"); src = dst
            if first:
                if src != dst: self.I(f"s_mov_b32 {dst}, {src}")
            else:
                self.I(f"s_add_u32 {s(out)}, {s(out)}, {src}")
            first = False
        if layer: self.I(f"s_add_u32 {s(out)}, {s(out)}, {s(S_L)}")
        if const: self.I(f"s_add_u32 {s(out)}, {s(out)}, {const}")
    def signal(self, off_s, dev=False, val=S_EPOCH):
        self.I(f"v_mov_b32 v5, {s(val)}\ns_mov_b64 exec, 1")
        if dev:
            self.vm.issue(f"buffer_store_dword v5, off, {WS}, {s(off_s)} sc1", "flag")
        else:
            g = self.A.newlabel("sg"); j = self.A.newlabel("sj")
            self.I(f"s_cmp_lg_u32 {s(S_MODE)}, 0\ns_cbranch_scc1 {g}")
            self.vm.issue(f"buffer_store_dword v5, off, {WS}, {s(off_s)}", "flag")
            self.A.L(j)
            self.cold.append((g, j, f"buffer_wbl2 sc1\ns_waitcnt vmcnt(0)\nbuffer_store_dword v5, off, {WS}, {s(off_s)} sc1"))
        self.I("s_mov_b64 exec, -1")
    def poll(self, voff, off_s, dev=False, wide=False):
        lab = self.A.newlabel("poll"); out = self.A.newlabel("pollx")
        self.I("s_mov_b32 s35, 0")
        self.A.L(lab)
        if wide:
            self.I(f"buffer_load_dwordx4 v[132:135], {v(voff)}, {WS}, {s(off_s)} offen sc1")
        else:
            self.I(f"buffer_load_dword v5, {v(voff)}, {WS}, {s(off_s)} offen sc1")
        self.I(f"s_add_u32 s35, s35, 1\ns_cmp_gt_u32 s35, 0x40000\ns_cbranch_scc1 {out}\ns_waitcnt vmcnt(0)")
        if wide:
            for k in range(4): self.I(f"v_xor_b32 v{132+k}, {s(S_TAG)}, v{132+k}")
            self.I("v_or3_b32 v132, v132, v133, v134\nv_or_b32 v132, v132, v135\nv_cmp_lt_u32 vcc, 7, v132")
        else:
            self.I(f"v_cmp_ne_u32 vcc, {s(S_EPOCH)}, v5")
        self.I(f"s_cbranch_vccnz {lab}")
        self.A.L(out)
        if not dev:
            g = self.A.newlabel("pg"); j = self.A.newlabel("pj")
            self.I(f"s_cmp_lg_u32 {s(S_MODE)}, 0\ns_cbranch_scc1 {g}")
            self.A.L(j)
            self.cold.append((g, j, "s_waitcnt vmcnt(0)\nbuffer_inv sc1\ns_waitcnt vmcnt(0)"))
        self.I("s_waitcnt vmcnt(0)")
        self.loops[lab] = 0
        self.vm.q = []
    cold = []
    def flag_x_off(self, base, out):
        self.lin(out, [(S_I, 128), (S_J, 32, 1, None), (S_WAVE, 8), (S_J, 4, 0, 1)], base)
    def window(self, win, n1=6):
        win = win if win is not None else []
        self.emit_list(self.take(win, n1))
        self.vm.wait("st")
        self.signal(40)
        self.emit_list(win)
    @staticmethod
    def take(items, n):
        out = []
        while items and n > 0:
            it = items.pop(0); out.append(it)
            if it[0] == "v": n -= 1
        return out
    def emit_list(self, items):
        for it in items:
            if it[0] == "s": self.I(it[1])
            elif it[0] == "w": self.vm.wait(it[1])
            elif it[2] in self.cfg.skip: pass
            else: self.vm.issue(it[1], it[2])
    def collect(self, fn):
        keep = self.A; A2 = Asm(); self.A = A2
        fn(); self.A = keep
        return [("s", x.text) for x in A2.ins]
    def load_wfrags(self, regs, soff, tag):
        out = []
        for k, r in enumerate(regs):
            if k and k % 4 == 0: out.append(("s", f"s_add_u32 {s(soff)}, {s(soff)}, 4096"))
            out.append(("v", f"buffer_load_dwordx4 {R(r,4)}, v1, {WS}, {s(soff)} offen offset:{(k%4)*1024}", tag))
        return out
    def lin_dma(self, src_term, src_base, lds_base, n, sg, sl, tag):
        it = self.collect(lambda: (self.lin(sl, [(S_WAVE, n * 1024)], lds_base, layer=False, tmp=54),
                                   self.lin(sg, [src_term, (sl, 1)], src_base - lds_base + (1 << 32) if src_base < lds_base else src_base - lds_base, layer=False, tmp=54)))
        for k in range(n):
            if k and k % 4 == 0: it += [("s", f"s_add_u32 {s(sg)}, {s(sg)}, 4096"), ("s", f"s_add_u32 {s(sl)}, {s(sl)}, 4096")]
            it.append(("s", f"s_mov_b32 m0, {s(sl)}"))
            it.append(("v", f"buffer_load_dwordx4 v1, {WS}, {s(sg)} offen offset:{(k%4)*1024} lds", tag))
        return it
    def resid_setup(self, xbuf, statbuf, flagbuf):
        self.lin(38, [(S_G, L.GS), (S_I, 4 * L.XTS, 0, 3), (S_WAVE, L.XTS), (S_J, 5120, 1, None)], xbuf, layer=False)
        self.lin(39, [(S_J, 3072, 0, 1), (38, 1)], 0, layer=False)
        self.I(f"s_and_b32 s36, {s(S_J)}, 1\ns_lshl_b32 s36, s36, 3\ns_add_u32 s38, s38, s36")
        self.lin(41, [(S_G, L.GS), (S_I, 4 * 4096, 0, 3), (S_WAVE, 4096), (S_J, 2048, 0, 1), (S_J, 256, 1, None)], statbuf, layer=False)
        self.flag_x_off(flagbuf, 40)
        self.I("s_mov_b32 s66, 0x00003f80\ns_mov_b32 s67, 0x3f800000\ns_mov_b32 s68, 0x3f803f80")
        self.I("v_lshrrev_b32 v18, 1, v4\nv_lshlrev_b32 v18, 10, v18\nv_lshl_add_u32 v18, v3, 4, v18\nv_and_b32 v5, 1, v4\nv_lshl_add_u32 v18, v5, 3, v18")
    def resid_epilogue(self, acc, store=True, statreg=20):
        for i in range(10):
            self.I(f"v_dot2c_f32_bf16 {v(acc+2*i)}, s66, {v(XRES+i)}\nv_dot2c_f32_bf16 {v(acc+2*i+1)}, s67, {v(XRES+i)}")
        if store: self.I(f"v_mov_b32 {v(statreg)}, 0\nv_mov_b32 {v(statreg+1)}, 0")
        for i in range(10):
            self.I(f"v_cvt_pk_bf16_f32 {v(XRES+i)}, {v(acc+2*i)}, {v(acc+2*i+1)}")
            if store and i == 3: self.vm.issue(f"buffer_store_dwordx4 {v(XRES,4)}, v1, {WS}, s39 offen", "st")
            if store and i == 7: self.vm.issue(f"buffer_store_dwordx4 {v(XRES+4,4)}, v1, {WS}, s39 offen offset:1024", "st")
        if not store: return
        self.vm.issue(f"buffer_store_dwordx2 {v(XRES+8,2)}, v1, {WS}, s38 offen offset:2048", "st")
        for i in range(10):
            self.I(f"v_dot2c_f32_bf16 {v(statreg)}, s68, {v(XRES+i)}\nv_dot2c_f32_bf16 {v(statreg+1)}, {v(XRES+i)}, {v(XRES+i)}")
        self.vm.issue(f"buffer_store_dwordx2 {v(statreg,2)}, v18, {WS}, s41 offen", "st")
    def stat_loads(self, soff, voff, dst, tag):
        for n in range(4):
            self.vm.issue(f"buffer_load_dwordx4 {v(dst+4*n,4)}, v1, {WS}, {s(soff)} offen offset:{n*1024} sc1", tag)
    def stat_finish(self, src, dst, presummed=False, packed=True):
        if not packed:
            for n in range(8): self.I(f"v_add_f32 {v(src+n)}, {v(src+n)}, {v(src+8+n)}")
            for n in range(4): self.I(f"v_add_f32 {v(src+n)}, {v(src+n)}, {v(src+4+n)}")
            for n in range(2): self.I(f"v_add_f32 {v(src+n)}, {v(src+n)}, {v(src+2+n)}")
        elif not presummed:
            for n in range(4): self.I(f"v_pk_add_f32 {v(src+2*n,2)}, {v(src+2*n,2)}, {v(src+8+2*n,2)}")
            for n in range(2): self.I(f"v_pk_add_f32 {v(src+2*n,2)}, {v(src+2*n,2)}, {v(src+4+2*n,2)}")
            self.I(f"v_pk_add_f32 {v(src,2)}, {v(src,2)}, {v(src+2,2)}")
        emit_xg_reduce(self.A, [src, src + 1], src + 2)
        self.I(f"""v_mul_f32 {v(dst)}, {hexf(-1.0/640)}, {v(src)}
        v_mul_f32 {v(src+2)}, {v(dst)}, {v(dst)}
        v_mov_b32 {v(src+3)}, {hexf(1.0/640)}
        v_fma_f32 {v(src+1)}, {v(src+1)}, {v(src+3)}, -{v(src+2)}
        v_max_f32 {v(src+1)}, 0, {v(src+1)}
        v_add_f32 {v(src+1)}, {hexf(1e-5)}, {v(src+1)}
        v_rsq_f32 {v(dst+1)}, {v(src+1)}""")

    def csum_loads(self, reg, term, base, row, mask, tag):
        self.lin(36, [term, (S_WAVE, 5 * row)], base, layer=False, tmp=37)
        self.I(f"s_mov_b64 exec, {mask:#x}")
        for k in range(5): self.vm.issue(f"buffer_load_dwordx4 {v(reg+4*k,4)}, v1, {WS}, s36 offen offset:{k*row} sc1", tag)
        self.I("s_mov_b64 exec, -1")
    def csum_part(self, reg, slots, row, mask):
        for a_, b_ in ((0, 1), (2, 3), (0, 2), (0, 4)):
            for i in range(4): self.I(f"v_add_f32 {v(reg+4*a_+i)}, {v(reg+4*a_+i)}, {v(reg+4*b_+i)}")
        self.lin(36, [(S_WAVE, row)], slots, layer=False)
        self.I(f"v_add_u32 v7, s36, v1\ns_mov_b64 exec, {mask:#x}\nds_write_b128 v7, {v(reg,4)}\ns_mov_b64 exec, -1\ns_waitcnt lgkmcnt(0)")
    def csum_final(self, reg, slots, row, dst, mask):
        self.I(f"v_add_u32 v7, {slots}, v1\ns_mov_b64 exec, {mask:#x}")
        for w in range(4): self.I(f"ds_read_b128 {v(reg+4*w,4)}, v7 offset:{w*row}")
        self.I("s_waitcnt lgkmcnt(0)")
        for a_, b_ in ((0, 1), (2, 3), (0, 2)):
            for i in range(4): self.I(f"v_add_f32 {v(reg+4*a_+i)}, {v(reg+4*a_+i)}, {v(reg+4*b_+i)}")
        self.I(f"v_add_u32 v7, {dst}, v1\nds_write_b128 v7, {v(reg,4)}\ns_mov_b64 exec, -1\ns_waitcnt lgkmcnt(0)")
    def qkv_setup(self, l0):
        self.lin(43, [(S_I, 2 * L.KVT), (S_WAVE, L.KVT, 1, None)], L.KVB)
        self.lin(40, [(S_I, 32), (S_J, 4)], L.FL_KV)
        self.I(f"v_add_u32 v240, {WQ_LDS}, v1\nv_add_u32 v241, {WQ_LDS + 61440}, v1")
        if not l0:
            self.lin(30, [(S_G, L.GS), (S_I, 4 * L.XTS, 0, 3), (S_WAVE, L.XTS)], L.XIN, layer=False)
            self.lin(42, [(S_G, L.GS), (S_I, 4 * 4096, 0, 3), (S_WAVE, 4096)], L.STATIN, layer=False)
    def wq_round(self, n):
        it = self.collect(lambda: (self.lin(53, [(S_WAVE, 6144)], WQ_LDS + n * 24576, layer=False),
                                   self.lin(52, [(S_J, 120 * 1024), (53, 1)], L.WQF - WQ_LDS, layer=False)))
        for k in range(5):
            if k == 4: it += S_("s_add_u32 s52, s52, 4096\ns_add_u32 s53, s53, 4096")
            if k % 4 == 0: it.append(("s", "s_mov_b32 m0, s53"))
            it.append(("v", f"buffer_load_dwordx4 v1, {WS}, s52 offen offset:{(k%4)*1024} sc1 lds", ("r", n)))
        return it
    def wkv_frags(self):
        it = self.collect(lambda: (self.lin(53, [(S_WAVE, 5 * 6144)], WQ_LDS + 5120, layer=False),
                                   self.lin(52, [(S_J, 120 * 1024), (53, 1)], L.WQF - WQ_LDS, layer=False)))
        for k in range(5):
            if k: it += S_("s_add_u32 s52, s52, 6144\ns_add_u32 s53, s53, 6144")
            it += [("s", "s_mov_b32 m0, s53"), ("v", f"buffer_load_dwordx4 v1, {WS}, s52 offen sc1 lds", "kvw")]
        return it
    QX, QWB, QACC, QSL, QSTAT, QCS = 20, 100, 148, 196, 212, 216
    def qkv_sweep(self, tiles, ks, xwait=None, filler=None, first_reads=True):
        X, WB, ACC = self.QX, self.QWB, self.QACC
        n = len(tiles)
        seq = [(k, ft) for k in ks for ft in tiles]
        D = 8 if n > 1 else 6
        NB = 12
        def rd(i):
            k, ft = seq[i]
            self.I(f"ds_read_b128 {v(WB+4*(i%NB),4)}, v{240 + k//10} offset:{((k%10)*6+ft)*1024}")
        for i in range(min(D, len(seq))): rd(i)
        for i, (k, ft) in enumerate(seq):
            if xwait and ft == tiles[0]: xwait(k)
            self.I(f"s_waitcnt lgkmcnt({min(D - 1, len(seq) - 1 - i)})")
            d = ACC + 4 * ft
            self.I(f"v_mfma_f32_16x16x32_bf16 {v(d,4)}, {v(WB+4*(i%NB),4)}, {v(X+4*k,4)}, {'0' if k == 0 else v(d,4)}")
            if i + D < len(seq): rd(i + D)
            if filler: filler(i, k, ft)
    def cs_reads(self, tiles):
        self.I(f"v_lshlrev_b32 v6, 4, v4\nv_add_u32 v6, {M_CSQ}, v6")
        for ft in tiles: self.I(f"ds_read_b128 {v(self.QCS+4*ft,4)}, v6 offset:{ft*64}")
    def phase_qkv(self, l0):
        A, vm = self.A, self.vm
        X, WB, ACC, SL, ST, CS = self.QX, self.QWB, self.QACC, self.QSL, self.QSTAT, self.QCS
        if l0:
            vm.wait("kvw")
            self.csum_part(172, M_CSQP, 384, 0xffffff)
            self.I("s_barrier")
            self.csum_final(172, M_CSQP, 384, M_CSQ, 0xffffff)
            self.cs_reads(range(6))
            r2 = self.wq_round(1) + self.wq_round(2)
            self.qkv_sweep([5], range(20), filler=lambda i, k, ft: self.emit_list(self.take(r2, 1)) if i % 2 == 1 else None)
            assert not r2
        else:
            nl = [0]
            def load():
                k = nl[0]; nl[0] += 1
                if k and k % 4 == 0: self.I("s_add_u32 s30, s30, 4096")
                vm.issue(f"buffer_load_dwordx4 {v(X+4*k,4)}, v1, {WS}, s30 offen offset:{(k%4)*1024} sc1", ("x", k))
            while nl[0] < 7: load()
            self.cs_reads(range(6))
            self.I("s_waitcnt lgkmcnt(0)\ns_barrier")
            def fil(i, k, ft):
                if nl[0] < 20 and i % 3 == 1: load()
                if i == 41: self.stat_loads(42, 18, SL, "stat")
            self.qkv_sweep([5, 0, 1, 2], range(20), xwait=lambda k: vm.wait(("x", k)), filler=fil)
            vm.wait("stat")
            self.stat_finish(SL, ST)
        self.stamp("qkv.kv")
        self.I(f"v_mov_b32 {v(ST+2)}, {v(ST+1)}")
        KA = ACC + 20; KP = 172
        done = A.newlabel("kvdone"); vt = A.newlabel("kvv"); k1 = A.newlabel("kvk1"); jn = A.newlabel("kvj")
        self.I(f"s_lshr_b32 s36, {s(S_J)}, 2\ns_xor_b32 s48, s36, {s(S_WAVE)}\ns_and_b32 s48, s48, 1\ns_cbranch_scc1 {done}")
        for i in (0, 2): self.I(f"v_pk_fma_f32 {v(KA+i,2)}, {v(ST,2)}, {v(CS+20+i,2)}, {v(KA+i,2)} op_sel_hi:[0,1,1]")
        for i in (0, 2): self.I(f"v_pk_mul_f32 {v(KA+i,2)}, {v(ST+2,2)}, {v(KA+i,2)} op_sel_hi:[0,1]")
        self.I(f"v_cvt_pk_bf16_f32 {v(KP)}, {v(KA)}, {v(KA+1)}\nv_cvt_pk_bf16_f32 {v(KP+1)}, {v(KA+2)}, {v(KA+3)}")
        self.I(f"s_and_b32 s37, {s(S_WAVE)}, 1\ns_bitcmp1_b32 {s(S_J)}, 1\ns_cbranch_scc1 {vt}")
        self.I(f"s_lshl_b32 s37, s37, 4\nv_add_u32 v6, s37, v3\ns_bitcmp1_b32 {s(S_J)}, 0\ns_cbranch_scc1 {k1}")
        self.I(f"""v_lshrrev_b32 v7, 1, v4
        v_lshlrev_b32 v7, 9, v7
        v_lshl_add_u32 v7, v6, 4, v7
        v_and_b32 v6, 1, v4
        v_lshl_add_u32 v7, v6, 3, v7
        buffer_store_dwordx2 {v(KP,2)}, v7, {WS}, s43 offen sc1
        s_branch {jn}""")
        A.L(k1)
        self.I(f"""v_lshlrev_b32 v6, 3, v6
        s_mov_b64 exec, 0xffff
        buffer_store_dwordx2 {v(KP,2)}, v6, {WS}, s43 offen offset:1024 sc1
        s_mov_b64 exec, -1
        s_branch {jn}""")
        A.L(vt)
        self.I(f"""s_lshr_b32 s36, {s(S_WAVE)}, 1
        s_lshl_b32 s36, s36, 9
        s_add_u32 s36, s36, {M_VT}
        v_lshlrev_b32 v6, 7, v4
        v_lshl_add_u32 v6, v3, 1, v6
        v_add_u32 v6, s36, v6
        ds_write_b16 v6, {v(KP)}
        ds_write_b16_d16_hi v6, {v(KP)} offset:32
        ds_write_b16 v6, {v(KP+1)} offset:64
        ds_write_b16_d16_hi v6, {v(KP+1)} offset:96
        v_lshlrev_b32 v6, 5, v3
        v_lshl_add_u32 v6, v4, 3, v6
        v_add_u32 v6, s36, v6
        ds_read_b64 {v(KP+2,2)}, v6
        s_mul_i32 s37, s37, 768
        s_add_u32 s37, s43, s37
        s_and_b32 s36, {s(S_J)}, 1
        s_lshl_b32 s36, s36, 8
        s_add_u32 s37, s37, s36
        v_and_b32 v6, 1, v4
        v_mul_u32_u24 v6, 384, v6
        v_lshl_add_u32 v6, v3, 4, v6
        v_lshrrev_b32 v7, 1, v4
        v_lshl_add_u32 v6, v7, 3, v6
        s_cmp_lg_u32 s36, 0
        s_cselect_b32 s36, 4, 99
        s_cselect_b32 exec_lo, 0x00ff00ff, -1
        v_cmp_eq_u32 vcc, s36, v3
        v_mov_b32 v7, 0x3f803f80
        s_mov_b32 exec_hi, exec_lo
        s_waitcnt lgkmcnt(0)
        v_cndmask_b32 {v(KP+2)}, {v(KP+2)}, v7, vcc
        v_cndmask_b32 {v(KP+3)}, {v(KP+3)}, v7, vcc
        buffer_store_dwordx2 {v(KP+2,2)}, v6, {WS}, s37 offen offset:1280 sc1
        s_mov_b64 exec, -1""")
        self.I(f"s_branch {jn}")
        A.L(done)
        self.I(f"v_mov_b32 v6, {BIG}\nbuffer_store_dwordx2 {v(KP,2)}, v6, {WS}, 0 offen")
        A.L(jn)
        vm.q.append("kvst")
        self.stamp("qkv.kvst")
        if l0:
            later = {0: self.wq_round(3), 1: self.wq_round(4), 2: self.prep_dma_items()}
            for n in range(5):
                vm.wait(("r", n))
                if n == 2: vm.wait("kvst")
                self.I("s_barrier")
                if n == 2:
                    sk = A.newlabel("kvsig")
                    self.I(f"s_cmp_lg_u32 {s(S_WAVE)}, 0\ns_cbranch_scc1 {sk}")
                    self.signal(40, dev=True, val=S_TAG); vm.q.pop()
                    A.L(sk)
                it = later.get(n, [])
                self.qkv_sweep([0, 1, 2, 3, 4], range(4 * n, 4 * n + 4), filler=lambda i, k, ft: self.emit_list(self.take(it, 1)) if i % 2 == 1 else None)
                assert not it
        else:
            self.qkv_sweep([3, 4], range(20))
        self.stamp("qkv.mm")
        c = math.log2(math.e) / math.sqrt(20.0)
        self.I(f"v_mul_f32 {v(ST+2)}, {hexf(c)}, {v(ST+1)}")
        for i in range(0, 20, 2): self.I(f"v_pk_fma_f32 {v(ACC+i,2)}, {v(ST,2)}, {v(CS+i,2)}, {v(ACC+i,2)} op_sel_hi:[0,1,1]")
        for i in range(0, 20, 2): self.I(f"v_pk_mul_f32 {v(ACC+i,2)}, {v(ST+2,2)}, {v(ACC+i,2)} op_sel_hi:[0,1]")
        P = 176
        for i in range(8): self.I(f"v_cvt_pk_bf16_f32 {v(P+i)}, {v(ACC+2*i)}, {v(ACC+2*i+1)}")
        self.I(f"v_cvt_pk_bf16_f32 {v(P+8)}, {v(ACC+16)}, {v(ACC+17)}\nv_mov_b32 {v(P+9)}, 0")
        self.I(f"v_cvt_pk_bf16_f32 {v(P+10)}, {v(ACC+18)}, {v(ACC+19)}\nv_mov_b32 {v(P+11)}, 0")
        self.lin(36, [(S_WAVE, AT.QST_Q, 1, None)], QST, layer=False, tmp=37)
        self.I(f"""s_and_b32 s37, {s(S_WAVE)}, 1
        s_lshl_b32 s37, s37, 4
        v_add_u32 v6, s37, v3
        v_mul_u32_u24 v7, {2*AT.QST_Q}, v4
        v_add_u32 v7, s36, v7
        v_lshl_add_u32 v5, v6, 4, v7
        v_lshl_add_u32 v6, v6, 3, v7""")
        self.I(f"""ds_write_b128 v5, {v(P,4)}
        ds_write_b128 v5, {v(P+4,4)} offset:512
        ds_write_b64 v6, {v(P+8,2)} offset:1024
        ds_write_b64 v6, {v(P+10,2)} offset:{1024+256}""")
        if l0:
            self.I("s_waitcnt lgkmcnt(0)\ns_barrier")
        else:
            self.I("s_waitcnt vmcnt(0) lgkmcnt(0)\ns_barrier"); vm.q = []
            sk = A.newlabel("kvsig")
            self.I(f"s_cmp_lg_u32 {s(S_WAVE)}, 0\ns_cbranch_scc1 {sk}")
            self.signal(40, dev=True, val=S_TAG)
            A.L(sk)
        self.stamp("qkv.epi")

    def pieces(self, n16, magic, pitch, dst, cmax=None):
        self.I(f"s_movk_i32 s52, {magic}\ns_movk_i32 s53, {pitch}\ns_add_u32 s46, s46, s44")
        for q in range(n16 // 2):
            self.I(f"""v_add_u32 v5, {64*q}, v0
            v_mul_u32_u24 v6, s52, v5
            v_lshrrev_b32 v6, 16, v6
            v_mul_u32_u24 v7, {n16}, v6
            v_sub_u32 v5, v5, v7
            v_lshrrev_b32 v7, 4, v6
            v_mul_u32_u24 v18, s32, v7
            v_bfe_u32 v7, v6, 3, 1
            v_mad_u32_u24 v18, v7, s33, v18
            v_bfe_u32 v7, v6, 2, 1
            v_mad_u32_u24 v18, v7, s34, v18
            v_and_b32 v6, 3, v6
            v_add3_u32 v18, v18, v6, s31
            v_mul_u32_u24 v18, s53, v18
            v_lshl_add_u32 v18, v5, 4, v18""")
            if cmax is not None:
                self.I(f"v_cmp_le_u32 vcc, {s(cmax)}, v5\nv_mov_b32 v7, {BIG}\nv_cndmask_b32 v7, 0, v7, vcc\nv_add_u32 v18, v18, v7")
            self.I(f"v_add_u32 {v(dst+q)}, s46, v18")
    PA = 244
    def prep_dma_items(self):
        it = []
        for q in range(7):
            it += [("s", f"s_add_u32 m0, s{72 if q < 5 else 65}, {q*1024}"), ("v", f"buffer_load_dwordx4 {v(self.PA+q)}, {s(SRD_SRC,4)}, 0 offen lds", "prep")]
        if self.cfg.ptouch:
            it += [("s", "v_lshlrev_b32 v253, 7, v0"), ("v", f"buffer_load_dword v254, v253, {WS}, s70 offen", "prep")]
        return it
    def prep_issue(self):
        A = self.A
        lab = {k: A.newlabel("pp" + k) for k in ("w2", "w1", "none", "n10", "end", "pad")}
        self.I(f"""s_lshl_b32 s30, s2, 1
        s_and_b32 s31, {s(S_WAVE)}, 1
        s_add_u32 s30, s30, s31
        s_movk_i32 s31, 192
        s_cmp_lt_u32 s2, 160
        s_cselect_b32 s31, 608, s31
        s_cmp_lt_u32 {s(S_WAVE)}, 2
        s_cselect_b32 s31, s31, 0
        s_add_u32 s30, s30, s31
        s_cmp_ge_u32 s2, 208
        s_cselect_b32 s31, 1024, 0
        s_cmp_lt_u32 {s(S_WAVE)}, 2
        s_cselect_b32 s31, s31, 0
        s_add_u32 s30, s30, s31
        s_min_u32 s31, {s(S_WAVE)}, 2
        s_mul_i32 s72, s31, 7168
        s_cmp_eq_u32 {s(S_WAVE)}, 3
        s_cselect_b32 s31, 5120, 0
        s_add_u32 s72, s72, s31
        s_add_u32 s72, s72, {PREP_LDS}
        s_cmp_lt_u32 {s(S_WAVE)}, 2
        s_cselect_b32 s65, s72, 0xffffec00""")
        for q in range(7): self.I(f"v_mov_b32 {v(self.PA+q)}, {BIG}")
        self.I(f"s_cmp_ge_u32 s30, 928\ns_cbranch_scc1 {lab['none']}\ns_cmp_ge_u32 s30, 608\ns_cbranch_scc1 {lab['w1']}\ns_cmp_ge_u32 s30, 160\ns_cbranch_scc1 {lab['w2']}")
        self.I(f"""s_lshr_b32 s47, s30, 3          ; ks
        s_and_b32 s48, s30, 7           ; j
        s_mul_i32 s49, s47, 52
        s_lshr_b32 s49, s49, 8          ; w = ks/5
        s_mul_i32 s50, s49, 5
        s_sub_u32 s50, s47, s50         ; s
        s_mul_i32 s31, s49, 160
        s_mul_i32 s32, s50, 40
        s_cmp_gt_u32 s50, 2
        s_cselect_b32 s33, 40, 0
        s_sub_u32 s32, s32, s33
        s_cmp_eq_u32 s50, 2
        s_cselect_b32 s32, 16, s32
        s_add_u32 s31, s31, s32
        s_cmp_eq_u32 s50, 2
        s_cselect_b32 s32, 80, 8
        s_cselect_b32 s33, 40, 20
        s_cselect_b32 s34, 20, 4
        s_mov_b32 s44, 0
        s_mov_b32 s45, 0
        s_mul_i32 s46, s48, 160
        s_mul_i32 s70, s48, 20
        s_add_u32 s70, s70, s47
        s_mul_i32 s70, s70, 5120
        s_add_u32 s70, s70, {L.WOF}
        s_mov_b32 {s(SRD_SRC)}, s96
        s_mov_b32 {s(SRD_SRC+1)}, s97
        s_mov_b32 {s(SRD_SRC+2)}, {640*640*2}
        s_branch {lab['n10']}""")
        A.L(lab['w2'])
        self.I(f"""s_sub_u32 s30, s30, 160
        s_lshr_b32 s47, s30, 3          ; r = w*14+s
        s_and_b32 s48, s30, 7           ; j
        s_mul_i32 s49, s47, 37
        s_lshr_b32 s49, s49, 8
        s_mul_i32 s50, s49, 7
        s_sub_u32 s50, s47, s50         ; sp
        s_lshl_b32 s49, s49, 1          ; 2q""")
        for u in range(2):
            self.I(f"""s_cmp_gt_u32 s50, 3
            s_cselect_b32 s52, 1, 0
            s_cselect_b32 s53, 4, 0
            s_sub_u32 s53, s50, s53
            s_lshl_b32 s53, s53, 1
            s_add_u32 s53, s53, {u}
            s_cmp_eq_u32 s50, 3
            s_cselect_b32 s52, {u}, s52
            s_cselect_b32 s53, 6, s53
            s_add_u32 s52, s52, s49""")
            emit_realtile(A, 52, 53, 31 + u, 44 + u, 54)
        self.I(f"""s_lshl_b32 s31, s31, 4
        s_lshl_b32 s32, s32, 4
        s_sub_u32 s32, s32, s31
        s_mov_b32 s33, 8
        s_mov_b32 s34, 4
        s_mul_i32 s46, s48, 160
        s_mul_i32 s70, s48, 56
        s_add_u32 s70, s70, s47
        s_mul_i32 s70, s70, 5120
        s_add_u32 s70, s70, {L.W2F}
        s_mov_b32 {s(SRD_SRC)}, s100
        s_mov_b32 {s(SRD_SRC+1)}, s101
        s_mov_b32 {s(SRD_SRC+2)}, {1728*640*2}""")
        A.L(lab['n10'])
        self.pieces(10, 6554, 1280, self.PA)
        self.I(f"s_mov_b32 s69, 5\ns_branch {lab['end']}")
        A.L(lab['w1'])
        self.I(f"""s_sub_u32 s30, s30, 608
        s_lshr_b32 s47, s30, 4          ; ks
        s_and_b32 s48, s30, 15          ; j'
        s_mul_i32 s49, s47, 52
        s_lshr_b32 s49, s49, 8
        s_mul_i32 s50, s49, 5
        s_sub_u32 s50, s47, s50""")
        emit_xk(A, 49, 50, 31, 32)
        self.I("s_mov_b32 s53, 0"); emit_realtile(A, 48, 53, 46, 44, 54)
        self.I(f"""s_lshl_b32 s46, s46, 5
        s_mov_b32 s33, 8
        s_mov_b32 s34, 4
        s_mov_b32 s44, 0
        s_mov_b32 s45, 0
        s_cmp_lt_u32 s48, 12
        s_cselect_b32 s54, 14, 12
        s_mul_i32 s70, s48, 20
        s_add_u32 s70, s70, s47
        s_mul_i32 s71, s70, 448
        s_add_u32 s71, s71, {L.CS1P}
        s_mul_i32 s70, s70, 7168
        s_add_u32 s70, s70, {L.W1F}
        s_mov_b32 {s(SRD_SRC)}, s98
        s_mov_b32 {s(SRD_SRC+1)}, s99
        s_mov_b32 {s(SRD_SRC+2)}, {640*1728*2}""")
        self.pieces(14, 4682, 3456, self.PA, cmax=54)
        self.I(f"s_mov_b32 s69, 7\ns_branch {lab['end']}")
        A.L(lab['none'])
        self.I(f"s_mov_b32 s69, 0\ns_mov_b32 s70, {BIG}")
        A.L(lab['end'])
    PF = 136
    def prep_read(self):
        A = self.A; F = self.PF
        l7 = A.newlabel("pf7"); end = A.newlabel("pfe"); l0_ = A.newlabel("pf0")
        self.I(f"s_waitcnt vmcnt(0)\ns_cmp_eq_u32 s69, 0\ns_cbranch_scc1 {l0_}\ns_cmp_eq_u32 s69, 7\ns_cbranch_scc1 {l7}")
        def body(n, P):
            self.I(f"v_lshrrev_b32 v5, 2, v0\nv_and_b32 v6, 3, v0\nv_mul_u32_u24 v5, {P}, v5\nv_lshl_add_u32 v5, v6, 3, v5\nv_add_u32 v5, s72, v5")
            for ft in range(n):
                for u in range(2): self.I(f"ds_read_b64_tr_b16 {v(F+4*ft+2*u,2)}, v5 offset:{u*16*P + ft*32}")
        body(5, 160)
        self.I(f"s_add_u32 s72, s70, 4096\ns_mov_b32 s69, {BIG}\ns_mov_b32 s71, {BIG}\ns_branch {end}")
        A.L(l0_)
        self.I(f"s_mov_b32 s70, {BIG}\ns_mov_b32 s72, {BIG}\ns_mov_b32 s69, {BIG}\ns_mov_b32 s71, {BIG}\ns_branch {end}")
        A.L(l7)
        body(7, 224)
        self.I("s_add_u32 s72, s70, 4096\ns_mov_b32 s69, s72\ns_waitcnt lgkmcnt(0)")
        for ft in range(7): self.I(f"v_mfma_f32_16x16x32_bf16 {v(F+28+4*ft,4)}, {v(F+4*ft,4)}, v[192:195], 0")
        for ft in range(1, 7):
            self.I(f"s_mov_b32 exec_lo, {0x00010001 << ft:#x}\ns_mov_b32 exec_hi, {0x00010001 << ft:#x}")
            for i in range(4): self.I(f"v_mov_b32 {v(F+28+i)}, {v(F+28+4*ft+i)}")
        self.I("s_mov_b64 exec, -1")
        A.L(end)
        self.I(f"v_lshlrev_b32 v196, 6, v3\nv_lshl_add_u32 v196, v4, 4, v196\nv_mov_b32 v5, {BIG}\nv_cmp_lt_u32 vcc, 6, v3\nv_cndmask_b32 v196, v196, v5, vcc\ns_waitcnt lgkmcnt(0)")
    def prep_store_items(self):
        F = self.PF
        it = [("v", f"buffer_store_dwordx4 {v(F+4*ft,4)}, v1, {WS}, s{70 if ft < 4 else 72 if ft == 4 else 69} offen offset:{(ft%4)*1024} sc1", "pst") for ft in range(7)]
        return it + [("v", f"buffer_store_dwordx4 {v(F+28,4)}, v196, {WS}, s71 offen sc1", "pst")]
    def wq_unit_issue(self):
        self.I(f"""s_lshr_b32 s47, s2, 3
        s_and_b32 s48, s2, 7
        s_mul_i32 s49, s47, 52
        s_lshr_b32 s49, s49, 8
        s_mul_i32 s50, s49, 5
        s_sub_u32 s50, s47, s50""")
        emit_xk(self.A, 49, 50, 31, 32)
        self.I(f"""s_mov_b32 s33, 8
        s_mov_b32 s34, 4
        s_mov_b32 s44, 0
        s_mov_b32 s45, 0
        s_mul_i32 s46, s48, 160
        s_mul_i32 s67, s48, 20
        s_add_u32 s67, s67, s47
        s_mul_i32 s68, s67, 384
        s_add_u32 s68, s68, {L.CSQP}
        s_mul_i32 s67, s67, 6144
        s_add_u32 s67, s67, {L.WQF}
        s_lshl_b32 s66, s48, 5
        s_add_u32 s66, s66, s47
        s_lshl_b32 s66, s66, 2
        s_add_u32 s66, s66, {L.FL_WQ}""")
        self.pieces(10, 6554, 1280, 100)
        for q in range(5): self.I(f"s_mov_b32 m0, {WQP_LDS + q*1024}\nbuffer_load_dwordx4 {v(100+q)}, {s(SRD_WQ,4)}, 0 offen lds")
        self.I(f"""s_mul_i32 s31, s31, 40
        s_mul_i32 s32, s32, 40
        s_add_u32 s32, s32, s31
        s_mov_b32 m0, {WQP_LDS + 5120}
        s_nop 0
        buffer_load_dwordx4 v1, {s(SRD_KV,4)}, s31 offen lds
        s_mov_b32 m0, {WQP_LDS + 6144}
        s_nop 0
        buffer_load_dwordx4 v1, {s(SRD_KV,4)}, s32 offen lds""")
    def wq_unit_finish(self):
        F = 132
        self.I(f"""v_lshrrev_b32 v5, 2, v0
        v_and_b32 v6, 3, v0
        v_mul_u32_u24 v7, 160, v5
        v_mad_u32_u24 v7, v6, 40, v7
        v_add_u32 v7, {WQP_LDS}, v7
        v_mul_u32_u24 v5, 40, v5
        v_lshl_add_u32 v5, v6, 3, v5
        s_and_b32 s36, s2, 1
        s_lshl_b32 s36, s36, 5
        s_add_u32 s36, s36, {WQP_LDS + 5120}
        v_add_u32 v5, s36, v5""")
        for ft in range(5):
            for u in range(2): self.I(f"ds_read_b64_tr_b16 {v(F+4*ft+2*u,2)}, v7 offset:{u*16*160 + ft*8}")
        for u in range(2): self.I(f"ds_read_b64_tr_b16 {v(F+20+2*u,2)}, v5 offset:{u*1024}")
        for ft in range(6):
            self.I(f"s_waitcnt lgkmcnt({2*(5-ft)})")
            if ft == 4: self.I("s_add_u32 s67, s67, 4096")
            self.I(f"buffer_store_dwordx4 {v(F+4*ft,4)}, v1, {WS}, s67 offen offset:{(ft%4)*1024} sc1")
        for ft in range(6): self.I(f"v_mfma_f32_16x16x32_bf16 {v(F+24+4*ft,4)}, {v(F+4*ft,4)}, v[192:195], 0")
        self.I("v_lshlrev_b32 v5, 4, v4\ns_mov_b32 exec_lo, 0x00010001\ns_mov_b32 exec_hi, 0x00010001")
        for ft in range(6): self.I(f"buffer_store_dwordx4 {v(F+24+4*ft,4)}, v5, {WS}, s68 offen offset:{ft*64} sc1")
        self.I("s_mov_b64 exec, -1")
    def x0_issue(self):
        self.lin(30, [(S_I, 64 * 1280), (S_WAVE, 16 * 1280)], 0, layer=False)
        self.lin(64, [(S_WAVE, 20480)], X0_LDS, layer=False)
        for a_ in range(4):
            self.I(f"v_add_u32 v5, {4*a_}, v4\nv_xor_b32 v5, v5, v3\nv_lshlrev_b32 v5, 4, v5\nv_mad_u32_u24 {v(100+a_)}, v4, s54, v5")
        for a_ in range(4):
            for b_ in range(5):
                self.I(f"s_add_u32 m0, s64, {(a_*5+b_)*1024}\ns_add_u32 s32, s30, {a_*5120 + b_*256}")
                self.vm.issue(f"buffer_load_dwordx4 {v(100+a_)}, {s(SRD_X,4)}, s32 offen lds", "x0")
    def x0_read(self, X, SL):
        self.I(f"""v_lshrrev_b32 v5, 1, v4
        v_xor_b32 v5, v5, v3
        v_lshlrev_b32 v5, 4, v5
        v_and_b32 v6, 1, v4
        v_lshl_add_u32 v5, v6, 3, v5
        v_lshrrev_b32 v6, 2, v3
        v_mul_u32_u24 v6, 5120, v6
        v_and_b32 v7, 3, v3
        v_lshl_add_u32 v6, v7, 8, v6
        v_add3_u32 v104, v5, v6, s64""")
        for c in range(1, 8): self.I(f"v_xor_b32 {v(104+c)}, {c*32}, v104")
        for k in range(20):
            for u in range(2):
                x = 2 * L.xk(k // 5, k % 5, u)
                self.I(f"ds_read_b64 {v(X+4*k+2*u,2)}, {v(104 + ((x >> 5) & 7))} offset:{(x >> 8) * 1024}")
        for ft in range(5):
            self.I(f"""s_mul_i32 s36, {s(S_J)}, 160
            s_add_u32 s36, s36, {32*ft}
            s_and_b32 s37, s36, 0xe0
            s_lshr_b32 s36, s36, 8
            s_lshl_b32 s36, s36, 10
            v_xor_b32 v5, s37, v104
            v_add_u32 v5, s36, v5
            ds_read_b64 {v(XRES+2*ft,2)}, v5""")
        self.I("s_waitcnt lgkmcnt(0)")
    def x0_stats(self, X, SL):
        it = S_(f"v_mov_b32 {v(SL)}, 0\nv_mov_b32 {v(SL+1)}, 0\nv_mov_b32 {v(SL+2)}, 0\nv_mov_b32 {v(SL+3)}, 0")
        for i in range(0, 80, 2):
            it += S_(f"""v_dot2c_f32_bf16 {v(SL)}, v192, {v(X+i)}
            v_dot2c_f32_bf16 {v(SL+1)}, {v(X+i)}, {v(X+i)}
            v_dot2c_f32_bf16 {v(SL+2)}, v192, {v(X+i+1)}
            v_dot2c_f32_bf16 {v(SL+3)}, {v(X+i+1)}, {v(X+i+1)}""")
        return it + S_(f"v_pk_add_f32 {v(SL,2)}, {v(SL,2)}, {v(SL+2,2)}")

    def phase_att(self):
        A, vm = self.A, self.vm
        r = AT.AttRegs(20, 256)
        assert r.end <= 132
        A.L("L_att")
        self.I("s_mov_b32 s59, 384\ns_mov_b32 s58, 0x3f803f80")
        self.I(f"s_add_u32 s56, {s(S_L)}, {L.KVB}")
        self.lin(51, [(S_JP, 140 * 1024), (S_C, 4 * 17920, 4, 1), (S_WAVE, 17920)], L.W1F, layer=False, tmp=54)
        self.lin(55, [(S_J, 280 * 1024), (S_WAVE, 70 * 1024), (S_C, 7936, 3, 3)], L.W2F + 39 * 1024, layer=False, tmp=54)
        self.lin(49, [(S_J, 100 * 1024), (S_C, 7168, 3, 3), (S_WAVE, 1792)], L.WOF + WO1 * 1024, layer=False, tmp=54)
        self.lin(50, [(S_J, 280 * 1024), (S_WAVE, 70 * 1024)], L.W2F, layer=False, tmp=54)
        assert L.GS <= 128 * 7 * 2048 and L.GS % (128 * 128) == 0
        self.lin(47, [(S_G, L.GS), (S_C, 4 * (L.GS // 128)), (S_WAVE, L.GS // 128)], L.GBASE, layer=False)
        self.I(f"v_lshrrev_b32 v5, 2, v0\nv_lshlrev_b32 v5, 7, v5\nv_and_b32 v6, 3, v0\nv_lshl_add_u32 {v(r.t+5)}, v6, 2, v5")
        self.I(f"v_lshlrev_b32 {v(r.pf)}, 7, v0")
        pf = lambda sg: ("v", f"buffer_load_dword v18, {v(r.pf)}, {WS}, s{sg} offen", "pf")
        self.w2_items = self.load_wfrags([w2_reg(k) for k in range(70)], 50, "w2")
        w2a = self.take(self.w2_items, 39)
        wo1 = self.lin_dma((S_J, 100 * 1024), L.WOF, WO_LDS, 18, 52, 53, "wo")
        self.emit_list(wo1[:[it[0] for it in wo1].index("v") - 1]); wo1 = wo1[[it[0] for it in wo1].index("v") - 1:]
        touch = [[("v", f"buffer_load_dword v18, {v(r.t+5)}, {WS}, s47 offen", "pf"), ("s", "s_add_u32 s47, s47, 2048")] for _ in range(7)]
        t16 = lambda sg: [("v", f"buffer_load_dword v18, {v(r.t+5)}, {WS}, s{sg} offen", "pf"), ("s", f"s_add_u32 s{sg}, s{sg}, 2048")]
        warm = [t16(51) for _ in range(9)] + [t16(55) for _ in range(4)] + [t16(49)]
        p1 = []
        for n in range(57):
            p1 += self.take(w2a, 1) if n % 3 != 2 or not wo1 else self.take(wo1, 1)
            if not w2a: p1 += self.take(wo1, 1) if n % 3 != 2 else []
            if n % 7 == 3 and touch: p1 += touch.pop(0)
            if n >= 29 and n % 2 == 1 and warm: p1 += warm.pop(0)
        p1 += w2a + wo1
        assert not warm and not touch
        self.I(f"s_mov_b32 s48, {L.FL_PREP}")
        self.lin(46, [(2, 4)], L.FL_PREP, layer=False)
        AT.emit_kv_addr(A, r, 0, S_WAVE, 56)
        AT.emit_att_pre(self, r, 0, S_WAVE, QST, RED_A)
        self.I(f"s_add_u32 s37, {s(S_L)}, {L.FL_KV}")
        pk = A.newlabel("kvp")
        self.I(f"s_cmp_lg_u32 {s(S_WAVE)}, 0\ns_cbranch_scc1 {pk}")
        self.poll(1, 37, dev=True, wide=True)
        self.I(f"""v_cmp_ne_u32 vcc, 0, v132
        s_lshl_b32 s36, {s(S_G)}, 3
        v_mov_b32 v6, {M_MODE}
        s_lshr_b64 s[64:65], vcc, s36
        s_and_b32 s64, s64, 0xff
        s_cselect_b32 s64, 1, {1 if self.cfg.force_global else 0}
        v_mov_b32 v7, s64
        ds_write_b32 v6, v7
        s_waitcnt lgkmcnt(0)""")
        A.L(pk)
        self.I("s_barrier")
        self.stamp("kv.poll")
        pf_ = A.newlabel('pfl')
        def check():
            ok = A.newlabel("prepok"); again = A.newlabel("prepagain")
            it = S_(f"s_mov_b32 s35, 0\n{again}:\ns_waitcnt vmcnt(0)")
            it += S_("\n".join(f"v_xor_b32 v{132+k}, {s(S_TAG)}, v{132+k}" for k in range(4)))
            it += S_(f"""v_or3_b32 v18, v132, v133, v134
            v_or_b32 v18, v18, v135
            v_cmp_lt_u32 vcc, 7, v18
            s_add_u32 s35, s35, 1
            s_cmp_gt_u32 s35, 0x40000
            s_cbranch_scc1 {ok}
            s_cbranch_vccz {ok}
            buffer_load_dwordx4 v[132:135], v1, {WS}, s48 offen sc1
            s_branch {again}
            {ok}:""")
            self.loops[again] = 0
            return it
        ev = {self.cfg.pflag: S_(f"s_waitcnt vmcnt(0)\ns_barrier\ns_cmp_lg_u32 {s(S_WAVE)}, 0\ns_cbranch_scc1 {pf_}\nv_mov_b32 v18, {s(S_TAG)}\ns_mov_b64 exec, 1\nbuffer_store_dword v18, off, {WS}, s46 sc1\ns_mov_b64 exec, -1\n{pf_}:"),
              (1, self.cfg.pchk - 2): [("v", f"buffer_load_dwordx4 v[132:135], v1, {WS}, s48 offen sc1", "prepfl")],
              (1, self.cfg.pchk): check()}
        for n_, it_ in enumerate(self.prep_store_items()): ev[(0, self.cfg.pst * n_)] = [it_]
        AT.emit_att_main(self, r, 0, S_WAVE, QST, 4, "sc1", NFIRST, ev, p1, (1, self.cfg.pchk + 1))
        vm.wait_all()
        self.stamp("att.main")
        self.lin(48, [(S_G, L.GS), (S_I, 4 * L.XTS, 0, 3), (S_J, 5120, 1, None)], L.OFB, layer=False)
        self.lin(49, [(S_J, 8, 0, 1), (S_WAVE, 256), (48, 1)], 2048, layer=False)
        self.I(f"v_bfe_u32 v5, v0, 4, 1\nv_lshrrev_b32 v6, 5, v0\nv_mul_u32_u24 v5, {L.XTS}, v5\nv_lshlrev_b32 v7, 4, v3\nv_add3_u32 v7, v7, v5, s49")
        self.lin(49, [(S_J, 3072, 0, 1), (S_WAVE, 1024, 1, None), (S_WAVE, 512, 0, 1), (48, 1)], 0, layer=False)
        self.I("v_lshlrev_b32 v6, 8, v6\nv_lshl_add_u32 v6, v3, 4, v6\nv_add3_u32 v6, v6, v5, s49")
        self.flag_x_off(L.FL_O, 40)
        self.I(f"s_mov_b32 s66, {hexf(2.0**-60)}\nv_mov_b32 {v(r.t+7)}, {hexf(2.0**60)}\nv_mov_b32 {v(r.t+6)}, 0x203")
        AT.emit_att_reduce(self, r, 0, S_WAVE, RED_A, self.take(self.w2_items, self.cfg.fin_w2))
        AT.emit_att_finish(self, r, 4, 6, 7, "", 2 * L.XTS)
        nb = A.newlabel("nobad")
        if self.cfg.force_bad: self.I(f"s_mov_b64 s[64:65], 1")
        self.I(f"""s_cmp_eq_u64 s[64:65], 0
        v_mov_b32 v6, {M_BAD}
        s_cbranch_scc1 {nb}
        s_cmp_lg_u32 {s(S_RETRY)}, 0
        s_cbranch_scc1 {nb}
        ds_write_b32 v6, v6""")
        A.L(nb)
        self.I(f"s_waitcnt lgkmcnt(0)\ns_barrier\nds_read_b64 v[132:133], v6") if False else self.I(f"s_waitcnt lgkmcnt(0)\ns_barrier\nds_read_b64 {v(r.t,2)}, v6")
        self.stamp("att.fin")
        wo2 = self.lin_dma((S_J, 100 * 1024), L.WOF + WO1 * 1024, WO_LDS + WO1 * 1024, 7, 52, 53, "wo")
        self.w1a = self.lin_dma((S_JP, 140 * 1024), L.W1F, W1A_LDS, 14, 46, 47, "w1")
        self.I(f"s_waitcnt lgkmcnt(0)\nv_readfirstlane_b32 s36, {v(r.t)}\nv_readfirstlane_b32 {s(S_MODE)}, {v(r.t+1)}\ns_cmp_lg_u32 s36, 0\ns_cbranch_scc1 L_slow")
        self.I(f"s_mov_b32 {s(S_RETRY)}, 0")
        keep = self.A; A2 = Asm(); A2.uid = 100000; self.A = A2
        A2.L("L_slow")
        self.I(f"s_mov_b32 s69, {BIG}\ns_mov_b32 s70, {BIG}\ns_mov_b32 s71, {BIG}\ns_mov_b32 s72, {BIG}\nv_mov_b32 v196, 0")
        self.I(f"s_mov_b32 {s(S_RETRY)}, 1\ns_waitcnt vmcnt(0)\ns_barrier\nv_mov_b32 v7, 0\nds_write_b32 v6, v7")
        AT.emit_kv_addr(A2, r, 0, S_WAVE, 56)
        for k in range(AT.NT):
            for it in AT.kv_items(r, 4, "sc1", k): self.I(it[1])
            if k % 8 == 7: self.I("s_waitcnt vmcnt(0)")
        AT.emit_att_truemax(self, r, 0, S_WAVE, QST, RED_A)
        self.I("s_branch L_att")
        self.A = keep; self.slow = A2.ins
        self.window(wo2 + self.take(self.w1a, self.cfg.s1_w1a), n1=7)

    def phase_oproj(self):
        vm = self.vm
        X, WB, ACC = 256, 68, 108
        self.lin(30, [(S_G, L.GS), (S_I, 4 * L.XTS, 0, 3), (S_WAVE, L.XTS)], L.OFB, layer=False)
        self.resid_setup(L.XMID, L.STATMID, L.FL_X1)
        sk = self.A.newlabel("cs1a")
        self.I(f"s_cmp_lg_u32 {s(S_L)}, 0\ns_cbranch_scc1 {sk}")
        self.csum_loads(20, (S_JP, 20 * 448), L.CS1P, 448, 0xfffffff, "cs")
        vm.wait("cs")
        self.csum_part(20, M_CS1P, 448, 0xfffffff)
        self.A.L(sk)
        self.I(f"v_add_u32 v64, {WO_LDS}, v1\nv_add_u32 v65, {WO_LDS + 51200}, v1")
        self.lin(37, [(S_I, 128)], L.FL_O)
        self.I("v_and_b32 v6, 31, v0\nv_lshlrev_b32 v6, 2, v6")
        self.poll(6, 37)
        def load(k):
            if k and k % 4 == 0: self.I("s_add_u32 s30, s30, 4096")
            vm.issue(f"buffer_load_dwordx4 {R(X+4*k,4)}, v1, {WS}, s30 offen offset:{(k%4)*1024} sc1", ("x", k))
        nl = 0
        while nl < 7: load(nl); nl += 1
        self.I("s_barrier")
        self.stamp("o.poll")
        D, NB = self.cfg.odepth, 10
        def rd(i): self.I(f"ds_read_b128 {v(WB+4*(i%NB),4)}, v{64 + i//50} offset:{(i%50)*1024}")
        for i in range(D): rd(i)
        for i in range(100):
            k, ft = divmod(i, 5)
            if ft == 0: vm.wait(("x", k))
            self.I(f"s_waitcnt lgkmcnt({min(D - 1, 99 - i)})")
            d = ACC + 4 * ft
            self.I(f"v_mfma_f32_16x16x32_bf16 {v(d,4)}, {v(WB+4*(i%NB),4)}, {R(X+4*k,4)}, {'0' if k == 0 else v(d,4)}")
            if i + D < 100: rd(i + D)
            if i % 4 == 1:
                if nl < 20: load(nl); nl += 1
                else: self.emit_list(self.take(self.w1a, 1))
        self.emit_list(self.w1a)
        self.stamp("o.mm")
        self.resid_epilogue(ACC)
        self.I("s_barrier")
        self.window(self.lin_dma((S_JP, 140 * 1024), L.W1F + 56 * 1024, W1B_LDS, 11, 52, 53, "w1b"))
        self.w1b = self.lin_dma((S_JP, 140 * 1024), L.W1F + 100 * 1024, W1B_LDS + 44 * 1024, 10, 52, 53, "w1b")
        sk = self.A.newlabel("cs1b")
        self.I(f"s_cmp_lg_u32 {s(S_L)}, 0\ns_cbranch_scc1 {sk}")
        self.csum_final(20, M_CS1P, 448, M_CS1, 0xfffffff)
        self.A.L(sk)
        self.stamp("o.epi")

    def phase_mlp1(self):
        A, vm = self.A, self.vm
        ACC, SL, ST, AD, XR, NXR, WB = 20, 76, 108, 116, 256, 8, 320
        for e in range(2):
            self.lin(42 + e, [(S_IP, 8, 0, 1), (S_WAVE, 2)], e, layer=False)
            self.lin(30 + e, [(42 + e, L.XTS), (S_G, L.GS)], L.XMID, layer=False)
            self.lin(32 + e, [(42 + e, L.HTS), (S_G, L.GS), (S_JP, 7168, 1, None)], L.HFB, layer=False)
            self.lin(44 + e, [(S_JP, 4096, 0, 1), (32 + e, 1)], 0, layer=False)
            self.I(f"s_and_b32 s36, {s(S_JP)}, 1\ns_lshl_b32 s36, s36, 3\ns_add_u32 s{32+e}, s{32+e}, s36")
            self.lin(42 + e, [(42 + e, 4096), (S_G, L.GS)], L.STATMID, layer=False)
        self.lin(40, [(S_IP, 256), (S_WAVE, 128, 1, None), (S_JP, 8), (S_WAVE, 4, 0, 1)], L.FL_H)
        self.lin(37, [(S_IP, 256), (S_WAVE, 128, 1, None), (S_WAVE, 16, 0, 1)], L.FL_X1)
        self.I(f"""v_add_u32 {v(AD)}, {W1A_LDS}, v1
        v_add_u32 {v(AD+1)}, {W1B_LDS}, v1
        v_add_u32 {v(AD+2)}, {W1B_LDS + 8*7168}, v1
        v_lshlrev_b32 {v(AD+3)}, 4, v4
        v_add_u32 {v(AD+3)}, {M_CS1}, {v(AD+3)}
        v_bfe_u32 v6, v0, 2, 2
        v_lshlrev_b32 v6, 5, v6
        v_and_b32 v7, 3, v0
        v_lshl_add_u32 v6, v7, 2, v6""")
        self.poll(6, 37)
        def xr(k, e): return XR + 8 * (k % NXR) + 4 * e
        def load(k):
            for e in range(2):
                if k and k % 4 == 0: self.I(f"s_add_u32 s{30+e}, s{30+e}, 4096")
                vm.issue(f"buffer_load_dwordx4 {R(xr(k,e),4)}, v1, {WS}, s{30+e} offen offset:{(k%4)*1024} sc1", ("x", k))
        def wread(k, ft): return f"ds_read_b128 {R(WB + 28*(k%2) + 4*ft, 4)}, {v(AD + k//8)} offset:{(k%8)*7168 + ft*1024}"
        PD = 5
        nl = 0
        while nl < 4: load(nl); nl += 1
        self.I("s_barrier")
        self.stamp("x1.poll")
        w2_in_loop = self.take(self.w2_items, 26 - self.cfg.fin_w2)
        sl_items = []
        for e in range(2):
            for n in range(4):
                sl_items.append(("v", f"buffer_load_dwordx4 {v(SL+16*e+4*n,4)}, v1, {WS}, s{42+e} offen offset:{n*1024} sc1", "stat"))
        def stat_code():
            for e in range(2):
                self.stat_finish(SL + 16 * e, ST + 4 * e, packed=False)
                self.I(f"v_mov_b32 {v(ST+4*e+2)}, {v(ST+4*e+1)}")
        sh = self.collect(stat_code) if self.cfg.m1sh else []
        for ft in range(7): self.I(wread(0, ft))
        for k in range(20):
            vm.wait(("x", k))
            if k == 13:
                vm.wait("w1b"); self.I("s_barrier")
            if k == 16 and sh: vm.wait("stat")
            self.I("s_waitcnt lgkmcnt(0)")
            n = 0
            for ft in range(7):
                for e in range(2):
                    d = ACC + 28 * e + 4 * ft
                    self.I(f"v_mfma_f32_16x16x32_bf16 {v(d,4)}, {R(WB+28*(k%2)+4*ft,4)}, {R(xr(k,e),4)}, {'0' if k == 0 else v(d,4)}")
                    if k + 1 < 20 and n < 7: self.I(wread(k + 1, n))
                    if n == 7 and nl < min(k + PD, 20): load(nl); nl += 1
                    if n == 9 and nl < min(k + 1 + PD, 20): load(nl); nl += 1
                    if n == 11 or (n == 8 and (nl == 20 or k % 2 == 0)):
                        if self.w1b: self.emit_list(self.take(self.w1b, 1))
                        elif sl_items: self.emit_list(self.take(sl_items, 1))
                        else: self.emit_list(self.take(w2_in_loop, 1))
                    if k >= 16 and sh: self.emit_list(sh[:2]); sh = sh[2:]
                    n += 1
            assert k < 7 or not self.w1b
            if self.cfg.fine == "m" and k in (0, 4, 9, 14): self.stamp(f"m1.k{k}")
        assert not sh and not sl_items
        self.w2_items = w2_in_loop + self.w2_items
        self.stamp("m1.mm")
        if not self.cfg.m1sh:
            vm.wait("stat"); stat_code()
        CB = SL; T = 120; PK = [[128, 116], [92, 96]]
        def cbread(ft):
            b = CB + 8 * (ft % 2)
            self.I(f"ds_read_b128 {v(b,4)}, v7 offset:{ft*64}\nds_read_b128 {v(b+4,4)}, v7 offset:{448+ft*64}")
        self.I(f"v_mov_b32 v7, {v(AD+3)}")
        cbread(0)
        self.I(f"s_mov_b32 s66, {hexf(math.log2(math.e))}\ns_mov_b32 s67, s66\ns_mov_b32 s68, {hexf(math.sqrt(0.5))}\ns_mov_b32 s69, s68")
        if self.cfg.fine == "m": self.stamp("m1.stat")
        for ft in range(7):
            ch = [(e, h) for e in range(2) for h in range(2)]
            D = lambda c: ACC + 28 * c[0] + 4 * ft + 2 * c[1]
            Tt = lambda c: T + 4 * c[0] + 2 * c[1]
            b = CB + 8 * (ft % 2); q = ft // 2
            self.I("s_waitcnt lgkmcnt(0)")
            if ft + 1 < 7: cbread(ft + 1)
            for c in ch: self.I(f"v_pk_fma_f32 {v(D(c),2)}, {v(ST+4*c[0],2)}, {v(b+2*c[1],2)}, {v(D(c),2)} op_sel_hi:[0,1,1]")
            for c in ch: self.I(f"v_pk_fma_f32 {v(D(c),2)}, {v(D(c),2)}, {v(ST+4*c[0]+2,2)}, {v(b+4+2*c[1],2)} op_sel_hi:[1,0,1]")
            for c in ch: self.I(f"v_pk_fma_f32 {v(Tt(c),2)}, {v(D(c),2)}, s[66:67], -0.5 op_sel_hi:[1,1,0]")
            for c in ch: self.I(f"v_exp_f32 {v(Tt(c))}, {v(Tt(c))}\nv_exp_f32 {v(Tt(c)+1)}, {v(Tt(c)+1)}")
            for c in ch: self.I(f"v_pk_add_f32 {v(Tt(c),2)}, {v(Tt(c),2)}, s[68:69]")
            for c in ch: self.I(f"v_pk_fma_f32 {v(Tt(c),2)}, {v(Tt(c),2)}, {v(Tt(c),2)}, 0.5 op_sel_hi:[1,1,0]")
            for c in ch: self.I(f"v_rcp_f32 {v(Tt(c))}, {v(Tt(c))}\nv_rcp_f32 {v(Tt(c)+1)}, {v(Tt(c)+1)}")
            for c in ch: self.I(f"v_pk_fma_f32 {v(D(c),2)}, {v(D(c),2)}, {v(Tt(c),2)}, {v(D(c),2)} neg_lo:[1,0,0] neg_hi:[1,0,0]")
            for c in ch: self.I(f"v_cvt_pk_bf16_f32 {v(PK[c[0]][q%2]+2*(ft%2)+c[1])}, {v(D(c))}, {v(D(c)+1)}")
            if ft % 2 == 1:
                for e in range(2): vm.issue(f"buffer_store_dwordx4 {v(PK[e][q%2],4)}, v1, {WS}, s{44+e} offen offset:{q*1024}", "st")
            elif ft == 6:
                for e in range(2): vm.issue(f"buffer_store_dwordx2 {v(PK[e][q%2],2)}, v1, {WS}, s{32+e} offen offset:3072", "st")
            else:
                self.emit_list(self.take(self.w2_items, 1))
        if self.cfg.fine == "m": self.stamp("m1.mish")
        self.window(self.w2_items)
        self.stamp("m1.epi")

    def phase_mlp2(self):
        A, vm = self.A, self.vm
        NS, XR, NR, accs, stage, PD, P0 = 14, 276, 25, [20, 40], 60, 10, 6
        fine = self.cfg.fine == "h"
        for p in range(4):
            self.I(f"s_add_u32 s37, {s(S_WAVE)}, {p+1}\ns_and_b32 s37, s37, 3")
            if p < 3: self.lin(44 + p, [(37, 15360)], RED_K + p * 5120, layer=False)
            self.lin(30 + p, [(37, L.HTS), (S_G, L.GS), (S_I, 4 * L.HTS, 0, 3), (S_WAVE, NS * 1024)], L.HFB, layer=False)
        self.lin(47, [(S_WAVE, 15360)], RED_K, layer=False)
        self.resid_setup(L.XIN, L.STATIN, L.FL_XIN + L.LS)
        self.lin(37, [(S_I, 128), (S_WAVE, 32)], L.FL_H)
        self.I("v_and_b32 v120, 7, v0\nv_lshlrev_b32 v120, 2, v120")
        self.I("s_barrier")
        self.poll(120, 37)
        self.stamp("h.poll")
        if self.cfg.wb:
            sk = A.newlabel("wb")
            self.I(f"s_and_b32 s36, {s(S_C)}, {self.cfg.wb - 1}\ns_or_b32 s36, s36, {s(S_WAVE)}\ns_cbranch_scc1 {sk}\nbuffer_wbl2 sc1")
            A.L(sk)
        self.wqa = self.lin_dma((S_J, 120 * 1024), L.WQF, WQ_LDS, 24, 52, 53, "wq")
        items = [(p, st) for p in range(4) for st in range(NS)]
        def xr(k): return XR + 4 * (k % NR)
        def load(k):
            p, st = items[k]
            if st % 4 == 0: self.I(f"s_add_u32 s34, s{30+p}, {(st//4)*4096}")
            vm.issue(f"buffer_load_dwordx4 {R(xr(k),4)}, v1, {WS}, s34 offen offset:{(st%4)*1024} sc1", ("x", k))
        nl = 0
        while nl < P0: load(nl); nl += 1
        NM = 5 * NS
        for k, (p, st) in enumerate(items):
            acc = accs[p % 2]
            if st == 0:
                fill = {}
                if p > 0:
                    prev = accs[(p - 1) % 2]
                    span = NM if p < 3 else NM // 2
                    lo = 3 if p < 3 else 12
                    fill.setdefault(0, []).append(f"v_add_u32 v7, s{44+p-1}, v1")
                    for ft in range(5):
                        fill.setdefault(lo + ft * (span - lo) // 5, []).append(f"ds_write_b128 v7, {v(prev+4*ft,4)} offset:{ft*1024}")
                if p == 3:
                    self.I("s_waitcnt lgkmcnt(0)\ns_barrier\nv_add_u32 v6, s47, v1")
                    for n in range(10):
                        fill.setdefault(n, []).append(f"ds_read_b128 {v(stage+4*n,4)}, v6 offset:{(n//5)*5120+(n%5)*1024}")
                    b2 = NM // 2 + 6
                    fill.setdefault(b2, []).append("s_waitcnt lgkmcnt(0)\ns_barrier")
                    for n in range(5):
                        fill.setdefault(b2 + 1 + n, []).append(f"ds_read_b128 {v(stage+40+4*n,4)}, v6 offset:{2*5120+n*1024}")
                    for n in range(20):
                        fill.setdefault(b2 + 1 + n // 2, []).append(f"v_add_f32 {v(stage+n)}, {v(stage+n)}, {v(stage+20+n)}")
                    fill.setdefault(b2 + 12, []).append("s_waitcnt lgkmcnt(0)")
                    for n in range(20):
                        fill.setdefault(b2 + 12 + n // 2, []).append(f"v_add_f32 {v(stage+n)}, {v(stage+n)}, {v(stage+40+n)}")
            vm.wait(("x", k))
            if fine and st == 0: self.stamp(f"k.g{p}")
            for ft in range(5):
                c = "0" if st == 0 else v(acc + 4 * ft, 4)
                self.I(f"v_mfma_f32_16x16x32_bf16 {v(acc+4*ft,4)}, {R(w2_reg(5*st+ft),4)}, {R(xr(k),4)}, {c}")
                for x in fill.get(5 * st + ft, []): self.I(x)
                if ft == 1 and k % 2 == 0 and nl < min(k + PD, len(items)): load(nl); nl += 1
            if nl < min(k + 1 + PD, len(items)): load(nl); nl += 1
            elif nl == len(items): self.emit_list(self.take(self.wqa, 1 + (k % 2 if self.cfg.wq3 == 3 else self.cfg.wq3 - 1)))
        if fine: self.stamp("k.mend")
        for i in range(0, 20, 2): self.I(f"v_pk_add_f32 {v(accs[1]+i,2)}, {v(accs[1]+i,2)}, {v(stage+i,2)}")
        self.stamp("m2.mm")

    def init_lds_consts(self):
        A, vm = self.A, self.vm
        self.I("s_mov_b32 s53, 0"); emit_realtile(A, S_JP, 53, 54, 56, 58)
        self.I("s_mov_b32 s53, 6"); emit_realtile(A, S_JP, 53, 55, 57, 58)
        self.I(f"""s_lshl_b32 s54, s54, 5
        v_mov_b32 v6, s57
        v_cmp_lt_u32 vcc, 23, v0
        v_cndmask_b32 v6, 0, v6, vcc
        v_add_u32 v6, v6, v2""")
        vm.issue(f"buffer_load_dwordx2 v[252:253], v6, s[12:15], s54 offen", "b1")
    def init_lds_finish(self):
        self.I(f"""v_lshlrev_b32 v20, 16, v252
        v_and_b32 v21, 0xffff0000, v252
        v_lshlrev_b32 v22, 16, v253
        v_and_b32 v23, 0xffff0000, v253
        v_add_u32 v6, {M_B1}, v1
        s_mov_b64 exec, 0x0fffffff
        ds_write_b128 v6, v[20:23]
        s_mov_b64 exec, -1
        v_mov_b32 v6, {M_BAD}
        v_mov_b32 v7, 0
        ds_write_b32 v6, v7""")

def build_main(cfg):
    G = Gen(cfg); A = G.A; vm = G.vm
    Gen.cold = []
    G.I(f"""
    s_cmp_ge_u32 s2, 256
    s_cbranch_scc1 L_end
    s_load_dwordx8 s[36:43], s[0:1], 0
    s_load_dwordx2 s[96:97], s[0:1], 32       ; wo
    s_load_dwordx2 s[98:99], s[0:1], 48       ; w1
    s_load_dwordx2 s[44:45], s[0:1], 56       ; b1
    s_load_dwordx2 s[100:101], s[0:1], 64     ; w2
    s_load_dwordx2 s[46:47], s[0:1], 72       ; out
    s_load_dwordx2 s[50:51], s[0:1], 88       ; ws
    v_lshrrev_b32 v2, 6, v0
    v_and_b32 v0, 63, v0
    v_readfirstlane_b32 {s(S_WAVE)}, v2
    v_lshlrev_b32 v1, 4, v0
    v_lshlrev_b32 v2, 3, v0
    v_and_b32 v3, 15, v0
    v_lshrrev_b32 v4, 4, v0
    s_and_b32 {s(S_G)}, s2, 7
    s_lshr_b32 {s(S_C)}, s2, 3
    s_lshl_b32 {s(S_I)}, {s(S_G)}, 2
    s_lshr_b32 s30, {s(S_C)}, 3
    s_add_u32 {s(S_I)}, {s(S_I)}, s30
    s_and_b32 {s(S_J)}, {s(S_C)}, 7
    s_lshl_b32 {s(S_IP)}, {s(S_G)}, 1
    s_lshr_b32 s30, {s(S_C)}, 4
    s_add_u32 {s(S_IP)}, {s(S_IP)}, s30
    s_and_b32 {s(S_JP)}, {s(S_C)}, 15
    s_mov_b32 {s(S_L)}, 0
    s_mov_b32 {s(S_MODE)}, 1
    s_mov_b32 {s(S_RETRY)}, 0
    s_getreg_b32 {s(S_TAG)}, hwreg(HW_REG_XCC_ID, 0, 3)
    """)
    if cfg.prof: G.I("s_mov_b32 s77, 0\nv_mov_b32 v19, 0\ns_memrealtime s[78:79]\ns_waitcnt lgkmcnt(0)\nv_writelane_b32 v19, s78, 62")
    G.stamp("start")
    G.I("s_waitcnt lgkmcnt(0)")
    srd(A, SRD_X, 36, 2048 * 640 * 2); srd(A, SRD_WQ, 38, 640 * 640 * 2)
    G.I(f"""s_bitcmp1_b32 s2, 1
    s_cselect_b32 {s(SRD_KV)}, s42, s40
    s_cselect_b32 {s(SRD_KV+1)}, s43, s41
    s_mov_b32 {s(SRD_KV+2)}, {640*20*2}
    s_mov_b32 {s(SRD_KV+3)}, 0x20000
    s_load_dword {s(S_EPOCH)}, s[50:51], {L.EPOCH}""")
    srd(A, 4, 50, L.WS_USED); srd(A, 8, 46, 2048 * 640 * 2); srd(A, 12, 44, 1728 * 2); srd(A, SRD_SRC, 96, 640 * 640 * 2)
    G.I("v_mov_b32 v192, 0x3f803f80\nv_mov_b32 v193, 0x3f803f80\nv_mov_b32 v194, 0x3f803f80\nv_mov_b32 v195, 0x3f803f80")
    G.I(f"s_cmp_lt_u32 s2, 160\ns_cselect_b32 s73, 0, 1\ns_or_b32 s73, s73, {s(S_WAVE)}\ns_cbranch_scc1 L_nowq1")
    G.wq_unit_issue()
    A.L("L_nowq1")
    G.I("s_movk_i32 s54, 1280")
    G.x0_issue()
    G.I(f"""s_cmp_ge_u32 s2, 160
    s_cselect_b32 s36, 0, 1
    s_or_b32 s36, s36, {s(S_WAVE)}
    s_cbranch_scc1 L_notouch
    s_sub_u32 s36, s2, 160
    s_lshl_b32 s37, s36, 13
    s_add_u32 s37, s37, {L.KVB}
    s_cmp_eq_u32 s36, {2 * L.LS // 8192 + 1}
    s_cselect_b32 s37, {L.FL_PREP}, s37
    s_cmp_gt_u32 s36, {2 * L.LS // 8192 + 1}
    s_cbranch_scc1 L_notouch
    v_lshlrev_b32 v5, 7, v0
    buffer_load_dword v254, v5, {WS}, s37 offen""")
    A.L("L_notouch")
    if os.environ.get("TLB"):
        st_ = int(os.environ["TLB"])
        G.I(f"""s_cmp_lg_u32 {s(S_WAVE)}, 1
        s_cbranch_scc1 L_notlb
        s_mul_i32 s37, {s(S_C)}, {64 << st_}
        v_lshlrev_b32 v5, {st_}, v0
        buffer_load_dword v254, v5, {WS}, s37 offen""")
        A.L("L_notlb")
    G.init_lds_consts()
    G.I(f"s_waitcnt lgkmcnt(0)\ns_mul_i32 {s(S_EPOCH)}, {s(S_EPOCH)}, 1664525\ns_add_u32 {s(S_EPOCH)}, {s(S_EPOCH)}, 1013904223")
    G.I(f"s_and_b32 s36, {s(S_EPOCH)}, 0xfffffff8\ns_or_b32 {s(S_TAG)}, {s(S_TAG)}, s36")
    G.stamp("p0.issue")
    G.prep_issue()
    G.qkv_setup(True)
    G.I("s_cmp_lg_u32 s73, 0\ns_cbranch_scc1 L_nowq2\ns_waitcnt vmcnt(21)")
    G.wq_unit_finish()
    G.I("s_waitcnt vmcnt(0)")
    G.signal(66, dev=True)
    G.I("s_branch L_wq3")
    A.L("L_nowq2")
    G.I("s_waitcnt vmcnt(0)")
    A.L("L_wq3")
    vm.q = []
    G.stamp("p0.x")
    G.init_lds_finish()
    G.x0_read(20, 196)
    G.I("s_barrier")
    G.emit_list(G.x0_stats(20, 196))
    G.stat_finish(196, 212, presummed=True)
    G.lin(37, [(S_J, 128)], L.FL_WQ, layer=False)
    G.I("v_min_u32 v6, 19, v0\nv_lshlrev_b32 v6, 2, v6")
    G.stamp("p0.stat")
    G.poll(6, 37, dev=True)
    G.stamp("p0.wq")
    G.csum_loads(172, (S_J, 20 * 384), L.CSQP, 384, 0xffffff, "cs")
    G.emit_list(G.wkv_frags() + G.wq_round(0))
    G.phase_qkv(True)
    G.prep_read()
    G.stamp("prep")
    A.L("L_layer")
    G.phase_att()
    G.I(f"s_cmp_lg_u32 s2, 0\ns_cbranch_scc1 L_noep\nv_mov_b32 v5, {s(S_EPOCH)}\ns_mov_b32 s36, {L.EPOCH}\ns_mov_b64 exec, 1\nbuffer_store_dword v5, off, {WS}, s36\ns_mov_b64 exec, -1")
    A.L("L_noep")
    G.phase_oproj()
    G.phase_mlp1()
    G.phase_mlp2()
    G.I(f"s_cmp_lg_u32 {s(S_L)}, 0\ns_cbranch_scc1 L_final")
    q0 = list(vm.q)
    G.resid_epilogue(40, statreg=60)
    G.I("s_barrier")
    G.window(G.wqa + G.lin_dma((S_J, 120 * 1024), L.WQF + 96 * 1024, WQ_LDS + 96 * 1024, 6, 52, 53, "wq"))
    G.stamp("m2.epi")
    G.I(f"s_mov_b32 {s(S_L)}, {L.LS}")
    G.qkv_setup(False)
    G.lin(37, [(S_I, 128), (S_WAVE, 8)], L.FL_XIN)
    G.I("v_bfe_u32 v6, v0, 1, 2\nv_lshlrev_b32 v6, 5, v6\nv_and_b32 v7, 1, v0\nv_lshl_add_u32 v6, v7, 2, v6")
    G.poll(6, 37)
    G.stamp("xin.poll")
    G.phase_qkv(False)
    G.I(f"s_mov_b32 s69, {BIG}\ns_mov_b32 s70, {BIG}\ns_mov_b32 s71, {BIG}\ns_mov_b32 s72, {BIG}\nv_mov_b32 v196, 0")
    G.I("s_branch L_layer")
    A.L("L_final")
    vm.q = q0
    G.lin(36, [(S_I, 64 * 1280), (S_WAVE, 16 * 1280), (S_J, 160)], 0, layer=False, tmp=37)
    G.I("v_mul_u32_u24 v6, 1280, v3\nv_lshl_add_u32 v6, v4, 3, v6")
    G.resid_epilogue(40, store=False)
    for ft in range(5): G.I(f"buffer_store_dwordx2 {v(XRES+2*ft,2)}, v6, s[8:11], s36 offen offset:{ft*32}")
    if cfg.prof:
        G.I("s_waitcnt vmcnt(0)"); G.stamp("end")
        G.I("s_memrealtime s[78:79]\ns_waitcnt lgkmcnt(0)\nv_writelane_b32 v19, s78, 63")
        G.I(f"s_lshl_b32 s36, s2, 2\ns_add_u32 s36, s36, {s(S_WAVE)}\ns_lshl_b32 s36, s36, 8\ns_add_u32 s36, s36, {L.PROF}\nv_lshlrev_b32 v6, 2, v0")
        G.I(f"buffer_store_dword v19, v6, {WS}, s36 offen")
        cfg.names = G.names
    A.L("L_end")
    G.I("s_endpgm")
    for g, j, code in Gen.cold:
        A.L(g); G.I(code); G.I(f"s_branch {j}")
    A.ins += G.slow
    npad = A.pad_hazards()
    tr = trace_two_layers(A.ins, G.loops)
    errs = check_waits([x for x in tr if x.op not in ("s_memtime", "s_memrealtime")], "main")
    assert errs == 0 or cfg.skip != ("",) and cfg.skip
    return A.text(), npad

def trace_two_layers(ins, loops):
    labels = {x.label: i for i, x in enumerate(ins) if x.is_label}
    tr = []; j = 0; left = {}; layer = 0
    while j < len(ins):
        c = ins[j]; tr.append(c)
        if c.op == "s_endpgm": break
        if c.kind == "branch":
            t = labels[c.target]
            if c.op == "s_branch":
                if c.target == "L_layer": layer = 1
                j = t; continue
            if t <= j:
                k = left.get(j, loops.get(c.target, 1))
                if k > 0: left[j] = k - 1; j = t; continue
                left.pop(j, None)
            elif (c.target == "L_final" and layer == 1) or c.target.startswith("L_prepok"):
                j = t; continue
        j += 1
    return tr

HEADER = open(f"cdna_kernels/{NAME}.s.ref").read().split("; Override launch")[0]

def build_all(cfg):
    body, npad = build_main(cfg)
    asm = HEADER
    asm += f"; @launch grid=(256,1,1) block=(256,1,1) lds={LDS_BYTES}\n"
    asm += '.amdgcn_target "amdgcn-amd-amdhsa--gfx950"\n'
    asm += wrap_kernel(NAME + "_kernel", body, vgpr=512, acc=256)
    return asm, npad

if __name__ == "__main__":
    cfg = Cfg()
    cfg.prof = "prof" in os.environ.get("XF", "")
    asm, npad = build_all(cfg)
    open("out.s", "w").write(asm)
    print("lines", len(asm.splitlines()), "bytes", len(asm), "pad", npad)
```

```python
from asmlib import *

KVT = 2816
NT = 16
QST_Q = 1536
RED_Q = 3072

class AttRegs:
    def __init__(self, base, kvbase=256):
        b = base
        def take(n, al=1):
            nonlocal b
            b = (b + al - 1) // al * al
            r = b; b += n; return r
        self.S = [take(16, 4), take(16, 4)]
        self.O = [take(16, 4), take(16, 4)]
        self.P = [take(8, 4), take(8, 4)]
        self.Q1 = [take(4, 4), take(4, 4)]
        self.Q2 = [take(2, 2), take(2, 2)]
        self.aQ1 = take(1); self.aQ2 = take(1); self.aR = take(1); self.pf = take(1)
        self.t = take(8, 4)
        self.T = [take(12, 4), take(12, 4)]
        self.end = b
        self.kv = kvbase
    def K1(self, t): return self.kv + 12 * t
    def V1(self, t): return self.kv + 12 * t + 4
    def V2(self, t): return self.kv + 12 * t + 8
    def K2(self, t): return self.kv + 192 + 2 * t

def emit_kv_addr(A, r, lane, wave_s, base_s):
    t = r.t
    A.I(f"s_mul_i32 s60, {s(wave_s)}, {NT*KVT}")
    A.I(f"s_add_u32 s60, s60, {s(base_s)}")
    A.I(f"v_lshlrev_b32 {v(t)}, 4, {v(lane)}")
    A.I(f"v_and_b32 {v(t+3)}, 31, {v(lane)}")
    A.I(f"v_lshrrev_b32 {v(t+4)}, 5, {v(lane)}")
    A.I(f"v_lshlrev_b32 {v(t+1)}, 3, {v(t+3)}")
    A.I(f"v_lshl_add_u32 {v(t+1)}, {v(t+4)}, 2, {v(t+1)}")
    A.I(f"v_lshlrev_b32 {v(t+2)}, 4, {v(t+3)}")
    A.I(f"v_mad_u32_u24 {v(t+2)}, {v(t+4)}, s59, {v(t+2)}")
    A.I(f"v_cmp_lt_u32 vcc, 20, {v(t+3)}\nv_mov_b32 {v(t+4)}, 0x40000000\nv_cndmask_b32 {v(t+2)}, {v(t+2)}, {v(t+4)}, vcc")

def kv_items(r, srd, flags, k):
    t = r.t
    return [("v", f"buffer_load_dwordx4 {R(r.K1(k),4)}, {v(t)}, {s(srd,4)}, s60 offen {flags}", ("kv", k)),
            ("v", f"buffer_load_dword {R(r.K2(k))}, {v(t+1)}, {s(srd,4)}, s60 offen offset:1024 {flags}", ("kv", k)),
            ("v", f"buffer_load_dwordx4 {R(r.V1(k),4)}, {v(t+2)}, {s(srd,4)}, s60 offen offset:1280 {flags}", ("kv", k)),
            ("v", f"buffer_load_dwordx4 {R(r.V2(k),4)}, {v(t+2)}, {s(srd,4)}, s60 offen offset:2048 {flags}", ("kv", k)),
            ("s", f"s_add_u32 s60, s60, {KVT}")]

def half_step(G, r, X, kS, kV2, kV1, fill, zeroO=False, doPV2=True):
    Y = 1 - X
    S, P = r.S[X], r.P[X]
    I = G.I
    def ex(i): I(f"v_exp_f32 {v(S+i)}, {v(S+i)}")
    def cv(i): I(f"v_cvt_pk_bf16_f32 {v(P+i)}, {v(S+2*i)}, {v(S+2*i+1)}")
    G.emit_list(fill.get('pre0', []))
    I(f"v_mfma_f32_32x32x16_bf16 {v(r.S[Y],16)}, {R(r.K1(kS),4)}, {v(r.Q1[Y],4)}, 0")
    G.emit_list(fill.get(0, []))
    for i in range(0, 4): ex(i)
    I(f"v_mfma_f32_32x32x8_bf16 {v(r.S[Y],16)}, {R(r.K2(kS),2)}, {v(r.Q2[Y],2)}, {v(r.S[Y],16)}")
    G.emit_list(fill.get(1, []))
    for i in range(4, 8): ex(i)
    cv(0); cv(1)
    if doPV2:
        I(f"v_mfma_f32_32x32x16_bf16 {v(r.O[Y],16)}, {R(r.V2(kV2),4)}, {v(r.P[Y]+4,4)}, {v(r.O[Y],16)}")
    G.emit_list(fill.get(2, []))
    cv(2); cv(3)
    for i in range(8, 12): ex(i)
    I(f"v_mfma_f32_32x32x16_bf16 {v(r.O[X],16)}, {R(r.V1(kV1),4)}, {v(P,4)}, {'0' if zeroO else v(r.O[X],16)}")
    G.emit_list(fill.get(3, []))
    for i in range(12, 16): ex(i)
    for i in range(4, 8): cv(i)

def place(fa, fb, items, slots):
    items = list(items)
    n = len(slots)
    per = -(-len(items) // n)
    k = 0
    for sl in slots:
        cnt = len(items) - (n - 1 - k) * per if False else min(per, len(items))
        tgt = (fa if sl[0] == 0 else fb).setdefault(sl[1], [])
        take = []
        while items and len(take) < per:
            take.append(items.pop(0))
        tgt.extend(take)
        k += 1
    assert not items

FULL = [(0, 0), (0, 2), (0, 3), (1, 0), (1, 2), (1, 3), (0, 1), (1, 1)]
ORD = [(0, 0), (0, 1), (0, 2), (0, 3), (1, 0), (1, 1), (1, 2), (1, 3)]

def S_(txt): return [("s", x.strip()) for x in txt.split("\n") if x.strip()]

def q_reads(r, X):
    return [f"ds_read_b128 {v(r.Q1[X],4)}, {v(r.aQ1)} offset:{X*QST_Q}",
            f"ds_read_b64 {v(r.Q2[X],2)}, {v(r.aQ2)} offset:{X*QST_Q + 1024}"]

def emit_att_pre(G, r, lane, wave_s, qst, red):
    I = G.I
    I(f"s_add_u32 s63, {s(wave_s)}, 1\ns_and_b32 s63, s63, 3")
    I(f"s_mul_i32 s61, s63, {2*QST_Q}\ns_add_u32 s61, s61, {qst}")
    I(f"v_lshl_add_u32 {v(r.aQ1)}, {v(lane)}, 4, s61")
    I(f"v_lshl_add_u32 {v(r.aQ2)}, {v(lane)}, 3, s61")
    for x in q_reads(r, 0) + q_reads(r, 1): I(x)
    for k in range(NT): I(f"v_accvgpr_write_b32 {R(r.K2(k)+1)}, s58")

def emit_att_main(G, r, lane, wave_s, qst, red, kvsrd, kvflags, nfirst, events, events2, p1_items, start, between01=None):
    I = G.I; vm = G.vm
    def next_q_addr():
        return [f"s_mul_i32 s61, s63, {2*RED_Q}", f"s_add_u32 s61, s61, {red}",
                f"v_lshl_add_u32 {v(r.aR)}, {v(lane)}, 4, s61",
                "s_add_u32 s63, s63, 1", "s_and_b32 s63, s63, 3",
                f"s_mul_i32 s61, s63, {2*QST_Q}", f"s_add_u32 s61, s61, {qst}",
                f"v_lshl_add_u32 {v(r.aQ1)}, {v(lane)}, 4, s61",
                f"v_lshl_add_u32 {v(r.aQ2)}, {v(lane)}, 3, s61"]
    for k in range(nfirst): G.emit_list(kv_items(r, kvsrd, kvflags, k))
    fine = G.cfg.fine == "a"
    if fine: G.stamp("a.issue")
    vm.wait(("kv", 0))
    I("s_waitcnt lgkmcnt(0)")
    if fine: G.stamp("a.kv0")
    I(f"v_mfma_f32_32x32x16_bf16 {v(r.S[0],16)}, {R(r.K1(0),4)}, {v(r.Q1[0],4)}, 0")
    I(f"v_mfma_f32_32x32x8_bf16 {v(r.S[0],16)}, {R(r.K2(0),2)}, {v(r.Q2[0],2)}, {v(r.S[0],16)}")
    def sends(X, src):
        return [f"ds_write_b128 {v(r.aR)}, {v(src+4*i,4)} offset:{X*RED_Q + i*1024}" for i in range(3)]
    def fetch(X):
        return [f"ds_read_b128 {v(r.T[X]+4*i,4)}, {v(r.aR)} offset:{X*RED_Q + i*1024}" for i in range(3)]
    def one_pass(pn):
        first = pn == 0
        for t in range(NT):
            fa = {}; fb = {}
            if t == 0 and not first:
                fa['pre0'] = S_("s_waitcnt lgkmcnt(0)")
                for X, f in ((0, fa), (1, fb)):
                    w = sends(X, r.O[X] if pn == 1 else r.T[X])
                    for i in range(3):
                        f[i] = []
                        if pn > 1: f[i] += S_("\n".join(f"v_add_f32 {v(r.T[X]+4*i+n)}, {v(r.T[X]+4*i+n)}, {v(r.O[X]+4*i+n)}" for n in range(4)))
                        f[i] += S_(w[i])
            if t == 2 and not first:
                fa[0] = S_("s_waitcnt lgkmcnt(0)\ns_barrier")
            if pn == 3 and t == 3:
                fa[0] = S_(f"s_mul_i32 s61, {s(wave_s)}, {2*RED_Q}"); fa[2] = S_(f"s_add_u32 s61, s61, {red}"); fa[3] = S_(f"v_lshl_add_u32 {v(r.aR)}, {v(lane)}, 4, s61")
            if (pn in (1, 2) and t == NT - 1) or (pn == 3 and t == 4):
                w = fetch(0) + fetch(1)
                for n, sl in enumerate([(1, 0), (1, 1), (1, 2), (1, 2), (1, 3), (1, 3)] if pn < 3 else ORD[:6]):
                    (fa if sl[0] == 0 else fb).setdefault(sl[1], []).extend(S_(w[n]))
            if t == NT - 2 and pn < 3:
                n = next_q_addr()
                place(fa, fb, S_("\n".join(n)), ORD[2:])
            if t == NT - 1 and pn < 3:
                q = q_reads(r, 0); fa[0] = S_(q[0]); fa[1] = S_(q[1])
                q = q_reads(r, 1); fa[2] = S_(q[0]); fa[3] = S_(q[1])
                fb['pre0'] = S_("s_waitcnt lgkmcnt(2)")
            if first and t + nfirst < NT:
                it = kv_items(r, kvsrd, kvflags, t + nfirst)
                place(fa, fb, it, [(0, 0), (0, 1), (0, 2), (0, 3), (1, 0)])
            if first and t + 1 < NT: fb['pre0'] = fb.get('pre0', []) + [("w", ("kv", t + 1))]
            if (pn, t) in events: fb.setdefault(3, []).extend(events[(pn, t)])
            for n_, it_ in enumerate(events2.get((pn, t), [])): fb.setdefault((2, 0)[n_ % 2], []).append(it_)
            if (pn, t) >= start and 1 <= t < NT - 2 and not (pn == 3 and t in (3, 4)):
                left = (3 - pn) * (NT - 3) + (NT - 2 - t) - (2 if (pn, t) < (3, 3) else 0)
                nv = sum(1 for it in p1_items if it[0] == "v")
                it = G.take(p1_items, -(-nv // left))
                if it: place(fa, fb, it, [(0, 0), (0, 2), (0, 3), (1, 0), (1, 2), (1, 3)][:max(len(it), 1)] if len(it) <= 6 else ORD)
            half_step(G, r, 0, t, (t - 1) % NT, t, fa, zeroO=(t == 0), doPV2=not (first and t == 0))
            half_step(G, r, 1, (t + 1) % NT, t, t, fb, zeroO=(t == 0))
    I("s_nop 7\ns_nop 2")
    one_pass(0)
    if fine: G.stamp("a.p0")
    if between01: between01()
    one_pass(1)
    if fine: G.stamp("a.p1")
    one_pass(2)
    if fine: G.stamp("a.p2")
    one_pass(3)
    assert all(it[0] == 's' for it in p1_items)
    I(f"v_mfma_f32_32x32x16_bf16 {v(r.O[1],16)}, {R(r.V2(NT-1),4)}, {v(r.P[1]+4,4)}, {v(r.O[1],16)}")

def emit_att_finish(G, r, osrd, ooff_v, ooff2_v, stflags, qstride):
    I = G.I; t = r.t
    I("s_mov_b64 s[64:65], 0\ns_waitcnt lgkmcnt(0)")
    for X in range(2):
        O = r.O[X]
        for i in range(0, 12, 2): I(f"v_pk_add_f32 {v(O+i,2)}, {v(O+i,2)}, {v(r.T[X]+i,2)}")
        I(f"v_mov_b32 {v(t)}, {v(O+8)}\nv_mov_b32 {v(t+1)}, {v(O+8)}")
        I(f"v_permlane32_swap_b32 {v(t)}, {v(t+1)}")
        I(f"v_med3_f32 {v(t+2)}, {v(t+1)}, s66, {v(t+7)}")
        I(f"v_rcp_f32 {v(t)}, {v(t+1)}")
        I(f"v_cmp_neq_f32 vcc, {v(t+2)}, {v(t+1)}")
        for i in range(0, 12, 2):
            I(f"v_pk_mul_f32 {v(O+i,2)}, {v(t,2)}, {v(O+i,2)} op_sel_hi:[0,1]")
        I("s_or_b64 s[64:65], s[64:65], vcc")
        for i in range(6):
            I(f"v_cvt_pk_bf16_f32 {v(r.P[X]+i)}, {v(O+2*i)}, {v(O+2*i+1)}")
        I(f"s_add_u32 s61, s57, {X*qstride}")
        G.vm.issue(f"buffer_store_dwordx4 {v(r.P[X],4)}, {v(ooff_v)}, {s(osrd,4)}, s61 offen {stflags}", "st")
        I("s_mov_b64 exec, 0xffffffff")
        G.vm.issue(f"buffer_store_dwordx2 {v(r.P[X]+4,2)}, {v(ooff2_v)}, {s(osrd,4)}, s61 offen {stflags}", "st")
        I("s_mov_b64 exec, -1")
        I(f"v_add_f32 {v(t+2)}, abs({v(O)}), abs({v(O+1)})")
        for i in range(2, 8): I(f"v_add_f32 {v(t+2)}, {v(t+2)}, abs({v(O+i)})")
        I(f"v_add_f32 {v(t+3)}, abs({v(O+8)}), abs({v(O+9)})")
        I(f"v_add_f32 {v(t+4)}, abs({v(O+10)}), abs({v(O+11)})")
        I(f"v_add_f32 {v(t+3)}, {v(t+3)}, {v(t+4)}")
        I(f"v_cmp_class_f32 vcc, {v(t+2)}, {v(t+6)}")
        I("s_or_b64 s[64:65], s[64:65], vcc")
        I(f"v_cmp_class_f32 vcc, {v(t+3)}, {v(t+6)}")
        I("s_or_b32 s64, s64, vcc_lo")

def emit_att_truemax(G, r, lane, wave_s, qst, mx):
    I = G.I; t = r.t
    lab = G.A.newlabel("mx")
    I(f"s_mov_b32 s62, 0")
    G.A.L(lab)
    I(f"s_mul_i32 s61, s62, {QST_Q}\ns_add_u32 s61, s61, {qst}")
    I(f"v_lshl_add_u32 {v(r.aQ1)}, {v(lane)}, 4, s61\nv_lshl_add_u32 {v(r.aQ2)}, {v(lane)}, 3, s61")
    for x in q_reads(r, 0): I(x)
    I(f"v_mov_b32 {v(t)}, 0xff800000")
    I("s_waitcnt lgkmcnt(0)")
    for k in range(NT):
        S = r.S[k % 2]
        I(f"v_mfma_f32_32x32x16_bf16 {v(S,16)}, {R(r.K1(k),4)}, {v(r.Q1[0],4)}, 0")
        I(f"v_mfma_f32_32x32x8_bf16 {v(S,16)}, {R(r.K2(k),2)}, {v(r.Q2[0],2)}, {v(S,16)}")
        for i in range(0, 16, 2): I(f"v_max3_f32 {v(t)}, {v(t)}, {v(S+i)}, {v(S+i+1)}")
    I(f"v_mov_b32 {v(t+1)}, {v(t)}\nv_permlane32_swap_b32 {v(t)}, {v(t+1)}\nv_max_f32 {v(t)}, {v(t)}, {v(t+1)}")
    I(f"s_lshl_b32 s61, s62, 2\ns_add_u32 s61, s61, {s(wave_s)}\ns_lshl_b32 s61, s61, 8\ns_add_u32 s61, s61, {mx}")
    I(f"v_lshl_add_u32 {v(t+2)}, {v(lane)}, 2, s61\nds_write_b32 {v(t+2)}, {v(t)}")
    I(f"s_add_u32 s62, s62, 1\ns_cmp_lt_u32 s62, 8\ns_cbranch_scc1 {lab}")
    G.loops[lab] = 1
    I("s_waitcnt lgkmcnt(0)\ns_barrier")
    I(f"s_lshl_b32 s61, {s(wave_s)}, 11\ns_add_u32 s61, s61, {mx}\nv_lshl_add_u32 {v(t+2)}, {v(lane)}, 2, s61")
    I(f"s_mul_i32 s61, {s(wave_s)}, {2*QST_Q}\ns_add_u32 s61, s61, {qst + 1024 + 4}\nv_lshl_add_u32 {v(r.aQ2)}, {v(lane)}, 3, s61")
    I(f"v_cmp_lt_u32 s[64:65], 31, {v(lane)}")
    S = r.S[0]
    for X in range(2):
        for w in range(4): I(f"ds_read_b32 {v(S+w)}, {v(t+2)} offset:{X*1024 + w*256}")
        I("s_waitcnt lgkmcnt(0)")
        I(f"""v_max_f32 {v(S)}, {v(S)}, {v(S+1)}
        v_max3_f32 {v(S)}, {v(S)}, {v(S+2)}, {v(S+3)}
        v_sub_f32 {v(S)}, 0, {v(S)}
        v_and_b32 {v(S+1)}, 0xffff0000, {v(S)}
        v_sub_f32 {v(S)}, {v(S)}, {v(S+1)}
        v_and_b32 {v(S+2)}, 0xffff0000, {v(S)}
        v_sub_f32 {v(S)}, {v(S)}, {v(S+2)}
        v_lshrrev_b32 {v(S+1)}, 16, {v(S+1)}
        v_or_b32 {v(S+1)}, {v(S+1)}, {v(S+2)}
        v_lshrrev_b32 {v(S)}, 16, {v(S)}
        v_cndmask_b32 {v(S)}, {v(S+1)}, {v(S)}, s[64:65]
        ds_write_b32 {v(r.aQ2)}, {v(S)} offset:{X*QST_Q}""")
    I("s_waitcnt lgkmcnt(0)\ns_barrier")
```

```python
from asmlib import *
import layout as L
import attn3 as AT
from attn3 import S_
from prep import srd, emit_xg_reduce, emit_realtile, emit_xk, BIG
import math, os, struct

NAME = "interleave_layers__grouped_kv_mqa__dense_activation_mish__prompt"
WQ_LDS = 0
X0_LDS = 0
KV0_LDS = 94208
WQP_LDS = 86016
PREP_LDS = 122880
RED_A = 122880
QST = 147456
WO_LDS = 0
W1AA = 20
W2A = 33
W1A_LDS, W1B_LDS = 102400, 0
RED_K = 98304
MISC = 159744
M_CS1, M_B1, M_CSQ, M_BAD = MISC, MISC + 448, MISC + 896, MISC + 1280
M_MODE = MISC + 1284
M_VT = MISC + 1344
M_CSQP = MISC + 2368
M_CS1P = MISC + 1344
LDS_BYTES = 163840

S_WAVE, S_G, S_C, S_I, S_J, S_IP, S_JP, S_EPOCH, S_L, S_MODE, S_RETRY, S_TAG = 20, 21, 22, 23, 24, 25, 26, 27, 28, 29, 76, 75
XRES = 8
WS = "s[4:7]"
SRD_X, SRD_WQ, SRD_KV, SRD_SRC, SRD_KV2 = 80, 84, 88, 92, 16

def hexf(x): return "0x%08x" % struct.unpack("<I", struct.pack("<f", x))[0]
def w2_reg(k):
    if k < 25: return 156 + 4 * k
    if k < 33: return 480 + 4 * (k - 25)
    if k < 59: return 376 + 4 * (k - 33)
    if k < 65: return 132 + 4 * (k - 59)
    return 256 + 4 * (k - 65)

NFIRST = int(os.environ.get('NF', 3))
class Cfg:
    fin_w2 = 6; s1_w1a = 6; s2 = 12; odepth = 8; m1sh = True
    w2warm = 0; otouch = False
    sect = True; nf = 3
    xtouch = False; w1warm = 0
    ahead = 0; kvf = 1; pdma = 9
    ends = False; outfl = ''; wb2 = 0
    s3_wq = 0; s3_n1 = 6; fastl1 = True
    wq3 = 3; tstep = 7; wstart = 44; wstep = 2; nta = False; t0 = True
    ptouch = False; pst = 1; pflag = (0, 13); pchk = 9; wb = 0
    prof = False; rt = False; fine = None; skip = (); force_global = False; force_bad = False

class Gen:
    def __init__(self, cfg):
        self.A = Asm(); self.vm = VmTracker(self.A); self.cfg = cfg
        self.names = []; self.loops = {}
    def I(self, t): return self.A.I(t)
    def stamp(self, name=""):
        if self.cfg.prof and not self.cfg.ends:
            if self.cfg.rt:
                self.I("s_memrealtime s[78:79]\ns_waitcnt lgkmcnt(0)\ns_lshl_b32 s74, s78, 18\ns_memtime s[78:79]\ns_waitcnt lgkmcnt(0)\ns_and_b32 s78, s78, 0x3ffff\ns_or_b32 s78, s78, s74")
            else:
                self.I("s_memtime s[78:79]\ns_waitcnt lgkmcnt(0)")
            self.I("s_mov_b32 m0, s77\nv_writelane_b32 v19, s78, m0\ns_add_u32 s77, s77, 1")
            self.names.append(name)
    def lin(self, out, terms, const=0, layer=True, tmp=36):
        first = True
        for t in terms:
            sreg, mul = t[0], t[1]
            src = s(sreg); dst = s(out) if first else s(tmp)
            if len(t) > 2:
                shr, mask = t[2], t[3]
                if shr: self.I(f"s_lshr_b32 {dst}, {src}, {shr}"); src = dst
                if mask is not None: self.I(f"s_and_b32 {dst}, {src}, {mask}"); src = dst
            if mul != 1: self.I(f"s_mul_i32 {dst}, {src}, {mul}"); src = dst
            if first:
                if src != dst: self.I(f"s_mov_b32 {dst}, {src}")
            else:
                self.I(f"s_add_u32 {s(out)}, {s(out)}, {src}")
            first = False
        if layer: self.I(f"s_add_u32 {s(out)}, {s(out)}, {s(S_L)}")
        if const: self.I(f"s_add_u32 {s(out)}, {s(out)}, {const}")
    def signal(self, off_s, dev=False, val=S_EPOCH):
        self.I(f"v_mov_b32 v5, {s(val)}\ns_mov_b64 exec, 1")
        if dev:
            self.vm.issue(f"buffer_store_dword v5, off, {WS}, {s(off_s)} sc1", "flag")
        else:
            g = self.A.newlabel("sg"); j = self.A.newlabel("sj")
            self.I(f"s_cmp_lg_u32 {s(S_MODE)}, 0\ns_cbranch_scc1 {g}")
            self.vm.issue(f"buffer_store_dword v5, off, {WS}, {s(off_s)}", "flag")
            self.A.L(j)
            self.cold.append((g, j, f"buffer_wbl2 sc1\ns_waitcnt vmcnt(0)\nbuffer_store_dword v5, off, {WS}, {s(off_s)} sc1"))
        self.I("s_mov_b64 exec, -1")
    def poll(self, voff, off_s, dev=False, wide=False):
        lab = self.A.newlabel("poll"); out = self.A.newlabel("pollx")
        self.I("s_mov_b32 s35, 0")
        self.A.L(lab)
        if wide:
            self.I(f"buffer_load_dwordx4 v[156:159], {v(voff)}, {WS}, {s(off_s)} offen sc1")
        else:
            self.I(f"buffer_load_dword v5, {v(voff)}, {WS}, {s(off_s)} offen sc1")
        self.I(f"s_add_u32 s35, s35, 1\ns_cmp_gt_u32 s35, 0x40000\ns_cbranch_scc1 {out}\ns_waitcnt vmcnt(0)")
        if wide:
            for k in range(4): self.I(f"v_xor_b32 v{156+k}, {s(S_TAG)}, v{156+k}")
            self.I("v_or3_b32 v156, v156, v157, v158\nv_or_b32 v156, v156, v159\nv_cmp_lt_u32 vcc, 7, v156")
        else:
            self.I(f"v_cmp_ne_u32 vcc, {s(S_EPOCH)}, v5")
        self.I(f"s_cbranch_vccnz {lab}")
        self.A.L(out)
        if not dev:
            g = self.A.newlabel("pg"); j = self.A.newlabel("pj")
            self.I(f"s_cmp_lg_u32 {s(S_MODE)}, 0\ns_cbranch_scc1 {g}")
            self.A.L(j)
            self.cold.append((g, j, "s_waitcnt vmcnt(0)\nbuffer_inv sc1\ns_waitcnt vmcnt(0)"))
        self.I("s_waitcnt vmcnt(0)")
        self.loops[lab] = 0
        self.vm.q = []
    cold = []
    def flag_x_off(self, base, out):
        self.lin(out, [(S_I, 128), (S_J, 32, 1, None), (S_WAVE, 8), (S_J, 4, 0, 1)], base)
    def window(self, win, n1=6):
        win = win if win is not None else []
        self.emit_list(self.take(win, n1))
        self.vm.wait("st")
        self.signal(40)
        self.emit_list(win)
    @staticmethod
    def take(items, n):
        out = []
        while items and n > 0:
            it = items.pop(0); out.append(it)
            if it[0] == "v": n -= 1
        return out
    def emit_list(self, items):
        for it in items:
            if it[0] == "s": self.I(it[1])
            elif it[0] == "w": self.vm.wait(it[1])
            elif it[2] in self.cfg.skip: pass
            else: self.vm.issue(it[1], it[2])
    def collect(self, fn):
        keep = self.A; A2 = Asm(); self.A = A2
        fn(); self.A = keep
        return [("s", x.text) for x in A2.ins]
    def load_wfrags(self, regs, soff, tag):
        out = []
        for k, r in enumerate(regs):
            if k and k % 4 == 0: out.append(("s", f"s_add_u32 {s(soff)}, {s(soff)}, 4096"))
            out.append(("v", f"buffer_load_dwordx4 {R(r,4)}, v1, {WS}, {s(soff)} offen offset:{(k%4)*1024}", tag))
        return out
    def lin_dma(self, src_term, src_base, lds_base, n, sg, sl, tag):
        it = self.collect(lambda: (self.lin(sl, [(S_WAVE, n * 1024)], lds_base, layer=False, tmp=54),
                                   self.lin(sg, [src_term, (sl, 1)], src_base - lds_base + (1 << 32) if src_base < lds_base else src_base - lds_base, layer=False, tmp=54)))
        for k in range(n):
            if k and k % 4 == 0: it += [("s", f"s_add_u32 {s(sg)}, {s(sg)}, 4096"), ("s", f"s_add_u32 {s(sl)}, {s(sl)}, 4096")]
            it.append(("s", f"s_mov_b32 m0, {s(sl)}"))
            it.append(("v", f"buffer_load_dwordx4 v1, {WS}, {s(sg)} offen offset:{(k%4)*1024} lds", tag))
        return it
    def resid_setup(self, xbuf, statbuf, flagbuf):
        self.lin(38, [(S_G, L.GS), (S_I, 4 * L.XTS, 0, 3), (S_WAVE, L.XTS), (S_J, 5120, 1, None)], xbuf, layer=False)
        self.lin(39, [(S_J, 3072, 0, 1), (38, 1)], 0, layer=False)
        self.I(f"s_and_b32 s36, {s(S_J)}, 1\ns_lshl_b32 s36, s36, 3\ns_add_u32 s38, s38, s36")
        self.lin(41, [(S_G, L.GS), (S_I, 4 * 4096, 0, 3), (S_WAVE, 4096), (S_J, 2048, 0, 1), (S_J, 256, 1, None)], statbuf, layer=False)
        self.flag_x_off(flagbuf, 40)
        self.I("s_mov_b32 s66, 0x00003f80\ns_mov_b32 s67, 0x3f800000\ns_mov_b32 s68, 0x3f803f80")
        self.I("v_lshrrev_b32 v18, 1, v4\nv_lshlrev_b32 v18, 10, v18\nv_lshl_add_u32 v18, v3, 4, v18\nv_and_b32 v5, 1, v4\nv_lshl_add_u32 v18, v5, 3, v18")
    def resid_epilogue(self, acc, store=True, statreg=20):
        for i in range(10):
            self.I(f"v_dot2c_f32_bf16 {v(acc+2*i)}, s66, {v(XRES+i)}\nv_dot2c_f32_bf16 {v(acc+2*i+1)}, s67, {v(XRES+i)}")
        if store: self.I(f"v_mov_b32 {v(statreg)}, 0\nv_mov_b32 {v(statreg+1)}, 0")
        for i in range(10):
            self.I(f"v_cvt_pk_bf16_f32 {v(XRES+i)}, {v(acc+2*i)}, {v(acc+2*i+1)}")
            if store and i == 3: self.vm.issue(f"buffer_store_dwordx4 {v(XRES,4)}, v1, {WS}, s39 offen", "st")
            if store and i == 7: self.vm.issue(f"buffer_store_dwordx4 {v(XRES+4,4)}, v1, {WS}, s39 offen offset:1024", "st")
        if not store: return
        self.vm.issue(f"buffer_store_dwordx2 {v(XRES+8,2)}, v1, {WS}, s38 offen offset:2048", "st")
        for i in range(10):
            self.I(f"v_dot2c_f32_bf16 {v(statreg)}, s68, {v(XRES+i)}\nv_dot2c_f32_bf16 {v(statreg+1)}, {v(XRES+i)}, {v(XRES+i)}")
        self.vm.issue(f"buffer_store_dwordx2 {v(statreg,2)}, v18, {WS}, s41 offen", "st")
    def stat_loads(self, soff, voff, dst, tag):
        for n in range(4):
            self.vm.issue(f"buffer_load_dwordx4 {v(dst+4*n,4)}, v1, {WS}, {s(soff)} offen offset:{n*1024} sc1", tag)
    def stat_finish(self, src, dst, presummed=False, packed=True):
        if not packed:
            for n in range(8): self.I(f"v_add_f32 {v(src+n)}, {v(src+n)}, {v(src+8+n)}")
            for n in range(4): self.I(f"v_add_f32 {v(src+n)}, {v(src+n)}, {v(src+4+n)}")
            for n in range(2): self.I(f"v_add_f32 {v(src+n)}, {v(src+n)}, {v(src+2+n)}")
        elif not presummed:
            for n in range(4): self.I(f"v_pk_add_f32 {v(src+2*n,2)}, {v(src+2*n,2)}, {v(src+8+2*n,2)}")
            for n in range(2): self.I(f"v_pk_add_f32 {v(src+2*n,2)}, {v(src+2*n,2)}, {v(src+4+2*n,2)}")
            self.I(f"v_pk_add_f32 {v(src,2)}, {v(src,2)}, {v(src+2,2)}")
        emit_xg_reduce(self.A, [src, src + 1], src + 2)
        self.I(f"""v_mul_f32 {v(dst)}, {hexf(-1.0/640)}, {v(src)}
        v_mul_f32 {v(src+2)}, {v(dst)}, {v(dst)}
        v_mov_b32 {v(src+3)}, {hexf(1.0/640)}
        v_fma_f32 {v(src+1)}, {v(src+1)}, {v(src+3)}, -{v(src+2)}
        v_max_f32 {v(src+1)}, 0, {v(src+1)}
        v_add_f32 {v(src+1)}, {hexf(1e-5)}, {v(src+1)}
        v_rsq_f32 {v(dst+1)}, {v(src+1)}""")

    def csum_loads(self, reg, term, base, row, mask, tag):
        self.lin(36, [term, (S_WAVE, 5 * row)], base, layer=False, tmp=37)
        self.I(f"s_mov_b64 exec, {mask:#x}")
        for k in range(5): self.vm.issue(f"buffer_load_dwordx4 {v(reg+4*k,4)}, v1, {WS}, s36 offen offset:{k*row} sc1", tag)
        self.I("s_mov_b64 exec, -1")
    def csum_part(self, reg, slots, row, mask):
        for a_, b_ in ((0, 1), (2, 3), (0, 2), (0, 4)):
            for i in range(4): self.I(f"v_add_f32 {v(reg+4*a_+i)}, {v(reg+4*a_+i)}, {v(reg+4*b_+i)}")
        self.lin(36, [(S_WAVE, row)], slots, layer=False)
        self.I(f"v_add_u32 v7, s36, v1\ns_mov_b64 exec, {mask:#x}\nds_write_b128 v7, {v(reg,4)}\ns_mov_b64 exec, -1\ns_waitcnt lgkmcnt(0)")
    def csum_final(self, reg, slots, row, dst, mask):
        self.I(f"v_add_u32 v7, {slots}, v1\ns_mov_b64 exec, {mask:#x}")
        for w in range(4): self.I(f"ds_read_b128 {v(reg+4*w,4)}, v7 offset:{w*row}")
        self.I("s_waitcnt lgkmcnt(0)")
        for a_, b_ in ((0, 1), (2, 3), (0, 2)):
            for i in range(4): self.I(f"v_add_f32 {v(reg+4*a_+i)}, {v(reg+4*a_+i)}, {v(reg+4*b_+i)}")
        self.I(f"v_add_u32 v7, {dst}, v1\nds_write_b128 v7, {v(reg,4)}\ns_mov_b64 exec, -1\ns_waitcnt lgkmcnt(0)")
    def qkv_setup(self, l0):
        self.lin(43, [(S_I, 2 * L.KVT), (S_WAVE, L.KVT, 1, None)], L.KVB)
        self.lin(40, [(S_I, 32), (S_J, 4)], L.FL_KV)
        self.I(f"v_add_u32 v240, {WQ_LDS}, v1\nv_add_u32 v241, {WQ_LDS + 61440}, v1")
        if not l0:
            self.lin(30, [(S_G, L.GS), (S_I, 4 * L.XTS, 0, 3), (S_WAVE, L.XTS)], L.XIN, layer=False)
            self.lin(42, [(S_G, L.GS), (S_I, 4 * 4096, 0, 3), (S_WAVE, 4096)], L.STATIN, layer=False)
    def wq_round(self, n):
        it = self.collect(lambda: (self.lin(53, [(S_WAVE, 6144)], WQ_LDS + n * 24576, layer=False),
                                   self.lin(52, [(S_J, 120 * 1024), (53, 1)], L.WQF - WQ_LDS, layer=False)))
        for k in range(5):
            if k == 4: it += S_("s_add_u32 s52, s52, 4096\ns_add_u32 s53, s53, 4096")
            if k % 4 == 0: it.append(("s", "s_mov_b32 m0, s53"))
            it.append(("v", f"buffer_load_dwordx4 v1, {WS}, s52 offen offset:{(k%4)*1024} sc1 lds", ("r", n)))
        return it
    def wkv_frags(self):
        it = self.collect(lambda: (self.lin(53, [(S_WAVE, 5 * 6144)], WQ_LDS + 5120, layer=False),
                                   self.lin(52, [(S_J, 120 * 1024), (53, 1)], L.WQF - WQ_LDS, layer=False)))
        for k in range(5):
            if k: it += S_("s_add_u32 s52, s52, 6144\ns_add_u32 s53, s53, 6144")
            it += [("s", "s_mov_b32 m0, s53"), ("v", f"buffer_load_dwordx4 v1, {WS}, s52 offen sc1 lds", "kvw")]
        return it
    QX, QWB, QACC, QSL, QSTAT, QCS = 20, 100, 148, 196, 212, 216
    def qkv_sweep(self, tiles, ks, xwait=None, filler=None, first_reads=True):
        X, WB, ACC = self.QX, self.QWB, self.QACC
        n = len(tiles)
        seq = [(k, ft) for k in ks for ft in tiles]
        D = 8 if n > 1 else 6
        NB = 12
        def rd(i):
            k, ft = seq[i]
            self.I(f"ds_read_b128 {v(WB+4*(i%NB),4)}, v{240 + k//10} offset:{((k%10)*6+ft)*1024}")
        for i in range(min(D, len(seq))): rd(i)
        for i, (k, ft) in enumerate(seq):
            if xwait and ft == tiles[0]: xwait(k)
            self.I(f"s_waitcnt lgkmcnt({min(D - 1, len(seq) - 1 - i)})")
            d = ACC + 4 * ft
            self.I(f"v_mfma_f32_16x16x32_bf16 {v(d,4)}, {v(WB+4*(i%NB),4)}, {v(X+4*k,4)}, {'0' if k == 0 else v(d,4)}")
            if i + D < len(seq): rd(i + D)
            if filler: filler(i, k, ft)
    def cs_reads(self, tiles):
        self.I(f"v_lshlrev_b32 v6, 4, v4\nv_add_u32 v6, {M_CSQ}, v6")
        for ft in tiles: self.I(f"ds_read_b128 {v(self.QCS+4*ft,4)}, v6 offset:{ft*64}")
    def phase_qkv(self, l0):
        A, vm = self.A, self.vm
        X, WB, ACC, SL, ST, CS = self.QX, self.QWB, self.QACC, self.QSL, self.QSTAT, self.QCS
        if l0:
            self.I(f"""v_lshrrev_b32 v5, 2, v0
            v_mul_u32_u24 v5, 40, v5
            v_and_b32 v6, 3, v0
            v_lshl_add_u32 v5, v6, 3, v5
            s_and_b32 s36, {s(S_J)}, 1
            s_lshl_b32 s36, s36, 5
            s_add_u32 s36, s36, {KV0_LDS}
            v_add_u32 v242, s36, v5""")
            self.lin(37, [(S_J, 128)], L.FL_WQ, layer=False)
            self.I("v_min_u32 v6, 19, v0\nv_lshlrev_b32 v6, 2, v6")
            def rd(k):
                for u in range(2): self.I(f"ds_read_b64_tr_b16 {v(WB+4*(k%6)+2*u,2)}, v242 offset:{L.xk(k//5, k%5, u)*40}")
            for k in range(4): rd(k)
            self.poll(6, 37, dev=True)
            self.stamp("p0.wq")
            self.csum_loads(216, (S_J, 20 * 384), L.CSQP, 384, 0xfffff, "cs")
            dm = self.wq_round(0) + self.wq_round(1) + self.wq_round(2)
            for k in range(20):
                c = lambda r_: '0' if k == 0 else v(r_, 4)
                self.I(f"v_mfma_f32_16x16x32_bf16 {v(SL,4)}, v[192:195], {v(X+4*k,4)}, {c(SL)}")
                if k % 4 != 3: self.emit_list(self.take(dm, 1))
                self.I(f"v_mfma_f32_16x16x32_bf16 {v(SL+4,4)}, {v(X+4*k,4)}, {v(X+4*k,4)}, {c(SL+4)}")
                self.I(f"s_waitcnt lgkmcnt({min(6, 2*(19-k))})")
                self.I(f"v_mfma_f32_16x16x32_bf16 {v(ACC+20,4)}, {v(WB+4*(k%6),4)}, {v(X+4*k,4)}, {c(ACC+20)}")
                self.I(f"v_mfma_f32_16x16x32_bf16 {v(CS+20,4)}, {v(WB+4*(k%6),4)}, v[192:195], {c(CS+20)}")
                if k + 4 < 20: rd(k + 4)
            assert not dm
            self.I(f"""v_and_b32 v5, 3, v3
            v_lshrrev_b32 v6, 2, v3
            v_cmp_eq_u32 vcc, 1, v5
            v_cmp_eq_u32 s[62:63], 2, v5
            v_cndmask_b32 {v(SL+4)}, {v(SL+4)}, {v(SL+5)}, vcc
            v_cmp_eq_u32 vcc, 3, v5
            v_cndmask_b32 {v(SL+4)}, {v(SL+4)}, {v(SL+6)}, s[62:63]
            v_cmp_eq_u32 s[62:63], v6, v4
            v_cndmask_b32 {v(SL+4)}, {v(SL+4)}, {v(SL+7)}, vcc
            v_mul_f32 {v(SL)}, 0.25, {v(SL)}
            v_cndmask_b32 {v(SL+1)}, 0, {v(SL+4)}, s[62:63]""")
            self.stat_finish(SL, ST, presummed=True)
            self.I(f"""v_lshlrev_b32 v6, 4, v4
            v_add_u32 v6, {M_CSQ + 320}, v6
            s_mov_b32 exec_lo, 0x00010001
            s_mov_b32 exec_hi, 0x00010001
            ds_write_b128 v6, {v(CS+20,4)}
            s_mov_b64 exec, -1""")
        else:
            nl = [0]
            def load():
                k = nl[0]; nl[0] += 1
                if k and k % 4 == 0: self.I("s_add_u32 s30, s30, 4096")
                vm.issue(f"buffer_load_dwordx4 {v(X+4*k,4)}, v1, {WS}, s30 offen offset:{(k%4)*1024} sc1", ("x", k))
            while nl[0] < 7: load()
            self.cs_reads(range(6))
            self.I("s_waitcnt lgkmcnt(0)\ns_barrier")
            sh = self.collect(lambda: self.stat_finish(SL, ST, packed=False))
            def fil(i, k, ft):
                if nl[0] < 20 and i % 3 == 1: load()
                if i == 8: self.stat_loads(42, 18, SL, "stat")
                if i == 44: vm.wait("stat")
                if i >= 44: self.emit_list(sh[:2]); del sh[:2]
            self.qkv_sweep([5, 0, 1, 2], range(20), xwait=lambda k: vm.wait(("x", k)), filler=fil)
            assert not sh
        self.stamp("qkv.kv")
        self.I(f"v_mov_b32 {v(ST+2)}, {v(ST+1)}")
        KA = ACC + 20; KP = 172
        done = A.newlabel("kvdone"); vt = A.newlabel("kvv"); k1 = A.newlabel("kvk1"); jn = A.newlabel("kvj")
        self.I(f"s_lshr_b32 s36, {s(S_J)}, 2\ns_xor_b32 s48, s36, {s(S_WAVE)}\ns_and_b32 s48, s48, 1\ns_cbranch_scc1 {done}")
        for i in (0, 2): self.I(f"v_pk_fma_f32 {v(KA+i,2)}, {v(ST,2)}, {v(CS+20+i,2)}, {v(KA+i,2)} op_sel_hi:[0,1,1]")
        for i in (0, 2): self.I(f"v_pk_mul_f32 {v(KA+i,2)}, {v(ST+2,2)}, {v(KA+i,2)} op_sel_hi:[0,1]")
        self.I(f"v_cvt_pk_bf16_f32 {v(KP)}, {v(KA)}, {v(KA+1)}\nv_cvt_pk_bf16_f32 {v(KP+1)}, {v(KA+2)}, {v(KA+3)}")
        self.I(f"s_and_b32 s37, {s(S_WAVE)}, 1\ns_bitcmp1_b32 {s(S_J)}, 1\ns_cbranch_scc1 {vt}")
        self.I(f"s_lshl_b32 s37, s37, 4\nv_add_u32 v6, s37, v3\ns_bitcmp1_b32 {s(S_J)}, 0\ns_cbranch_scc1 {k1}")
        self.I(f"""v_lshrrev_b32 v7, 1, v4
        v_lshlrev_b32 v7, 9, v7
        v_lshl_add_u32 v7, v6, 4, v7
        v_and_b32 v6, 1, v4
        v_lshl_add_u32 v7, v6, 3, v7
        buffer_store_dwordx2 {v(KP,2)}, v7, {WS}, s43 offen sc1
        s_branch {jn}""")
        A.L(k1)
        self.I(f"""v_lshlrev_b32 v6, 3, v6
        s_mov_b64 exec, 0xffff
        buffer_store_dwordx2 {v(KP,2)}, v6, {WS}, s43 offen offset:1024 sc1
        s_mov_b64 exec, -1
        s_branch {jn}""")
        A.L(vt)
        self.I(f"""s_lshr_b32 s36, {s(S_WAVE)}, 1
        s_lshl_b32 s36, s36, 9
        s_add_u32 s36, s36, {M_VT}
        v_lshlrev_b32 v6, 7, v4
        v_lshl_add_u32 v6, v3, 1, v6
        v_add_u32 v6, s36, v6
        ds_write_b16 v6, {v(KP)}
        ds_write_b16_d16_hi v6, {v(KP)} offset:32
        ds_write_b16 v6, {v(KP+1)} offset:64
        ds_write_b16_d16_hi v6, {v(KP+1)} offset:96
        v_lshlrev_b32 v6, 5, v3
        v_lshl_add_u32 v6, v4, 3, v6
        v_add_u32 v6, s36, v6
        ds_read_b64 {v(KP+2,2)}, v6
        s_mul_i32 s37, s37, 768
        s_add_u32 s37, s43, s37
        s_and_b32 s36, {s(S_J)}, 1
        s_lshl_b32 s36, s36, 8
        s_add_u32 s37, s37, s36
        v_and_b32 v6, 1, v4
        v_mul_u32_u24 v6, 384, v6
        v_lshl_add_u32 v6, v3, 4, v6
        v_lshrrev_b32 v7, 1, v4
        v_lshl_add_u32 v6, v7, 3, v6
        s_cmp_lg_u32 s36, 0
        s_cselect_b32 s36, 4, 99
        s_cselect_b32 exec_lo, 0x00ff00ff, -1
        v_cmp_eq_u32 vcc, s36, v3
        v_mov_b32 v7, 0x3f803f80
        s_mov_b32 exec_hi, exec_lo
        s_waitcnt lgkmcnt(0)
        v_cndmask_b32 {v(KP+2)}, {v(KP+2)}, v7, vcc
        v_cndmask_b32 {v(KP+3)}, {v(KP+3)}, v7, vcc
        buffer_store_dwordx2 {v(KP+2,2)}, v6, {WS}, s37 offen offset:1280 sc1
        s_mov_b64 exec, -1""")
        self.I(f"s_branch {jn}")
        A.L(done)
        self.I(f"v_mov_b32 v6, {BIG}\nbuffer_store_dwordx2 {v(KP,2)}, v6, {WS}, 0 offen")
        A.L(jn)
        vm.q.append("kvst")
        self.stamp("qkv.kvst")
        if l0:
            later = {0: self.wq_round(3), 1: self.wq_round(4), self.cfg.pdma: self.prep_dma_items()}
            for n in range(5):
                vm.wait(("r", n))
                if n == 0: self.csum_part(216, M_CSQP, 384, 0xfffff)
                if n == self.cfg.kvf: vm.wait("kvst")
                self.I("s_barrier")
                if n == self.cfg.kvf:
                    sk = A.newlabel("kvsig")
                    self.I(f"s_cmp_lg_u32 {s(S_WAVE)}, 0\ns_cbranch_scc1 {sk}")
                    self.signal(40, dev=True, val=S_TAG); vm.q.pop()
                    A.L(sk)
                if n == 3: self.csum_final(216, M_CSQP, 384, M_CSQ, 0xfffff)
                it = later.get(n, [])
                self.qkv_sweep([0, 1, 2, 3, 4], range(4 * n, 4 * n + 4), filler=lambda i, k, ft: self.emit_list(self.take(it, 1)) if i % 2 == 1 else None)
                assert not it
            self.cs_reads(range(5))
            self.emit_list(later.get(5, []))
            self.I("s_waitcnt lgkmcnt(0)")
        else:
            self.qkv_sweep([3, 4], range(20))
            self.I("s_waitcnt vmcnt(0)\ns_barrier"); vm.q = []
            sk = A.newlabel("kvsig")
            self.I(f"s_cmp_lg_u32 {s(S_WAVE)}, 0\ns_cbranch_scc1 {sk}")
            self.signal(40, dev=True, val=S_TAG)
            A.L(sk)
        self.stamp("qkv.mm")
        c = math.log2(math.e) / math.sqrt(20.0)
        self.I(f"v_mul_f32 {v(ST+2)}, {hexf(c)}, {v(ST+1)}")
        for i in range(0, 20, 2): self.I(f"v_pk_fma_f32 {v(ACC+i,2)}, {v(ST,2)}, {v(CS+i,2)}, {v(ACC+i,2)} op_sel_hi:[0,1,1]")
        for i in range(0, 20, 2): self.I(f"v_pk_mul_f32 {v(ACC+i,2)}, {v(ST+2,2)}, {v(ACC+i,2)} op_sel_hi:[0,1]")
        P = 176
        for i in range(8): self.I(f"v_cvt_pk_bf16_f32 {v(P+i)}, {v(ACC+2*i)}, {v(ACC+2*i+1)}")
        self.I(f"v_cvt_pk_bf16_f32 {v(P+8)}, {v(ACC+16)}, {v(ACC+17)}\nv_mov_b32 {v(P+9)}, 0")
        self.I(f"v_cvt_pk_bf16_f32 {v(P+10)}, {v(ACC+18)}, {v(ACC+19)}\nv_mov_b32 {v(P+11)}, 0")
        self.lin(36, [(S_WAVE, AT.QST_Q, 1, None)], QST, layer=False, tmp=37)
        self.I(f"""s_and_b32 s37, {s(S_WAVE)}, 1
        s_lshl_b32 s37, s37, 4
        v_add_u32 v6, s37, v3
        v_mul_u32_u24 v7, {2*AT.QST_Q}, v4
        v_add_u32 v7, s36, v7
        v_lshl_add_u32 v5, v6, 4, v7
        v_lshl_add_u32 v6, v6, 3, v7""")
        self.I(f"""ds_write_b128 v5, {v(P,4)}
        ds_write_b128 v5, {v(P+4,4)} offset:512
        ds_write_b64 v6, {v(P+8,2)} offset:1024
        ds_write_b64 v6, {v(P+10,2)} offset:{1024+256}""")
        self.I("s_waitcnt lgkmcnt(0)\ns_barrier")
        self.stamp("qkv.epi")

    def pieces(self, n16, magic, pitch, dst, cmax=None):
        self.I(f"s_movk_i32 s52, {magic}\ns_movk_i32 s53, {pitch}\ns_add_u32 s46, s46, s44")
        for q in range(n16 // 2):
            self.I(f"""v_add_u32 v5, {64*q}, v0
            v_mul_u32_u24 v6, s52, v5
            v_lshrrev_b32 v6, 16, v6
            v_mul_u32_u24 v7, {n16}, v6
            v_sub_u32 v5, v5, v7
            v_lshrrev_b32 v7, 4, v6
            v_mul_u32_u24 v18, s32, v7
            v_bfe_u32 v7, v6, 3, 1
            v_mad_u32_u24 v18, v7, s33, v18
            v_bfe_u32 v7, v6, 2, 1
            v_mad_u32_u24 v18, v7, s34, v18
            v_and_b32 v6, 3, v6
            v_add3_u32 v18, v18, v6, s31
            v_mul_u32_u24 v18, s53, v18
            v_lshl_add_u32 v18, v5, 4, v18""")
            if cmax is not None:
                self.I(f"v_cmp_le_u32 vcc, {s(cmax)}, v5\nv_mov_b32 v7, {BIG}\nv_cndmask_b32 v7, 0, v7, vcc\nv_add_u32 v18, v18, v7")
            self.I(f"v_add_u32 {v(dst+q)}, s46, v18")
    PA = 244
    def prep_dma_items(self):
        it = []
        for q in range(7):
            it += [("s", f"s_add_u32 m0, s{72 if q < 5 else 65}, {q*1024}"), ("v", f"buffer_load_dwordx4 {v(self.PA+q)}, {s(SRD_SRC,4)}, 0 offen lds", "prep")]
        if self.cfg.ptouch:
            it += [("s", "v_lshlrev_b32 v253, 7, v0"), ("v", f"buffer_load_dword v254, v253, {WS}, s70 offen", "prep")]
        return it
    def prep_issue(self):
        A = self.A
        lab = {k: A.newlabel("pp" + k) for k in ("w2", "w1", "none", "n10", "end", "pad")}
        self.I(f"""s_lshl_b32 s30, s2, 1
        s_and_b32 s31, {s(S_WAVE)}, 1
        s_add_u32 s30, s30, s31
        s_movk_i32 s31, 192
        s_cmp_lt_u32 s2, 160
        s_cselect_b32 s31, 608, s31
        s_cmp_lt_u32 {s(S_WAVE)}, 2
        s_cselect_b32 s31, s31, 0
        s_add_u32 s30, s30, s31
        s_cmp_ge_u32 s2, 208
        s_cselect_b32 s31, 1024, 0
        s_cmp_lt_u32 {s(S_WAVE)}, 2
        s_cselect_b32 s31, s31, 0
        s_add_u32 s30, s30, s31
        s_min_u32 s31, {s(S_WAVE)}, 2
        s_mul_i32 s72, s31, 7168
        s_cmp_eq_u32 {s(S_WAVE)}, 3
        s_cselect_b32 s31, 5120, 0
        s_add_u32 s72, s72, s31
        s_add_u32 s72, s72, {PREP_LDS}
        s_cmp_lt_u32 {s(S_WAVE)}, 2
        s_cselect_b32 s65, s72, {0xffffec00 if self.cfg.pdma != 9 else 83968 - 5120}""")
        for q in range(7): self.I(f"v_mov_b32 {v(self.PA+q)}, {BIG}")
        self.I(f"s_cmp_ge_u32 s30, 928\ns_cbranch_scc1 {lab['none']}\ns_cmp_ge_u32 s30, 608\ns_cbranch_scc1 {lab['w1']}\ns_cmp_ge_u32 s30, 160\ns_cbranch_scc1 {lab['w2']}")
        self.I(f"""s_lshr_b32 s47, s30, 3          ; ks
        s_and_b32 s48, s30, 7           ; j
        s_mul_i32 s49, s47, 52
        s_lshr_b32 s49, s49, 8          ; w = ks/5
        s_mul_i32 s50, s49, 5
        s_sub_u32 s50, s47, s50         ; s
        s_mul_i32 s31, s49, 160
        s_mul_i32 s32, s50, 40
        s_cmp_gt_u32 s50, 2
        s_cselect_b32 s33, 40, 0
        s_sub_u32 s32, s32, s33
        s_cmp_eq_u32 s50, 2
        s_cselect_b32 s32, 16, s32
        s_add_u32 s31, s31, s32
        s_cmp_eq_u32 s50, 2
        s_cselect_b32 s32, 80, 8
        s_cselect_b32 s33, 40, 20
        s_cselect_b32 s34, 20, 4
        s_mov_b32 s44, 0
        s_mov_b32 s45, 0
        s_mul_i32 s46, s48, 160
        s_mul_i32 s70, s48, 20
        s_add_u32 s70, s70, s47
        s_mul_i32 s70, s70, 5120
        s_add_u32 s70, s70, {L.WOF}
        s_mov_b32 {s(SRD_SRC)}, s96
        s_mov_b32 {s(SRD_SRC+1)}, s97
        s_mov_b32 {s(SRD_SRC+2)}, {640*640*2}
        s_branch {lab['n10']}""")
        A.L(lab['w2'])
        self.I(f"""s_sub_u32 s30, s30, 160
        s_lshr_b32 s47, s30, 3          ; r = w*14+s
        s_and_b32 s48, s30, 7           ; j
        s_mul_i32 s49, s47, 37
        s_lshr_b32 s49, s49, 8
        s_mul_i32 s50, s49, 7
        s_sub_u32 s50, s47, s50         ; sp
        s_lshl_b32 s49, s49, 1          ; 2q""")
        for u in range(2):
            self.I(f"""s_cmp_gt_u32 s50, 3
            s_cselect_b32 s52, 1, 0
            s_cselect_b32 s53, 4, 0
            s_sub_u32 s53, s50, s53
            s_lshl_b32 s53, s53, 1
            s_add_u32 s53, s53, {u}
            s_cmp_eq_u32 s50, 3
            s_cselect_b32 s52, {u}, s52
            s_cselect_b32 s53, 6, s53
            s_add_u32 s52, s52, s49""")
            emit_realtile(A, 52, 53, 31 + u, 44 + u, 54)
        self.I(f"""s_lshl_b32 s31, s31, 4
        s_lshl_b32 s32, s32, 4
        s_sub_u32 s32, s32, s31
        s_mov_b32 s33, 8
        s_mov_b32 s34, 4
        s_mul_i32 s46, s48, 160
        s_mul_i32 s70, s48, 56
        s_add_u32 s70, s70, s47
        s_mul_i32 s70, s70, 5120
        s_add_u32 s70, s70, {L.W2F}
        s_mov_b32 {s(SRD_SRC)}, s100
        s_mov_b32 {s(SRD_SRC+1)}, s101
        s_mov_b32 {s(SRD_SRC+2)}, {1728*640*2}""")
        A.L(lab['n10'])
        self.pieces(10, 6554, 1280, self.PA)
        self.I(f"s_mov_b32 s69, 5\ns_branch {lab['end']}")
        A.L(lab['w1'])
        self.I(f"""s_sub_u32 s30, s30, 608
        s_lshr_b32 s47, s30, 4          ; ks
        s_and_b32 s48, s30, 15          ; j'
        s_mul_i32 s49, s47, 52
        s_lshr_b32 s49, s49, 8
        s_mul_i32 s50, s49, 5
        s_sub_u32 s50, s47, s50""")
        emit_xk(A, 49, 50, 31, 32)
        self.I("s_mov_b32 s53, 0"); emit_realtile(A, 48, 53, 46, 44, 54)
        self.I(f"""s_lshl_b32 s46, s46, 5
        s_mov_b32 s33, 8
        s_mov_b32 s34, 4
        s_mov_b32 s44, 0
        s_mov_b32 s45, 0
        s_cmp_lt_u32 s48, 12
        s_cselect_b32 s54, 14, 12
        s_mul_i32 s70, s48, 20
        s_add_u32 s70, s70, s47
        s_mul_i32 s71, s70, 448
        s_add_u32 s71, s71, {L.CS1P}
        s_mul_i32 s70, s70, 7168
        s_add_u32 s70, s70, {L.W1F}
        s_mov_b32 {s(SRD_SRC)}, s98
        s_mov_b32 {s(SRD_SRC+1)}, s99
        s_mov_b32 {s(SRD_SRC+2)}, {640*1728*2}""")
        self.pieces(14, 4682, 3456, self.PA, cmax=54)
        self.I(f"s_mov_b32 s69, 7\ns_branch {lab['end']}")
        A.L(lab['none'])
        self.I(f"s_mov_b32 s69, 0\ns_mov_b32 s70, {BIG}")
        A.L(lab['end'])
    PF = 160
    def prep_read(self):
        A = self.A; F = self.PF
        l7 = A.newlabel("pf7"); end = A.newlabel("pfe"); l0_ = A.newlabel("pf0")
        self.I(f"s_waitcnt vmcnt(0)\ns_cmp_eq_u32 s69, 0\ns_cbranch_scc1 {l0_}\ns_cmp_eq_u32 s69, 7\ns_cbranch_scc1 {l7}")
        def body(n, P):
            self.I(f"v_lshrrev_b32 v5, 2, v0\nv_and_b32 v6, 3, v0\nv_mul_u32_u24 v5, {P}, v5\nv_lshl_add_u32 v5, v6, 3, v5\nv_add_u32 v5, s72, v5")
            for ft in range(n):
                for u in range(2): self.I(f"ds_read_b64_tr_b16 {v(F+4*ft+2*u,2)}, v5 offset:{u*16*P + ft*32}")
        body(5, 160)
        self.I(f"s_add_u32 s72, s70, 4096\ns_mov_b32 s69, {BIG}\ns_mov_b32 s71, {BIG}\ns_branch {end}")
        A.L(l0_)
        self.I(f"s_mov_b32 s70, {BIG}\ns_mov_b32 s72, {BIG}\ns_mov_b32 s69, {BIG}\ns_mov_b32 s71, {BIG}\ns_branch {end}")
        A.L(l7)
        body(7, 224)
        self.I("s_add_u32 s72, s70, 4096\ns_mov_b32 s69, s72\ns_waitcnt lgkmcnt(0)")
        for i in range(4): self.I(f"v_mov_b32 v{216+i}, 0x3f803f80")
        for ft in range(7): self.I(f"v_mfma_f32_16x16x32_bf16 {v(F+28+4*ft,4)}, {v(F+4*ft,4)}, v[216:219], 0")
        for ft in range(1, 7):
            self.I(f"s_mov_b32 exec_lo, {0x00010001 << ft:#x}\ns_mov_b32 exec_hi, {0x00010001 << ft:#x}")
            for i in range(4): self.I(f"v_mov_b32 {v(F+28+i)}, {v(F+28+4*ft+i)}")
        self.I("s_mov_b64 exec, -1")
        A.L(end)
        self.I(f"v_lshlrev_b32 v220, 6, v3\nv_lshl_add_u32 v220, v4, 4, v220\nv_mov_b32 v5, {BIG}\nv_cmp_lt_u32 vcc, 6, v3\nv_cndmask_b32 v220, v220, v5, vcc\ns_waitcnt lgkmcnt(0)")
    def prep_store_items(self):
        F = self.PF
        it = [("v", f"buffer_store_dwordx4 {v(F+4*ft,4)}, v1, {WS}, s{70 if ft < 4 else 72 if ft == 4 else 69} offen offset:{(ft%4)*1024} sc1", "pst") for ft in range(7)]
        return it + [("v", f"buffer_store_dwordx4 {v(F+28,4)}, v220, {WS}, s71 offen sc1", "pst")]
    def wq_unit_addr(self):
        self.I(f"""s_lshr_b32 s47, s2, 3
        s_and_b32 s48, s2, 7
        s_mul_i32 s49, s47, 52
        s_lshr_b32 s49, s49, 8
        s_mul_i32 s50, s49, 5
        s_sub_u32 s50, s47, s50""")
        emit_xk(self.A, 49, 50, 31, 32)
        self.I(f"""s_mov_b32 s33, 8
        s_mov_b32 s34, 4
        s_mov_b32 s44, 0
        s_mov_b32 s45, 0
        s_mul_i32 s46, s48, 160
        s_mul_i32 s67, s48, 20
        s_add_u32 s67, s67, s47
        s_mul_i32 s68, s67, 384
        s_add_u32 s68, s68, {L.CSQP}
        s_mul_i32 s67, s67, 6144
        s_add_u32 s67, s67, {L.WQF}
        s_lshl_b32 s66, s48, 5
        s_add_u32 s66, s66, s47
        s_lshl_b32 s66, s66, 2
        s_add_u32 s66, s66, {L.FL_WQ}""")
        self.pieces(10, 6554, 1280, 100)
    def wq_unit_issue(self):
        for q in range(5): self.I(f"s_mov_b32 m0, {WQP_LDS + q*1024}\nbuffer_load_dwordx4 {v(100+q)}, {s(SRD_WQ,4)}, 0 offen lds")
        self.I(f"""s_mul_i32 s31, s31, 40
        s_mul_i32 s32, s32, 40
        s_add_u32 s32, s32, s31
        s_mov_b32 m0, {WQP_LDS + 5120}
        s_nop 0
        buffer_load_dwordx4 v1, {s(SRD_KV,4)}, s31 offen lds
        s_mov_b32 m0, {WQP_LDS + 6144}
        s_nop 0
        buffer_load_dwordx4 v1, {s(SRD_KV,4)}, s32 offen lds""")
    def wq_unit_finish(self):
        F = 132
        self.I(f"""v_lshrrev_b32 v5, 2, v0
        v_and_b32 v6, 3, v0
        v_mul_u32_u24 v7, 160, v5
        v_mad_u32_u24 v7, v6, 40, v7
        v_add_u32 v7, {WQP_LDS}, v7
        v_mul_u32_u24 v5, 40, v5
        v_lshl_add_u32 v5, v6, 3, v5
        s_and_b32 s36, s2, 1
        s_lshl_b32 s36, s36, 5
        s_add_u32 s36, s36, {WQP_LDS + 5120}
        v_add_u32 v5, s36, v5""")
        for ft in range(5):
            for u in range(2): self.I(f"ds_read_b64_tr_b16 {v(F+4*ft+2*u,2)}, v7 offset:{u*16*160 + ft*8}")
        for u in range(2): self.I(f"ds_read_b64_tr_b16 {v(F+20+2*u,2)}, v5 offset:{u*1024}")
        for ft in range(6):
            self.I(f"s_waitcnt lgkmcnt({2*(5-ft)})")
            if ft == 4: self.I("s_add_u32 s67, s67, 4096")
            self.I(f"buffer_store_dwordx4 {v(F+4*ft,4)}, v1, {WS}, s67 offen offset:{(ft%4)*1024} sc1")
        for ft in range(6): self.I(f"v_mfma_f32_16x16x32_bf16 {v(F+24+4*ft,4)}, {v(F+4*ft,4)}, v[192:195], 0")
        self.I("v_lshlrev_b32 v5, 4, v4\ns_mov_b32 exec_lo, 0x00010001\ns_mov_b32 exec_hi, 0x00010001")
        for ft in range(6): self.I(f"buffer_store_dwordx4 {v(F+24+4*ft,4)}, v5, {WS}, s68 offen offset:{ft*64} sc1")
        self.I("s_mov_b64 exec, -1")
    def x0_issue(self):
        self.lin(30, [(S_I, 64 * 1280), (S_WAVE, 16 * 1280)], 0, layer=False)
        self.lin(64, [(S_WAVE, 20480)], X0_LDS, layer=False)
        for a_ in range(4):
            self.I(f"v_add_u32 v5, {4*a_}, v4\nv_xor_b32 v5, v5, v3\nv_lshlrev_b32 v5, 4, v5\nv_mad_u32_u24 {v(100+a_)}, v4, s54, v5")
        self.I(f"s_lshl_b32 s36, {s(S_WAVE)}, 2\nv_add_u32 v5, s36, v4\nv_xor_b32 v5, v5, v3\nv_lshlrev_b32 v5, 4, v5\nv_mad_u32_u24 v105, v4, s54, v5")
        self.I(f"s_cmp_eq_u32 {s(S_WAVE)}, 0\ns_cbranch_scc1 L_x0done")
        if self.cfg.xtouch:
            self.lin(32, [(S_I, 64 * 1280), (S_J, 10240), (S_WAVE, 8192, 1, 1)], 0, layer=False)
            self.lin(33, [(S_C, 8192, 2, 3)], 0, layer=False)
            self.I(f"""v_lshlrev_b32 v5, 7, v0
            s_cmp_eq_u32 {s(S_WAVE)}, 3
            s_cbranch_scc1 L_xt3
            buffer_load_dword v254, v5, {s(SRD_X,4)}, s32 offen
            s_branch L_xt4""")
            self.A.L("L_xt3")
            self.I(f"buffer_load_dword v254, v5, {s(SRD_KV2,4)}, s33 offen")
            self.A.L("L_xt4")
        for a_ in range(4):
            for b_ in range(5):
                self.I(f"s_add_u32 m0, s64, {(a_*5+b_)*1024}\ns_add_u32 s32, s30, {a_*5120 + b_*256}")
                self.I(f"buffer_load_dwordx4 {v(100+a_)}, {s(SRD_X,4)}, s32 offen lds")
        self.lin(30, [(S_I, 64 * 1280)], 0, layer=False)
        self.lin(31, [(S_WAVE, 5120)], 0, layer=False)
        for b_ in range(5):
            self.I(f"s_add_u32 m0, s31, {X0_LDS + b_*1024}\ns_add_u32 s32, s30, s31\ns_add_u32 s32, s32, {b_*256}")
            self.I(f"buffer_load_dwordx4 v105, {s(SRD_X,4)}, s32 offen lds")
        for n in range(2):
            self.I(f"s_lshl_b32 s31, {s(S_WAVE)}, 1\ns_add_u32 s31, s31, {n}\ns_sub_u32 s31, s31, 2\ns_min_u32 s31, s31, 4")
            self.I(f"s_lshl_b32 s32, s31, 10\ns_add_u32 m0, s32, {X0_LDS}\ns_lshl_b32 s32, s31, 8\ns_add_u32 s32, s32, s30")
            self.I(f"buffer_load_dwordx4 v100, {s(SRD_X,4)}, s32 offen lds")
        self.I(f"s_sub_u32 s31, {s(S_WAVE)}, 1\ns_mul_i32 s52, s31, 9216\ns_add_u32 s53, s52, {KV0_LDS}")
        for k in range(9):
            if k and k % 4 == 0: self.I("s_add_u32 s52, s52, 4096\ns_add_u32 s53, s53, 4096")
            if k % 4 == 0: self.I("s_mov_b32 m0, s53")
            self.I(f"buffer_load_dwordx4 v1, {s(SRD_KV2,4)}, s52 offen offset:{(k%4)*1024} lds")
        self.A.L("L_x0done")
    def x0_read(self, X, SL):
        self.I(f"""v_lshrrev_b32 v5, 1, v4
        v_xor_b32 v5, v5, v3
        v_lshlrev_b32 v5, 4, v5
        v_and_b32 v6, 1, v4
        v_lshl_add_u32 v5, v6, 3, v5
        v_lshrrev_b32 v6, 2, v3
        v_mul_u32_u24 v6, 5120, v6
        v_and_b32 v7, 3, v3
        v_lshl_add_u32 v6, v7, 8, v6
        v_add3_u32 v104, v5, v6, s64""")
        for c in range(1, 8): self.I(f"v_xor_b32 {v(104+c)}, {c*32}, v104")
        for k in range(20):
            for u in range(2):
                x = 2 * L.xk(k // 5, k % 5, u)
                self.I(f"ds_read_b64 {v(X+4*k+2*u,2)}, {v(104 + ((x >> 5) & 7))} offset:{(x >> 8) * 1024}")
        for ft in range(5):
            self.I(f"""s_mul_i32 s36, {s(S_J)}, 160
            s_add_u32 s36, s36, {32*ft}
            s_and_b32 s37, s36, 0xe0
            s_lshr_b32 s36, s36, 8
            s_lshl_b32 s36, s36, 10
            v_xor_b32 v5, s37, v104
            v_add_u32 v5, s36, v5
            ds_read_b64 {v(XRES+2*ft,2)}, v5""")
        self.I("s_waitcnt lgkmcnt(0)")
    def x0_stats(self, X, SL):
        it = S_(f"v_mov_b32 {v(SL)}, 0\nv_mov_b32 {v(SL+1)}, 0\nv_mov_b32 {v(SL+2)}, 0\nv_mov_b32 {v(SL+3)}, 0")
        for i in range(0, 80, 2):
            it += S_(f"""v_dot2c_f32_bf16 {v(SL)}, v192, {v(X+i)}
            v_dot2c_f32_bf16 {v(SL+1)}, {v(X+i)}, {v(X+i)}
            v_dot2c_f32_bf16 {v(SL+2)}, v192, {v(X+i+1)}
            v_dot2c_f32_bf16 {v(SL+3)}, {v(X+i+1)}, {v(X+i+1)}""")
        return it + S_(f"v_pk_add_f32 {v(SL,2)}, {v(SL,2)}, {v(SL+2,2)}")

    def phase_att(self):
        A, vm = self.A, self.vm
        r = AT.AttRegs(20, 256)
        assert r.end <= 156
        A.L("L_att")
        self.I("s_mov_b32 s59, 384\ns_mov_b32 s58, 0x3f803f80")
        self.I(f"s_add_u32 s56, {s(S_L)}, {L.KVB}")
        w1w = self.cfg.w1warm * 128
        self.lin(51, [(S_JP, 140 * 1024), (S_C, 4 * w1w, 4, 1), (S_WAVE, w1w)], L.W1F + W1AA * 1024, layer=False, tmp=54)
        self.lin(55, [(S_J, 280 * 1024), (S_WAVE, 70 * 1024), (S_C, 9472, 3, 3)], L.W2F + W2A * 1024, layer=False, tmp=54)
        self.lin(50, [(S_J, 280 * 1024), (S_WAVE, 70 * 1024)], L.W2F, layer=False, tmp=54)
        assert L.GS <= 128 * 7 * 2048 and L.GS % (128 * 128) == 0
        self.lin(47, [(S_G, L.GS), (S_C, 4 * (L.GS // 128)), (S_WAVE, L.GS // 128)], L.GBASE, layer=False)
        if self.cfg.t0: self.I(f"s_cmp_eq_u32 {s(S_L)}, 0\ns_cselect_b32 s47, s47, {BIG}")
        if self.cfg.sect:
            self.I(f"v_lshrrev_b32 v5, 1, v0\nv_lshlrev_b32 v5, 6, v5\nv_and_b32 v6, 1, v0\nv_lshl_add_u32 {v(r.t+5)}, v6, 2, v5")
        else:
            self.I(f"v_lshrrev_b32 v5, 2, v0\nv_lshlrev_b32 v5, 7, v5\nv_and_b32 v6, 3, v0\nv_lshl_add_u32 {v(r.t+5)}, v6, 2, v5")
        self.I(f"v_lshlrev_b32 {v(r.pf)}, 7, v0")
        pf = lambda sg: ("v", f"buffer_load_dword v18, {v(r.pf)}, {WS}, s{sg} offen", "pf")
        self.w2_items = self.load_wfrags([w2_reg(k) for k in range(70)], 50, "w2")
        w2a = self.take(self.w2_items, W2A)
        wo1 = self.lin_dma((S_J, 100 * 1024), L.WOF, WO_LDS, 25, 52, 53, "wo") + self.lin_dma((S_JP, 140 * 1024), L.W1F, W1A_LDS, 5, 52, 53, "wo")
        self.emit_list(wo1[:[it[0] for it in wo1].index("v") - 1]); wo1 = wo1[[it[0] for it in wo1].index("v") - 1:]
        touch = [[("v", f"buffer_load_dword v18, {v(r.t+5)}, {WS}, s47 offen", "touch"), ("s", "s_add_u32 s47, s47, 2048")] for _ in range(7)]
        t16 = lambda sg: [("v", f"buffer_load_dword v18, {v(r.t+5)}, {WS}, s{sg} offen", f"pf{sg}"), ("s", f"s_add_u32 s{sg}, s{sg}, 2048")]
        warm = [t16(55) for _ in range(self.cfg.w2warm)] + [t16(51) for _ in range(-(-w1w // 2048))]
        if self.cfg.otouch:
            self.lin(49, [(S_G, 327680), (S_C, 10240), (S_WAVE, 2560)], 0, layer=False, tmp=54)
            self.I(f"s_cmp_lg_u32 {s(S_L)}, 0\ns_cselect_b32 s49, s49, {BIG}")
            warm += [[("v", f"buffer_load_dword v18, {v(r.t+5)}, s[8:11], s49 offen offset:{o_}", "ot")] for o_ in (0, 2048)]
        p1 = []
        if self.cfg.ahead:
            self.lin(44, [(S_J, 280 * 1024), (S_WAVE, 70 * 1024), (S_C, 9984, 3, 3)], L.W2F, layer=False, tmp=54)
            self.lin(45, [(S_J, 100 * 1024), (S_C, 18432, 3, 3), (S_WAVE, 4608)], L.WOF, layer=False, tmp=54)
            for n in range(5): p1 += t16(44) + (t16(45) if n < 3 else [])
            for n in range(self.cfg.ahead): p1 += warm.pop(0)
        for n in range(63):
            p1 += self.take(w2a if (n % 2 == 0 and w2a) or not wo1 else wo1, 1)
            if n % self.cfg.tstep == 3 and touch: p1 += touch.pop(0)
            if n >= self.cfg.wstart and (n - self.cfg.wstart) % self.cfg.wstep == 0 and warm: p1 += warm.pop(0)
        p1 += w2a + wo1 + sum(warm, []); warm = []
        if self.cfg.nta: p1 = [(it[0], it[1].replace(' lds', ' nt lds') if it[2] == 'wo' else it[1] + ' nt', it[2]) if it[0] == 'v' and it[2] in ('w2', 'wo') else it for it in p1]
        assert not warm and not touch
        self.I(f"s_mov_b32 s48, {L.FL_PREP}")
        self.lin(46, [(2, 4)], L.FL_PREP, layer=False)
        AT.emit_kv_addr(A, r, 0, S_WAVE, 56)
        AT.emit_att_pre(self, r, 0, S_WAVE, QST, RED_A)
        self.I(f"s_add_u32 s37, {s(S_L)}, {L.FL_KV}")
        pk = A.newlabel("kvp")
        self.I(f"s_cmp_lg_u32 {s(S_WAVE)}, 0\ns_cbranch_scc1 {pk}")
        self.poll(1, 37, dev=True, wide=True)
        self.I(f"""v_cmp_ne_u32 vcc, 0, v156
        s_lshl_b32 s36, {s(S_G)}, 3
        v_mov_b32 v6, {M_MODE}
        s_lshr_b64 s[64:65], vcc, s36
        s_and_b32 s64, s64, 0xff
        s_cselect_b32 s64, 1, {1 if self.cfg.force_global else 0}
        v_mov_b32 v7, s64
        ds_write_b32 v6, v7
        s_waitcnt lgkmcnt(0)""")
        A.L(pk)
        self.I("s_barrier")
        self.stamp("kv.poll")
        pf_ = A.newlabel('pfl')
        def check():
            ok = A.newlabel("prepok"); again = A.newlabel("prepagain")
            it = S_(f"s_mov_b32 s35, 0\n{again}:\ns_waitcnt vmcnt(0)")
            it += S_("\n".join(f"v_xor_b32 v{156+k}, {s(S_TAG)}, v{156+k}" for k in range(4)))
            it += S_(f"""v_or3_b32 v18, v156, v157, v158
            v_or_b32 v18, v18, v159
            v_cmp_lt_u32 vcc, 7, v18
            s_add_u32 s35, s35, 1
            s_cmp_gt_u32 s35, 0x40000
            s_cbranch_scc1 {ok}
            s_cbranch_vccz {ok}
            buffer_load_dwordx4 v[156:159], v1, {WS}, s48 offen sc1
            s_branch {again}
            {ok}:""")
            self.loops[again] = 0
            return it
        ev = {self.cfg.pflag: S_(f"s_waitcnt vmcnt(0)\ns_barrier\ns_cmp_lg_u32 {s(S_WAVE)}, 0\ns_cbranch_scc1 {pf_}\nv_mov_b32 v18, {s(S_TAG)}\ns_mov_b64 exec, 1\nbuffer_store_dword v18, off, {WS}, s46 sc1\ns_mov_b64 exec, -1\n{pf_}:"),
              (1 + (self.cfg.pchk - 2) // 16, (self.cfg.pchk - 2) % 16): [("v", f"buffer_load_dwordx4 v[156:159], v1, {WS}, s48 offen sc1", "prepfl")],
              (1 + self.cfg.pchk // 16, self.cfg.pchk % 16): check()}
        for n_, it_ in enumerate(self.prep_store_items()): ev[(0, self.cfg.pst * n_)] = [it_]
        if self.cfg.fastl1:
            for key in (self.cfg.pflag, (1 + self.cfg.pchk // 16, self.cfg.pchk % 16)):
                l_ = A.newlabel("l1skip")
                ev[key] = S_(f"s_cmp_lg_u32 {s(S_L)}, 0\ns_cbranch_scc1 {l_}") + ev[key] + S_(f"{l_}:")
        AT.emit_att_main(self, r, 0, S_WAVE, QST, RED_A, 4, "sc1", self.cfg.nf, ev, p1, (1 + (self.cfg.pchk + 1) // 16, (self.cfg.pchk + 1) % 16))
        vm.wait_all()
        self.stamp("att.main")
        self.lin(48, [(S_G, L.GS), (S_I, 4 * L.XTS, 0, 3), (S_J, 5120, 1, None)], L.OFB, layer=False)
        self.lin(49, [(S_J, 8, 0, 1), (S_WAVE, 256), (48, 1)], 2048, layer=False)
        self.I(f"v_bfe_u32 v5, v0, 4, 1\nv_lshrrev_b32 v6, 5, v0\nv_mul_u32_u24 v5, {L.XTS}, v5\nv_lshlrev_b32 v7, 4, v3\nv_add3_u32 v7, v7, v5, s49")
        self.lin(49, [(S_J, 3072, 0, 1), (S_WAVE, 1024, 1, None), (S_WAVE, 512, 0, 1), (48, 1)], 0, layer=False)
        self.I("v_lshlrev_b32 v6, 8, v6\nv_lshl_add_u32 v6, v3, 4, v6\nv_add3_u32 v6, v6, v5, s49")
        self.flag_x_off(L.FL_O, 40)
        self.I(f"s_mov_b32 s66, {hexf(2.0**-60)}\nv_mov_b32 {v(r.t+7)}, {hexf(2.0**60)}\nv_mov_b32 {v(r.t+6)}, 0x203")
        self.I(f"v_mov_b32 v18, {M_BAD}\nds_read_b64 {v(r.Q2[0],2)}, v18")
        AT.emit_att_finish(self, r, 4, 6, 7, "", 2 * L.XTS)
        self.I(f"v_readfirstlane_b32 {s(S_MODE)}, {v(r.Q2[0]+1)}")
        self.stamp("att.fin")
        nb = A.newlabel("nobad"); bd = A.newlabel("bad")
        if self.cfg.force_bad: self.I(f"s_and_b32 s64, {s(S_WAVE)}, 1\ns_mov_b32 s65, 0")
        self.emit_list(self.take(self.w2_items, self.cfg.fin_w2))
        self.I(f"""s_cmp_lg_u32 {s(S_RETRY)}, 0
        s_cselect_b64 s[64:65], 0, s[64:65]
        s_cmp_lg_u64 s[64:65], 0
        s_cbranch_scc1 {bd}""")
        vm.wait("st")
        self.I(f"s_cmp_lg_u32 s57, 0\ns_cbranch_scc1 {nb}")
        self.signal(40); vm.q.pop()
        self.I(f"s_mov_b32 s57, {BIG}\ns_branch {nb}")
        A.L(bd)
        self.I("ds_write_b32 v18, v18")
        A.L(nb)
        self.I(f"s_waitcnt lgkmcnt(0)\ns_barrier\nds_read_b32 v7, v18")
        self.w1a = self.lin_dma((S_JP, 140 * 1024), L.W1F + W1AA * 1024, W1A_LDS + W1AA * 1024, 9, 46, 47, "w1")
        self.I(f"s_waitcnt lgkmcnt(0)\nv_readfirstlane_b32 s36, v7\ns_cmp_lg_u32 s36, 0\ns_cbranch_scc1 L_slow")
        self.I(f"s_mov_b32 {s(S_RETRY)}, 0")
        keep = self.A; A2 = Asm(); A2.uid = 100000; self.A = A2
        A2.L("L_slow")
        self.I(f"s_mov_b32 s69, {BIG}\ns_mov_b32 s70, {BIG}\ns_mov_b32 s71, {BIG}\ns_mov_b32 s72, {BIG}\nv_mov_b32 v220, 0")
        self.I(f"s_mov_b32 {s(S_RETRY)}, 1\ns_waitcnt vmcnt(0)\ns_barrier\nv_mov_b32 v7, 0\nds_write_b32 v18, v7")
        AT.emit_kv_addr(A2, r, 0, S_WAVE, 56)
        for k in range(AT.NT):
            for it in AT.kv_items(r, 4, "sc1", k): self.I(it[1])
            if k % 8 == 7: self.I("s_waitcnt vmcnt(0)")
        AT.emit_att_truemax(self, r, 0, S_WAVE, QST, RED_A)
        self.I("s_branch L_att")
        self.A = keep; self.slow = A2.ins
        self.emit_list(self.take(self.w1a, self.cfg.s1_w1a))

    def phase_oproj(self):
        vm = self.vm
        X, WB, ACC = 256, 68, 108
        self.lin(30, [(S_G, L.GS), (S_I, 4 * L.XTS, 0, 3), (S_WAVE, L.XTS)], L.OFB, layer=False)
        self.resid_setup(L.XMID, L.STATMID, L.FL_X1)
        self.I(f"v_add_u32 v64, {WO_LDS}, v1\nv_add_u32 v65, {WO_LDS + 51200}, v1")
        self.lin(37, [(S_I, 128)], L.FL_O)
        self.I("v_and_b32 v6, 31, v0\nv_lshlrev_b32 v6, 2, v6")
        self.poll(6, 37)
        def load(k):
            if k and k % 4 == 0: self.I("s_add_u32 s30, s30, 4096")
            vm.issue(f"buffer_load_dwordx4 {R(X+4*k,4)}, v1, {WS}, s30 offen offset:{(k%4)*1024} sc1", ("x", k))
        nl = 0
        while nl < 7: load(nl); nl += 1
        self.stamp("o.poll")
        D, NB = self.cfg.odepth, 10
        def rd(i): self.I(f"ds_read_b128 {v(WB+4*(i%NB),4)}, v{64 + i//50} offset:{(i%50)*1024}")
        for i in range(D): rd(i)
        for i in range(100):
            k, ft = divmod(i, 5)
            if ft == 0: vm.wait(("x", k))
            self.I(f"s_waitcnt lgkmcnt({min(D - 1, 99 - i)})")
            d = ACC + 4 * ft
            self.I(f"v_mfma_f32_16x16x32_bf16 {v(d,4)}, {v(WB+4*(i%NB),4)}, {R(X+4*k,4)}, {'0' if k == 0 else v(d,4)}")
            if i + D < 100: rd(i + D)
            if i % 4 == 1:
                if nl < 20: load(nl); nl += 1
                else: self.emit_list(self.take(self.w1a, 1))
        self.emit_list(self.w1a)
        self.csum_loads(24, (S_JP, 20 * 448), L.CS1P, 448, 0xfffffff, "cs")
        self.stamp("o.mm")
        self.resid_epilogue(ACC)
        self.I("s_barrier")
        self.window(self.lin_dma((S_JP, 140 * 1024), L.W1F + 56 * 1024, W1B_LDS, 11, 52, 53, "w1b"))
        self.w1b = self.lin_dma((S_JP, 140 * 1024), L.W1F + 100 * 1024, W1B_LDS + 44 * 1024, 10, 52, 53, "w1b")
        sk = self.A.newlabel("cs1a")
        self.I(f"s_cmp_lg_u32 {s(S_L)}, 0\ns_cbranch_scc1 {sk}")
        self.csum_part(24, M_CS1P, 448, 0xfffffff)
        self.A.L(sk)
        self.stamp("o.epi")

    def phase_mlp1(self):
        A, vm = self.A, self.vm
        ACC, SL, ST, AD, XR, NXR, WB = 20, 76, 108, 116, 256, 8, 320
        for e in range(2):
            self.lin(42 + e, [(S_IP, 8, 0, 1), (S_WAVE, 2)], e, layer=False)
            self.lin(30 + e, [(42 + e, L.XTS), (S_G, L.GS)], L.XMID, layer=False)
            self.lin(32 + e, [(42 + e, L.HTS), (S_G, L.GS), (S_JP, 7168, 1, None)], L.HFB, layer=False)
            self.lin(44 + e, [(S_JP, 4096, 0, 1), (32 + e, 1)], 0, layer=False)
            self.I(f"s_and_b32 s36, {s(S_JP)}, 1\ns_lshl_b32 s36, s36, 3\ns_add_u32 s{32+e}, s{32+e}, s36")
            self.lin(42 + e, [(42 + e, 4096), (S_G, L.GS)], L.STATMID, layer=False)
        self.lin(40, [(S_IP, 256), (S_WAVE, 128, 1, None), (S_JP, 8), (S_WAVE, 4, 0, 1)], L.FL_H)
        self.lin(37, [(S_IP, 256), (S_WAVE, 128, 1, None), (S_WAVE, 16, 0, 1)], L.FL_X1)
        self.I(f"""v_add_u32 {v(AD)}, {W1A_LDS}, v1
        v_add_u32 {v(AD+1)}, {W1B_LDS}, v1
        v_add_u32 {v(AD+2)}, {W1B_LDS + 8*7168}, v1
        v_lshlrev_b32 {v(AD+3)}, 4, v4
        v_add_u32 {v(AD+3)}, {M_CS1}, {v(AD+3)}
        v_bfe_u32 v6, v0, 2, 2
        v_lshlrev_b32 v6, 5, v6
        v_and_b32 v7, 3, v0
        v_lshl_add_u32 v6, v7, 2, v6""")
        self.poll(6, 37)
        def xr(k, e): return XR + 8 * (k % NXR) + 4 * e
        def load(k):
            for e in range(2):
                if k and k % 4 == 0: self.I(f"s_add_u32 s{30+e}, s{30+e}, 4096")
                vm.issue(f"buffer_load_dwordx4 {R(xr(k,e),4)}, v1, {WS}, s{30+e} offen offset:{(k%4)*1024} sc1", ("x", k))
        def wread(k, ft): return f"ds_read_b128 {R(WB + 28*(k%2) + 4*ft, 4)}, {v(AD + k//8)} offset:{(k%8)*7168 + ft*1024}"
        PD = 5
        nl = 0
        while nl < 4: load(nl); nl += 1
        self.I("s_barrier")
        self.stamp("x1.poll")
        w2_in_loop = self.take(self.w2_items, 32 - self.cfg.fin_w2)
        sl_items = []
        for e in range(2):
            for n in range(4):
                sl_items.append(("v", f"buffer_load_dwordx4 {v(SL+16*e+4*n,4)}, v1, {WS}, s{42+e} offen offset:{n*1024} sc1", "stat"))
        def stat_code():
            for e in range(2):
                self.stat_finish(SL + 16 * e, ST + 4 * e, packed=False)
                self.I(f"v_mov_b32 {v(ST+4*e+2)}, {v(ST+4*e+1)}")
        sh = self.collect(stat_code) if self.cfg.m1sh else []
        for ft in range(7): self.I(wread(0, ft))
        for k in range(20):
            vm.wait(("x", k))
            if k == 13:
                vm.wait("w1b"); self.I("s_barrier")
            if k == 16 and sh: vm.wait("stat")
            self.I("s_waitcnt lgkmcnt(0)")
            n = 0
            for ft in range(7):
                for e in range(2):
                    d = ACC + 28 * e + 4 * ft
                    self.I(f"v_mfma_f32_16x16x32_bf16 {v(d,4)}, {R(WB+28*(k%2)+4*ft,4)}, {R(xr(k,e),4)}, {'0' if k == 0 else v(d,4)}")
                    if k + 1 < 20 and n < 7: self.I(wread(k + 1, n))
                    if n == 7 and nl < min(k + PD, 20): load(nl); nl += 1
                    if n == 9 and nl < min(k + 1 + PD, 20): load(nl); nl += 1
                    if n == 11 or (n == 8 and (nl == 20 or k % 2 == 0)):
                        if self.w1b: self.emit_list(self.take(self.w1b, 1))
                        elif sl_items: self.emit_list(self.take(sl_items, 1))
                        else: self.emit_list(self.take(w2_in_loop, 1))
                    if k >= 16 and sh: self.emit_list(sh[:2]); sh = sh[2:]
                    n += 1
            if k == 3:
                sk = A.newlabel("cs1b")
                self.I(f"s_cmp_lg_u32 {s(S_L)}, 0\ns_cbranch_scc1 {sk}")
                self.csum_final(120 - 4 * 0, M_CS1P, 448, M_CS1, 0xfffffff) if False else self.csum_final(SL + 16, M_CS1P, 448, M_CS1, 0xfffffff)
                A.L(sk)
            assert k < 7 or not self.w1b
            if self.cfg.fine == "m" and k in (0, 4, 9, 14): self.stamp(f"m1.k{k}")
        assert not sh and not sl_items
        self.w2_items = w2_in_loop + self.w2_items
        self.stamp("m1.mm")
        self.I("s_barrier")
        if not self.cfg.m1sh:
            vm.wait("stat"); stat_code()
        CB = SL; T = 120; PK = [[128, 116], [92, 96]]
        def cbread(ft):
            b = CB + 8 * (ft % 2)
            self.I(f"ds_read_b128 {v(b,4)}, v7 offset:{ft*64}\nds_read_b128 {v(b+4,4)}, v7 offset:{448+ft*64}")
        self.I(f"v_mov_b32 v7, {v(AD+3)}")
        cbread(0)
        self.I(f"s_mov_b32 s66, {hexf(math.log2(math.e))}\ns_mov_b32 s67, s66\ns_mov_b32 s68, {hexf(math.sqrt(0.5))}\ns_mov_b32 s69, s68")
        if self.cfg.fine == "m": self.stamp("m1.stat")
        for ft in range(7):
            ch = [(e, h) for e in range(2) for h in range(2)]
            D = lambda c: ACC + 28 * c[0] + 4 * ft + 2 * c[1]
            Tt = lambda c: T + 4 * c[0] + 2 * c[1]
            b = CB + 8 * (ft % 2); q = ft // 2
            self.I("s_waitcnt lgkmcnt(0)")
            if ft + 1 < 7: cbread(ft + 1)
            for c in ch: self.I(f"v_pk_fma_f32 {v(D(c),2)}, {v(ST+4*c[0],2)}, {v(b+2*c[1],2)}, {v(D(c),2)} op_sel_hi:[0,1,1]")
            for c in ch: self.I(f"v_pk_fma_f32 {v(D(c),2)}, {v(D(c),2)}, {v(ST+4*c[0]+2,2)}, {v(b+4+2*c[1],2)} op_sel_hi:[1,0,1]")
            for c in ch: self.I(f"v_pk_fma_f32 {v(Tt(c),2)}, {v(D(c),2)}, s[66:67], -0.5 op_sel_hi:[1,1,0]")
            for c in ch: self.I(f"v_exp_f32 {v(Tt(c))}, {v(Tt(c))}\nv_exp_f32 {v(Tt(c)+1)}, {v(Tt(c)+1)}")
            for c in ch: self.I(f"v_pk_add_f32 {v(Tt(c),2)}, {v(Tt(c),2)}, s[68:69]")
            for c in ch: self.I(f"v_pk_fma_f32 {v(Tt(c),2)}, {v(Tt(c),2)}, {v(Tt(c),2)}, 0.5 op_sel_hi:[1,1,0]")
            for c in ch: self.I(f"v_rcp_f32 {v(Tt(c))}, {v(Tt(c))}\nv_rcp_f32 {v(Tt(c)+1)}, {v(Tt(c)+1)}")
            for c in ch: self.I(f"v_pk_fma_f32 {v(D(c),2)}, {v(D(c),2)}, {v(Tt(c),2)}, {v(D(c),2)} neg_lo:[1,0,0] neg_hi:[1,0,0]")
            for c in ch: self.I(f"v_cvt_pk_bf16_f32 {v(PK[c[0]][q%2]+2*(ft%2)+c[1])}, {v(D(c))}, {v(D(c)+1)}")
            if ft % 2 == 1:
                for e in range(2): vm.issue(f"buffer_store_dwordx4 {v(PK[e][q%2],4)}, v1, {WS}, s{44+e} offen offset:{q*1024}", "st")
            elif ft == 6:
                for e in range(2): vm.issue(f"buffer_store_dwordx2 {v(PK[e][q%2],2)}, v1, {WS}, s{32+e} offen offset:3072", "st")
            else:
                self.emit_list(self.take(self.w2_items, 1))
        if self.cfg.fine == "m": self.stamp("m1.mish")
        self.wqa = self.lin_dma((S_J, 120 * 1024), L.WQF, WQ_LDS, 24, 52, 53, "wq")
        self.window(self.w2_items + self.take(self.wqa, self.cfg.s3_wq), n1=self.cfg.s3_n1)
        self.stamp("m1.epi")

    def phase_mlp2(self):
        A, vm = self.A, self.vm
        NS, XR, NR, accs, stage, PD, P0 = 14, 276, 25, [20, 40], 60, 10, 6
        fine = self.cfg.fine == "h"
        for p in range(4):
            self.I(f"s_add_u32 s37, {s(S_WAVE)}, {p+1}\ns_and_b32 s37, s37, 3")
            if p < 3: self.lin(44 + p, [(37, 15360)], RED_K + p * 5120, layer=False)
            self.lin(30 + p, [(37, L.HTS), (S_G, L.GS), (S_I, 4 * L.HTS, 0, 3), (S_WAVE, NS * 1024)], L.HFB, layer=False)
        self.lin(47, [(S_WAVE, 15360)], RED_K, layer=False)
        self.resid_setup(L.XIN, L.STATIN, L.FL_XIN + L.LS)
        self.lin(37, [(S_I, 128), (S_WAVE, 32)], L.FL_H)
        self.I("v_and_b32 v120, 7, v0\nv_lshlrev_b32 v120, 2, v120")
        self.poll(120, 37)
        self.stamp("h.poll")
        if self.cfg.wb:
            sk = A.newlabel("wb")
            self.I(f"s_and_b32 s36, {s(S_C)}, {self.cfg.wb - 1}\ns_or_b32 s36, s36, {s(S_WAVE)}\ns_cbranch_scc1 {sk}\nbuffer_wbl2 sc1")
            A.L(sk)
        items = [(p, st) for p in range(4) for st in range(NS)]
        def xr(k): return XR + 4 * (k % NR)
        def load(k):
            p, st = items[k]
            if st % 4 == 0: self.I(f"s_add_u32 s34, s{30+p}, {(st//4)*4096}")
            vm.issue(f"buffer_load_dwordx4 {R(xr(k),4)}, v1, {WS}, s34 offen offset:{(st%4)*1024} sc1", ("x", k))
        nl = 0
        while nl < P0: load(nl); nl += 1
        NM = 5 * NS
        for k, (p, st) in enumerate(items):
            acc = accs[p % 2]
            if st == 0:
                fill = {}
                if p > 0:
                    prev = accs[(p - 1) % 2]
                    span = NM if p < 3 else NM // 2
                    lo = 3 if p < 3 else 12
                    fill.setdefault(0, []).append(f"v_add_u32 v7, s{44+p-1}, v1")
                    for ft in range(5):
                        fill.setdefault(lo + ft * (span - lo) // 5, []).append(f"ds_write_b128 v7, {v(prev+4*ft,4)} offset:{ft*1024}")
                if p == 3:
                    self.I("s_waitcnt lgkmcnt(0)\ns_barrier\nv_add_u32 v6, s47, v1")
                    for n in range(10):
                        fill.setdefault(n, []).append(f"ds_read_b128 {v(stage+4*n,4)}, v6 offset:{(n//5)*5120+(n%5)*1024}")
                    b2 = NM // 2 + 6
                    fill.setdefault(b2, []).append("s_waitcnt lgkmcnt(0)\ns_barrier")
                    for n in range(5):
                        fill.setdefault(b2 + 1 + n, []).append(f"ds_read_b128 {v(stage+40+4*n,4)}, v6 offset:{2*5120+n*1024}")
                    for n in range(20):
                        fill.setdefault(b2 + 1 + n // 2, []).append(f"v_add_f32 {v(stage+n)}, {v(stage+n)}, {v(stage+20+n)}")
                    fill.setdefault(b2 + 12, []).append("s_waitcnt lgkmcnt(0)")
                    for n in range(20):
                        fill.setdefault(b2 + 12 + n // 2, []).append(f"v_add_f32 {v(stage+n)}, {v(stage+n)}, {v(stage+40+n)}")
            vm.wait(("x", k))
            if fine and st == 0: self.stamp(f"k.g{p}")
            for ft in range(5):
                c = "0" if st == 0 else v(acc + 4 * ft, 4)
                self.I(f"v_mfma_f32_16x16x32_bf16 {v(acc+4*ft,4)}, {R(w2_reg(5*st+ft),4)}, {R(xr(k),4)}, {c}")
                for x in fill.get(5 * st + ft, []): self.I(x)
                if ft == 1 and k % 2 == 0 and nl < min(k + PD, len(items)): load(nl); nl += 1
            if nl < min(k + 1 + PD, len(items)): load(nl); nl += 1
            elif k == len(items) - 10 and self.cfg.wb2:
                sk = A.newlabel("wb")
                self.I(f"s_and_b32 s36, {s(S_C)}, {self.cfg.wb2 - 1}\ns_or_b32 s36, s36, {s(S_WAVE)}\ns_cbranch_scc1 {sk}\ns_cmp_eq_u32 {s(S_L)}, 0\ns_cbranch_scc1 {sk}\nbuffer_wbl2 sc1")
                A.L(sk)
            elif nl == len(items): self.emit_list(self.take(self.wqa, 1 + (k % 2 if self.cfg.wq3 == 3 else self.cfg.wq3 - 1)))
        if fine: self.stamp("k.mend")
        for i in range(0, 20, 2): self.I(f"v_pk_add_f32 {v(accs[1]+i,2)}, {v(accs[1]+i,2)}, {v(stage+i,2)}")
        self.stamp("m2.mm")

    def init_lds_consts(self):
        A, vm = self.A, self.vm
        self.I("s_mov_b32 s53, 0"); emit_realtile(A, S_JP, 53, 54, 56, 58)
        self.I("s_mov_b32 s53, 6"); emit_realtile(A, S_JP, 53, 55, 57, 58)
        self.I(f"""s_lshl_b32 s54, s54, 5
        v_mov_b32 v6, s57
        v_cmp_lt_u32 vcc, 23, v0
        v_cndmask_b32 v6, 0, v6, vcc
        v_add_u32 v6, v6, v2""")
        vm.issue(f"buffer_load_dwordx2 v[252:253], v6, s[12:15], s54 offen", "b1")
    def init_lds_finish(self):
        self.I(f"""v_lshlrev_b32 v20, 16, v252
        v_and_b32 v21, 0xffff0000, v252
        v_lshlrev_b32 v22, 16, v253
        v_and_b32 v23, 0xffff0000, v253
        v_add_u32 v6, {M_B1}, v1
        s_mov_b64 exec, 0x0fffffff
        ds_write_b128 v6, v[20:23]
        s_mov_b64 exec, -1
        v_mov_b32 v6, {M_BAD}
        v_mov_b32 v7, 0
        ds_write_b32 v6, v7""")

def build_main(cfg):
    G = Gen(cfg); A = G.A; vm = G.vm
    Gen.cold = []
    G.I(f"""
    s_cmp_ge_u32 s2, 256
    s_cbranch_scc1 L_end
    s_load_dwordx8 s[36:43], s[0:1], 0
    s_load_dwordx2 s[96:97], s[0:1], 32       ; wo
    s_load_dwordx2 s[98:99], s[0:1], 48       ; w1
    s_load_dwordx2 s[56:57], s[0:1], 56       ; b1
    s_load_dwordx2 s[100:101], s[0:1], 64     ; w2
    s_load_dwordx2 s[58:59], s[0:1], 72       ; out
    s_load_dwordx2 s[60:61], s[0:1], 88       ; ws
    v_lshrrev_b32 v2, 6, v0
    v_and_b32 v0, 63, v0
    v_readfirstlane_b32 {s(S_WAVE)}, v2
    v_lshlrev_b32 v1, 4, v0
    v_lshlrev_b32 v2, 3, v0
    v_and_b32 v3, 15, v0
    v_lshrrev_b32 v4, 4, v0
    s_and_b32 {s(S_G)}, s2, 7
    s_lshr_b32 {s(S_C)}, s2, 3
    s_lshl_b32 {s(S_I)}, {s(S_G)}, 2
    s_lshr_b32 s30, {s(S_C)}, 3
    s_add_u32 {s(S_I)}, {s(S_I)}, s30
    s_and_b32 {s(S_J)}, {s(S_C)}, 7
    s_lshl_b32 {s(S_IP)}, {s(S_G)}, 1
    s_lshr_b32 s30, {s(S_C)}, 4
    s_add_u32 {s(S_IP)}, {s(S_IP)}, s30
    s_and_b32 {s(S_JP)}, {s(S_C)}, 15
    s_mov_b32 {s(S_L)}, 0
    s_mov_b32 {s(S_MODE)}, 1
    s_mov_b32 {s(S_RETRY)}, 0
    s_getreg_b32 {s(S_TAG)}, hwreg(HW_REG_XCC_ID, 0, 3)
    """)
    if cfg.prof: G.I("s_mov_b32 s77, 0\nv_mov_b32 v19, 0\ns_memrealtime s[78:79]\ns_waitcnt lgkmcnt(0)\nv_writelane_b32 v19, s78, 62")
    G.stamp("start")
    G.I(f"s_cmp_lt_u32 s2, 160\ns_cselect_b32 s73, 0, 1\ns_or_b32 s73, s73, {s(S_WAVE)}")
    G.wq_unit_addr()
    G.I("s_waitcnt lgkmcnt(0)")
    srd(A, SRD_X, 36, 2048 * 640 * 2); srd(A, SRD_WQ, 38, 640 * 640 * 2)
    G.I(f"""s_bitcmp1_b32 s2, 1
    s_cselect_b32 {s(SRD_KV)}, s42, s40
    s_cselect_b32 {s(SRD_KV+1)}, s43, s41
    s_mov_b32 {s(SRD_KV+2)}, {640*20*2}
    s_mov_b32 {s(SRD_KV+3)}, 0x20000
    s_bitcmp1_b32 {s(S_J)}, 1
    s_cselect_b32 {s(SRD_KV2)}, s42, s40
    s_cselect_b32 {s(SRD_KV2+1)}, s43, s41
    s_mov_b32 {s(SRD_KV2+2)}, {640*20*2}
    s_mov_b32 {s(SRD_KV2+3)}, 0x20000
    s_load_dword {s(S_EPOCH)}, s[60:61], {L.EPOCH}""")
    srd(A, 4, 60, L.WS_USED); srd(A, 8, 58, 2048 * 640 * 2); srd(A, 12, 56, 1728 * 2); srd(A, SRD_SRC, 96, 640 * 640 * 2)
    G.I("v_mov_b32 v192, 0x3f803f80\nv_mov_b32 v193, 0x3f803f80\nv_mov_b32 v194, 0x3f803f80\nv_mov_b32 v195, 0x3f803f80")
    G.I("s_cmp_lg_u32 s73, 0\ns_cbranch_scc1 L_nowq1")
    G.wq_unit_issue()
    A.L("L_nowq1")
    G.I("s_movk_i32 s54, 1280")
    G.x0_issue()
    G.I(f"""s_cmp_ge_u32 s2, 160
    s_cselect_b32 s36, 0, 1
    s_or_b32 s36, s36, {s(S_WAVE)}
    s_cbranch_scc1 L_notouch
    s_sub_u32 s36, s2, 160
    s_lshl_b32 s37, s36, 13
    s_add_u32 s37, s37, {L.KVB}
    s_cmp_eq_u32 s36, {2 * L.LS // 8192 + 1}
    s_cselect_b32 s37, {L.FL_PREP}, s37
    s_cmp_gt_u32 s36, {2 * L.LS // 8192 + 1}
    s_cbranch_scc1 L_notouch
    v_lshlrev_b32 v5, 7, v0
    buffer_load_dword v254, v5, {WS}, s37 offen""")
    A.L("L_notouch")
    if os.environ.get("TLB"):
        st_ = int(os.environ["TLB"])
        G.I(f"""s_cmp_lg_u32 {s(S_WAVE)}, 1
        s_cbranch_scc1 L_notlb
        s_mul_i32 s37, {s(S_C)}, {64 << st_}
        v_lshlrev_b32 v5, {st_}, v0
        buffer_load_dword v254, v5, {WS}, s37 offen""")
        A.L("L_notlb")
    G.init_lds_consts()
    G.I(f"s_waitcnt lgkmcnt(0)\ns_mul_i32 {s(S_EPOCH)}, {s(S_EPOCH)}, 1664525\ns_add_u32 {s(S_EPOCH)}, {s(S_EPOCH)}, 1013904223")
    G.I(f"s_and_b32 s36, {s(S_EPOCH)}, 0xfffffff8\ns_or_b32 {s(S_TAG)}, {s(S_TAG)}, s36")
    G.stamp("p0.issue")
    G.prep_issue()
    G.qkv_setup(True)
    G.I("s_cmp_lg_u32 s73, 0\ns_cbranch_scc1 L_nowq2\ns_waitcnt vmcnt(1)")
    G.wq_unit_finish()
    G.I("s_waitcnt vmcnt(0)")
    G.signal(66, dev=True)
    G.I("s_branch L_wq3")
    A.L("L_nowq2")
    G.I("s_waitcnt vmcnt(0)")
    A.L("L_wq3")
    vm.q = []
    G.stamp("p0.x")
    if cfg.pdma == 9: G.emit_list(G.prep_dma_items())
    G.init_lds_finish()
    G.I("s_barrier")
    G.x0_read(20, 196)
    G.I("s_barrier")
    G.stamp("p0.read")
    G.phase_qkv(True)
    G.prep_read()
    G.stamp("prep")
    A.L("L_layer")
    G.I("s_mov_b32 s57, 0")
    G.phase_att()
    G.I(f"s_cmp_lg_u32 s2, 0\ns_cbranch_scc1 L_noep\nv_mov_b32 v5, {s(S_EPOCH)}\ns_mov_b32 s36, {L.EPOCH}\ns_mov_b64 exec, 1\nbuffer_store_dword v5, off, {WS}, s36\ns_mov_b64 exec, -1")
    A.L("L_noep")
    G.phase_oproj()
    G.phase_mlp1()
    G.phase_mlp2()
    G.I(f"s_cmp_lg_u32 {s(S_L)}, 0\ns_cbranch_scc1 L_final")
    q0 = list(vm.q)
    G.resid_epilogue(40, statreg=60)
    G.I("s_barrier")
    G.window(G.wqa + G.lin_dma((S_J, 120 * 1024), L.WQF + 96 * 1024, WQ_LDS + 96 * 1024, 6, 52, 53, "wq"))
    G.stamp("m2.epi")
    G.I(f"s_mov_b32 {s(S_L)}, {L.LS}")
    G.qkv_setup(False)
    G.lin(37, [(S_I, 128), (S_WAVE, 8)], L.FL_XIN)
    G.I("v_bfe_u32 v6, v0, 1, 2\nv_lshlrev_b32 v6, 5, v6\nv_and_b32 v7, 1, v0\nv_lshl_add_u32 v6, v7, 2, v6")
    G.poll(6, 37)
    G.stamp("xin.poll")
    G.phase_qkv(False)
    G.I(f"s_mov_b32 s69, {BIG}\ns_mov_b32 s70, {BIG}\ns_mov_b32 s71, {BIG}\ns_mov_b32 s72, {BIG}\nv_mov_b32 v220, 0")
    G.I("s_branch L_layer")
    A.L("L_final")
    vm.q = q0
    G.lin(36, [(S_I, 64 * 1280), (S_WAVE, 16 * 1280), (S_J, 160)], 0, layer=False, tmp=37)
    G.I("v_mul_u32_u24 v6, 1280, v3\nv_lshl_add_u32 v6, v4, 3, v6")
    G.resid_epilogue(40, store=False)
    for ft in range(5): G.I(f"buffer_store_dwordx2 {v(XRES+2*ft,2)}, v6, s[8:11], s36 offen offset:{ft*32} {cfg.outfl}")
    if cfg.prof:
        G.I("s_waitcnt vmcnt(0)"); G.stamp("end")
        G.I("s_memrealtime s[78:79]\ns_waitcnt lgkmcnt(0)\nv_writelane_b32 v19, s78, 63")
        G.I(f"s_lshl_b32 s36, s2, 2\ns_add_u32 s36, s36, {s(S_WAVE)}\ns_lshl_b32 s36, s36, 8\ns_add_u32 s36, s36, {L.PROF}\nv_lshlrev_b32 v6, 2, v0")
        G.I(f"buffer_store_dword v19, v6, {WS}, s36 offen")
        cfg.names = G.names
    A.L("L_end")
    G.I("s_endpgm")
    for g, j, code in Gen.cold:
        A.L(g); G.I(code); G.I(f"s_branch {j}")
    A.ins += G.slow
    npad = A.pad_hazards()
    tr = trace_two_layers(A.ins, G.loops)
    errs = check_waits([x for x in tr if x.op not in ("s_memtime", "s_memrealtime")], "main")
    assert errs == 0 or cfg.skip != ("",) and cfg.skip
    return A.text(), npad

def trace_two_layers(ins, loops):
    labels = {x.label: i for i, x in enumerate(ins) if x.is_label}
    tr = []; j = 0; left = {}; layer = 0
    while j < len(ins):
        c = ins[j]; tr.append(c)
        if c.op == "s_endpgm": break
        if c.kind == "branch":
            t = labels[c.target]
            if c.op == "s_branch":
                if c.target == "L_layer": layer = 1
                j = t; continue
            if t <= j:
                k = left.get(j, loops.get(c.target, 1))
                if k > 0: left[j] = k - 1; j = t; continue
                left.pop(j, None)
            elif (c.target == "L_final" and layer == 1) or c.target.startswith("L_prepok"):
                j = t; continue
        j += 1
    return tr

HEADER = open(f"cdna_kernels/{NAME}.s.ref").read().split("; Override launch")[0]

def build_all(cfg):
    body, npad = build_main(cfg)
    asm = HEADER
    asm += f"; @launch grid=(256,1,1) block=(256,1,1) lds={LDS_BYTES}\n"
    asm += '.amdgcn_target "amdgcn-amd-amdhsa--gfx950"\n'
    asm += wrap_kernel(NAME + "_kernel", body, vgpr=512, acc=256)
    return asm, npad

if __name__ == "__main__":
    cfg = Cfg()
    cfg.prof = "prof" in os.environ.get("XF", "")
    asm, npad = build_all(cfg)
    open("out.s", "w").write(asm)
    print("lines", len(asm.splitlines()), "bytes", len(asm), "pad", npad)
```

```python
from asmlib import *
import layout as L
import attn3 as AT
from attn3 import S_
from prep import srd, emit_xg_reduce, emit_realtile, emit_xk, BIG
import math, os, struct

NAME = "interleave_layers__grouped_kv_mqa__dense_activation_mish__prompt"
WQ_LDS = 0
X0_LDS = 0
KV0_LDS = 94208
WQP_LDS = 86016
PREP_LDS = 122880
RED_A = 122880
QST = 147456
WO_LDS = 0
W1AA = 20
W2A = 33
W1A_LDS, W1B_LDS = 102400, 0
RED_K = 122880
MISC = 159744
M_CS1, M_B1, M_CSQ, M_BAD = MISC, MISC + 448, MISC + 896, MISC + 1280
M_MODE = MISC + 1284
M_VT = MISC + 1344
M_CSQP = MISC + 2368
M_CS1P = MISC + 1344
LDS_BYTES = 163840

S_WAVE, S_G, S_C, S_I, S_J, S_IP, S_JP, S_EPOCH, S_L, S_MODE, S_RETRY, S_TAG = 20, 21, 22, 23, 24, 25, 26, 27, 28, 29, 76, 75
XRES = 8
WS = "s[4:7]"
SRD_X, SRD_WQ, SRD_KV, SRD_SRC, SRD_KV2 = 80, 84, 88, 92, 16

def hexf(x): return "0x%08x" % struct.unpack("<I", struct.pack("<f", x))[0]
def w2_reg(k):
    if k < 25: return 156 + 4 * k
    if k < 33: return 480 + 4 * (k - 25)
    if k < 59: return 376 + 4 * (k - 33)
    if k < 65: return 132 + 4 * (k - 59)
    return 256 + 4 * (k - 65)

NFIRST = int(os.environ.get('NF', 3))
class Cfg:
    fin_w2 = 0; s1_w1a = 9; s2 = 12; odepth = 8; m1sh = True
    ctouch = 2; ct2 = (3, 6)
    wtouch = 0; tpos = ((0, 14), (1, 2), (1, 10), (2, 3), (2, 10), (3, 1), (3, 8))
    wqn = 20; pd2 = 10; mish_ld = 3; s4_n1 = 6
    dst = False; kvi0 = 24
    tA = [5, 0, 1]; kvi = 36; chain = True
    hst = ''; ost = ''; hld = 'sc1'
    dbg = None; dbgwg = 0
    w2warm = 0; otouch = False
    sect = True; nf = 3
    xtouch = True; w1warm = 80
    ahead = 0; kvf = 1; pdma = 9
    ends = False; outfl = ''; wb2 = 0
    s3_wq = 0; s3_n1 = 6; fastl1 = True
    wq3 = 2; tstep = 7; wstart = 48; wstep = 2; nta = False; t0 = True
    ptouch = False; pst = 1; pflag = (0, 13); pchk = 9; wb = 0
    prof = False; rt = False; fine = None; skip = (); force_global = False; force_bad = False

class Gen:
    def __init__(self, cfg):
        self.A = Asm(); self.vm = VmTracker(self.A); self.cfg = cfg
        self.names = []; self.loops = {}
    def I(self, t): return self.A.I(t)
    def stamp(self, name=""):
        if self.cfg.dbg and name not in self.cfg.dbg: return
        if self.cfg.prof and not self.cfg.ends:
            if self.cfg.rt:
                self.I("s_memrealtime s[78:79]\ns_waitcnt lgkmcnt(0)\ns_lshl_b32 s74, s78, 18\ns_memtime s[78:79]\ns_waitcnt lgkmcnt(0)\ns_and_b32 s78, s78, 0x3ffff\ns_or_b32 s78, s78, s74")
            else:
                self.I("s_memtime s[78:79]\ns_waitcnt lgkmcnt(0)")
            self.I("s_mov_b32 m0, s77\nv_writelane_b32 v19, s78, m0\ns_add_u32 s77, s77, 1")
            self.names.append(name)
    def lin(self, out, terms, const=0, layer=True, tmp=36):
        first = True
        for t in terms:
            sreg, mul = t[0], t[1]
            src = s(sreg); dst = s(out) if first else s(tmp)
            if len(t) > 2:
                shr, mask = t[2], t[3]
                if shr: self.I(f"s_lshr_b32 {dst}, {src}, {shr}"); src = dst
                if mask is not None: self.I(f"s_and_b32 {dst}, {src}, {mask}"); src = dst
            if mul != 1: self.I(f"s_mul_i32 {dst}, {src}, {mul}"); src = dst
            if first:
                if src != dst: self.I(f"s_mov_b32 {dst}, {src}")
            else:
                self.I(f"s_add_u32 {s(out)}, {s(out)}, {src}")
            first = False
        if layer: self.I(f"s_add_u32 {s(out)}, {s(out)}, {s(S_L)}")
        if const: self.I(f"s_add_u32 {s(out)}, {s(out)}, {const}")
    def signal(self, off_s, dev=False, val=S_EPOCH):
        self.I(f"v_mov_b32 v5, {s(val)}\ns_mov_b64 exec, 1")
        if dev:
            self.vm.issue(f"buffer_store_dword v5, off, {WS}, {s(off_s)} sc1", "flag")
        else:
            g = self.A.newlabel("sg"); j = self.A.newlabel("sj")
            self.I(f"s_cmp_lg_u32 {s(S_MODE)}, 0\ns_cbranch_scc1 {g}")
            self.vm.issue(f"buffer_store_dword v5, off, {WS}, {s(off_s)}", "flag")
            self.A.L(j)
            self.cold.append((g, j, f"buffer_wbl2 sc1\ns_waitcnt vmcnt(0)\nbuffer_store_dword v5, off, {WS}, {s(off_s)} sc1"))
        self.I("s_mov_b64 exec, -1")
    def poll(self, voff, off_s, dev=False, wide=False, pre=False):
        lab = self.A.newlabel("poll"); out = self.A.newlabel("pollx"); ent = self.A.newlabel("polle")
        self.I("s_mov_b32 s35, 0")
        if pre: self.I(f"s_branch {ent}")
        self.A.L(lab)
        if wide:
            self.I(f"buffer_load_dwordx4 v[156:159], {v(voff)}, {WS}, {s(off_s)} offen sc1")
        else:
            self.I(f"buffer_load_dword v5, {v(voff)}, {WS}, {s(off_s)} offen sc1")
        self.A.L(ent)
        self.I(f"s_add_u32 s35, s35, 1\ns_cmp_gt_u32 s35, 0x40000\ns_cbranch_scc1 {out}\ns_waitcnt vmcnt(0)")
        if wide:
            for k in range(4): self.I(f"v_xor_b32 v{156+k}, {s(S_TAG)}, v{156+k}")
            self.I("v_or3_b32 v156, v156, v157, v158\nv_or_b32 v156, v156, v159\nv_cmp_lt_u32 vcc, 7, v156")
        else:
            self.I(f"v_cmp_ne_u32 vcc, {s(S_EPOCH)}, v5")
        self.I(f"s_cbranch_vccnz {lab}")
        self.A.L(out)
        if not dev:
            g = self.A.newlabel("pg"); j = self.A.newlabel("pj")
            self.I(f"s_cmp_lg_u32 {s(S_MODE)}, 0\ns_cbranch_scc1 {g}")
            self.A.L(j)
            self.cold.append((g, j, "s_waitcnt vmcnt(0)\nbuffer_inv sc1\ns_waitcnt vmcnt(0)"))
        self.I("s_waitcnt vmcnt(0)")
        self.loops[lab] = 0
        self.vm.q = []
    cold = []
    def flag_x_off(self, base, out):
        self.lin(out, [(S_I, 128), (S_J, 32, 1, None), (S_WAVE, 8), (S_J, 4, 0, 1)], base)
    def window(self, win, n1=6):
        win = win if win is not None else []
        self.emit_list(self.take(win, n1))
        self.vm.wait("st")
        self.signal(40)
        self.emit_list(win)
    @staticmethod
    def take(items, n):
        out = []
        while items and n > 0:
            it = items.pop(0); out.append(it)
            if it[0] == "v": n -= 1
        return out
    def emit_list(self, items):
        for it in items:
            if it[0] == "s": self.I(it[1])
            elif it[0] == "w": self.vm.wait(it[1])
            elif it[2] in self.cfg.skip: pass
            else: self.vm.issue(it[1], it[2])
    def collect(self, fn):
        keep = self.A; A2 = Asm(); self.A = A2
        fn(); self.A = keep
        return [("s", x.text) for x in A2.ins]
    def load_wfrags(self, regs, soff, tag):
        out = []
        for k, r in enumerate(regs):
            if k and k % 4 == 0: out.append(("s", f"s_add_u32 {s(soff)}, {s(soff)}, 4096"))
            out.append(("v", f"buffer_load_dwordx4 {R(r,4)}, v1, {WS}, {s(soff)} offen offset:{(k%4)*1024}", tag))
        return out
    def lin_dma(self, src_term, src_base, lds_base, n, sg, sl, tag):
        it = self.collect(lambda: (self.lin(sl, [(S_WAVE, n * 1024)], lds_base, layer=False, tmp=54),
                                   self.lin(sg, [src_term, (sl, 1)], src_base - lds_base + (1 << 32) if src_base < lds_base else src_base - lds_base, layer=False, tmp=54)))
        for k in range(n):
            if k and k % 4 == 0: it += [("s", f"s_add_u32 {s(sg)}, {s(sg)}, 4096"), ("s", f"s_add_u32 {s(sl)}, {s(sl)}, 4096")]
            it.append(("s", f"s_mov_b32 m0, {s(sl)}"))
            it.append(("v", f"buffer_load_dwordx4 v1, {WS}, {s(sg)} offen offset:{(k%4)*1024} lds", tag))
        return it
    def resid_setup(self, xbuf, statbuf, flagbuf):
        self.lin(38, [(S_G, L.GS), (S_I, 4 * L.XTS, 0, 3), (S_WAVE, L.XTS), (S_J, 5120, 1, None)], xbuf, layer=False)
        self.lin(39, [(S_J, 3072, 0, 1), (38, 1)], 0, layer=False)
        self.I(f"s_and_b32 s36, {s(S_J)}, 1\ns_lshl_b32 s36, s36, 3\ns_add_u32 s38, s38, s36")
        self.lin(41, [(S_G, L.GS), (S_I, 4 * 4096, 0, 3), (S_WAVE, 4096), (S_J, 2048, 0, 1), (S_J, 256, 1, None)], statbuf, layer=False)
        self.flag_x_off(flagbuf, 40)
        self.I("s_mov_b32 s66, 0x00003f80\ns_mov_b32 s67, 0x3f800000\ns_mov_b32 s68, 0x3f803f80")
        self.I("v_lshrrev_b32 v18, 1, v4\nv_lshlrev_b32 v18, 10, v18\nv_lshl_add_u32 v18, v3, 4, v18\nv_and_b32 v5, 1, v4\nv_lshl_add_u32 v18, v5, 3, v18")
    def resid_epilogue(self, acc, store=True, statreg=20):
        for i in range(10):
            self.I(f"v_dot2c_f32_bf16 {v(acc+2*i)}, s66, {v(XRES+i)}\nv_dot2c_f32_bf16 {v(acc+2*i+1)}, s67, {v(XRES+i)}")
        if store: self.I(f"v_mov_b32 {v(statreg)}, 0\nv_mov_b32 {v(statreg+1)}, 0")
        for i in range(10):
            self.I(f"v_cvt_pk_bf16_f32 {v(XRES+i)}, {v(acc+2*i)}, {v(acc+2*i+1)}")
            if store and i == 3: self.vm.issue(f"buffer_store_dwordx4 {v(XRES,4)}, v1, {WS}, s39 offen", "st")
            if store and i == 7: self.vm.issue(f"buffer_store_dwordx4 {v(XRES+4,4)}, v1, {WS}, s39 offen offset:1024", "st")
        if not store: return
        self.vm.issue(f"buffer_store_dwordx2 {v(XRES+8,2)}, v1, {WS}, s38 offen offset:2048", "st")
        for i in range(10):
            self.I(f"v_dot2c_f32_bf16 {v(statreg)}, s68, {v(XRES+i)}\nv_dot2c_f32_bf16 {v(statreg+1)}, {v(XRES+i)}, {v(XRES+i)}")
        self.vm.issue(f"buffer_store_dwordx2 {v(statreg,2)}, v18, {WS}, s41 offen", "st")
    def stat_loads(self, soff, voff, dst, tag):
        for n in range(4):
            self.vm.issue(f"buffer_load_dwordx4 {v(dst+4*n,4)}, v1, {WS}, {s(soff)} offen offset:{n*1024} sc1", tag)
    def stat_finish(self, src, dst, presummed=False, packed=True):
        if not packed:
            for n in range(8): self.I(f"v_add_f32 {v(src+n)}, {v(src+n)}, {v(src+8+n)}")
            for n in range(4): self.I(f"v_add_f32 {v(src+n)}, {v(src+n)}, {v(src+4+n)}")
            for n in range(2): self.I(f"v_add_f32 {v(src+n)}, {v(src+n)}, {v(src+2+n)}")
        elif not presummed:
            for n in range(4): self.I(f"v_pk_add_f32 {v(src+2*n,2)}, {v(src+2*n,2)}, {v(src+8+2*n,2)}")
            for n in range(2): self.I(f"v_pk_add_f32 {v(src+2*n,2)}, {v(src+2*n,2)}, {v(src+4+2*n,2)}")
            self.I(f"v_pk_add_f32 {v(src,2)}, {v(src,2)}, {v(src+2,2)}")
        emit_xg_reduce(self.A, [src, src + 1], src + 2)
        self.I(f"""v_mul_f32 {v(dst)}, {hexf(-1.0/640)}, {v(src)}
        v_mul_f32 {v(src+2)}, {v(dst)}, {v(dst)}
        v_mov_b32 {v(src+3)}, {hexf(1.0/640)}
        v_fma_f32 {v(src+1)}, {v(src+1)}, {v(src+3)}, -{v(src+2)}
        v_max_f32 {v(src+1)}, 0, {v(src+1)}
        v_add_f32 {v(src+1)}, {hexf(1e-5)}, {v(src+1)}
        v_rsq_f32 {v(dst+1)}, {v(src+1)}""")

    def csum_loads(self, reg, term, base, row, mask, tag):
        self.lin(36, [term, (S_WAVE, 5 * row)], base, layer=False, tmp=37)
        self.I(f"s_mov_b64 exec, {mask:#x}")
        for k in range(5): self.vm.issue(f"buffer_load_dwordx4 {v(reg+4*k,4)}, v1, {WS}, s36 offen offset:{k*row} sc1", tag)
        self.I("s_mov_b64 exec, -1")
    def csum_part(self, reg, slots, row, mask):
        for a_, b_ in ((0, 1), (2, 3), (0, 2), (0, 4)):
            for i in range(4): self.I(f"v_add_f32 {v(reg+4*a_+i)}, {v(reg+4*a_+i)}, {v(reg+4*b_+i)}")
        self.lin(36, [(S_WAVE, row)], slots, layer=False)
        self.I(f"v_add_u32 v7, s36, v1\ns_mov_b64 exec, {mask:#x}\nds_write_b128 v7, {v(reg,4)}\ns_mov_b64 exec, -1\ns_waitcnt lgkmcnt(0)")
    def csum_final(self, reg, slots, row, dst, mask):
        self.I(f"v_add_u32 v7, {slots}, v1\ns_mov_b64 exec, {mask:#x}")
        for w in range(4): self.I(f"ds_read_b128 {v(reg+4*w,4)}, v7 offset:{w*row}")
        self.I("s_waitcnt lgkmcnt(0)")
        for a_, b_ in ((0, 1), (2, 3), (0, 2)):
            for i in range(4): self.I(f"v_add_f32 {v(reg+4*a_+i)}, {v(reg+4*a_+i)}, {v(reg+4*b_+i)}")
        self.I(f"v_add_u32 v7, {dst}, v1\nds_write_b128 v7, {v(reg,4)}\ns_mov_b64 exec, -1\ns_waitcnt lgkmcnt(0)")
    def qkv_setup(self, l0):
        self.lin(43, [(S_I, 2 * L.KVT), (S_WAVE, L.KVT, 1, None)], L.KVB)
        self.lin(40, [(S_I, 32), (S_J, 4)], L.FL_KV)
        self.I(f"v_add_u32 v240, {WQ_LDS}, v1\nv_add_u32 v241, {WQ_LDS + 61440}, v1")
        if not l0:
            self.lin(30, [(S_G, L.GS), (S_I, 4 * L.XTS, 0, 3), (S_WAVE, L.XTS)], L.XIN, layer=False)
            self.lin(42, [(S_G, L.GS), (S_I, 4 * 4096, 0, 3), (S_WAVE, 4096)], L.STATIN, layer=False)
    def wq_round(self, n):
        it = self.collect(lambda: (self.lin(53, [(S_WAVE, 6144)], WQ_LDS + n * 24576, layer=False),
                                   self.lin(52, [(S_J, 120 * 1024), (53, 1)], L.WQF - WQ_LDS, layer=False)))
        for k in range(5):
            if k == 4: it += S_("s_add_u32 s52, s52, 4096\ns_add_u32 s53, s53, 4096")
            if k % 4 == 0: it.append(("s", "s_mov_b32 m0, s53"))
            it.append(("v", f"buffer_load_dwordx4 v1, {WS}, s52 offen offset:{(k%4)*1024} sc1 lds", ("r", n)))
        return it
    def wkv_frags(self):
        it = self.collect(lambda: (self.lin(53, [(S_WAVE, 5 * 6144)], WQ_LDS + 5120, layer=False),
                                   self.lin(52, [(S_J, 120 * 1024), (53, 1)], L.WQF - WQ_LDS, layer=False)))
        for k in range(5):
            if k: it += S_("s_add_u32 s52, s52, 6144\ns_add_u32 s53, s53, 6144")
            it += [("s", "s_mov_b32 m0, s53"), ("v", f"buffer_load_dwordx4 v1, {WS}, s52 offen sc1 lds", "kvw")]
        return it
    QX, QWB, QACC, QSL, QSTAT, QCS = 20, 100, 148, 196, 212, 216
    def qkv_sweep(self, tiles, ks, xwait=None, filler=None, first_reads=True):
        X, WB, ACC = self.QX, self.QWB, self.QACC
        n = len(tiles)
        seq = [(k, ft) for k in ks for ft in tiles]
        D = 8 if n > 1 else 6
        NB = 12
        def rd(i):
            k, ft = seq[i]
            self.I(f"ds_read_b128 {v(WB+4*(i%NB),4)}, v{240 + k//10} offset:{((k%10)*6+ft)*1024}")
        for i in range(min(D, len(seq))): rd(i)
        for i, (k, ft) in enumerate(seq):
            if xwait and ft == tiles[0]: xwait(k)
            self.I(f"s_waitcnt lgkmcnt({min(D - 1, len(seq) - 1 - i)})")
            d = ACC + 4 * ft
            self.I(f"v_mfma_f32_16x16x32_bf16 {v(d,4)}, {v(WB+4*(i%NB),4)}, {v(X+4*k,4)}, {'0' if k == 0 else v(d,4)}")
            if i + D < len(seq): rd(i + D)
            if filler: filler(i, k, ft)
    def cs_reads(self, tiles):
        self.I(f"v_lshlrev_b32 v6, 4, v4\nv_add_u32 v6, {M_CSQ}, v6")
        for ft in tiles: self.I(f"ds_read_b128 {v(self.QCS+4*ft,4)}, v6 offset:{ft*64}")
    def phase_qkv(self, l0):
        A, vm = self.A, self.vm
        X, WB, ACC, SL, ST, CS = self.QX, self.QWB, self.QACC, self.QSL, self.QSTAT, self.QCS
        if l0:
            self.I(f"""v_lshrrev_b32 v5, 2, v0
            v_mul_u32_u24 v5, 40, v5
            v_and_b32 v6, 3, v0
            v_lshl_add_u32 v5, v6, 3, v5
            s_and_b32 s36, {s(S_J)}, 1
            s_lshl_b32 s36, s36, 5
            s_add_u32 s36, s36, {KV0_LDS}
            v_add_u32 v242, s36, v5""")
            self.lin(37, [(S_J, 128)], L.FL_WQ, layer=False)
            self.I("v_min_u32 v6, 19, v0\nv_lshlrev_b32 v6, 2, v6")
            def rd(k):
                for u in range(2): self.I(f"ds_read_b64_tr_b16 {v(WB+4*(k%6)+2*u,2)}, v242 offset:{L.xk(k//5, k%5, u)*40}")
            for k in range(4): rd(k)
            self.poll(6, 37, dev=True)
            self.stamp("p0.wq")
            self.csum_loads(216, (S_J, 20 * 384), L.CSQP, 384, 0xfffff, "cs")
            dm = self.wq_round(0) + self.wq_round(1) + self.wq_round(2)
            for k in range(20):
                c = lambda r_: '0' if k == 0 else v(r_, 4)
                self.I(f"v_mfma_f32_16x16x32_bf16 {v(SL,4)}, v[192:195], {v(X+4*k,4)}, {c(SL)}")
                if k % 4 != 3: self.emit_list(self.take(dm, 1))
                self.I(f"v_mfma_f32_16x16x32_bf16 {v(SL+4,4)}, {v(X+4*k,4)}, {v(X+4*k,4)}, {c(SL+4)}")
                self.I(f"s_waitcnt lgkmcnt({min(6, 2*(19-k))})")
                self.I(f"v_mfma_f32_16x16x32_bf16 {v(ACC+20,4)}, {v(WB+4*(k%6),4)}, {v(X+4*k,4)}, {c(ACC+20)}")
                self.I(f"v_mfma_f32_16x16x32_bf16 {v(CS+20,4)}, {v(WB+4*(k%6),4)}, v[192:195], {c(CS+20)}")
                if k + 4 < 20: rd(k + 4)
            assert not dm
            self.I(f"""v_and_b32 v5, 3, v3
            v_lshrrev_b32 v6, 2, v3
            v_cmp_eq_u32 vcc, 1, v5
            v_cmp_eq_u32 s[62:63], 2, v5
            v_cndmask_b32 {v(SL+4)}, {v(SL+4)}, {v(SL+5)}, vcc
            v_cmp_eq_u32 vcc, 3, v5
            v_cndmask_b32 {v(SL+4)}, {v(SL+4)}, {v(SL+6)}, s[62:63]
            v_cmp_eq_u32 s[62:63], v6, v4
            v_cndmask_b32 {v(SL+4)}, {v(SL+4)}, {v(SL+7)}, vcc
            v_mul_f32 {v(SL)}, 0.25, {v(SL)}
            v_cndmask_b32 {v(SL+1)}, 0, {v(SL+4)}, s[62:63]""")
            self.stat_finish(SL, ST, presummed=True)
            self.I(f"""v_lshlrev_b32 v6, 4, v4
            v_add_u32 v6, {M_CSQ + 320}, v6
            s_mov_b32 exec_lo, 0x00010001
            s_mov_b32 exec_hi, 0x00010001
            ds_write_b128 v6, {v(CS+20,4)}
            s_mov_b64 exec, -1""")
        else:
            nl = [0]
            def load():
                k = nl[0]; nl[0] += 1
                if k and k % 4 == 0: self.I("s_add_u32 s30, s30, 4096")
                vm.issue(f"buffer_load_dwordx4 {v(X+4*k,4)}, v1, {WS}, s30 offen offset:{(k%4)*1024} sc1", ("x", k))
            while nl[0] < 7: load()
            self.cs_reads(range(6))
            self.I("s_waitcnt lgkmcnt(0)\ns_barrier")
            sh = self.collect(lambda: self.stat_finish(SL, ST, packed=False))
            tA = self.cfg.tA
            nA = len(tA)
            def fil(i, k, ft):
                if nl[0] < 20 and i % (nA - 1) == 0 + (nA > 2): load()
                if i == 2 * nA: self.stat_loads(42, 18, SL, "stat")
                if i == 10 * nA: vm.wait("stat")
                if i >= 10 * nA: self.emit_list(sh[:2 if nA > 2 else 3]); del sh[:2 if nA > 2 else 3]
            self.qkv_sweep(tA, range(20), xwait=lambda k: vm.wait(("x", k)), filler=fil)
            self.emit_list(sh)
        self.stamp("qkv.kv")
        self.I(f"v_mov_b32 {v(ST+2)}, {v(ST+1)}")
        KA = ACC + 20; KP = 172
        done = A.newlabel("kvdone"); vt = A.newlabel("kvv"); k1 = A.newlabel("kvk1"); jn = A.newlabel("kvj")
        self.I(f"s_lshr_b32 s36, {s(S_J)}, 2\ns_xor_b32 s48, s36, {s(S_WAVE)}\ns_and_b32 s48, s48, 1\ns_cbranch_scc1 {done}")
        for i in (0, 2): self.I(f"v_pk_fma_f32 {v(KA+i,2)}, {v(ST,2)}, {v(CS+20+i,2)}, {v(KA+i,2)} op_sel_hi:[0,1,1]")
        for i in (0, 2): self.I(f"v_pk_mul_f32 {v(KA+i,2)}, {v(ST+2,2)}, {v(KA+i,2)} op_sel_hi:[0,1]")
        self.I(f"v_cvt_pk_bf16_f32 {v(KP)}, {v(KA)}, {v(KA+1)}\nv_cvt_pk_bf16_f32 {v(KP+1)}, {v(KA+2)}, {v(KA+3)}")
        self.I(f"s_and_b32 s37, {s(S_WAVE)}, 1\ns_bitcmp1_b32 {s(S_J)}, 1\ns_cbranch_scc1 {vt}")
        self.I(f"s_lshl_b32 s37, s37, 4\nv_add_u32 v6, s37, v3\ns_bitcmp1_b32 {s(S_J)}, 0\ns_cbranch_scc1 {k1}")
        self.I(f"""v_lshrrev_b32 v7, 1, v4
        v_lshlrev_b32 v7, 9, v7
        v_lshl_add_u32 v7, v6, 4, v7
        v_and_b32 v6, 1, v4
        v_lshl_add_u32 v7, v6, 3, v7
        buffer_store_dwordx2 {v(KP,2)}, v7, {WS}, s43 offen sc1
        s_branch {jn}""")
        A.L(k1)
        self.I(f"""v_lshlrev_b32 v6, 3, v6
        s_mov_b64 exec, 0xffff
        buffer_store_dwordx2 {v(KP,2)}, v6, {WS}, s43 offen offset:1024 sc1
        s_mov_b64 exec, -1
        s_branch {jn}""")
        A.L(vt)
        self.I(f"""s_lshr_b32 s36, {s(S_WAVE)}, 1
        s_lshl_b32 s36, s36, 9
        s_add_u32 s36, s36, {M_VT}
        v_lshlrev_b32 v6, 7, v4
        v_lshl_add_u32 v6, v3, 1, v6
        v_add_u32 v6, s36, v6
        ds_write_b16 v6, {v(KP)}
        ds_write_b16_d16_hi v6, {v(KP)} offset:32
        ds_write_b16 v6, {v(KP+1)} offset:64
        ds_write_b16_d16_hi v6, {v(KP+1)} offset:96
        v_lshlrev_b32 v6, 5, v3
        v_lshl_add_u32 v6, v4, 3, v6
        v_add_u32 v6, s36, v6
        ds_read_b64 {v(KP+2,2)}, v6
        s_mul_i32 s37, s37, 768
        s_add_u32 s37, s43, s37
        s_and_b32 s36, {s(S_J)}, 1
        s_lshl_b32 s36, s36, 8
        s_add_u32 s37, s37, s36
        v_and_b32 v6, 1, v4
        v_mul_u32_u24 v6, 384, v6
        v_lshl_add_u32 v6, v3, 4, v6
        v_lshrrev_b32 v7, 1, v4
        v_lshl_add_u32 v6, v7, 3, v6
        s_cmp_lg_u32 s36, 0
        s_cselect_b32 s36, 4, 99
        s_cselect_b32 exec_lo, 0x00ff00ff, -1
        v_cmp_eq_u32 vcc, s36, v3
        v_mov_b32 v7, 0x3f803f80
        s_mov_b32 exec_hi, exec_lo
        s_waitcnt lgkmcnt(0)
        v_cndmask_b32 {v(KP+2)}, {v(KP+2)}, v7, vcc
        v_cndmask_b32 {v(KP+3)}, {v(KP+3)}, v7, vcc
        buffer_store_dwordx2 {v(KP+2,2)}, v6, {WS}, s37 offen offset:1280 sc1
        s_mov_b64 exec, -1""")
        self.I(f"s_branch {jn}")
        A.L(done)
        self.I(f"v_mov_b32 v6, {BIG}\nbuffer_store_dwordx2 {v(KP,2)}, v6, {WS}, 0 offen")
        A.L(jn)
        vm.q.append("kvst")
        self.stamp("qkv.kvst")
        if l0:
            later = {}
            it = self.wq_round(3) + self.wq_round(4)
            vm.wait(("r", 2))
            self.csum_part(216, M_CSQP, 384, 0xfffff)
            self.I("s_barrier")
            def filq(i, k, ft):
                if i % 2 == 1: self.emit_list(self.take(it, 1))
                if i == self.cfg.kvi0:
                    vm.wait("kvst")
                    self.I("s_barrier")
                    sk = A.newlabel("kvsig")
                    self.I(f"s_cmp_lg_u32 {s(S_WAVE)}, 0\ns_cbranch_scc1 {sk}")
                    self.signal(40, dev=True, val=S_TAG); vm.q.pop()
                    A.L(sk)
            self.qkv_sweep([0, 1, 2, 3, 4], range(12), filler=filq)
            vm.wait(("r", 4))
            self.I("s_barrier")
            self.csum_final(216, M_CSQP, 384, M_CSQ, 0xfffff)
            self.qkv_sweep([0, 1, 2, 3, 4], range(12, 20))
            self.cs_reads(range(5))
            self.emit_list(later.get(5, []))
            self.I("s_waitcnt lgkmcnt(0)")
        else:
            def filb(i, k, ft):
                if i == self.cfg.kvi:
                    self.I("s_waitcnt vmcnt(0)\ns_barrier"); vm.q = []
                    sk = A.newlabel("kvsig")
                    self.I(f"s_cmp_lg_u32 {s(S_WAVE)}, 0\ns_cbranch_scc1 {sk}")
                    self.signal(40, dev=True, val=S_TAG)
                    A.L(sk)
            self.qkv_sweep([t_ for t_ in range(5) if t_ not in tA], range(20), filler=filb)
        self.stamp("qkv.mm")
        c = math.log2(math.e) / math.sqrt(20.0)
        self.I(f"v_mul_f32 {v(ST+2)}, {hexf(c)}, {v(ST+1)}")
        for i in range(0, 20, 2): self.I(f"v_pk_fma_f32 {v(ACC+i,2)}, {v(ST,2)}, {v(CS+i,2)}, {v(ACC+i,2)} op_sel_hi:[0,1,1]")
        for i in range(0, 20, 2): self.I(f"v_pk_mul_f32 {v(ACC+i,2)}, {v(ST+2,2)}, {v(ACC+i,2)} op_sel_hi:[0,1]")
        P = 176
        for i in range(8): self.I(f"v_cvt_pk_bf16_f32 {v(P+i)}, {v(ACC+2*i)}, {v(ACC+2*i+1)}")
        self.I(f"v_cvt_pk_bf16_f32 {v(P+8)}, {v(ACC+16)}, {v(ACC+17)}\nv_mov_b32 {v(P+9)}, 0")
        self.I(f"v_cvt_pk_bf16_f32 {v(P+10)}, {v(ACC+18)}, {v(ACC+19)}\nv_mov_b32 {v(P+11)}, 0")
        self.lin(36, [(S_WAVE, AT.QST_Q, 1, None)], QST, layer=False, tmp=37)
        self.I(f"""s_and_b32 s37, {s(S_WAVE)}, 1
        s_lshl_b32 s37, s37, 4
        v_add_u32 v6, s37, v3
        v_mul_u32_u24 v7, {2*AT.QST_Q}, v4
        v_add_u32 v7, s36, v7
        v_lshl_add_u32 v5, v6, 4, v7
        v_lshl_add_u32 v6, v6, 3, v7""")
        self.I(f"""ds_write_b128 v5, {v(P,4)}
        ds_write_b128 v5, {v(P+4,4)} offset:512
        ds_write_b64 v6, {v(P+8,2)} offset:1024
        ds_write_b64 v6, {v(P+10,2)} offset:{1024+256}""")
        self.I("s_waitcnt lgkmcnt(0)\ns_barrier")
        self.stamp("qkv.epi")

    def pieces(self, n16, magic, pitch, dst, cmax=None):
        self.I(f"s_movk_i32 s52, {magic}\ns_movk_i32 s53, {pitch}\ns_add_u32 s46, s46, s44")
        for q in range(n16 // 2):
            self.I(f"""v_add_u32 v5, {64*q}, v0
            v_mul_u32_u24 v6, s52, v5
            v_lshrrev_b32 v6, 16, v6
            v_mul_u32_u24 v7, {n16}, v6
            v_sub_u32 v5, v5, v7
            v_lshrrev_b32 v7, 4, v6
            v_mul_u32_u24 v18, s32, v7
            v_bfe_u32 v7, v6, 3, 1
            v_mad_u32_u24 v18, v7, s33, v18
            v_bfe_u32 v7, v6, 2, 1
            v_mad_u32_u24 v18, v7, s34, v18
            v_and_b32 v6, 3, v6
            v_add3_u32 v18, v18, v6, s31
            v_mul_u32_u24 v18, s53, v18
            v_lshl_add_u32 v18, v5, 4, v18""")
            if cmax is not None:
                self.I(f"v_cmp_le_u32 vcc, {s(cmax)}, v5\nv_mov_b32 v7, {BIG}\nv_cndmask_b32 v7, 0, v7, vcc\nv_add_u32 v18, v18, v7")
            self.I(f"v_add_u32 {v(dst+q)}, s46, v18")
    PA = 244
    def prep_dma_items(self):
        it = []
        for q in range(7):
            it += [("s", f"s_add_u32 m0, s{72 if q < 5 else 65}, {q*1024}"), ("v", f"buffer_load_dwordx4 {v(self.PA+q)}, {s(SRD_SRC,4)}, 0 offen lds", "prep")]
        if self.cfg.ptouch:
            it += [("s", "v_lshlrev_b32 v253, 7, v0"), ("v", f"buffer_load_dword v254, v253, {WS}, s70 offen", "prep")]
        return it
    def prep_issue(self):
        A = self.A
        lab = {k: A.newlabel("pp" + k) for k in ("w2", "w1", "none", "n10", "end", "pad")}
        self.I(f"""s_lshl_b32 s30, s2, 1
        s_and_b32 s31, {s(S_WAVE)}, 1
        s_add_u32 s30, s30, s31
        s_movk_i32 s31, 192
        s_cmp_lt_u32 s2, 160
        s_cselect_b32 s31, 608, s31
        s_cmp_lt_u32 {s(S_WAVE)}, 2
        s_cselect_b32 s31, s31, 0
        s_add_u32 s30, s30, s31
        s_cmp_ge_u32 s2, 208
        s_cselect_b32 s31, 1024, 0
        s_cmp_lt_u32 {s(S_WAVE)}, 2
        s_cselect_b32 s31, s31, 0
        s_add_u32 s30, s30, s31
        s_min_u32 s31, {s(S_WAVE)}, 2
        s_mul_i32 s72, s31, 7168
        s_cmp_eq_u32 {s(S_WAVE)}, 3
        s_cselect_b32 s31, 5120, 0
        s_add_u32 s72, s72, s31
        s_add_u32 s72, s72, {PREP_LDS}
        s_cmp_lt_u32 {s(S_WAVE)}, 2
        s_cselect_b32 s65, s72, {0xffffec00 if self.cfg.pdma != 9 else 83968 - 5120}""")
        for q in range(7): self.I(f"v_mov_b32 {v(self.PA+q)}, {BIG}")
        self.I(f"s_cmp_ge_u32 s30, 928\ns_cbranch_scc1 {lab['none']}\ns_cmp_ge_u32 s30, 608\ns_cbranch_scc1 {lab['w1']}\ns_cmp_ge_u32 s30, 160\ns_cbranch_scc1 {lab['w2']}")
        self.I(f"""s_lshr_b32 s47, s30, 3          ; ks
        s_and_b32 s48, s30, 7           ; j
        s_mul_i32 s49, s47, 52
        s_lshr_b32 s49, s49, 8          ; w = ks/5
        s_mul_i32 s50, s49, 5
        s_sub_u32 s50, s47, s50         ; s
        s_mul_i32 s31, s49, 160
        s_mul_i32 s32, s50, 40
        s_cmp_gt_u32 s50, 2
        s_cselect_b32 s33, 40, 0
        s_sub_u32 s32, s32, s33
        s_cmp_eq_u32 s50, 2
        s_cselect_b32 s32, 16, s32
        s_add_u32 s31, s31, s32
        s_cmp_eq_u32 s50, 2
        s_cselect_b32 s32, 80, 8
        s_cselect_b32 s33, 40, 20
        s_cselect_b32 s34, 20, 4
        s_mov_b32 s44, 0
        s_mov_b32 s45, 0
        s_mul_i32 s46, s48, 160
        s_mul_i32 s70, s48, 20
        s_add_u32 s70, s70, s47
        s_mul_i32 s70, s70, 5120
        s_add_u32 s70, s70, {L.WOF}
        s_mov_b32 {s(SRD_SRC)}, s96
        s_mov_b32 {s(SRD_SRC+1)}, s97
        s_mov_b32 {s(SRD_SRC+2)}, {640*640*2}
        s_branch {lab['n10']}""")
        A.L(lab['w2'])
        self.I(f"""s_sub_u32 s30, s30, 160
        s_lshr_b32 s47, s30, 3          ; r = w*14+s
        s_and_b32 s48, s30, 7           ; j
        s_mul_i32 s49, s47, 37
        s_lshr_b32 s49, s49, 8
        s_mul_i32 s50, s49, 7
        s_sub_u32 s50, s47, s50         ; sp
        s_lshl_b32 s49, s49, 1          ; 2q""")
        for u in range(2):
            self.I(f"""s_cmp_gt_u32 s50, 3
            s_cselect_b32 s52, 1, 0
            s_cselect_b32 s53, 4, 0
            s_sub_u32 s53, s50, s53
            s_lshl_b32 s53, s53, 1
            s_add_u32 s53, s53, {u}
            s_cmp_eq_u32 s50, 3
            s_cselect_b32 s52, {u}, s52
            s_cselect_b32 s53, 6, s53
            s_add_u32 s52, s52, s49""")
            emit_realtile(A, 52, 53, 31 + u, 44 + u, 54)
        self.I(f"""s_lshl_b32 s31, s31, 4
        s_lshl_b32 s32, s32, 4
        s_sub_u32 s32, s32, s31
        s_mov_b32 s33, 8
        s_mov_b32 s34, 4
        s_mul_i32 s46, s48, 160
        s_mul_i32 s70, s48, 56
        s_add_u32 s70, s70, s47
        s_mul_i32 s70, s70, 5120
        s_add_u32 s70, s70, {L.W2F}
        s_mov_b32 {s(SRD_SRC)}, s100
        s_mov_b32 {s(SRD_SRC+1)}, s101
        s_mov_b32 {s(SRD_SRC+2)}, {1728*640*2}""")
        A.L(lab['n10'])
        self.pieces(10, 6554, 1280, self.PA)
        self.I(f"s_mov_b32 s69, 5\ns_branch {lab['end']}")
        A.L(lab['w1'])
        self.I(f"""s_sub_u32 s30, s30, 608
        s_lshr_b32 s47, s30, 4          ; ks
        s_and_b32 s48, s30, 15          ; j'
        s_mul_i32 s49, s47, 52
        s_lshr_b32 s49, s49, 8
        s_mul_i32 s50, s49, 5
        s_sub_u32 s50, s47, s50""")
        emit_xk(A, 49, 50, 31, 32)
        self.I("s_mov_b32 s53, 0"); emit_realtile(A, 48, 53, 46, 44, 54)
        self.I(f"""s_lshl_b32 s46, s46, 5
        s_mov_b32 s33, 8
        s_mov_b32 s34, 4
        s_mov_b32 s44, 0
        s_mov_b32 s45, 0
        s_cmp_lt_u32 s48, 12
        s_cselect_b32 s54, 14, 12
        s_mul_i32 s70, s48, 20
        s_add_u32 s70, s70, s47
        s_mul_i32 s71, s70, 448
        s_add_u32 s71, s71, {L.CS1P}
        s_mul_i32 s70, s70, 7168
        s_add_u32 s70, s70, {L.W1F}
        s_mov_b32 {s(SRD_SRC)}, s98
        s_mov_b32 {s(SRD_SRC+1)}, s99
        s_mov_b32 {s(SRD_SRC+2)}, {640*1728*2}""")
        self.pieces(14, 4682, 3456, self.PA, cmax=54)
        self.I(f"s_mov_b32 s69, 7\ns_branch {lab['end']}")
        A.L(lab['none'])
        self.I(f"s_mov_b32 s69, 0\ns_mov_b32 s70, {BIG}")
        A.L(lab['end'])
    PF = 160
    def prep_read(self):
        A = self.A; F = self.PF
        l7 = A.newlabel("pf7"); end = A.newlabel("pfe"); l0_ = A.newlabel("pf0")
        self.I(f"s_waitcnt vmcnt(0)\ns_cmp_eq_u32 s69, 0\ns_cbranch_scc1 {l0_}\ns_cmp_eq_u32 s69, 7\ns_cbranch_scc1 {l7}")
        def body(n, P):
            self.I(f"v_lshrrev_b32 v5, 2, v0\nv_and_b32 v6, 3, v0\nv_mul_u32_u24 v5, {P}, v5\nv_lshl_add_u32 v5, v6, 3, v5\nv_add_u32 v5, s72, v5")
            for ft in range(n):
                for u in range(2): self.I(f"ds_read_b64_tr_b16 {v(F+4*ft+2*u,2)}, v5 offset:{u*16*P + ft*32}")
        body(5, 160)
        self.I(f"s_add_u32 s72, s70, 4096\ns_mov_b32 s69, {BIG}\ns_mov_b32 s71, {BIG}\ns_branch {end}")
        A.L(l0_)
        self.I(f"s_mov_b32 s70, {BIG}\ns_mov_b32 s72, {BIG}\ns_mov_b32 s69, {BIG}\ns_mov_b32 s71, {BIG}\ns_branch {end}")
        A.L(l7)
        body(7, 224)
        self.I("s_add_u32 s72, s70, 4096\ns_mov_b32 s69, s72\ns_waitcnt lgkmcnt(0)")
        for i in range(4): self.I(f"v_mov_b32 v{216+i}, 0x3f803f80")
        for ft in range(7): self.I(f"v_mfma_f32_16x16x32_bf16 {v(F+28+4*ft,4)}, {v(F+4*ft,4)}, v[216:219], 0")
        for ft in range(1, 7):
            self.I(f"s_mov_b32 exec_lo, {0x00010001 << ft:#x}\ns_mov_b32 exec_hi, {0x00010001 << ft:#x}")
            for i in range(4): self.I(f"v_mov_b32 {v(F+28+i)}, {v(F+28+4*ft+i)}")
        self.I("s_mov_b64 exec, -1")
        A.L(end)
        self.I(f"v_lshlrev_b32 v220, 6, v3\nv_lshl_add_u32 v220, v4, 4, v220\nv_mov_b32 v5, {BIG}\nv_cmp_lt_u32 vcc, 6, v3\nv_cndmask_b32 v220, v220, v5, vcc\ns_waitcnt lgkmcnt(0)")
    def prep_store_items(self):
        F = self.PF
        it = [("v", f"buffer_store_dwordx4 {v(F+4*ft,4)}, v1, {WS}, s{70 if ft < 4 else 72 if ft == 4 else 69} offen offset:{(ft%4)*1024} sc1", "pst") for ft in range(7)]
        return it + [("v", f"buffer_store_dwordx4 {v(F+28,4)}, v220, {WS}, s71 offen sc1", "pst")]
    def wq_unit_addr(self):
        self.I(f"""s_lshr_b32 s47, s2, 3
        s_and_b32 s48, s2, 7
        s_mul_i32 s49, s47, 52
        s_lshr_b32 s49, s49, 8
        s_mul_i32 s50, s49, 5
        s_sub_u32 s50, s47, s50""")
        emit_xk(self.A, 49, 50, 31, 32)
        self.I(f"""s_mov_b32 s33, 8
        s_mov_b32 s34, 4
        s_mov_b32 s44, 0
        s_mov_b32 s45, 0
        s_mul_i32 s46, s48, 160
        s_mul_i32 s67, s48, 20
        s_add_u32 s67, s67, s47
        s_mul_i32 s68, s67, 384
        s_add_u32 s68, s68, {L.CSQP}
        s_mul_i32 s67, s67, 6144
        s_add_u32 s67, s67, {L.WQF}
        s_lshl_b32 s66, s48, 5
        s_add_u32 s66, s66, s47
        s_lshl_b32 s66, s66, 2
        s_add_u32 s66, s66, {L.FL_WQ}""")
        self.pieces(10, 6554, 1280, 100)
    def wq_unit_issue(self):
        for q in range(5): self.I(f"s_mov_b32 m0, {WQP_LDS + q*1024}\nbuffer_load_dwordx4 {v(100+q)}, {s(SRD_WQ,4)}, 0 offen lds")
        self.I(f"""s_mul_i32 s31, s31, 40
        s_mul_i32 s32, s32, 40
        s_add_u32 s32, s32, s31
        s_mov_b32 m0, {WQP_LDS + 5120}
        s_nop 0
        buffer_load_dwordx4 v1, {s(SRD_KV,4)}, s31 offen lds
        s_mov_b32 m0, {WQP_LDS + 6144}
        s_nop 0
        buffer_load_dwordx4 v1, {s(SRD_KV,4)}, s32 offen lds""")
    def wq_unit_finish(self):
        F = 132
        self.I(f"""v_lshrrev_b32 v5, 2, v0
        v_and_b32 v6, 3, v0
        v_mul_u32_u24 v7, 160, v5
        v_mad_u32_u24 v7, v6, 40, v7
        v_add_u32 v7, {WQP_LDS}, v7
        v_mul_u32_u24 v5, 40, v5
        v_lshl_add_u32 v5, v6, 3, v5
        s_and_b32 s36, s2, 1
        s_lshl_b32 s36, s36, 5
        s_add_u32 s36, s36, {WQP_LDS + 5120}
        v_add_u32 v5, s36, v5""")
        for ft in range(5):
            for u in range(2): self.I(f"ds_read_b64_tr_b16 {v(F+4*ft+2*u,2)}, v7 offset:{u*16*160 + ft*8}")
        for u in range(2): self.I(f"ds_read_b64_tr_b16 {v(F+20+2*u,2)}, v5 offset:{u*1024}")
        for ft in range(6):
            self.I(f"s_waitcnt lgkmcnt({2*(5-ft)})")
            if ft == 4: self.I("s_add_u32 s67, s67, 4096")
            self.I(f"buffer_store_dwordx4 {v(F+4*ft,4)}, v1, {WS}, s67 offen offset:{(ft%4)*1024} sc1")
        for ft in range(6): self.I(f"v_mfma_f32_16x16x32_bf16 {v(F+24+4*ft,4)}, {v(F+4*ft,4)}, v[192:195], 0")
        self.I("v_lshlrev_b32 v5, 4, v4\ns_mov_b32 exec_lo, 0x00010001\ns_mov_b32 exec_hi, 0x00010001")
        for ft in range(6): self.I(f"buffer_store_dwordx4 {v(F+24+4*ft,4)}, v5, {WS}, s68 offen offset:{ft*64} sc1")
        self.I("s_mov_b64 exec, -1")
    def x0_issue(self):
        self.lin(30, [(S_I, 64 * 1280), (S_WAVE, 16 * 1280)], 0, layer=False)
        self.lin(64, [(S_WAVE, 20480)], X0_LDS, layer=False)
        for a_ in range(4):
            self.I(f"v_add_u32 v5, {4*a_}, v4\nv_xor_b32 v5, v5, v3\nv_lshlrev_b32 v5, 4, v5\nv_mad_u32_u24 {v(100+a_)}, v4, s54, v5")
        self.I(f"s_lshl_b32 s36, {s(S_WAVE)}, 2\nv_add_u32 v5, s36, v4\nv_xor_b32 v5, v5, v3\nv_lshlrev_b32 v5, 4, v5\nv_mad_u32_u24 v105, v4, s54, v5")
        self.I(f"s_cmp_eq_u32 {s(S_WAVE)}, 0\ns_cbranch_scc1 L_x0done")
        if self.cfg.xtouch:
            self.lin(32, [(S_I, 64 * 1280), (S_J, 10240), (S_WAVE, 8192, 1, 1)], 0, layer=False)
            self.lin(33, [(S_C, 8192, 2, 3)], 0, layer=False)
            self.I(f"""v_lshlrev_b32 v5, 7, v0
            s_cmp_eq_u32 {s(S_WAVE)}, 3
            s_cbranch_scc1 L_xt3
            buffer_load_dword v254, v5, {s(SRD_X,4)}, s32 offen
            s_branch L_xt4""")
            self.A.L("L_xt3")
            self.I(f"buffer_load_dword v254, v5, {s(SRD_KV2,4)}, s33 offen")
            self.A.L("L_xt4")
        for a_ in range(4):
            for b_ in range(5):
                self.I(f"s_add_u32 m0, s64, {(a_*5+b_)*1024}\ns_add_u32 s32, s30, {a_*5120 + b_*256}")
                self.I(f"buffer_load_dwordx4 {v(100+a_)}, {s(SRD_X,4)}, s32 offen lds")
        self.lin(30, [(S_I, 64 * 1280)], 0, layer=False)
        self.lin(31, [(S_WAVE, 5120)], 0, layer=False)
        for b_ in range(5):
            self.I(f"s_add_u32 m0, s31, {X0_LDS + b_*1024}\ns_add_u32 s32, s30, s31\ns_add_u32 s32, s32, {b_*256}")
            self.I(f"buffer_load_dwordx4 v105, {s(SRD_X,4)}, s32 offen lds")
        for n in range(2):
            self.I(f"s_lshl_b32 s31, {s(S_WAVE)}, 1\ns_add_u32 s31, s31, {n}\ns_sub_u32 s31, s31, 2\ns_min_u32 s31, s31, 4")
            self.I(f"s_lshl_b32 s32, s31, 10\ns_add_u32 m0, s32, {X0_LDS}\ns_lshl_b32 s32, s31, 8\ns_add_u32 s32, s32, s30")
            self.I(f"buffer_load_dwordx4 v100, {s(SRD_X,4)}, s32 offen lds")
        self.I(f"s_sub_u32 s31, {s(S_WAVE)}, 1\ns_mul_i32 s52, s31, 9216\ns_add_u32 s53, s52, {KV0_LDS}")
        for k in range(9):
            if k and k % 4 == 0: self.I("s_add_u32 s52, s52, 4096\ns_add_u32 s53, s53, 4096")
            if k % 4 == 0: self.I("s_mov_b32 m0, s53")
            self.I(f"buffer_load_dwordx4 v1, {s(SRD_KV2,4)}, s52 offen offset:{(k%4)*1024} lds")
        self.A.L("L_x0done")
    def x0_read(self, X, SL):
        self.I(f"""v_lshrrev_b32 v5, 1, v4
        v_xor_b32 v5, v5, v3
        v_lshlrev_b32 v5, 4, v5
        v_and_b32 v6, 1, v4
        v_lshl_add_u32 v5, v6, 3, v5
        v_lshrrev_b32 v6, 2, v3
        v_mul_u32_u24 v6, 5120, v6
        v_and_b32 v7, 3, v3
        v_lshl_add_u32 v6, v7, 8, v6
        v_add3_u32 v104, v5, v6, s64""")
        for c in range(1, 8): self.I(f"v_xor_b32 {v(104+c)}, {c*32}, v104")
        for k in range(20):
            for u in range(2):
                x = 2 * L.xk(k // 5, k % 5, u)
                self.I(f"ds_read_b64 {v(X+4*k+2*u,2)}, {v(104 + ((x >> 5) & 7))} offset:{(x >> 8) * 1024}")
        for ft in range(5):
            self.I(f"""s_mul_i32 s36, {s(S_J)}, 160
            s_add_u32 s36, s36, {32*ft}
            s_and_b32 s37, s36, 0xe0
            s_lshr_b32 s36, s36, 8
            s_lshl_b32 s36, s36, 10
            v_xor_b32 v5, s37, v104
            v_add_u32 v5, s36, v5
            ds_read_b64 {v(XRES+2*ft,2)}, v5""")
        self.I("s_waitcnt lgkmcnt(0)")
    def x0_stats(self, X, SL):
        it = S_(f"v_mov_b32 {v(SL)}, 0\nv_mov_b32 {v(SL+1)}, 0\nv_mov_b32 {v(SL+2)}, 0\nv_mov_b32 {v(SL+3)}, 0")
        for i in range(0, 80, 2):
            it += S_(f"""v_dot2c_f32_bf16 {v(SL)}, v192, {v(X+i)}
            v_dot2c_f32_bf16 {v(SL+1)}, {v(X+i)}, {v(X+i)}
            v_dot2c_f32_bf16 {v(SL+2)}, v192, {v(X+i+1)}
            v_dot2c_f32_bf16 {v(SL+3)}, {v(X+i+1)}, {v(X+i+1)}""")
        return it + S_(f"v_pk_add_f32 {v(SL,2)}, {v(SL,2)}, {v(SL+2,2)}")

    def phase_att(self):
        A, vm = self.A, self.vm
        r = AT.AttRegs(20, 256)
        assert r.end <= 156
        A.L("L_att")
        pk0 = A.newlabel("kvp0")
        self.I(f"s_add_u32 s31, {s(S_L)}, {L.FL_KV}\ns_cmp_lg_u32 {s(S_WAVE)}, 0\ns_cbranch_scc1 {pk0}\nbuffer_load_dwordx4 v[156:159], v1, {WS}, s31 offen sc1")
        A.L(pk0)
        self.I("s_mov_b32 s59, 384\ns_mov_b32 s58, 0x3f803f80")
        self.I(f"s_add_u32 s56, {s(S_L)}, {L.KVB}")
        w1w = self.cfg.w1warm * 128
        self.lin(51, [(S_JP, 140 * 1024), (S_C, 4 * w1w, 4, 1), (S_WAVE, w1w)], L.W1F + W1AA * 1024, layer=False, tmp=54)
        self.lin(55, [(S_J, 280 * 1024), (S_WAVE, 70 * 1024), (S_C, 9472, 3, 3)], L.W2F + W2A * 1024, layer=False, tmp=54)
        self.lin(50, [(S_J, 280 * 1024), (S_WAVE, 70 * 1024)], L.W2F, layer=False, tmp=54)
        assert L.GS <= 128 * 7 * 2048 and L.GS % (128 * 128) == 0
        self.lin(47, [(S_G, L.GS), (S_C, 4 * 2048), (S_WAVE, 2048)], L.GBASE, layer=False)
        if self.cfg.t0: self.I(f"s_cmp_eq_u32 {s(S_L)}, 0\ns_cselect_b32 s47, s47, {BIG}")
        if self.cfg.sect:
            self.I(f"v_lshrrev_b32 v5, 1, v0\nv_lshlrev_b32 v5, 6, v5\nv_and_b32 v6, 1, v0\nv_lshl_add_u32 {v(r.t+5)}, v6, 2, v5")
        else:
            self.I(f"v_lshrrev_b32 v5, 2, v0\nv_lshlrev_b32 v5, 7, v5\nv_and_b32 v6, 3, v0\nv_lshl_add_u32 {v(r.t+5)}, v6, 2, v5")
        self.I(f"v_lshlrev_b32 {v(r.pf)}, 7, v0")
        pf = lambda sg: ("v", f"buffer_load_dword v18, {v(r.pf)}, {WS}, s{sg} offen", "pf")
        self.w2_items = self.load_wfrags([w2_reg(k) for k in range(70)], 50, "w2")
        w2a = self.take(self.w2_items, W2A)
        wo1 = self.lin_dma((S_J, 100 * 1024), L.WOF, WO_LDS, 25, 52, 53, "wo") + self.lin_dma((S_JP, 140 * 1024), L.W1F, W1A_LDS, 5, 52, 53, "wo")
        self.emit_list(wo1[:[it[0] for it in wo1].index("v") - 1]); wo1 = wo1[[it[0] for it in wo1].index("v") - 1:]
        touch = [[("v", f"buffer_load_dword v18, {v(r.t+5)}, {WS}, s47 offen", "touch"), ("s", f"s_add_u32 s47, s47, {128*2048}")] for _ in range(0 if self.cfg.dst else 7)]
        tq = touch; touch = [] if self.cfg.tpos else touch
        t16 = lambda sg: [("v", f"buffer_load_dword v18, {v(r.t+5)}, {WS}, s{sg} offen", f"pf{sg}"), ("s", f"s_add_u32 s{sg}, s{sg}, 2048")]
        warm = [t16(55) for _ in range(self.cfg.w2warm)] + [t16(51) for _ in range(-(-w1w // 2048))]
        if self.cfg.otouch:
            self.lin(49, [(S_G, 327680), (S_C, 10240), (S_WAVE, 2560)], 0, layer=False, tmp=54)
            self.I(f"s_cmp_lg_u32 {s(S_L)}, 0\ns_cselect_b32 s49, s49, {BIG}")
            warm += [[("v", f"buffer_load_dword v18, {v(r.t+5)}, s[8:11], s49 offen offset:{o_}", "ot")] for o_ in (0, 2048)]
        p1 = []
        if self.cfg.ahead:
            self.lin(44, [(S_J, 280 * 1024), (S_WAVE, 70 * 1024), (S_C, 9984, 3, 3)], L.W2F, layer=False, tmp=54)
            self.lin(45, [(S_J, 100 * 1024), (S_C, 18432, 3, 3), (S_WAVE, 4608)], L.WOF, layer=False, tmp=54)
            for n in range(5): p1 += t16(44) + (t16(45) if n < 3 else [])
            for n in range(self.cfg.ahead): p1 += warm.pop(0)
        for n in range(63):
            p1 += self.take(w2a if (n % 2 == 0 and w2a) or not wo1 else wo1, 1)
            if n % self.cfg.tstep == 3 and touch: p1 += touch.pop(0)
            if n >= self.cfg.wstart and (n - self.cfg.wstart) % self.cfg.wstep == 0 and warm: p1 += warm.pop(0)
        p1 += w2a + wo1 + sum(warm, []); warm = []
        if self.cfg.nta: p1 = [(it[0], it[1].replace(' lds', ' nt lds') if it[2] == 'wo' else it[1] + ' nt', it[2]) if it[0] == 'v' and it[2] in ('w2', 'wo') else it for it in p1]
        assert not warm and not touch
        self.I(f"s_mov_b32 s48, {L.FL_PREP}")
        self.lin(46, [(2, 4)], L.FL_PREP, layer=False)
        AT.emit_kv_addr(A, r, 0, S_WAVE, 56)
        self.lin(44, [(S_G, L.GS), (S_I, 4 * L.XTS, 0, 3), (S_J, 5120, 1, None)], L.OFB, layer=False)
        self.lin(45, [(S_J, 8, 0, 1), (S_WAVE, 256), (44, 1)], 2048, layer=False)
        self.I(f"v_bfe_u32 v5, v0, 4, 1\nv_lshrrev_b32 {v(r.t+3)}, 5, v0\nv_mul_u32_u24 v5, {L.XTS}, v5\nv_lshlrev_b32 {v(r.t+4)}, 4, v3\nv_add3_u32 {v(r.t+4)}, {v(r.t+4)}, v5, s45")
        self.lin(45, [(S_J, 3072, 0, 1), (S_WAVE, 1024, 1, None), (S_WAVE, 512, 0, 1), (44, 1)], 0, layer=False)
        self.I(f"v_lshlrev_b32 {v(r.t+3)}, 8, {v(r.t+3)}\nv_lshl_add_u32 {v(r.t+3)}, v3, 4, {v(r.t+3)}\nv_add3_u32 {v(r.t+3)}, {v(r.t+3)}, v5, s45")
        if self.cfg.dst:
            self.resid_setup(L.XMID, L.STATMID, L.FL_X1)
            self.I(f"v_mov_b32 {v(r.pf)}, v18")
            self.h_addr()
            self.I(f"s_add_u32 s34, s41, {L.STATIN - L.STATMID}\ns_mov_b32 s30, {2*L.XTS}")
            self.I(f"s_mov_b32 s16, s4\ns_mov_b32 s17, s5\ns_or_b32 s36, {s(S_L)}, {s(S_RETRY)}\ns_cselect_b32 s18, 0, s6\ns_mov_b32 s19, 0x20000")
            D = lambda ad, so, off=0: [("v", f"buffer_store_dword v0, {ad}, s[16:19], {so} offen offset:{off}", "touch")]
            dst = [D(v(r.t+3), "0"), D(v(r.t+3), "s30"), D(v(r.t+4), "0"), D(v(r.t+4), "s30"),
                   D("v1", "s39"), D("v1", "s39", 1024), D("v1", "s38", 2048), D(v(r.pf), "s41")]
            for e in range(2): dst += [D("v1", f"s{44+e}", q * 1024) for q in range(3)] + [D("v1", f"s{32+e}", 3072)]
            dst += [D(v(r.pf), "s34")]
        self.flag_x_off(L.FL_O, 40)
        if self.cfg.ct2:
            self.I("s_getpc_b64 s[62:63]") if False else None
            self.I("s_getpc_b64 s[42:43]")
            A.L("L_pc1")
            self.lin(36, [(S_C, 4), (S_WAVE, 1)], 0, layer=False, tmp=37)
            self.I(f"s_and_b32 s36, s36, 15\ns_lshl_b32 s36, s36, 11\ns_add_u32 s36, s36, L_chain-L_pc1\nv_add_u32 {v(r.pf)}, s36, {v(r.t+5)}\nv_min_u32 {v(r.pf)}, L_end-L_pc1, {v(r.pf)}")
        AT.emit_att_pre(self, r, 0, S_WAVE, QST, RED_A)
        pk = A.newlabel("kvp")
        self.I(f"s_cmp_lg_u32 {s(S_WAVE)}, 0\ns_cbranch_scc1 {pk}")
        self.poll(1, 31, dev=True, wide=True, pre=True)
        self.I(f"""v_cmp_ne_u32 vcc, 0, v156
        s_lshl_b32 s36, {s(S_G)}, 3
        v_mov_b32 v6, {M_MODE}
        s_lshr_b64 s[64:65], vcc, s36
        s_and_b32 s64, s64, 0xff
        s_cselect_b32 s64, 1, {1 if self.cfg.force_global else 0}
        v_mov_b32 v7, s64
        ds_write_b32 v6, v7
        s_waitcnt lgkmcnt(0)""")
        A.L(pk)
        self.I("s_barrier")
        self.stamp("kv.poll")
        ev2 = {}
        pf_ = A.newlabel('pfl')
        def check():
            ok = A.newlabel("prepok"); again = A.newlabel("prepagain")
            it = S_(f"s_mov_b32 s35, 0\n{again}:\ns_waitcnt vmcnt(0)")
            it += S_("\n".join(f"v_xor_b32 v{156+k}, {s(S_TAG)}, v{156+k}" for k in range(4)))
            it += S_(f"""v_or3_b32 v18, v156, v157, v158
            v_or_b32 v18, v18, v159
            v_cmp_lt_u32 vcc, 7, v18
            s_add_u32 s35, s35, 1
            s_cmp_gt_u32 s35, 0x40000
            s_cbranch_scc1 {ok}
            s_cbranch_vccz {ok}
            buffer_load_dwordx4 v[156:159], v1, {WS}, s48 offen sc1
            s_branch {again}
            {ok}:""")
            self.loops[again] = 0
            return it
        ev = {self.cfg.pflag: S_(f"s_waitcnt vmcnt(0)\ns_barrier\ns_cmp_lg_u32 {s(S_WAVE)}, 0\ns_cbranch_scc1 {pf_}\nv_mov_b32 v18, {s(S_TAG)}\ns_mov_b64 exec, 1\nbuffer_store_dword v18, off, {WS}, s46 sc1\ns_mov_b64 exec, -1\n{pf_}:"),
              (1 + (self.cfg.pchk - 2) // 16, (self.cfg.pchk - 2) % 16): [("v", f"buffer_load_dwordx4 v[156:159], v1, {WS}, s48 offen sc1", "prepfl")],
              (1 + self.cfg.pchk // 16, self.cfg.pchk % 16): check()}
        for n_, it_ in enumerate(self.prep_store_items()): ev[(0, self.cfg.pst * n_)] = [it_]
        if self.cfg.ct2: ev2.setdefault(self.cfg.ct2, []).append(("v", f"global_load_dword v18, {v(r.pf)}, s[42:43]", "ct"))
        if self.cfg.tpos:
            for key in self.cfg.tpos: ev2.setdefault(key, []).extend(tq.pop(0))
            assert not tq
        if self.cfg.dst:
            keys = [(0, t_) for t_ in range(9, 16) if (0, t_) != self.cfg.pflag] + [(1, t_) for t_ in (1, 3, 4, 5, 6)]
            for n_, it_ in enumerate(dst): ev2.setdefault(keys[n_ * len(keys) // len(dst)], []).extend(it_)
        if self.cfg.fastl1:
            for key in (self.cfg.pflag, (1 + self.cfg.pchk // 16, self.cfg.pchk % 16)):
                l_ = A.newlabel("l1skip")
                ev[key] = S_(f"s_cmp_lg_u32 {s(S_L)}, 0\ns_cbranch_scc1 {l_}") + ev[key] + S_(f"{l_}:")
        AT.emit_att_main(self, r, 0, S_WAVE, QST, RED_A, 4, "sc1", self.cfg.nf, ev, ev2, p1, (1 + (self.cfg.pchk + 1) // 16, (self.cfg.pchk + 1) % 16))
        A.L("L_chain")
        vm.wait_all()
        self.stamp("att.main")
        self.I(f"s_mov_b32 s66, {hexf(2.0**-60)}\nv_mov_b32 {v(r.t+7)}, {hexf(2.0**60)}\nv_mov_b32 {v(r.t+6)}, 0x203")
        self.I(f"v_mov_b32 v18, {M_BAD}\nds_read_b64 {v(r.Q2[0],2)}, v18")
        self.I(f"v_mov_b32 v6, {v(r.t+3)}\nv_mov_b32 v7, {v(r.t+4)}")
        AT.emit_att_finish(self, r, 4, 6, 7, self.cfg.ost, 2 * L.XTS)
        self.I(f"v_readfirstlane_b32 {s(S_MODE)}, {v(r.Q2[0]+1)}")
        self.stamp("att.fin")
        nb = A.newlabel("nobad"); bd = A.newlabel("bad")
        if self.cfg.force_bad: self.I(f"s_and_b32 s64, {s(S_WAVE)}, 1\ns_mov_b32 s65, 0")
        self.emit_list(self.take(self.w2_items, self.cfg.fin_w2))
        self.I(f"""s_cmp_lg_u32 {s(S_RETRY)}, 0
        s_cselect_b64 s[64:65], 0, s[64:65]
        s_cmp_lg_u64 s[64:65], 0
        s_cbranch_scc1 {bd}""")
        vm.wait("st")
        self.I(f"s_cmp_lg_u32 s57, 0\ns_cbranch_scc1 {nb}")
        self.signal(40); vm.q.pop()
        self.I(f"s_mov_b32 s57, {BIG}\ns_branch {nb}")
        A.L(bd)
        self.I("ds_write_b32 v18, v18")
        A.L(nb)
        self.I(f"s_waitcnt lgkmcnt(0)\ns_barrier\nds_read_b32 v7, v18")
        self.w1a = self.lin_dma((S_JP, 140 * 1024), L.W1F + W1AA * 1024, W1A_LDS + W1AA * 1024, 9, 46, 47, "w1")
        self.I(f"s_waitcnt lgkmcnt(0)\nv_readfirstlane_b32 s36, v7\ns_cmp_lg_u32 s36, 0\ns_cbranch_scc1 L_slow")
        self.I(f"s_mov_b32 {s(S_RETRY)}, 0")
        keep = self.A; A2 = Asm(); A2.uid = 100000; self.A = A2
        A2.L("L_slow")
        self.I(f"s_mov_b32 s69, {BIG}\ns_mov_b32 s70, {BIG}\ns_mov_b32 s71, {BIG}\ns_mov_b32 s72, {BIG}\nv_mov_b32 v220, 0")
        self.I(f"s_mov_b32 {s(S_RETRY)}, 1\ns_waitcnt vmcnt(0)\ns_barrier\nv_mov_b32 v7, 0\nds_write_b32 v18, v7")
        AT.emit_kv_addr(A2, r, 0, S_WAVE, 56)
        for k in range(AT.NT):
            for it in AT.kv_items(r, 4, "sc1", k): self.I(it[1])
            if k % 8 == 7: self.I("s_waitcnt vmcnt(0)")
        AT.emit_att_truemax(self, r, 0, S_WAVE, QST, RED_A)
        self.I("s_branch L_att")
        self.A = keep; self.slow = A2.ins
        self.emit_list(self.take(self.w1a, self.cfg.s1_w1a))

    def phase_oproj(self):
        vm = self.vm
        X, WB, ACC = 256, 68, 108
        self.lin(30, [(S_G, L.GS), (S_I, 4 * L.XTS, 0, 3), (S_WAVE, L.XTS)], L.OFB, layer=False)
        self.resid_setup(L.XMID, L.STATMID, L.FL_X1)
        sk = self.A.newlabel("cs1l")
        self.I(f"s_cmp_lg_u32 {s(S_L)}, 0\ns_cbranch_scc1 {sk}")
        self.csum_loads(24, (S_JP, 20 * 448), L.CS1P, 448, 0xfffffff, "cs")
        self.A.L(sk)
        self.I(f"v_add_u32 v64, {WO_LDS}, v1\nv_add_u32 v65, {WO_LDS + 51200}, v1")
        self.lin(37, [(S_I, 128)], L.FL_O)
        self.I("v_and_b32 v6, 31, v0\nv_lshlrev_b32 v6, 2, v6")
        self.poll(6, 37)
        def load(k):
            if k and k % 4 == 0: self.I("s_add_u32 s30, s30, 4096")
            vm.issue(f"buffer_load_dwordx4 {R(X+4*k,4)}, v1, {WS}, s30 offen offset:{(k%4)*1024} sc1", ("x", k))
        nl = 0
        while nl < 7: load(nl); nl += 1
        self.stamp("o.poll")
        D, NB = self.cfg.odepth, 10
        def rd(i): self.I(f"ds_read_b128 {v(WB+4*(i%NB),4)}, v{64 + i//50} offset:{(i%50)*1024}")
        for i in range(D): rd(i)
        for i in range(100):
            k, ft = divmod(i, 5)
            if ft == 0: vm.wait(("x", k))
            self.I(f"s_waitcnt lgkmcnt({min(D - 1, 99 - i)})")
            d = ACC + 4 * ft
            self.I(f"v_mfma_f32_16x16x32_bf16 {v(d,4)}, {v(WB+4*(i%NB),4)}, {R(X+4*k,4)}, {'0' if k == 0 else v(d,4)}")
            if i + D < 100: rd(i + D)
            if i % 4 == 1:
                if nl < 20: load(nl); nl += 1
                else: self.emit_list(self.take(self.w1a, 1))
        self.emit_list(self.w1a)
        self.stamp("o.mm")
        self.resid_epilogue(ACC)
        self.I("s_barrier")
        self.window(self.lin_dma((S_JP, 140 * 1024), L.W1F + 56 * 1024, W1B_LDS, 11, 52, 53, "w1b"))
        self.w1b = self.lin_dma((S_JP, 140 * 1024), L.W1F + 100 * 1024, W1B_LDS + 44 * 1024, 10, 52, 53, "w1b")
        sk = self.A.newlabel("cs1a")
        self.I(f"s_cmp_lg_u32 {s(S_L)}, 0\ns_cbranch_scc1 {sk}")
        self.csum_part(24, M_CS1P, 448, 0xfffffff)
        self.A.L(sk)
        self.stamp("o.epi")

    def h_addr(self):
        for e in range(2):
            self.lin(32 + e, [(S_IP, 8 * L.HTS, 0, 1), (S_WAVE, 2 * L.HTS), (S_G, L.GS), (S_JP, 7168, 1, None)], L.HFB + e * L.HTS, layer=False)
            self.lin(44 + e, [(S_JP, 4096, 0, 1), (32 + e, 1)], 0, layer=False)
            self.I(f"s_and_b32 s36, {s(S_JP)}, 1\ns_lshl_b32 s36, s36, 3\ns_add_u32 s{32+e}, s{32+e}, s36")
    def phase_mlp1(self):
        A, vm = self.A, self.vm
        ACC, SL, ST, AD, XR, NXR, WB = 20, 76, 108, 116, 256, 8, 320
        for e in range(2):
            self.lin(42 + e, [(S_IP, 8, 0, 1), (S_WAVE, 2)], e, layer=False)
            self.lin(30 + e, [(42 + e, L.XTS), (S_G, L.GS)], L.XMID, layer=False)
            self.lin(42 + e, [(42 + e, 4096), (S_G, L.GS)], L.STATMID, layer=False)
        self.h_addr()
        self.lin(40, [(S_IP, 256), (S_WAVE, 128, 1, None), (S_JP, 8), (S_WAVE, 4, 0, 1)], L.FL_H)
        self.lin(37, [(S_IP, 256), (S_WAVE, 128, 1, None), (S_WAVE, 16, 0, 1)], L.FL_X1)
        self.I(f"""v_add_u32 {v(AD)}, {W1A_LDS}, v1
        v_add_u32 {v(AD+1)}, {W1B_LDS}, v1
        v_add_u32 {v(AD+2)}, {W1B_LDS + 8*7168}, v1
        v_lshlrev_b32 {v(AD+3)}, 4, v4
        v_add_u32 {v(AD+3)}, {M_CS1}, {v(AD+3)}
        v_bfe_u32 v6, v0, 2, 2
        v_lshlrev_b32 v6, 5, v6
        v_and_b32 v7, 3, v0
        v_lshl_add_u32 v6, v7, 2, v6""")
        self.poll(6, 37)
        def xr(k, e): return XR + 8 * (k % NXR) + 4 * e
        def load(k):
            for e in range(2):
                if k and k % 4 == 0: self.I(f"s_add_u32 s{30+e}, s{30+e}, 4096")
                vm.issue(f"buffer_load_dwordx4 {R(xr(k,e),4)}, v1, {WS}, s{30+e} offen offset:{(k%4)*1024} sc1", ("x", k))
        def wread(k, ft): return f"ds_read_b128 {R(WB + 28*(k%2) + 4*ft, 4)}, {v(AD + k//8)} offset:{(k%8)*7168 + ft*1024}"
        PD = 5
        nl = 0
        while nl < 4: load(nl); nl += 1
        self.I("s_barrier")
        self.stamp("x1.poll")
        w2_in_loop = self.take(self.w2_items, 32 - self.cfg.fin_w2)
        sl_items = []
        for e in range(2):
            for n in range(4):
                sl_items.append(("v", f"buffer_load_dwordx4 {v(SL+16*e+4*n,4)}, v1, {WS}, s{42+e} offen offset:{n*1024} sc1", "stat"))
        def stat_code():
            for e in range(2):
                self.stat_finish(SL + 16 * e, ST + 4 * e, packed=False)
                self.I(f"v_mov_b32 {v(ST+4*e+2)}, {v(ST+4*e+1)}")
        sh = self.collect(stat_code) if self.cfg.m1sh else []
        for ft in range(7): self.I(wread(0, ft))
        for k in range(20):
            vm.wait(("x", k))
            if k == 13:
                vm.wait("w1b"); self.I("s_barrier")
            if k == 16 and sh: vm.wait("stat")
            self.I("s_waitcnt lgkmcnt(0)")
            n = 0
            for ft in range(7):
                for e in range(2):
                    d = ACC + 28 * e + 4 * ft
                    self.I(f"v_mfma_f32_16x16x32_bf16 {v(d,4)}, {R(WB+28*(k%2)+4*ft,4)}, {R(xr(k,e),4)}, {'0' if k == 0 else v(d,4)}")
                    if k + 1 < 20 and n < 7: self.I(wread(k + 1, n))
                    if n == 7 and nl < min(k + PD, 20): load(nl); nl += 1
                    if n == 9 and nl < min(k + 1 + PD, 20): load(nl); nl += 1
                    if n == 11 or (n == 8 and (nl == 20 or k % 2 == 0)):
                        if self.w1b: self.emit_list(self.take(self.w1b, 1))
                        elif sl_items: self.emit_list(self.take(sl_items, 1))
                        else: self.emit_list(self.take(w2_in_loop, 1))
                    if n == 5 and nl == 20: self.emit_list(self.take(w2_in_loop, 1))
                    if k >= 16 and sh: self.emit_list(sh[:2]); sh = sh[2:]
                    n += 1
            if k == 3:
                sk = A.newlabel("cs1b")
                self.I(f"s_cmp_lg_u32 {s(S_L)}, 0\ns_cbranch_scc1 {sk}")
                self.csum_final(120 - 4 * 0, M_CS1P, 448, M_CS1, 0xfffffff) if False else self.csum_final(SL + 16, M_CS1P, 448, M_CS1, 0xfffffff)
                A.L(sk)
            assert k < 7 or not self.w1b
            if self.cfg.fine == "m" and k in (0, 4, 9, 14): self.stamp(f"m1.k{k}")
        assert not sh and not sl_items
        self.w2_items = w2_in_loop + self.w2_items
        self.stamp("m1.mm")
        self.I("s_barrier")
        if not self.cfg.m1sh:
            vm.wait("stat"); stat_code()
        CB = SL; T = 120; PK = [[128, 116], [92, 96]]
        def cbread(ft):
            b = CB + 8 * (ft % 2)
            self.I(f"ds_read_b128 {v(b,4)}, v7 offset:{ft*64}\nds_read_b128 {v(b+4,4)}, v7 offset:{448+ft*64}")
        self.I(f"v_mov_b32 v7, {v(AD+3)}")
        cbread(0)
        self.I(f"s_mov_b32 s66, {hexf(math.log2(math.e))}\ns_mov_b32 s67, s66\ns_mov_b32 s68, {hexf(math.sqrt(0.5))}\ns_mov_b32 s69, s68")
        if self.cfg.fine == "m": self.stamp("m1.stat")
        for ft in range(7):
            ch = [(e, h) for e in range(2) for h in range(2)]
            D = lambda c: ACC + 28 * c[0] + 4 * ft + 2 * c[1]
            Tt = lambda c: T + 4 * c[0] + 2 * c[1]
            b = CB + 8 * (ft % 2); q = ft // 2
            self.I("s_waitcnt lgkmcnt(0)")
            if ft + 1 < 7: cbread(ft + 1)
            for c in ch: self.I(f"v_pk_fma_f32 {v(D(c),2)}, {v(ST+4*c[0],2)}, {v(b+2*c[1],2)}, {v(D(c),2)} op_sel_hi:[0,1,1]")
            for c in ch: self.I(f"v_pk_fma_f32 {v(D(c),2)}, {v(D(c),2)}, {v(ST+4*c[0]+2,2)}, {v(b+4+2*c[1],2)} op_sel_hi:[1,0,1]")
            for c in ch: self.I(f"v_pk_fma_f32 {v(Tt(c),2)}, {v(D(c),2)}, s[66:67], -0.5 op_sel_hi:[1,1,0]")
            for c in ch: self.I(f"v_exp_f32 {v(Tt(c))}, {v(Tt(c))}\nv_exp_f32 {v(Tt(c)+1)}, {v(Tt(c)+1)}")
            for c in ch: self.I(f"v_pk_add_f32 {v(Tt(c),2)}, {v(Tt(c),2)}, s[68:69]")
            for c in ch: self.I(f"v_pk_fma_f32 {v(Tt(c),2)}, {v(Tt(c),2)}, {v(Tt(c),2)}, 0.5 op_sel_hi:[1,1,0]")
            for c in ch: self.I(f"v_rcp_f32 {v(Tt(c))}, {v(Tt(c))}\nv_rcp_f32 {v(Tt(c)+1)}, {v(Tt(c)+1)}")
            for c in ch: self.I(f"v_pk_fma_f32 {v(D(c),2)}, {v(D(c),2)}, {v(Tt(c),2)}, {v(D(c),2)} neg_lo:[1,0,0] neg_hi:[1,0,0]")
            for c in ch: self.I(f"v_cvt_pk_bf16_f32 {v(PK[c[0]][q%2]+2*(ft%2)+c[1])}, {v(D(c))}, {v(D(c)+1)}")
            if ft % 2 == 1:
                for e in range(2): vm.issue(f"buffer_store_dwordx4 {v(PK[e][q%2],4)}, v1, {WS}, s{44+e} offen offset:{q*1024} {self.cfg.hst}", "st")
            elif ft == 6:
                for e in range(2): vm.issue(f"buffer_store_dwordx2 {v(PK[e][q%2],2)}, v1, {WS}, s{32+e} offen offset:3072 {self.cfg.hst}", "st")
            elif ft < self.cfg.mish_ld:
                self.emit_list(self.take(self.w2_items, 2))
        if self.cfg.fine == "m": self.stamp("m1.mish")
        self.wqa = self.lin_dma((S_J, 120 * 1024), L.WQF, WQ_LDS, 30, 52, 53, "wq")
        self.window(self.w2_items + self.take(self.wqa, self.cfg.s3_wq), n1=self.cfg.s3_n1)
        self.stamp("m1.epi")

    def phase_mlp2(self):
        A, vm = self.A, self.vm
        NS, XR, NR, accs, stage, PD, P0 = 14, 276, 25, [20, 40], 60, self.cfg.pd2, 6
        fine = self.cfg.fine == "h"
        for p in range(4):
            self.I(f"s_add_u32 s37, {s(S_WAVE)}, {p+1}\ns_and_b32 s37, s37, 3")
            self.lin(44 + p, [(37, 5120)], RED_K, layer=False)
            self.lin(30 + p, [(37, L.HTS), (S_G, L.GS), (S_I, 4 * L.HTS, 0, 3), (S_WAVE, NS * 1024)], L.HFB, layer=False)
        self.resid_setup(L.XIN, L.STATIN, L.FL_XIN + L.LS)
        self.lin(37, [(S_I, 128), (S_WAVE, 32)], L.FL_H)
        self.I("v_and_b32 v120, 7, v0\nv_lshlrev_b32 v120, 2, v120")
        self.poll(120, 37)
        self.stamp("h.poll")
        if self.cfg.wb:
            sk = A.newlabel("wb")
            self.I(f"s_and_b32 s36, {s(S_C)}, {self.cfg.wb - 1}\ns_or_b32 s36, s36, {s(S_WAVE)}\ns_cbranch_scc1 {sk}\nbuffer_wbl2 sc1")
            A.L(sk)
        items = [(p, st) for p in range(4) for st in range(NS)]
        def xr(k): return XR + 4 * (k % NR)
        def load(k):
            p, st = items[k]
            if st % 4 == 0: self.I(f"s_add_u32 s34, s{30+p}, {(st//4)*4096}")
            vm.issue(f"buffer_load_dwordx4 {R(xr(k),4)}, v1, {WS}, s34 offen offset:{(st%4)*1024} {self.cfg.hld}", ("x", k))
        nl = 0
        while nl < P0: load(nl); nl += 1
        NM = 5 * NS; nwq = 0
        for k, (p, st) in enumerate(items):
            acc = accs[p % 2]
            if st == 0:
                fill = {}
                T0, T1 = stage + 20 * (p % 2), stage + 20 * ((p + 1) % 2)
                if p > 0:
                    prev = accs[(p - 1) % 2]
                    fill.setdefault(0, []).append(f"v_add_u32 v7, s{44+p-1}, v1")
                    if p > 1: fill.setdefault(3, []).append("s_waitcnt lgkmcnt(0)")
                    for ft in range(5):
                        m = 4 + 5 * ft
                        if p > 1:
                            for n in range(4): fill.setdefault(m + n // 2, []).append(f"v_add_f32 {v(T1+4*ft+n)}, {v(T1+4*ft+n)}, {v(prev+4*ft+n)}")
                        fill.setdefault(m + 2, []).append(f"ds_write_b128 v7, {v((T1 if p > 1 else prev)+4*ft,4)} offset:{ft*1024}")
                    fill.setdefault(38, []).append(f"s_waitcnt lgkmcnt(0)\ns_barrier\nv_add_u32 v6, s{44+p}, v1")
                    for ft in range(5): fill.setdefault(40 + 2 * ft, []).append(f"ds_read_b128 {v(T0+4*ft,4)}, v6 offset:{ft*1024}")
            vm.wait(("x", k))
            if fine and st == 0: self.stamp(f"k.g{p}")
            for ft in range(5):
                c = "0" if st == 0 else v(acc + 4 * ft, 4)
                self.I(f"v_mfma_f32_16x16x32_bf16 {v(acc+4*ft,4)}, {R(w2_reg(5*st+ft),4)}, {R(xr(k),4)}, {c}")
                for x in fill.get(5 * st + ft, []): self.I(x)
                if ft == 1 and k % 2 == 0 and nl < min(k + PD, len(items)): load(nl); nl += 1
            if nl < min(k + 1 + PD, len(items)): load(nl); nl += 1
            elif k == len(items) - 10 and self.cfg.wb2:
                sk = A.newlabel("wb")
                self.I(f"s_and_b32 s36, {s(S_C)}, {self.cfg.wb2 - 1}\ns_or_b32 s36, s36, {s(S_WAVE)}\ns_cbranch_scc1 {sk}\ns_cmp_eq_u32 {s(S_L)}, 0\ns_cbranch_scc1 {sk}\nbuffer_wbl2 sc1")
                A.L(sk)
            elif nl == len(items) and nwq < self.cfg.wqn: self.emit_list(self.take(self.wqa, 2)); nwq += 2
        if fine: self.stamp("k.mend")
        self.I("s_waitcnt lgkmcnt(0)")
        for i in range(0, 20, 2): self.I(f"v_pk_add_f32 {v(accs[1]+i,2)}, {v(accs[1]+i,2)}, {v(stage+20+i,2)}")
        self.stamp("m2.mm")

    def init_lds_consts(self):
        A, vm = self.A, self.vm
        self.I("s_mov_b32 s53, 0"); emit_realtile(A, S_JP, 53, 54, 56, 58)
        self.I("s_mov_b32 s53, 6"); emit_realtile(A, S_JP, 53, 55, 57, 58)
        self.I(f"""s_lshl_b32 s54, s54, 5
        v_mov_b32 v6, s57
        v_cmp_lt_u32 vcc, 23, v0
        v_cndmask_b32 v6, 0, v6, vcc
        v_add_u32 v6, v6, v2""")
        vm.issue(f"buffer_load_dwordx2 v[252:253], v6, s[12:15], s54 offen", "b1")
    def init_lds_finish(self):
        self.I(f"""v_lshlrev_b32 v20, 16, v252
        v_and_b32 v21, 0xffff0000, v252
        v_lshlrev_b32 v22, 16, v253
        v_and_b32 v23, 0xffff0000, v253
        v_add_u32 v6, {M_B1}, v1
        s_mov_b64 exec, 0x0fffffff
        ds_write_b128 v6, v[20:23]
        s_mov_b64 exec, -1
        v_mov_b32 v6, {M_BAD}
        v_mov_b32 v7, 0
        ds_write_b32 v6, v7""")

def build_main(cfg):
    G = Gen(cfg); A = G.A; vm = G.vm
    Gen.cold = []
    G.I("s_cmp_ge_u32 s2, 256\ns_cbranch_scc1 L_end")
    if cfg.ctouch:
        G.I(f"s_cmp_ge_u32 s2, {8 * cfg.ctouch}\ns_cbranch_scc1 L_noct\ns_getpc_b64 s[62:63]")
        A.L("L_pc0")
        G.I(f"""s_lshr_b32 s30, s2, 3
        s_and_b32 s30, s30, 1
        s_lshl_b32 s30, s30, 15
        v_lshlrev_b32 v5, 7, v0
        v_add_u32 v5, s30, v5
        v_min_u32 v5, L_codeend-L_pc0-4, v5
        global_load_dword v255, v5, s[62:63]""")
        A.L("L_noct")
    G.I(f"""
    s_load_dwordx8 s[36:43], s[0:1], 0
    s_load_dwordx2 s[96:97], s[0:1], 32       ; wo
    s_load_dwordx2 s[98:99], s[0:1], 48       ; w1
    s_load_dwordx2 s[56:57], s[0:1], 56       ; b1
    s_load_dwordx2 s[100:101], s[0:1], 64     ; w2
    s_load_dwordx2 s[58:59], s[0:1], 72       ; out
    s_load_dwordx2 s[60:61], s[0:1], 88       ; ws
    v_lshrrev_b32 v2, 6, v0
    v_and_b32 v0, 63, v0
    v_readfirstlane_b32 {s(S_WAVE)}, v2
    v_lshlrev_b32 v1, 4, v0
    v_lshlrev_b32 v2, 3, v0
    v_and_b32 v3, 15, v0
    v_lshrrev_b32 v4, 4, v0
    s_and_b32 {s(S_G)}, s2, 7
    s_lshr_b32 {s(S_C)}, s2, 3
    s_lshl_b32 {s(S_I)}, {s(S_G)}, 2
    s_lshr_b32 s30, {s(S_C)}, 3
    s_add_u32 {s(S_I)}, {s(S_I)}, s30
    s_and_b32 {s(S_J)}, {s(S_C)}, 7
    s_lshl_b32 {s(S_IP)}, {s(S_G)}, 1
    s_lshr_b32 s30, {s(S_C)}, 4
    s_add_u32 {s(S_IP)}, {s(S_IP)}, s30
    s_and_b32 {s(S_JP)}, {s(S_C)}, 15
    s_mov_b32 {s(S_L)}, 0
    s_mov_b32 {s(S_MODE)}, 1
    s_mov_b32 {s(S_RETRY)}, 0
    s_getreg_b32 {s(S_TAG)}, hwreg(HW_REG_XCC_ID, 0, 3)
    """)
    if cfg.prof: G.I("s_mov_b32 s77, 0\nv_mov_b32 v19, 0\ns_memrealtime s[78:79]\ns_waitcnt lgkmcnt(0)\nv_writelane_b32 v19, s78, 62")
    G.stamp("start")
    G.I(f"s_cmp_lt_u32 s2, 160\ns_cselect_b32 s73, 0, 1\ns_or_b32 s73, s73, {s(S_WAVE)}")
    G.wq_unit_addr()
    G.I("s_waitcnt lgkmcnt(0)")
    srd(A, SRD_X, 36, 2048 * 640 * 2); srd(A, SRD_WQ, 38, 640 * 640 * 2)
    G.I(f"""s_bitcmp1_b32 s2, 1
    s_cselect_b32 {s(SRD_KV)}, s42, s40
    s_cselect_b32 {s(SRD_KV+1)}, s43, s41
    s_mov_b32 {s(SRD_KV+2)}, {640*20*2}
    s_mov_b32 {s(SRD_KV+3)}, 0x20000
    s_bitcmp1_b32 {s(S_J)}, 1
    s_cselect_b32 {s(SRD_KV2)}, s42, s40
    s_cselect_b32 {s(SRD_KV2+1)}, s43, s41
    s_mov_b32 {s(SRD_KV2+2)}, {640*20*2}
    s_mov_b32 {s(SRD_KV2+3)}, 0x20000
    s_load_dword {s(S_EPOCH)}, s[60:61], {L.EPOCH}""")
    srd(A, 4, 60, L.WS_USED); srd(A, 8, 58, 2048 * 640 * 2); srd(A, 12, 56, 1728 * 2); srd(A, SRD_SRC, 96, 640 * 640 * 2)
    G.I("v_mov_b32 v192, 0x3f803f80\nv_mov_b32 v193, 0x3f803f80\nv_mov_b32 v194, 0x3f803f80\nv_mov_b32 v195, 0x3f803f80")
    G.I("s_cmp_lg_u32 s73, 0\ns_cbranch_scc1 L_nowq1")
    G.wq_unit_issue()
    A.L("L_nowq1")
    G.I("s_movk_i32 s54, 1280")
    G.x0_issue()
    G.I(f"""s_cmp_ge_u32 s2, 160
    s_cselect_b32 s36, 0, 1
    s_or_b32 s36, s36, {s(S_WAVE)}
    s_cbranch_scc1 L_notouch
    s_sub_u32 s36, s2, 160
    s_lshl_b32 s37, s36, 13
    s_add_u32 s37, s37, {L.KVB}
    s_cmp_eq_u32 s36, {2 * L.LS // 8192 + 1}
    s_cselect_b32 s37, {L.FL_PREP}, s37
    s_cmp_gt_u32 s36, {2 * L.LS // 8192 + 1}
    s_cbranch_scc1 L_notouch
    v_lshlrev_b32 v5, 7, v0
    buffer_load_dword v254, v5, {WS}, s37 offen""")
    A.L("L_notouch")
    if os.environ.get("TLB"):
        st_ = int(os.environ["TLB"])
        G.I(f"""s_cmp_lg_u32 {s(S_WAVE)}, 1
        s_cbranch_scc1 L_notlb
        s_mul_i32 s37, {s(S_C)}, {64 << st_}
        v_lshlrev_b32 v5, {st_}, v0
        buffer_load_dword v254, v5, {WS}, s37 offen""")
        A.L("L_notlb")
    G.init_lds_consts()
    G.I(f"s_waitcnt lgkmcnt(0)\ns_mul_i32 {s(S_EPOCH)}, {s(S_EPOCH)}, 1664525\ns_add_u32 {s(S_EPOCH)}, {s(S_EPOCH)}, 1013904223")
    G.I(f"s_and_b32 s36, {s(S_EPOCH)}, 0xfffffff8\ns_or_b32 {s(S_TAG)}, {s(S_TAG)}, s36")
    G.stamp("p0.issue")
    G.prep_issue()
    G.qkv_setup(True)
    G.I("s_cmp_lg_u32 s73, 0\ns_cbranch_scc1 L_nowq2\ns_waitcnt vmcnt(1)")
    G.wq_unit_finish()
    G.I("s_waitcnt vmcnt(0)")
    G.signal(66, dev=True)
    G.I("s_branch L_wq3")
    A.L("L_nowq2")
    G.I("s_waitcnt vmcnt(0)")
    A.L("L_wq3")
    vm.q = []
    G.stamp("p0.x")
    if cfg.wtouch:
        per = -(-(L.PROF - L.WOF) // (256 * 128)) * 128
        G.lin(36, [(2, per)], L.WOF, layer=False)
        G.I(f"s_cmp_lg_u32 {s(S_WAVE)}, {cfg.wtouch - 1}\ns_cbranch_scc1 L_nowt\nv_lshlrev_b32 v5, 7, v0")
        for n in range(-(-per // 8192)):
            G.I(f"buffer_load_dword v254, v5, {WS}, s36 offen\ns_add_u32 s36, s36, 8192")
        A.L("L_nowt")
    if cfg.pdma == 9: G.emit_list(G.prep_dma_items())
    G.init_lds_finish()
    G.I("s_barrier")
    G.x0_read(20, 196)
    G.I("s_barrier")
    G.stamp("p0.read")
    G.phase_qkv(True)
    G.prep_read()
    G.stamp("prep")
    A.L("L_layer")
    G.I("s_mov_b32 s57, 0")
    G.phase_att()
    G.I(f"s_cmp_lg_u32 s2, 0\ns_cbranch_scc1 L_noep\nv_mov_b32 v5, {s(S_EPOCH)}\ns_mov_b32 s36, {L.EPOCH}\ns_mov_b64 exec, 1\nbuffer_store_dword v5, off, {WS}, s36\ns_mov_b64 exec, -1")
    A.L("L_noep")
    G.phase_oproj()
    G.phase_mlp1()
    G.phase_mlp2()
    G.I(f"s_cmp_lg_u32 {s(S_L)}, 0\ns_cbranch_scc1 L_final")
    q0 = list(vm.q)
    G.resid_epilogue(40, statreg=60)
    G.window(G.wqa, n1=cfg.s4_n1)
    G.stamp("m2.epi")
    G.I(f"s_mov_b32 {s(S_L)}, {L.LS}")
    G.qkv_setup(False)
    G.lin(37, [(S_I, 128), (S_WAVE, 8)], L.FL_XIN)
    G.I("v_bfe_u32 v6, v0, 1, 2\nv_lshlrev_b32 v6, 5, v6\nv_and_b32 v7, 1, v0\nv_lshl_add_u32 v6, v7, 2, v6")
    G.poll(6, 37)
    G.stamp("xin.poll")
    G.phase_qkv(False)
    G.I(f"s_mov_b32 s69, {BIG}\ns_mov_b32 s70, {BIG}\ns_mov_b32 s71, {BIG}\ns_mov_b32 s72, {BIG}\nv_mov_b32 v220, 0")
    G.I("s_branch L_layer")
    A.L("L_final")
    vm.q = q0
    G.lin(36, [(S_I, 64 * 1280), (S_WAVE, 16 * 1280), (S_J, 160)], 0, layer=False, tmp=37)
    G.I("v_mul_u32_u24 v6, 1280, v3\nv_lshl_add_u32 v6, v4, 3, v6")
    G.resid_epilogue(40, store=False)
    for ft in range(5): G.I(f"buffer_store_dwordx2 {v(XRES+2*ft,2)}, v6, s[8:11], s36 offen offset:{ft*32} {cfg.outfl}")
    if cfg.prof:
        G.I("s_waitcnt vmcnt(0)"); G.stamp("end")
        G.I("s_memrealtime s[78:79]\ns_waitcnt lgkmcnt(0)\nv_writelane_b32 v19, s78, 63")
        G.I(f"s_lshl_b32 s36, s2, 2\ns_add_u32 s36, s36, {s(S_WAVE)}\ns_lshl_b32 s36, s36, 8\ns_add_u32 s36, s36, {L.PROF}\nv_lshlrev_b32 v6, 2, v0")
        G.I(f"buffer_store_dword v19, v6, {WS}, s36 offen")
        if cfg.dbg:
            G.I(f"""s_cmp_lg_u32 s2, {cfg.dbgwg}
            s_cbranch_scc1 L_end
            s_cmp_lg_u32 {s(S_WAVE)}, 0
            s_cbranch_scc1 L_end
            s_load_dwordx2 s[36:37], s[0:1], 80
            v_readlane_b32 s38, v19, 0
            s_waitcnt lgkmcnt(0)
            v_subrev_u32 v19, s38, v19
            s_mov_b64 exec, 0xffff
            global_store_dword v6, v19, s[36:37]""")
        cfg.names = G.names
    A.L("L_end")
    G.I("s_endpgm")
    for g, j, code in Gen.cold:
        A.L(g); G.I(code); G.I(f"s_branch {j}")
    A.ins += G.slow
    A.L("L_codeend")
    npad = A.pad_hazards()
    tr = trace_two_layers(A.ins, G.loops)
    errs = check_waits([x for x in tr if x.op not in ("s_memtime", "s_memrealtime")], "main")
    assert errs == 0 or cfg.skip != ("",) and cfg.skip
    return A.text(), npad

def trace_two_layers(ins, loops):
    labels = {x.label: i for i, x in enumerate(ins) if x.is_label}
    tr = []; j = 0; left = {}; layer = 0
    while j < len(ins):
        c = ins[j]; tr.append(c)
        if c.op == "s_endpgm": break
        if c.kind == "branch":
            t = labels[c.target]
            if c.op == "s_branch":
                if c.target == "L_layer": layer = 1
                j = t; continue
            if t <= j:
                k = left.get(j, loops.get(c.target, 1))
                if k > 0: left[j] = k - 1; j = t; continue
                left.pop(j, None)
            elif (c.target == "L_final" and layer == 1) or c.target.startswith("L_prepok"):
                j = t; continue
        j += 1
    return tr

HEADER = open(f"cdna_kernels/{NAME}.s.ref").read().split("; Override launch")[0]

def build_all(cfg):
    body, npad = build_main(cfg)
    asm = HEADER
    asm += f"; @launch grid=(256,1,1) block=(256,1,1) lds={LDS_BYTES}\n"
    asm += '.amdgcn_target "amdgcn-amd-amdhsa--gfx950"\n'
    asm += wrap_kernel(NAME + "_kernel", body, vgpr=512, acc=256)
    return asm, npad

if __name__ == "__main__":
    cfg = Cfg()
    cfg.prof = "prof" in os.environ.get("XF", "")
    asm, npad = build_all(cfg)
    open("out.s", "w").write(asm)
    print("lines", len(asm.splitlines()), "bytes", len(asm), "pad", npad)
```

```python
from asmlib import *

KVT = 2816
NT = 16
QST_Q = 1536
RED_Q = 3072

class AttRegs:
    def __init__(self, base, kvbase=256):
        b = base
        def take(n, al=1):
            nonlocal b
            b = (b + al - 1) // al * al
            r = b; b += n; return r
        self.S = [take(16, 4), take(16, 4)]
        self.O = [take(16, 4), take(16, 4)]
        self.P = [take(8, 4), take(8, 4)]
        self.Q1 = [take(4, 4), take(4, 4)]
        self.Q2 = [take(2, 2), take(2, 2)]
        self.aQ1 = take(1); self.aQ2 = take(1); self.aR = take(1); self.pf = take(1)
        self.t = take(8, 4)
        self.T = [take(12, 4), take(12, 4)]
        self.end = b
        self.kv = kvbase
    def K1(self, t): return self.kv + 12 * t
    def V1(self, t): return self.kv + 12 * t + 4
    def V2(self, t): return self.kv + 12 * t + 8
    def K2(self, t): return self.kv + 192 + 2 * t

def emit_kv_addr(A, r, lane, wave_s, base_s):
    t = r.t
    A.I(f"s_mul_i32 s60, {s(wave_s)}, {NT*KVT}")
    A.I(f"s_add_u32 s60, s60, {s(base_s)}")
    A.I(f"v_lshlrev_b32 {v(t)}, 4, {v(lane)}")
    A.I(f"v_and_b32 {v(t+3)}, 31, {v(lane)}")
    A.I(f"v_lshrrev_b32 {v(t+4)}, 5, {v(lane)}")
    A.I(f"v_lshlrev_b32 {v(t+1)}, 3, {v(t+3)}")
    A.I(f"v_lshl_add_u32 {v(t+1)}, {v(t+4)}, 2, {v(t+1)}")
    A.I(f"v_lshlrev_b32 {v(t+2)}, 4, {v(t+3)}")
    A.I(f"v_mad_u32_u24 {v(t+2)}, {v(t+4)}, s59, {v(t+2)}")
    A.I(f"v_cmp_lt_u32 vcc, 20, {v(t+3)}\nv_mov_b32 {v(t+4)}, 0x40000000\nv_cndmask_b32 {v(t+2)}, {v(t+2)}, {v(t+4)}, vcc")

def kv_items(r, srd, flags, k):
    t = r.t
    return [("v", f"buffer_load_dwordx4 {R(r.K1(k),4)}, {v(t)}, {s(srd,4)}, s60 offen {flags}", ("kv", k)),
            ("v", f"buffer_load_dword {R(r.K2(k))}, {v(t+1)}, {s(srd,4)}, s60 offen offset:1024 {flags}", ("kv", k)),
            ("v", f"buffer_load_dwordx4 {R(r.V1(k),4)}, {v(t+2)}, {s(srd,4)}, s60 offen offset:1280 {flags}", ("kv", k)),
            ("v", f"buffer_load_dwordx4 {R(r.V2(k),4)}, {v(t+2)}, {s(srd,4)}, s60 offen offset:2048 {flags}", ("kv", k)),
            ("s", f"s_add_u32 s60, s60, {KVT}")]

def half_step(G, r, X, kS, kV2, kV1, fill, zeroO=False, doPV2=True):
    Y = 1 - X
    S, P = r.S[X], r.P[X]
    I = G.I
    def ex(i): I(f"v_exp_f32 {v(S+i)}, {v(S+i)}")
    def cv(i): I(f"v_cvt_pk_bf16_f32 {v(P+i)}, {v(S+2*i)}, {v(S+2*i+1)}")
    G.emit_list(fill.get('pre0', []))
    I(f"v_mfma_f32_32x32x16_bf16 {v(r.S[Y],16)}, {R(r.K1(kS),4)}, {v(r.Q1[Y],4)}, 0")
    G.emit_list(fill.get(0, []))
    for i in range(0, 4): ex(i)
    I(f"v_mfma_f32_32x32x8_bf16 {v(r.S[Y],16)}, {R(r.K2(kS),2)}, {v(r.Q2[Y],2)}, {v(r.S[Y],16)}")
    G.emit_list(fill.get(1, []))
    for i in range(4, 8): ex(i)
    cv(0); cv(1)
    if doPV2:
        I(f"v_mfma_f32_32x32x16_bf16 {v(r.O[Y],16)}, {R(r.V2(kV2),4)}, {v(r.P[Y]+4,4)}, {v(r.O[Y],16)}")
    G.emit_list(fill.get(2, []))
    cv(2); cv(3)
    for i in range(8, 12): ex(i)
    I(f"v_mfma_f32_32x32x16_bf16 {v(r.O[X],16)}, {R(r.V1(kV1),4)}, {v(P,4)}, {'0' if zeroO else v(r.O[X],16)}")
    G.emit_list(fill.get(3, []))
    for i in range(12, 16): ex(i)
    for i in range(4, 8): cv(i)

def place(fa, fb, items, slots):
    items = list(items)
    n = len(slots)
    per = -(-len(items) // n)
    k = 0
    for sl in slots:
        cnt = len(items) - (n - 1 - k) * per if False else min(per, len(items))
        tgt = (fa if sl[0] == 0 else fb).setdefault(sl[1], [])
        take = []
        while items and len(take) < per:
            take.append(items.pop(0))
        tgt.extend(take)
        k += 1
    assert not items

FULL = [(0, 0), (0, 2), (0, 3), (1, 0), (1, 2), (1, 3), (0, 1), (1, 1)]
ORD = [(0, 0), (0, 1), (0, 2), (0, 3), (1, 0), (1, 1), (1, 2), (1, 3)]

def S_(txt): return [("s", x.strip()) for x in txt.split("\n") if x.strip()]

def q_reads(r, X):
    return [f"ds_read_b128 {v(r.Q1[X],4)}, {v(r.aQ1)} offset:{X*QST_Q}",
            f"ds_read_b64 {v(r.Q2[X],2)}, {v(r.aQ2)} offset:{X*QST_Q + 1024}"]

def emit_att_pre(G, r, lane, wave_s, qst, red):
    I = G.I
    I(f"s_add_u32 s63, {s(wave_s)}, 1\ns_and_b32 s63, s63, 3")
    I(f"s_mul_i32 s61, s63, {2*QST_Q}\ns_add_u32 s61, s61, {qst}")
    I(f"v_lshl_add_u32 {v(r.aQ1)}, {v(lane)}, 4, s61")
    I(f"v_lshl_add_u32 {v(r.aQ2)}, {v(lane)}, 3, s61")
    for x in q_reads(r, 0) + q_reads(r, 1): I(x)
    for k in range(NT): I(f"v_accvgpr_write_b32 {R(r.K2(k)+1)}, s58")

def emit_att_main(G, r, lane, wave_s, qst, red, kvsrd, kvflags, nfirst, events, events2, p1_items, start, late):
    I = G.I; vm = G.vm
    def next_q_addr():
        return [f"s_mul_i32 s61, s63, {2*RED_Q}", f"s_add_u32 s61, s61, {red}",
                f"v_lshl_add_u32 {v(r.aR)}, {v(lane)}, 4, s61",
                "s_add_u32 s63, s63, 1", "s_and_b32 s63, s63, 3",
                f"s_mul_i32 s61, s63, {2*QST_Q}", f"s_add_u32 s61, s61, {qst}",
                f"v_lshl_add_u32 {v(r.aQ1)}, {v(lane)}, 4, s61",
                f"v_lshl_add_u32 {v(r.aQ2)}, {v(lane)}, 3, s61"]
    for k in range(nfirst): G.emit_list(kv_items(r, kvsrd, kvflags, k))
    fine = G.cfg.fine == "a"
    if fine: G.stamp("a.issue")
    vm.wait(("kv", 0))
    I("s_waitcnt lgkmcnt(0)")
    if fine: G.stamp("a.kv0")
    I(f"v_mfma_f32_32x32x16_bf16 {v(r.S[0],16)}, {R(r.K1(0),4)}, {v(r.Q1[0],4)}, 0")
    I(f"v_mfma_f32_32x32x8_bf16 {v(r.S[0],16)}, {R(r.K2(0),2)}, {v(r.Q2[0],2)}, {v(r.S[0],16)}")
    def sends(X, src):
        return [f"ds_write_b128 {v(r.aR)}, {v(src+4*i,4)} offset:{X*RED_Q + i*1024}" for i in range(3)]
    def fetch(X):
        return [f"ds_read_b128 {v(r.T[X]+4*i,4)}, {v(r.aR)} offset:{X*RED_Q + i*1024}" for i in range(3)]
    def one_pass(pn):
        first = pn == 0
        for t in range(NT):
            fa = {}; fb = {}
            if t == 0 and not first:
                fa['pre0'] = S_("s_waitcnt lgkmcnt(0)")
                for X, f in ((0, fa), (1, fb)):
                    w = sends(X, r.O[X] if pn == 1 else r.T[X])
                    for i in range(3):
                        f[i] = []
                        if pn > 1: f[i] += S_("\n".join(f"v_add_f32 {v(r.T[X]+4*i+n)}, {v(r.T[X]+4*i+n)}, {v(r.O[X]+4*i+n)}" for n in range(4)))
                        f[i] += S_(w[i])
            if t == 2 and not first:
                fa[0] = S_("s_waitcnt lgkmcnt(0)\ns_barrier")
            if pn == 3 and t == 3:
                fa[0] = S_(f"s_mul_i32 s61, {s(wave_s)}, {2*RED_Q}"); fa[2] = S_(f"s_add_u32 s61, s61, {red}"); fa[3] = S_(f"v_lshl_add_u32 {v(r.aR)}, {v(lane)}, 4, s61")
            if (pn in (1, 2) and t == NT - 1) or (pn == 3 and t == 4):
                w = fetch(0) + fetch(1)
                for n, sl in enumerate([(1, 0), (1, 1), (1, 2), (1, 2), (1, 3), (1, 3)] if pn < 3 else ORD[:6]):
                    (fa if sl[0] == 0 else fb).setdefault(sl[1], []).extend(S_(w[n]))
            if t == NT - 2 and pn < 3:
                n = next_q_addr()
                place(fa, fb, S_("\n".join(n)), ORD[2:])
            if t == NT - 1 and pn < 3:
                q = q_reads(r, 0); fa[0] = S_(q[0]); fa[1] = S_(q[1])
                q = q_reads(r, 1); fa[2] = S_(q[0]); fa[3] = S_(q[1])
                fb['pre0'] = S_("s_waitcnt lgkmcnt(2)")
            if first and t + nfirst < NT:
                it = kv_items(r, kvsrd, kvflags, t + nfirst)
                place(fa, fb, it, [(0, 0), (0, 1), (0, 2), (0, 3), (1, 0)])
            if first and t + 1 < NT: fb['pre0'] = fb.get('pre0', []) + [("w", ("kv", t + 1))]
            if (pn, t) in events: fb.setdefault(3, []).extend(events[(pn, t)])
            for n_, it_ in enumerate(events2.get((pn, t), [])): fb.setdefault((2, 0)[n_ % 2], []).append(it_)
            if (pn, t) >= start and 1 <= t < NT - 2 and not (pn == 3 and t in (3, 4)):
                left = (3 - pn) * (NT - 3) + (NT - 2 - t) - (2 if (pn, t) < (3, 3) else 0)
                nv = sum(1 for it in p1_items if it[0] == "v")
                it = G.take(p1_items, -(-nv // left))
                if it: place(fa, fb, it, [(0, 0), (0, 2), (0, 3), (1, 0), (1, 2), (1, 3)][:max(len(it), 1)] if len(it) <= 6 else ORD)
            for hf, k_ in ORD:
                f_ = fa if hf == 0 else fb
                if late and not f_.get(k_) and (k_ != 1 or pn >= 1) and not (first and t == 0 and hf == 0): f_[k_] = late.pop(0)
            half_step(G, r, 0, t, (t - 1) % NT, t, fa, zeroO=(t == 0), doPV2=not (first and t == 0))
            half_step(G, r, 1, (t + 1) % NT, t, t, fb, zeroO=(t == 0))
    I("s_nop 7\ns_nop 2")
    one_pass(0)
    if fine: G.stamp("a.p0")
    one_pass(1)
    if fine: G.stamp("a.p1")
    G.A.L('L_p2')
    one_pass(2)
    if fine: G.stamp("a.p2")
    one_pass(3)
    assert all(it[0] == 's' for it in p1_items) and not late
    I(f"v_mfma_f32_32x32x16_bf16 {v(r.O[1],16)}, {R(r.V2(NT-1),4)}, {v(r.P[1]+4,4)}, {v(r.O[1],16)}")

def emit_att_finish(G, r, osrd, ooff_v, ooff2_v, stflags, qstride):
    I = G.I; t = r.t
    I("s_mov_b64 s[64:65], 0\ns_waitcnt lgkmcnt(0)")
    for X in range(2):
        O = r.O[X]
        for i in range(0, 12, 2): I(f"v_pk_add_f32 {v(O+i,2)}, {v(O+i,2)}, {v(r.T[X]+i,2)}")
        I(f"v_mov_b32 {v(t)}, {v(O+8)}\nv_mov_b32 {v(t+1)}, {v(O+8)}")
        I(f"v_permlane32_swap_b32 {v(t)}, {v(t+1)}")
        I(f"v_med3_f32 {v(t+2)}, {v(t+1)}, s62, {v(t+7)}")
        I(f"v_rcp_f32 {v(t)}, {v(t+1)}")
        I(f"v_cmp_neq_f32 vcc, {v(t+2)}, {v(t+1)}")
        for i in range(0, 12, 2):
            I(f"v_pk_mul_f32 {v(O+i,2)}, {v(t,2)}, {v(O+i,2)} op_sel_hi:[0,1]")
        I("s_or_b64 s[64:65], s[64:65], vcc")
        for i in range(6):
            I(f"v_cvt_pk_bf16_f32 {v(r.P[X]+i)}, {v(O+2*i)}, {v(O+2*i+1)}")
        I(f"s_add_u32 s61, s57, {X*qstride}")
        G.vm.issue(f"buffer_store_dwordx4 {v(r.P[X],4)}, {v(ooff_v)}, {s(osrd,4)}, s61 offen {stflags}", "st")
        I("s_mov_b64 exec, 0xffffffff")
        G.vm.issue(f"buffer_store_dwordx2 {v(r.P[X]+4,2)}, {v(ooff2_v)}, {s(osrd,4)}, s61 offen {stflags}", "st")
        I("s_mov_b64 exec, -1")
        I(f"v_add_f32 {v(t+2)}, abs({v(O)}), abs({v(O+1)})")
        for i in range(2, 8): I(f"v_add_f32 {v(t+2)}, {v(t+2)}, abs({v(O+i)})")
        I(f"v_add_f32 {v(r.Q1[0])}, abs({v(O+8)}), abs({v(O+9)})")
        I(f"v_add_f32 {v(r.Q1[0]+1)}, abs({v(O+10)}), abs({v(O+11)})")
        I(f"v_add_f32 {v(r.Q1[0])}, {v(r.Q1[0])}, {v(r.Q1[0]+1)}")
        I(f"v_cmp_class_f32 vcc, {v(t+2)}, {v(t+6)}")
        I("s_or_b64 s[64:65], s[64:65], vcc")
        I(f"v_cmp_class_f32 vcc, {v(r.Q1[0])}, {v(t+6)}")
        I("s_or_b32 s64, s64, vcc_lo")

def emit_att_truemax(G, r, lane, wave_s, qst, mx):
    I = G.I; t = r.t
    lab = G.A.newlabel("mx")
    I(f"s_mov_b32 s62, 0")
    G.A.L(lab)
    I(f"s_mul_i32 s61, s62, {QST_Q}\ns_add_u32 s61, s61, {qst}")
    I(f"v_lshl_add_u32 {v(r.aQ1)}, {v(lane)}, 4, s61\nv_lshl_add_u32 {v(r.aQ2)}, {v(lane)}, 3, s61")
    for x in q_reads(r, 0): I(x)
    I(f"v_mov_b32 {v(t)}, 0xff800000")
    I("s_waitcnt lgkmcnt(0)")
    for k in range(NT):
        S = r.S[k % 2]
        I(f"v_mfma_f32_32x32x16_bf16 {v(S,16)}, {R(r.K1(k),4)}, {v(r.Q1[0],4)}, 0")
        I(f"v_mfma_f32_32x32x8_bf16 {v(S,16)}, {R(r.K2(k),2)}, {v(r.Q2[0],2)}, {v(S,16)}")
        for i in range(0, 16, 2): I(f"v_max3_f32 {v(t)}, {v(t)}, {v(S+i)}, {v(S+i+1)}")
    I(f"v_mov_b32 {v(t+1)}, {v(t)}\nv_permlane32_swap_b32 {v(t)}, {v(t+1)}\nv_max_f32 {v(t)}, {v(t)}, {v(t+1)}")
    I(f"s_lshl_b32 s61, s62, 2\ns_add_u32 s61, s61, {s(wave_s)}\ns_lshl_b32 s61, s61, 8\ns_add_u32 s61, s61, {mx}")
    I(f"v_lshl_add_u32 {v(t+2)}, {v(lane)}, 2, s61\nds_write_b32 {v(t+2)}, {v(t)}")
    I(f"s_add_u32 s62, s62, 1\ns_cmp_lt_u32 s62, 8\ns_cbranch_scc1 {lab}")
    G.loops[lab] = 1
    I("s_waitcnt lgkmcnt(0)\ns_barrier")
    I(f"s_lshl_b32 s61, {s(wave_s)}, 11\ns_add_u32 s61, s61, {mx}\nv_lshl_add_u32 {v(t+2)}, {v(lane)}, 2, s61")
    I(f"s_mul_i32 s61, {s(wave_s)}, {2*QST_Q}\ns_add_u32 s61, s61, {qst + 1024 + 4}\nv_lshl_add_u32 {v(r.aQ2)}, {v(lane)}, 3, s61")
    I(f"v_cmp_lt_u32 s[64:65], 31, {v(lane)}")
    S = r.S[0]
    for X in range(2):
        for w in range(4): I(f"ds_read_b32 {v(S+w)}, {v(t+2)} offset:{X*1024 + w*256}")
        I("s_waitcnt lgkmcnt(0)")
        I(f"""v_max_f32 {v(S)}, {v(S)}, {v(S+1)}
        v_max3_f32 {v(S)}, {v(S)}, {v(S+2)}, {v(S+3)}
        v_sub_f32 {v(S)}, 0, {v(S)}
        v_and_b32 {v(S+1)}, 0xffff0000, {v(S)}
        v_sub_f32 {v(S)}, {v(S)}, {v(S+1)}
        v_and_b32 {v(S+2)}, 0xffff0000, {v(S)}
        v_sub_f32 {v(S)}, {v(S)}, {v(S+2)}
        v_lshrrev_b32 {v(S+1)}, 16, {v(S+1)}
        v_or_b32 {v(S+1)}, {v(S+1)}, {v(S+2)}
        v_lshrrev_b32 {v(S)}, 16, {v(S)}
        v_cndmask_b32 {v(S)}, {v(S+1)}, {v(S)}, s[64:65]
        ds_write_b32 {v(r.aQ2)}, {v(S)} offset:{X*QST_Q}""")
    I("s_waitcnt lgkmcnt(0)\ns_barrier")
```

```python
from asmlib import *
import layout as L
import attn3 as AT
from attn3 import S_
from prep import srd, emit_xg_reduce, emit_realtile, emit_xk, BIG
import math, os, struct

NAME = "interleave_layers__grouped_kv_mqa__dense_activation_mish__prompt"
WQ_LDS = 0
X0_LDS = 0
KV0_LDS = 94208
WQP_LDS = 86016
PREP_LDS = 122880
RED_A = 122880
QST = 147456
WO_LDS = 0
W1AA = 20
W2A = 33
W1A_LDS, W1B_LDS = 102400, 0
RED_K = 122880
MISC = 159744
M_CS1, M_B1, M_CSQ, M_BAD = MISC, MISC + 448, MISC + 896, MISC + 1280
M_MODE = MISC + 1284
M_VT = MISC + 1344
M_CSQP = MISC + 2368
M_CS1P = MISC + 1344
LDS_BYTES = 163840

S_WAVE, S_G, S_C, S_I, S_J, S_IP, S_JP, S_EPOCH, S_L, S_MODE, S_RETRY, S_TAG = 20, 21, 22, 23, 24, 25, 26, 27, 28, 29, 76, 75
XRES = 8
WS = "s[4:7]"
SRD_X, SRD_WQ, SRD_KV, SRD_SRC, SRD_KV2 = 80, 84, 88, 92, 16

def hexf(x): return "0x%08x" % struct.unpack("<I", struct.pack("<f", x))[0]
def w2_reg(k):
    if k < 25: return 156 + 4 * k
    if k < 33: return 480 + 4 * (k - 25)
    if k < 59: return 376 + 4 * (k - 33)
    if k < 65: return 132 + 4 * (k - 59)
    return 256 + 4 * (k - 65)

NFIRST = int(os.environ.get('NF', 3))
class Cfg:
    fin_w2 = 0; s1_w1a = 5; s2 = 12; odepth = 9; m1sh = True
    b1n = 11; s2_n1 = 6
    tlb = 0; pp = True; psl = 1; fst = True
    o_w2 = 6; xm = 15
    ctouch = 2; ct2 = (3, 6)
    wtouch = 0; tpos = ((0, 14), (1, 2), (1, 10), (2, 3), (2, 10), (3, 1), (3, 8))
    wqn = 20; pd2 = 10; mish_ld = 6; s4_n1 = 6
    dst = False; kvi0 = 24
    tA = [5, 0, 1]; kvi = 36; chain = True
    hst = ''; ost = ''; hld = 'sc1'
    dbg = None; dbgwg = 0
    w2warm = 0; otouch = False
    sect = True; nf = 3
    xtouch = True; w1warm = 80
    ahead = 0; kvf = 1; pdma = 9
    ends = False; outfl = ''; wb2 = 0
    s3_wq = 0; s3_n1 = 6; fastl1 = True
    wq3 = 2; tstep = 7; wstart = 48; wstep = 2; nta = False; t0 = True
    ptouch = False; pst = 1; pflag = (0, 13); pchk = 9; wb = 0
    prof = False; rt = False; fine = None; skip = (); force_global = False; force_bad = False

class Gen:
    def __init__(self, cfg):
        self.A = Asm(); self.vm = VmTracker(self.A); self.cfg = cfg
        self.names = []; self.loops = {}
    def I(self, t): return self.A.I(t)
    def stamp(self, name=""):
        if self.cfg.dbg and name not in self.cfg.dbg: return
        if self.cfg.prof and not self.cfg.ends:
            if self.cfg.rt:
                self.I("s_memrealtime s[78:79]\ns_waitcnt lgkmcnt(0)\ns_lshl_b32 s74, s78, 18\ns_memtime s[78:79]\ns_waitcnt lgkmcnt(0)\ns_and_b32 s78, s78, 0x3ffff\ns_or_b32 s78, s78, s74")
            else:
                self.I("s_memtime s[78:79]\ns_waitcnt lgkmcnt(0)")
            self.I("s_mov_b32 m0, s77\nv_writelane_b32 v19, s78, m0\ns_add_u32 s77, s77, 1")
            self.names.append(name)
    def lin(self, out, terms, const=0, layer=True, tmp=36):
        first = True
        for t in terms:
            sreg, mul = t[0], t[1]
            src = s(sreg); dst = s(out) if first else s(tmp)
            if len(t) > 2:
                shr, mask = t[2], t[3]
                if shr: self.I(f"s_lshr_b32 {dst}, {src}, {shr}"); src = dst
                if mask is not None: self.I(f"s_and_b32 {dst}, {src}, {mask}"); src = dst
            if mul != 1: self.I(f"s_mul_i32 {dst}, {src}, {mul}"); src = dst
            if first:
                if src != dst: self.I(f"s_mov_b32 {dst}, {src}")
            else:
                self.I(f"s_add_u32 {s(out)}, {s(out)}, {src}")
            first = False
        if layer: self.I(f"s_add_u32 {s(out)}, {s(out)}, {s(S_L)}")
        if const: self.I(f"s_add_u32 {s(out)}, {s(out)}, {const}")
    def signal(self, off_s, dev=False, val=S_EPOCH):
        self.I(f"v_mov_b32 v5, {s(val)}\ns_mov_b64 exec, 1")
        if dev:
            self.vm.issue(f"buffer_store_dword v5, off, {WS}, {s(off_s)} sc1", "flag")
        else:
            g = self.A.newlabel("sg"); j = self.A.newlabel("sj")
            self.I(f"s_cmp_lg_u32 {s(S_MODE)}, 0\ns_cbranch_scc1 {g}")
            self.vm.issue(f"buffer_store_dword v5, off, {WS}, {s(off_s)}", "flag")
            self.A.L(j)
            self.cold.append((g, j, f"buffer_wbl2 sc1\ns_waitcnt vmcnt(0)\nbuffer_store_dword v5, off, {WS}, {s(off_s)} sc1"))
        self.I("s_mov_b64 exec, -1")
    def poll(self, voff, off_s, dev=False, wide=False, pre=False):
        lab = self.A.newlabel("poll"); out = self.A.newlabel("pollx"); ent = self.A.newlabel("polle")
        self.I("s_mov_b32 s35, 0")
        if pre: self.I(f"s_branch {ent}")
        self.A.L(lab)
        if wide:
            self.I(f"buffer_load_dwordx4 v[156:159], {v(voff)}, {WS}, {s(off_s)} offen sc1")
        else:
            self.I(f"buffer_load_dword v5, {v(voff)}, {WS}, {s(off_s)} offen sc1")
        self.A.L(ent)
        self.I(f"s_add_u32 s35, s35, 1\ns_cmp_gt_u32 s35, 0x40000\ns_cbranch_scc1 {out}\ns_waitcnt vmcnt(0)")
        if wide:
            for k in range(4): self.I(f"v_xor_b32 v{156+k}, {s(S_TAG)}, v{156+k}")
            self.I("v_or3_b32 v156, v156, v157, v158\nv_or_b32 v156, v156, v159\nv_cmp_lt_u32 vcc, 7, v156")
        else:
            self.I(f"v_cmp_ne_u32 vcc, {s(S_EPOCH)}, v5")
        self.I(f"s_cbranch_vccnz {lab}")
        self.A.L(out)
        if not dev:
            g = self.A.newlabel("pg"); j = self.A.newlabel("pj")
            self.I(f"s_cmp_lg_u32 {s(S_MODE)}, 0\ns_cbranch_scc1 {g}")
            self.A.L(j)
            self.cold.append((g, j, "s_waitcnt vmcnt(0)\nbuffer_inv sc1\ns_waitcnt vmcnt(0)"))
        self.I("s_waitcnt vmcnt(0)")
        self.loops[lab] = 0
        self.vm.q = []
    def poll2(self, voff, off_s, dsts, dev=False):
        A = self.A
        lab = A.newlabel("poll"); out = A.newlabel("pollx")
        ld = lambda d: f"buffer_load_dword {v(d)}, {v(voff)}, {WS}, {s(off_s)} offen sc1"
        self.I(f"{ld(dsts[0])}\ns_mov_b32 s35, 0\ns_sleep {self.cfg.psl}")
        A.L(lab)
        for a_, b_ in ((0, 1), (1, 0)):
            self.I(f"""{ld(dsts[b_])}
            s_waitcnt vmcnt(1)
            v_cmp_ne_u32 vcc, {s(S_EPOCH)}, {v(dsts[a_])}
            s_cbranch_vccz {out}""")
        self.I(f"s_add_u32 s35, s35, 1\ns_cmp_lt_u32 s35, 0x20000\ns_cbranch_scc1 {lab}")
        A.L(out)
        if not dev:
            g = A.newlabel("pg"); j = A.newlabel("pj")
            self.I(f"s_cmp_lg_u32 {s(S_MODE)}, 0\ns_cbranch_scc1 {g}")
            A.L(j)
            self.cold.append((g, j, "s_waitcnt vmcnt(0)\nbuffer_inv sc1\ns_waitcnt vmcnt(0)"))
        self.loops[lab] = 0
        self.vm.q = ["poll"]
    cold = []
    def flag_x_off(self, base, out):
        self.lin(out, [(S_I, 128), (S_J, 32, 1, None), (S_WAVE, 8), (S_J, 4, 0, 1)], base)
    @staticmethod
    def units(raw):
        out = []
        for it in raw:
            if out and (it[1].startswith("s_cselect") or it[1].endswith(":")): out[-1].append(it)
            else: out.append([it])
        return out
    def window(self, win, n1=6, fl=40):
        win = win if win is not None else []
        self.emit_list(self.take(win, n1))
        self.vm.wait("st")
        self.signal(fl)
        self.emit_list(win)
    @staticmethod
    def take(items, n):
        out = []
        while items and n > 0:
            it = items.pop(0); out.append(it)
            if it[0] == "v": n -= 1
        return out
    def emit_list(self, items):
        for it in items:
            if it[0] == "s": self.I(it[1])
            elif it[0] == "w": self.vm.wait(it[1])
            elif it[2] in self.cfg.skip: pass
            else: self.vm.issue(it[1], it[2])
    def collect(self, fn):
        keep = self.A; A2 = Asm(); self.A = A2
        fn(); self.A = keep
        return [("s", x.text) for x in A2.ins]
    def load_wfrags(self, regs, soff, tag):
        out = []
        for k, r in enumerate(regs):
            if k and k % 4 == 0: out.append(("s", f"s_add_u32 {s(soff)}, {s(soff)}, 4096"))
            out.append(("v", f"buffer_load_dwordx4 {R(r,4)}, v1, {WS}, {s(soff)} offen offset:{(k%4)*1024}", tag))
        return out
    def lin_dma(self, src_term, src_base, lds_base, n, sg, sl, tag):
        it = self.collect(lambda: (self.lin(sl, [(S_WAVE, n * 1024)], lds_base, layer=False, tmp=54),
                                   self.lin(sg, [src_term, (sl, 1)], src_base - lds_base + (1 << 32) if src_base < lds_base else src_base - lds_base, layer=False, tmp=54)))
        for k in range(n):
            if k and k % 4 == 0: it += [("s", f"s_add_u32 {s(sg)}, {s(sg)}, 4096"), ("s", f"s_add_u32 {s(sl)}, {s(sl)}, 4096")]
            it.append(("s", f"s_mov_b32 m0, {s(sl)}"))
            it.append(("v", f"buffer_load_dwordx4 v1, {WS}, {s(sg)} offen offset:{(k%4)*1024} lds", tag))
        return it
    def resid_setup(self, xbuf, statbuf, flagbuf):
        self.lin(38, [(S_G, L.GS), (S_I, 4 * L.XTS, 0, 3), (S_WAVE, L.XTS), (S_J, 5120, 1, None)], xbuf, layer=False)
        self.lin(39, [(S_J, 3072, 0, 1), (38, 1)], 0, layer=False)
        self.I(f"s_and_b32 s36, {s(S_J)}, 1\ns_lshl_b32 s36, s36, 3\ns_add_u32 s38, s38, s36")
        self.lin(41, [(S_G, L.GS), (S_I, 4 * 4096, 0, 3), (S_WAVE, 4096), (S_J, 2048, 0, 1), (S_J, 256, 1, None)], statbuf, layer=False)
        self.flag_x_off(flagbuf, 40)
        self.I("s_mov_b32 s66, 0x00003f80\ns_mov_b32 s67, 0x3f800000\ns_mov_b32 s68, 0x3f803f80")
        self.I("v_lshrrev_b32 v18, 1, v4\nv_lshlrev_b32 v18, 10, v18\nv_lshl_add_u32 v18, v3, 4, v18\nv_and_b32 v6, 1, v4\nv_lshl_add_u32 v18, v6, 3, v18")
    def resid_epilogue(self, acc, store=True, statreg=20):
        for i in range(10):
            self.I(f"v_dot2c_f32_bf16 {v(acc+2*i)}, s66, {v(XRES+i)}\nv_dot2c_f32_bf16 {v(acc+2*i+1)}, s67, {v(XRES+i)}")
        if store: self.I(f"v_mov_b32 {v(statreg)}, 0\nv_mov_b32 {v(statreg+1)}, 0")
        for i in range(10):
            self.I(f"v_cvt_pk_bf16_f32 {v(XRES+i)}, {v(acc+2*i)}, {v(acc+2*i+1)}")
            if store and i == 3: self.vm.issue(f"buffer_store_dwordx4 {v(XRES,4)}, v1, {WS}, s39 offen", "st")
            if store and i == 7: self.vm.issue(f"buffer_store_dwordx4 {v(XRES+4,4)}, v1, {WS}, s39 offen offset:1024", "st")
        if not store: return
        self.vm.issue(f"buffer_store_dwordx2 {v(XRES+8,2)}, v1, {WS}, s38 offen offset:2048", "st")
        for i in range(10):
            self.I(f"v_dot2c_f32_bf16 {v(statreg)}, s68, {v(XRES+i)}\nv_dot2c_f32_bf16 {v(statreg+1)}, {v(XRES+i)}, {v(XRES+i)}")
        self.vm.issue(f"buffer_store_dwordx2 {v(statreg,2)}, v18, {WS}, s41 offen", "st")
    def stat_loads(self, soff, voff, dst, tag):
        for n in range(4):
            self.vm.issue(f"buffer_load_dwordx4 {v(dst+4*n,4)}, v1, {WS}, {s(soff)} offen offset:{n*1024} sc1", tag)
    def stat_finish(self, src, dst, presummed=False, packed=True):
        if not packed:
            for n in range(8): self.I(f"v_add_f32 {v(src+n)}, {v(src+n)}, {v(src+8+n)}")
            for n in range(4): self.I(f"v_add_f32 {v(src+n)}, {v(src+n)}, {v(src+4+n)}")
            for n in range(2): self.I(f"v_add_f32 {v(src+n)}, {v(src+n)}, {v(src+2+n)}")
        elif not presummed:
            for n in range(4): self.I(f"v_pk_add_f32 {v(src+2*n,2)}, {v(src+2*n,2)}, {v(src+8+2*n,2)}")
            for n in range(2): self.I(f"v_pk_add_f32 {v(src+2*n,2)}, {v(src+2*n,2)}, {v(src+4+2*n,2)}")
            self.I(f"v_pk_add_f32 {v(src,2)}, {v(src,2)}, {v(src+2,2)}")
        emit_xg_reduce(self.A, [src, src + 1], src + 2)
        self.I(f"""v_mul_f32 {v(dst)}, {hexf(-1.0/640)}, {v(src)}
        v_mul_f32 {v(src+2)}, {v(dst)}, {v(dst)}
        v_mov_b32 {v(src+3)}, {hexf(1.0/640)}
        v_fma_f32 {v(src+1)}, {v(src+1)}, {v(src+3)}, -{v(src+2)}
        v_max_f32 {v(src+1)}, 0, {v(src+1)}
        v_add_f32 {v(src+1)}, {hexf(1e-5)}, {v(src+1)}
        v_rsq_f32 {v(dst+1)}, {v(src+1)}""")

    def csum_loads(self, reg, term, base, row, mask, tag):
        self.lin(36, [term, (S_WAVE, 5 * row)], base, layer=False, tmp=37)
        self.I(f"s_mov_b64 exec, {mask:#x}")
        for k in range(5): self.vm.issue(f"buffer_load_dwordx4 {v(reg+4*k,4)}, v1, {WS}, s36 offen offset:{k*row} sc1", tag)
        self.I("s_mov_b64 exec, -1")
    def csum_part(self, reg, slots, row, mask):
        for a_, b_ in ((0, 1), (2, 3), (0, 2), (0, 4)):
            for i in range(4): self.I(f"v_add_f32 {v(reg+4*a_+i)}, {v(reg+4*a_+i)}, {v(reg+4*b_+i)}")
        self.lin(36, [(S_WAVE, row)], slots, layer=False)
        self.I(f"v_add_u32 v7, s36, v1\ns_mov_b64 exec, {mask:#x}\nds_write_b128 v7, {v(reg,4)}\ns_mov_b64 exec, -1\ns_waitcnt lgkmcnt(0)")
    def csum_final(self, reg, slots, row, dst, mask):
        self.I(f"v_add_u32 v7, {slots}, v1\ns_mov_b64 exec, {mask:#x}")
        for w in range(4): self.I(f"ds_read_b128 {v(reg+4*w,4)}, v7 offset:{w*row}")
        self.I("s_waitcnt lgkmcnt(0)")
        for a_, b_ in ((0, 1), (2, 3), (0, 2)):
            for i in range(4): self.I(f"v_add_f32 {v(reg+4*a_+i)}, {v(reg+4*a_+i)}, {v(reg+4*b_+i)}")
        self.I(f"v_add_u32 v7, {dst}, v1\nds_write_b128 v7, {v(reg,4)}\ns_mov_b64 exec, -1\ns_waitcnt lgkmcnt(0)")
    def qkv_setup(self, l0):
        lo = 0 if l0 else L.LS
        self.lin(94, [(S_I, 2 * L.KVT), (S_WAVE, L.KVT, 1, None)], L.KVB + lo, layer=False)
        self.lin(95, [(S_I, 32), (S_J, 4)], L.FL_KV + lo, layer=False)
        if not l0:
            self.lin(96, [(S_G, L.GS), (S_I, 4 * L.XTS, 0, 3), (S_WAVE, L.XTS)], L.XIN, layer=False)
            self.lin(97, [(S_G, L.GS), (S_I, 4 * 4096, 0, 3), (S_WAVE, 4096)], L.STATIN, layer=False)
            self.lin(98, [(S_I, 128), (S_WAVE, 8)], L.FL_XIN + lo, layer=False)
            self.I("v_bfe_u32 v122, v0, 1, 2\nv_lshlrev_b32 v122, 5, v122\nv_and_b32 v123, 1, v0\nv_lshl_add_u32 v122, v123, 2, v122")
    def wq_round(self, n):
        it = self.collect(lambda: (self.lin(53, [(S_WAVE, 6144)], WQ_LDS + n * 24576, layer=False),
                                   self.lin(52, [(S_J, 120 * 1024), (53, 1)], L.WQF - WQ_LDS, layer=False)))
        for k in range(5):
            if k == 4: it += S_("s_add_u32 s52, s52, 4096\ns_add_u32 s53, s53, 4096")
            if k % 4 == 0: it.append(("s", "s_mov_b32 m0, s53"))
            it.append(("v", f"buffer_load_dwordx4 v1, {WS}, s52 offen offset:{(k%4)*1024} sc1 lds", ("r", n)))
        return it
    def wkv_frags(self):
        it = self.collect(lambda: (self.lin(53, [(S_WAVE, 5 * 6144)], WQ_LDS + 5120, layer=False),
                                   self.lin(52, [(S_J, 120 * 1024), (53, 1)], L.WQF - WQ_LDS, layer=False)))
        for k in range(5):
            if k: it += S_("s_add_u32 s52, s52, 6144\ns_add_u32 s53, s53, 6144")
            it += [("s", "s_mov_b32 m0, s53"), ("v", f"buffer_load_dwordx4 v1, {WS}, s52 offen sc1 lds", "kvw")]
        return it
    QX, QWB, QACC, QSL, QSTAT, QCS = 20, 100, 148, 196, 212, 216
    def qkv_sweep(self, tiles, ks, xwait=None, filler=None, first_reads=True):
        X, WB, ACC = self.QX, self.QWB, self.QACC
        n = len(tiles)
        seq = [(k, ft) for k in ks for ft in tiles]
        D = 8 if n > 1 else 6
        NB = 12
        def rd(i):
            k, ft = seq[i]
            self.I(f"ds_read_b128 {v(WB+4*(i%NB),4)}, v{240 + k//10} offset:{((k%10)*6+ft)*1024}")
        for i in range(min(D, len(seq))): rd(i)
        for i, (k, ft) in enumerate(seq):
            if xwait and ft == tiles[0]: xwait(k)
            self.I(f"s_waitcnt lgkmcnt({min(D - 1, len(seq) - 1 - i)})")
            d = ACC + 4 * ft
            self.I(f"v_mfma_f32_16x16x32_bf16 {v(d,4)}, {v(WB+4*(i%NB),4)}, {v(X+4*k,4)}, {'0' if k == 0 else v(d,4)}")
            if i + D < len(seq): rd(i + D)
            if filler: filler(i, k, ft)
    def cs_reads(self, tiles):
        self.I(f"v_lshlrev_b32 v6, 4, v4\nv_add_u32 v6, {M_CSQ}, v6")
        for ft in tiles: self.I(f"ds_read_b128 {v(self.QCS+4*ft,4)}, v6 offset:{ft*64}")
    def phase_qkv(self, l0):
        A, vm = self.A, self.vm
        X, WB, ACC, SL, ST, CS = self.QX, self.QWB, self.QACC, self.QSL, self.QSTAT, self.QCS
        if l0:
            self.I(f"v_add_u32 v240, {WQ_LDS}, v1\nv_add_u32 v241, {WQ_LDS + 61440}, v1")
            self.I(f"""v_lshrrev_b32 v5, 2, v0
            v_mul_u32_u24 v5, 40, v5
            v_and_b32 v6, 3, v0
            v_lshl_add_u32 v5, v6, 3, v5
            s_and_b32 s36, {s(S_J)}, 1
            s_lshl_b32 s36, s36, 5
            s_add_u32 s36, s36, {KV0_LDS}
            v_add_u32 v242, s36, v5""")
            self.lin(37, [(S_J, 128)], L.FL_WQ, layer=False)
            self.I("v_min_u32 v6, 19, v0\nv_lshlrev_b32 v6, 2, v6")
            def rd(k):
                for u in range(2): self.I(f"ds_read_b64_tr_b16 {v(WB+4*(k%6)+2*u,2)}, v242 offset:{L.xk(k//5, k%5, u)*40}")
            for k in range(4): rd(k)
            for k in range(20):
                c = lambda r_: '0' if k == 0 else v(r_, 4)
                self.I(f"v_mfma_f32_16x16x32_bf16 {v(SL,4)}, v[192:195], {v(X+4*k,4)}, {c(SL)}")
                self.I(f"v_mfma_f32_16x16x32_bf16 {v(SL+4,4)}, {v(X+4*k,4)}, {v(X+4*k,4)}, {c(SL+4)}")
            self.poll2(6, 37, (253, 254), dev=True) if self.cfg.pp else self.poll(6, 37, dev=True)
            self.stamp("p0.wq")
            self.csum_loads(216, (S_J, 20 * 384), L.CSQP, 384, 0xfffff, "cs")
            dm = self.wq_round(0) + self.wq_round(1) + self.wq_round(2)
            self.emit_list(self.take(dm, 5))
            for k in range(20):
                c = lambda r_: '0' if k == 0 else v(r_, 4)
                self.I(f"s_waitcnt lgkmcnt({min(6, 2*(19-k))})")
                self.I(f"v_mfma_f32_16x16x32_bf16 {v(ACC+20,4)}, {v(WB+4*(k%6),4)}, {v(X+4*k,4)}, {c(ACC+20)}")
                if k % 2 == 0: self.emit_list(self.take(dm, 1))
                self.I(f"v_mfma_f32_16x16x32_bf16 {v(CS+20,4)}, {v(WB+4*(k%6),4)}, v[192:195], {c(CS+20)}")
                if k + 4 < 20: rd(k + 4)
            assert not dm
            self.I(f"""v_and_b32 v5, 3, v3
            v_lshrrev_b32 v6, 2, v3
            v_cmp_eq_u32 vcc, 1, v5
            v_cmp_eq_u32 s[62:63], 2, v5
            v_cndmask_b32 {v(SL+4)}, {v(SL+4)}, {v(SL+5)}, vcc
            v_cmp_eq_u32 vcc, 3, v5
            v_cndmask_b32 {v(SL+4)}, {v(SL+4)}, {v(SL+6)}, s[62:63]
            v_cmp_eq_u32 s[62:63], v6, v4
            v_cndmask_b32 {v(SL+4)}, {v(SL+4)}, {v(SL+7)}, vcc
            v_mul_f32 {v(SL)}, 0.25, {v(SL)}
            v_cndmask_b32 {v(SL+1)}, 0, {v(SL+4)}, s[62:63]""")
            self.stat_finish(SL, ST, presummed=True)
            self.I(f"""v_lshlrev_b32 v6, 4, v4
            v_add_u32 v6, {M_CSQ + 320}, v6
            s_mov_b32 exec_lo, 0x00010001
            s_mov_b32 exec_hi, 0x00010001
            ds_write_b128 v6, {v(CS+20,4)}
            s_mov_b64 exec, -1""")
        else:
            nl = [0]
            def load():
                k = nl[0]; nl[0] += 1
                if k and k % 4 == 0: self.I("s_add_u32 s96, s96, 4096")
                vm.issue(f"buffer_load_dwordx4 {v(X+4*k,4)}, v1, {WS}, s96 offen offset:{(k%4)*1024} sc1", ("x", k))
            while nl[0] < 7: load()
            self.I(f"v_add_u32 v240, {WQ_LDS}, v1\nv_add_u32 v241, {WQ_LDS + 61440}, v1")
            self.cs_reads(range(6))
            self.I("s_waitcnt lgkmcnt(0)\ns_barrier")
            sh = self.collect(lambda: self.stat_finish(SL, ST, packed=False))
            tA = self.cfg.tA
            nA = len(tA)
            def fil(i, k, ft):
                if nl[0] < 20 and i % (nA - 1) == 0 + (nA > 2): load()
                if i == 2 * nA: self.stat_loads(97, 18, SL, "stat")
                if i == 10 * nA: vm.wait("stat")
                if i >= 10 * nA: self.emit_list(sh[:2 if nA > 2 else 3]); del sh[:2 if nA > 2 else 3]
            self.qkv_sweep(tA, range(20), xwait=lambda k: vm.wait(("x", k)), filler=fil)
            self.emit_list(sh)
        self.stamp("qkv.kv")
        self.I(f"v_mov_b32 {v(ST+2)}, {v(ST+1)}")
        KA = ACC + 20; KP = 172
        done = A.newlabel("kvdone"); vt = A.newlabel("kvv"); k1 = A.newlabel("kvk1"); jn = A.newlabel("kvj")
        self.I(f"s_lshr_b32 s36, {s(S_J)}, 2\ns_xor_b32 s48, s36, {s(S_WAVE)}\ns_and_b32 s48, s48, 1\ns_cbranch_scc1 {done}")
        for i in (0, 2): self.I(f"v_pk_fma_f32 {v(KA+i,2)}, {v(ST,2)}, {v(CS+20+i,2)}, {v(KA+i,2)} op_sel_hi:[0,1,1]")
        for i in (0, 2): self.I(f"v_pk_mul_f32 {v(KA+i,2)}, {v(ST+2,2)}, {v(KA+i,2)} op_sel_hi:[0,1]")
        self.I(f"v_cvt_pk_bf16_f32 {v(KP)}, {v(KA)}, {v(KA+1)}\nv_cvt_pk_bf16_f32 {v(KP+1)}, {v(KA+2)}, {v(KA+3)}")
        self.I(f"s_and_b32 s37, {s(S_WAVE)}, 1\ns_bitcmp1_b32 {s(S_J)}, 1\ns_cbranch_scc1 {vt}")
        self.I(f"s_lshl_b32 s37, s37, 4\nv_add_u32 v6, s37, v3\ns_bitcmp1_b32 {s(S_J)}, 0\ns_cbranch_scc1 {k1}")
        self.I(f"""v_lshrrev_b32 v7, 1, v4
        v_lshlrev_b32 v7, 9, v7
        v_lshl_add_u32 v7, v6, 4, v7
        v_and_b32 v6, 1, v4
        v_lshl_add_u32 v7, v6, 3, v7
        buffer_store_dwordx2 {v(KP,2)}, v7, {WS}, s94 offen sc1
        s_branch {jn}""")
        A.L(k1)
        self.I(f"""v_lshlrev_b32 v6, 3, v6
        s_mov_b64 exec, 0xffff
        buffer_store_dwordx2 {v(KP,2)}, v6, {WS}, s94 offen offset:1024 sc1
        s_mov_b64 exec, -1
        s_branch {jn}""")
        A.L(vt)
        self.I(f"""s_lshr_b32 s36, {s(S_WAVE)}, 1
        s_lshl_b32 s36, s36, 9
        s_add_u32 s36, s36, {M_VT}
        v_lshlrev_b32 v6, 7, v4
        v_lshl_add_u32 v6, v3, 1, v6
        v_add_u32 v6, s36, v6
        ds_write_b16 v6, {v(KP)}
        ds_write_b16_d16_hi v6, {v(KP)} offset:32
        ds_write_b16 v6, {v(KP+1)} offset:64
        ds_write_b16_d16_hi v6, {v(KP+1)} offset:96
        v_lshlrev_b32 v6, 5, v3
        v_lshl_add_u32 v6, v4, 3, v6
        v_add_u32 v6, s36, v6
        ds_read_b64 {v(KP+2,2)}, v6
        s_mul_i32 s37, s37, 768
        s_add_u32 s37, s94, s37
        s_and_b32 s36, {s(S_J)}, 1
        s_lshl_b32 s36, s36, 8
        s_add_u32 s37, s37, s36
        v_and_b32 v6, 1, v4
        v_mul_u32_u24 v6, 384, v6
        v_lshl_add_u32 v6, v3, 4, v6
        v_lshrrev_b32 v7, 1, v4
        v_lshl_add_u32 v6, v7, 3, v6
        s_cmp_lg_u32 s36, 0
        s_cselect_b32 s36, 4, 99
        s_cselect_b32 exec_lo, 0x00ff00ff, -1
        v_cmp_eq_u32 vcc, s36, v3
        v_mov_b32 v7, 0x3f803f80
        s_mov_b32 exec_hi, exec_lo
        s_waitcnt lgkmcnt(0)
        v_cndmask_b32 {v(KP+2)}, {v(KP+2)}, v7, vcc
        v_cndmask_b32 {v(KP+3)}, {v(KP+3)}, v7, vcc
        buffer_store_dwordx2 {v(KP+2,2)}, v6, {WS}, s37 offen offset:1280 sc1
        s_mov_b64 exec, -1""")
        self.I(f"s_branch {jn}")
        A.L(done)
        self.I(f"v_mov_b32 v6, {BIG}\nbuffer_store_dwordx2 {v(KP,2)}, v6, {WS}, 0 offen")
        A.L(jn)
        vm.q.append("kvst")
        self.stamp("qkv.kvst")
        if l0:
            later = {}
            it = self.wq_round(3) + self.wq_round(4)
            vm.wait(("r", 2))
            self.csum_part(216, M_CSQP, 384, 0xfffff)
            self.I("s_barrier")
            def filq(i, k, ft):
                if i % 2 == 1: self.emit_list(self.take(it, 1))
                if i == self.cfg.kvi0:
                    vm.wait("kvst")
                    self.I("s_barrier")
                    sk = A.newlabel("kvsig")
                    self.I(f"s_cmp_lg_u32 {s(S_WAVE)}, 0\ns_cbranch_scc1 {sk}")
                    self.signal(95, dev=True, val=S_TAG); vm.q.pop()
                    A.L(sk)
            self.qkv_sweep([0, 1, 2, 3, 4], range(12), filler=filq)
            vm.wait(("r", 4))
            self.I("s_barrier")
            self.csum_final(216, M_CSQP, 384, M_CSQ, 0xfffff)
            self.qkv_sweep([0, 1, 2, 3, 4], range(12, 20))
            self.cs_reads(range(5))
            self.emit_list(later.get(5, []))
            self.I("s_waitcnt lgkmcnt(0)")
        else:
            def filb(i, k, ft):
                if i == self.cfg.kvi:
                    self.I("s_waitcnt vmcnt(0)\ns_barrier"); vm.q = []
                    sk = A.newlabel("kvsig")
                    self.I(f"s_cmp_lg_u32 {s(S_WAVE)}, 0\ns_cbranch_scc1 {sk}")
                    self.signal(95, dev=True, val=S_TAG)
                    A.L(sk)
            self.qkv_sweep([t_ for t_ in range(5) if t_ not in tA], range(20), filler=filb)
        self.stamp("qkv.mm")
        c = math.log2(math.e) / math.sqrt(20.0)
        self.I(f"v_mul_f32 {v(ST+2)}, {hexf(c)}, {v(ST+1)}")
        for i in range(0, 20, 2): self.I(f"v_pk_fma_f32 {v(ACC+i,2)}, {v(ST,2)}, {v(CS+i,2)}, {v(ACC+i,2)} op_sel_hi:[0,1,1]")
        for i in range(0, 20, 2): self.I(f"v_pk_mul_f32 {v(ACC+i,2)}, {v(ST+2,2)}, {v(ACC+i,2)} op_sel_hi:[0,1]")
        P = 176
        for i in range(8): self.I(f"v_cvt_pk_bf16_f32 {v(P+i)}, {v(ACC+2*i)}, {v(ACC+2*i+1)}")
        self.I(f"v_cvt_pk_bf16_f32 {v(P+8)}, {v(ACC+16)}, {v(ACC+17)}\nv_mov_b32 {v(P+9)}, 0")
        self.I(f"v_cvt_pk_bf16_f32 {v(P+10)}, {v(ACC+18)}, {v(ACC+19)}\nv_mov_b32 {v(P+11)}, 0")
        self.lin(36, [(S_WAVE, AT.QST_Q, 1, None)], QST, layer=False, tmp=37)
        self.I(f"""s_and_b32 s37, {s(S_WAVE)}, 1
        s_lshl_b32 s37, s37, 4
        v_add_u32 v6, s37, v3
        v_mul_u32_u24 v7, {2*AT.QST_Q}, v4
        v_add_u32 v7, s36, v7
        v_lshl_add_u32 v5, v6, 4, v7
        v_lshl_add_u32 v6, v6, 3, v7""")
        self.I(f"""ds_write_b128 v5, {v(P,4)}
        ds_write_b128 v5, {v(P+4,4)} offset:512
        ds_write_b64 v6, {v(P+8,2)} offset:1024
        ds_write_b64 v6, {v(P+10,2)} offset:{1024+256}""")
        self.I("s_waitcnt lgkmcnt(0)\ns_barrier")
        self.stamp("qkv.epi")

    def pieces(self, n16, magic, pitch, dst, cmax=None):
        self.I(f"s_movk_i32 s52, {magic}\ns_movk_i32 s53, {pitch}\ns_add_u32 s46, s46, s44")
        for q in range(n16 // 2):
            self.I(f"""v_add_u32 v5, {64*q}, v0
            v_mul_u32_u24 v6, s52, v5
            v_lshrrev_b32 v6, 16, v6
            v_mul_u32_u24 v7, {n16}, v6
            v_sub_u32 v5, v5, v7
            v_lshrrev_b32 v7, 4, v6
            v_mul_u32_u24 v18, s32, v7
            v_bfe_u32 v7, v6, 3, 1
            v_mad_u32_u24 v18, v7, s33, v18
            v_bfe_u32 v7, v6, 2, 1
            v_mad_u32_u24 v18, v7, s34, v18
            v_and_b32 v6, 3, v6
            v_add3_u32 v18, v18, v6, s31
            v_mul_u32_u24 v18, s53, v18
            v_lshl_add_u32 v18, v5, 4, v18""")
            if cmax is not None:
                self.I(f"v_cmp_le_u32 vcc, {s(cmax)}, v5\nv_mov_b32 v7, {BIG}\nv_cndmask_b32 v7, 0, v7, vcc\nv_add_u32 v18, v18, v7")
            self.I(f"v_add_u32 {v(dst+q)}, s46, v18")
    PA = 244
    def prep_dma_items(self):
        it = []
        for q in range(7):
            it += [("s", f"s_add_u32 m0, s{72 if q < 5 else 65}, {q*1024}"), ("v", f"buffer_load_dwordx4 {v(self.PA+q)}, {s(SRD_SRC,4)}, 0 offen lds", "prep")]
        if self.cfg.ptouch:
            it += [("s", "v_lshlrev_b32 v253, 7, v0"), ("v", f"buffer_load_dword v254, v253, {WS}, s70 offen", "prep")]
        return it
    def prep_issue(self):
        A = self.A
        lab = {k: A.newlabel("pp" + k) for k in ("w2", "w1", "none", "n10", "end", "pad")}
        self.I(f"""s_lshl_b32 s30, s2, 1
        s_and_b32 s31, {s(S_WAVE)}, 1
        s_add_u32 s30, s30, s31
        s_movk_i32 s31, 192
        s_cmp_lt_u32 s2, 160
        s_cselect_b32 s31, 608, s31
        s_cmp_lt_u32 {s(S_WAVE)}, 2
        s_cselect_b32 s31, s31, 0
        s_add_u32 s30, s30, s31
        s_cmp_ge_u32 s2, 208
        s_cselect_b32 s31, 1024, 0
        s_cmp_lt_u32 {s(S_WAVE)}, 2
        s_cselect_b32 s31, s31, 0
        s_add_u32 s30, s30, s31
        s_min_u32 s31, {s(S_WAVE)}, 2
        s_mul_i32 s72, s31, 7168
        s_cmp_eq_u32 {s(S_WAVE)}, 3
        s_cselect_b32 s31, 5120, 0
        s_add_u32 s72, s72, s31
        s_add_u32 s72, s72, {PREP_LDS}
        s_cmp_lt_u32 {s(S_WAVE)}, 2
        s_cselect_b32 s65, s72, {0xffffec00 if self.cfg.pdma != 9 else 83968 - 5120}""")
        for q in range(7): self.I(f"v_mov_b32 {v(self.PA+q)}, {BIG}")
        self.I(f"s_cmp_ge_u32 s30, 928\ns_cbranch_scc1 {lab['none']}\ns_cmp_ge_u32 s30, 608\ns_cbranch_scc1 {lab['w1']}\ns_cmp_ge_u32 s30, 160\ns_cbranch_scc1 {lab['w2']}")
        self.I(f"""s_lshr_b32 s47, s30, 3          ; ks
        s_and_b32 s48, s30, 7           ; j
        s_mul_i32 s49, s47, 52
        s_lshr_b32 s49, s49, 8          ; w = ks/5
        s_mul_i32 s50, s49, 5
        s_sub_u32 s50, s47, s50         ; s
        s_mul_i32 s31, s49, 160
        s_mul_i32 s32, s50, 40
        s_cmp_gt_u32 s50, 2
        s_cselect_b32 s33, 40, 0
        s_sub_u32 s32, s32, s33
        s_cmp_eq_u32 s50, 2
        s_cselect_b32 s32, 16, s32
        s_add_u32 s31, s31, s32
        s_cmp_eq_u32 s50, 2
        s_cselect_b32 s32, 80, 8
        s_cselect_b32 s33, 40, 20
        s_cselect_b32 s34, 20, 4
        s_mov_b32 s44, 0
        s_mov_b32 s45, 0
        s_mul_i32 s46, s48, 160
        s_mul_i32 s70, s48, 20
        s_add_u32 s70, s70, s47
        s_mul_i32 s70, s70, 5120
        s_add_u32 s70, s70, {L.WOF}
        s_mov_b32 {s(SRD_SRC)}, s96
        s_mov_b32 {s(SRD_SRC+1)}, s97
        s_mov_b32 {s(SRD_SRC+2)}, {640*640*2}
        s_branch {lab['n10']}""")
        A.L(lab['w2'])
        self.I(f"""s_sub_u32 s30, s30, 160
        s_lshr_b32 s47, s30, 3          ; r = w*14+s
        s_and_b32 s48, s30, 7           ; j
        s_mul_i32 s49, s47, 37
        s_lshr_b32 s49, s49, 8
        s_mul_i32 s50, s49, 7
        s_sub_u32 s50, s47, s50         ; sp
        s_lshl_b32 s49, s49, 1          ; 2q""")
        for u in range(2):
            self.I(f"""s_cmp_gt_u32 s50, 3
            s_cselect_b32 s52, 1, 0
            s_cselect_b32 s53, 4, 0
            s_sub_u32 s53, s50, s53
            s_lshl_b32 s53, s53, 1
            s_add_u32 s53, s53, {u}
            s_cmp_eq_u32 s50, 3
            s_cselect_b32 s52, {u}, s52
            s_cselect_b32 s53, 6, s53
            s_add_u32 s52, s52, s49""")
            emit_realtile(A, 52, 53, 31 + u, 44 + u, 54)
        self.I(f"""s_lshl_b32 s31, s31, 4
        s_lshl_b32 s32, s32, 4
        s_sub_u32 s32, s32, s31
        s_mov_b32 s33, 8
        s_mov_b32 s34, 4
        s_mul_i32 s46, s48, 160
        s_mul_i32 s70, s48, 56
        s_add_u32 s70, s70, s47
        s_mul_i32 s70, s70, 5120
        s_add_u32 s70, s70, {L.W2F}
        s_mov_b32 {s(SRD_SRC)}, s100
        s_mov_b32 {s(SRD_SRC+1)}, s101
        s_mov_b32 {s(SRD_SRC+2)}, {1728*640*2}""")
        A.L(lab['n10'])
        self.pieces(10, 6554, 1280, self.PA)
        self.I(f"s_mov_b32 s69, 5\ns_branch {lab['end']}")
        A.L(lab['w1'])
        self.I(f"""s_sub_u32 s30, s30, 608
        s_lshr_b32 s47, s30, 4          ; ks
        s_and_b32 s48, s30, 15          ; j'
        s_mul_i32 s49, s47, 52
        s_lshr_b32 s49, s49, 8
        s_mul_i32 s50, s49, 5
        s_sub_u32 s50, s47, s50""")
        emit_xk(A, 49, 50, 31, 32)
        self.I("s_mov_b32 s53, 0"); emit_realtile(A, 48, 53, 46, 44, 54)
        self.I(f"""s_lshl_b32 s46, s46, 5
        s_mov_b32 s33, 8
        s_mov_b32 s34, 4
        s_mov_b32 s44, 0
        s_mov_b32 s45, 0
        s_cmp_lt_u32 s48, 12
        s_cselect_b32 s54, 14, 12
        s_mul_i32 s70, s48, 20
        s_add_u32 s70, s70, s47
        s_mul_i32 s71, s70, 448
        s_add_u32 s71, s71, {L.CS1P}
        s_mul_i32 s70, s70, 7168
        s_add_u32 s70, s70, {L.W1F}
        s_mov_b32 {s(SRD_SRC)}, s98
        s_mov_b32 {s(SRD_SRC+1)}, s99
        s_mov_b32 {s(SRD_SRC+2)}, {640*1728*2}""")
        self.pieces(14, 4682, 3456, self.PA, cmax=54)
        self.I(f"s_mov_b32 s69, 7\ns_branch {lab['end']}")
        A.L(lab['none'])
        self.I(f"s_mov_b32 s69, 0\ns_mov_b32 s70, {BIG}")
        A.L(lab['end'])
    PF = 160
    def prep_read(self):
        A = self.A; F = self.PF
        l7 = A.newlabel("pf7"); end = A.newlabel("pfe"); l0_ = A.newlabel("pf0")
        self.I(f"s_waitcnt vmcnt(0)\ns_cmp_eq_u32 s69, 0\ns_cbranch_scc1 {l0_}\ns_cmp_eq_u32 s69, 7\ns_cbranch_scc1 {l7}")
        def body(n, P):
            self.I(f"v_lshrrev_b32 v5, 2, v0\nv_and_b32 v6, 3, v0\nv_mul_u32_u24 v5, {P}, v5\nv_lshl_add_u32 v5, v6, 3, v5\nv_add_u32 v5, s72, v5")
            for ft in range(n):
                for u in range(2): self.I(f"ds_read_b64_tr_b16 {v(F+4*ft+2*u,2)}, v5 offset:{u*16*P + ft*32}")
        body(5, 160)
        self.I(f"s_add_u32 s72, s70, 4096\ns_mov_b32 s69, {BIG}\ns_mov_b32 s71, {BIG}\ns_branch {end}")
        A.L(l0_)
        self.I(f"s_mov_b32 s70, {BIG}\ns_mov_b32 s72, {BIG}\ns_mov_b32 s69, {BIG}\ns_mov_b32 s71, {BIG}\ns_branch {end}")
        A.L(l7)
        body(7, 224)
        self.I("s_add_u32 s72, s70, 4096\ns_mov_b32 s69, s72\ns_waitcnt lgkmcnt(0)")
        for i in range(4): self.I(f"v_mov_b32 v{216+i}, 0x3f803f80")
        for ft in range(7): self.I(f"v_mfma_f32_16x16x32_bf16 {v(F+28+4*ft,4)}, {v(F+4*ft,4)}, v[216:219], 0")
        for ft in range(1, 7):
            self.I(f"s_mov_b32 exec_lo, {0x00010001 << ft:#x}\ns_mov_b32 exec_hi, {0x00010001 << ft:#x}")
            for i in range(4): self.I(f"v_mov_b32 {v(F+28+i)}, {v(F+28+4*ft+i)}")
        self.I("s_mov_b64 exec, -1")
        A.L(end)
        self.I(f"v_lshlrev_b32 v220, 6, v3\nv_lshl_add_u32 v220, v4, 4, v220\nv_mov_b32 v5, {BIG}\nv_cmp_lt_u32 vcc, 6, v3\nv_cndmask_b32 v220, v220, v5, vcc\ns_waitcnt lgkmcnt(0)")
    def prep_store_items(self):
        F = self.PF
        it = [("v", f"buffer_store_dwordx4 {v(F+4*ft,4)}, v1, {WS}, s{70 if ft < 4 else 72 if ft == 4 else 69} offen offset:{(ft%4)*1024} sc1", "pst") for ft in range(7)]
        return it + [("v", f"buffer_store_dwordx4 {v(F+28,4)}, v220, {WS}, s71 offen sc1", "pst")]
    def wq_unit_addr(self):
        self.I(f"""s_lshr_b32 s47, s2, 3
        s_and_b32 s48, s2, 7
        s_mul_i32 s49, s47, 52
        s_lshr_b32 s49, s49, 8
        s_mul_i32 s50, s49, 5
        s_sub_u32 s50, s47, s50""")
        emit_xk(self.A, 49, 50, 31, 32)
        self.I(f"""s_mov_b32 s33, 8
        s_mov_b32 s34, 4
        s_mov_b32 s44, 0
        s_mov_b32 s45, 0
        s_mul_i32 s46, s48, 160
        s_mul_i32 s67, s48, 20
        s_add_u32 s67, s67, s47
        s_mul_i32 s68, s67, 384
        s_add_u32 s68, s68, {L.CSQP}
        s_mul_i32 s67, s67, 6144
        s_add_u32 s67, s67, {L.WQF}
        s_lshl_b32 s66, s48, 5
        s_add_u32 s66, s66, s47
        s_lshl_b32 s66, s66, 2
        s_add_u32 s66, s66, {L.FL_WQ}""")
        self.pieces(10, 6554, 1280, 100)
    def wq_unit_issue(self):
        for q in range(5): self.I(f"s_mov_b32 m0, {WQP_LDS + q*1024}\nbuffer_load_dwordx4 {v(100+q)}, {s(SRD_WQ,4)}, 0 offen lds")
        self.I(f"""s_mul_i32 s31, s31, 40
        s_mul_i32 s32, s32, 40
        s_add_u32 s32, s32, s31
        s_mov_b32 m0, {WQP_LDS + 5120}
        s_nop 0
        buffer_load_dwordx4 v1, {s(SRD_KV,4)}, s31 offen lds
        s_mov_b32 m0, {WQP_LDS + 6144}
        s_nop 0
        buffer_load_dwordx4 v1, {s(SRD_KV,4)}, s32 offen lds""")
    def wq_unit_finish(self):
        F = 132
        self.I(f"""v_lshrrev_b32 v5, 2, v0
        v_and_b32 v6, 3, v0
        v_mul_u32_u24 v7, 160, v5
        v_mad_u32_u24 v7, v6, 40, v7
        v_add_u32 v7, {WQP_LDS}, v7
        v_mul_u32_u24 v5, 40, v5
        v_lshl_add_u32 v5, v6, 3, v5
        s_and_b32 s36, s2, 1
        s_lshl_b32 s36, s36, 5
        s_add_u32 s36, s36, {WQP_LDS + 5120}
        v_add_u32 v5, s36, v5""")
        for ft in range(5):
            for u in range(2): self.I(f"ds_read_b64_tr_b16 {v(F+4*ft+2*u,2)}, v7 offset:{u*16*160 + ft*8}")
        for u in range(2): self.I(f"ds_read_b64_tr_b16 {v(F+20+2*u,2)}, v5 offset:{u*1024}")
        for ft in range(6):
            self.I(f"s_waitcnt lgkmcnt({2*(5-ft)})")
            if ft == 4: self.I("s_add_u32 s67, s67, 4096")
            self.I(f"buffer_store_dwordx4 {v(F+4*ft,4)}, v1, {WS}, s67 offen offset:{(ft%4)*1024} sc1")
        for ft in range(6): self.I(f"v_mfma_f32_16x16x32_bf16 {v(F+24+4*ft,4)}, {v(F+4*ft,4)}, v[192:195], 0")
        self.I("v_lshlrev_b32 v5, 4, v4\ns_mov_b32 exec_lo, 0x00010001\ns_mov_b32 exec_hi, 0x00010001")
        for ft in range(6): self.I(f"buffer_store_dwordx4 {v(F+24+4*ft,4)}, v5, {WS}, s68 offen offset:{ft*64} sc1")
        self.I("s_mov_b64 exec, -1")
    def x0_issue(self):
        self.lin(30, [(S_I, 64 * 1280), (S_WAVE, 16 * 1280)], 0, layer=False, tmp=31)
        self.lin(64, [(S_WAVE, 20480)], X0_LDS, layer=False)
        for a_ in range(4):
            self.I(f"v_add_u32 v5, {4*a_}, v4\nv_and_b32 v5, {self.cfg.xm}, v5\nv_xor_b32 v5, v5, v3\nv_lshlrev_b32 v5, 4, v5\nv_mad_u32_u24 {v(100+a_)}, v4, s54, v5")
        self.I(f"s_lshl_b32 s31, {s(S_WAVE)}, 2\nv_add_u32 v5, s31, v4\nv_and_b32 v5, {self.cfg.xm}, v5\nv_xor_b32 v5, v5, v3\nv_lshlrev_b32 v5, 4, v5\nv_mad_u32_u24 v105, v4, s54, v5")
        self.I("s_waitcnt lgkmcnt(0)")
        srd(self.A, SRD_X, 36, 2048 * 640 * 2)
        self.I(f"""s_bitcmp1_b32 {s(S_J)}, 1
        s_cselect_b32 {s(SRD_KV2)}, s42, s40
        s_cselect_b32 {s(SRD_KV2+1)}, s43, s41
        s_mov_b32 {s(SRD_KV2+2)}, {640*20*2}
        s_mov_b32 {s(SRD_KV2+3)}, 0x20000""")
        if self.cfg.fine == "p": self.stamp("p.setup")
        self.I(f"s_cmp_eq_u32 {s(S_WAVE)}, 0\ns_cbranch_scc1 L_x0done") if self.cfg.fine != "p" else None
        if self.cfg.xtouch:
            self.lin(32, [(S_I, 64 * 1280), (S_J, 10240), (S_WAVE, 8192, 1, 1)], 0, layer=False)
            self.lin(33, [(S_C, 8192, 2, 3)], 0, layer=False)
            self.I(f"""v_lshlrev_b32 v5, 7, v0
            s_cmp_eq_u32 {s(S_WAVE)}, 3
            s_cbranch_scc1 L_xt3
            buffer_load_dword v254, v5, {s(SRD_X,4)}, s32 offen
            s_branch L_xt4""")
            self.A.L("L_xt3")
            self.I(f"buffer_load_dword v254, v5, {s(SRD_KV2,4)}, s33 offen")
            self.A.L("L_xt4")
        for a_ in range(4):
            for b_ in range(5):
                self.I(f"s_add_u32 m0, s64, {(a_*5+b_)*1024}\ns_add_u32 s32, s30, {a_*5120 + b_*256}")
                self.I(f"buffer_load_dwordx4 {v(100+a_)}, {s(SRD_X,4)}, s32 offen lds")
            if self.cfg.fine == "p": self.stamp(f"p.a{a_}")
        self.lin(30, [(S_I, 64 * 1280)], 0, layer=False)
        self.lin(31, [(S_WAVE, 5120)], 0, layer=False)
        for b_ in range(5):
            self.I(f"s_add_u32 m0, s31, {X0_LDS + b_*1024}\ns_add_u32 s32, s30, s31\ns_add_u32 s32, s32, {b_*256}")
            self.I(f"buffer_load_dwordx4 v105, {s(SRD_X,4)}, s32 offen lds")
        for n in range(2):
            self.I(f"s_lshl_b32 s31, {s(S_WAVE)}, 1\ns_add_u32 s31, s31, {n}\ns_sub_u32 s31, s31, 2\ns_min_u32 s31, s31, 4")
            self.I(f"s_lshl_b32 s32, s31, 10\ns_add_u32 m0, s32, {X0_LDS}\ns_lshl_b32 s32, s31, 8\ns_add_u32 s32, s32, s30")
            self.I(f"buffer_load_dwordx4 v100, {s(SRD_X,4)}, s32 offen lds")
        if self.cfg.fine == "p": self.stamp("p.t0")
        self.I(f"s_sub_u32 s31, {s(S_WAVE)}, 1\ns_mul_i32 s52, s31, 9216\ns_add_u32 s53, s52, {KV0_LDS}")
        for k in range(9):
            if k and k % 4 == 0: self.I("s_add_u32 s52, s52, 4096\ns_add_u32 s53, s53, 4096")
            if k % 4 == 0: self.I("s_mov_b32 m0, s53")
            self.I(f"buffer_load_dwordx4 v1, {s(SRD_KV2,4)}, s52 offen offset:{(k%4)*1024} lds")
        self.A.L("L_x0done")
    def x0_read(self, X, SL):
        self.I(f"""v_lshrrev_b32 v5, 1, v4
        v_xor_b32 v5, v5, v3
        v_lshlrev_b32 v5, 4, v5
        v_and_b32 v6, 1, v4
        v_lshl_add_u32 v5, v6, 3, v5
        v_lshrrev_b32 v6, 2, v3
        v_mul_u32_u24 v6, 5120, v6
        v_and_b32 v7, 3, v3
        v_lshl_add_u32 v6, v7, 8, v6
        v_add3_u32 v104, v5, v6, s64""")
        for c in range(1, 8): self.I(f"v_xor_b32 {v(104+c)}, {c*32}, v104")
        for k in range(20):
            for u in range(2):
                x = 2 * L.xk(k // 5, k % 5, u)
                self.I(f"ds_read_b64 {v(X+4*k+2*u,2)}, {v(104 + ((x >> 5) & 7))} offset:{(x >> 8) * 1024}")
        for ft in range(5):
            self.I(f"""s_mul_i32 s36, {s(S_J)}, 160
            s_add_u32 s36, s36, {32*ft}
            s_and_b32 s37, s36, 0xe0
            s_lshr_b32 s36, s36, 8
            s_lshl_b32 s36, s36, 10
            v_xor_b32 v5, s37, v104
            v_add_u32 v5, s36, v5
            ds_read_b64 {v(XRES+2*ft,2)}, v5""")
        self.I("s_waitcnt lgkmcnt(0)")
    def x0_stats(self, X, SL):
        it = S_(f"v_mov_b32 {v(SL)}, 0\nv_mov_b32 {v(SL+1)}, 0\nv_mov_b32 {v(SL+2)}, 0\nv_mov_b32 {v(SL+3)}, 0")
        for i in range(0, 80, 2):
            it += S_(f"""v_dot2c_f32_bf16 {v(SL)}, v192, {v(X+i)}
            v_dot2c_f32_bf16 {v(SL+1)}, {v(X+i)}, {v(X+i)}
            v_dot2c_f32_bf16 {v(SL+2)}, v192, {v(X+i+1)}
            v_dot2c_f32_bf16 {v(SL+3)}, {v(X+i+1)}, {v(X+i+1)}""")
        return it + S_(f"v_pk_add_f32 {v(SL,2)}, {v(SL,2)}, {v(SL+2,2)}")

    def phase_att(self):
        A, vm, cfg = self.A, self.vm, self.cfg
        r = AT.AttRegs(20, 256)
        assert r.end <= 156
        A.L("L_att")
        pk0 = A.newlabel("kvp0")
        self.I(f"s_add_u32 s31, {s(S_L)}, {L.FL_KV}\ns_cmp_lg_u32 {s(S_WAVE)}, 0\ns_cbranch_scc1 {pk0}\nbuffer_load_dwordx4 v[156:159], v1, {WS}, s31 offen sc1")
        A.L(pk0)
        self.I(f"s_mov_b32 s59, 384\ns_mov_b32 s58, 0x3f803f80\ns_add_u32 s56, {s(S_L)}, {L.KVB}")
        AT.emit_kv_addr(A, r, 0, S_WAVE, 56)
        AT.emit_att_pre(self, r, 0, S_WAVE, QST, RED_A)
        w1w = cfg.w1warm * 128
        wo1 = self.lin_dma((S_J, 100 * 1024), L.WOF, WO_LDS, 25, 52, 53, "wo") + self.lin_dma((S_JP, 140 * 1024), L.W1F, W1A_LDS, 5, 52, 53, "wo")
        n0 = [it[0] for it in wo1].index("v") - 1
        def late_code():
            self.lin(46, [(2, 4)], L.FL_PREP, layer=False)
            assert L.GS <= 128 * 7 * 2048 and L.GS % (128 * 128) == 0
            self.lin(47, [(S_G, L.GS), (S_C, 4 * 2048), (S_WAVE, 2048)], L.GBASE, layer=False)
            self.I(f"s_cmp_eq_u32 {s(S_L)}, 0\ns_cselect_b32 s47, s47, {BIG}")
            self.I(f"v_lshrrev_b32 v6, 1, v0\nv_lshlrev_b32 v6, 6, v6\nv_and_b32 v7, 1, v0\nv_lshl_add_u32 {v(r.t+5)}, v7, 2, v6")
            self.I(f"s_mov_b32 s48, {L.FL_PREP}")
            self.lin(50, [(S_J, 280 * 1024), (S_WAVE, 70 * 1024)], L.W2F, layer=False, tmp=54)
            self.emit_list(wo1[:n0])
            self.lin(51, [(S_JP, 140 * 1024), (S_C, 4 * w1w, 4, 1), (S_WAVE, w1w)], L.W1F + W1AA * 1024, layer=False, tmp=36)
            self.I("s_getpc_b64 s[42:43]"); self.A.L("L_pc1")
            self.lin(36, [(S_C, 4), (S_WAVE, 1)], 0, layer=False, tmp=37)
            self.I(f"s_and_b32 s36, s36, 15\ns_lshl_b32 s36, s36, 11\ns_add_u32 s36, s36, L_chain-L_pc1\nv_add_u32 {v(r.pf)}, s36, {v(r.t+5)}\nv_min_u32 {v(r.pf)}, L_end-L_pc1, {v(r.pf)}")
            self.lin(44, [(S_G, L.GS), (S_I, 4 * L.XTS, 0, 3), (S_J, 5120, 1, None)], L.OFB, layer=False)
            self.lin(45, [(S_J, 8, 0, 1), (S_WAVE, 256), (44, 1)], 2048, layer=False)
            self.I(f"v_bfe_u32 v6, v0, 4, 1\nv_lshrrev_b32 {v(r.t+3)}, 5, v0\nv_mul_u32_u24 v6, {L.XTS}, v6\nv_lshlrev_b32 {v(r.t+4)}, 4, v3\nv_add3_u32 {v(r.t+4)}, {v(r.t+4)}, v6, s45")
            self.lin(45, [(S_J, 3072, 0, 1), (S_WAVE, 1024, 1, None), (S_WAVE, 512, 0, 1), (44, 1)], 0, layer=False)
            self.I(f"v_lshlrev_b32 {v(r.t+3)}, 8, {v(r.t+3)}\nv_lshl_add_u32 {v(r.t+3)}, v3, 4, {v(r.t+3)}\nv_add3_u32 {v(r.t+3)}, {v(r.t+3)}, v6, s45")
            self.flag_x_off(L.FL_O, 49)
            self.I(f"s_mov_b32 s62, {hexf(2.0**-60)}\nv_mov_b32 {v(r.t+7)}, {hexf(2.0**60)}\nv_mov_b32 {v(r.t+6)}, 0x203")
            self.oproj_setup()
            self.mlp1_setup()
        raw = self.collect(late_code); wo1 = wo1[n0:]
        late = []
        for it in raw:
            if late and (it[1].startswith("s_cselect") or it[1].endswith(":")): late[-1].append(it)
            else: late.append([it])
        self.w2_items = self.load_wfrags([w2_reg(k) for k in range(70)], 50, "w2")
        w2a = self.take(self.w2_items, W2A)
        t16 = lambda sg, step, tag: [("v", f"buffer_load_dword v5, {v(r.t+5)}, {WS}, s{sg} offen", tag), ("s", f"s_add_u32 s{sg}, s{sg}, {step}")]
        warm = [t16(51, 2048, "pf51") for _ in range(-(-w1w // 2048))]
        p1 = []
        for n in range(63):
            p1 += self.take(w2a if (n % 2 == 0 and w2a) or not wo1 else wo1, 1)
            if n >= cfg.wstart and (n - cfg.wstart) % cfg.wstep == 0 and warm: p1 += warm.pop(0)
        p1 += w2a + wo1 + sum(warm, [])
        pk = A.newlabel("kvp")
        self.I(f"s_cmp_lg_u32 {s(S_WAVE)}, 0\ns_cbranch_scc1 {pk}")
        self.poll(1, 31, dev=True, wide=True, pre=True)
        self.I(f"""v_cmp_ne_u32 vcc, 0, v156
        s_lshl_b32 s36, {s(S_G)}, 3
        v_mov_b32 v6, {M_MODE}
        s_lshr_b64 s[64:65], vcc, s36
        s_and_b32 s64, s64, 0xff
        s_cselect_b32 s64, 1, {1 if cfg.force_global else 0}
        v_mov_b32 v7, s64
        ds_write_b32 v6, v7
        s_waitcnt lgkmcnt(0)""")
        A.L(pk)
        self.I("s_barrier")
        self.stamp("kv.poll")
        pf_ = A.newlabel('pfl'); ok = A.newlabel("prepok"); again = A.newlabel("prepagain"); l1 = A.newlabel("l1skip"); l2 = A.newlabel("l1skip")
        chk = S_(f"s_cmp_lg_u32 {s(S_L)}, 0\ns_cbranch_scc1 {l2}\ns_mov_b32 s35, 0\n{again}:\ns_waitcnt vmcnt(0)")
        chk += S_("\n".join(f"v_xor_b32 v{156+k}, {s(S_TAG)}, v{156+k}" for k in range(4)))
        chk += S_(f"""v_or3_b32 v156, v156, v157, v158
        v_or_b32 v156, v156, v159
        v_cmp_lt_u32 vcc, 7, v156
        s_add_u32 s35, s35, 1
        s_cmp_gt_u32 s35, 0x40000
        s_cbranch_scc1 {ok}
        s_cbranch_vccz {ok}
        buffer_load_dwordx4 v[156:159], v1, {WS}, s48 offen sc1
        s_branch {again}
        {ok}:
        {l2}:""")
        self.loops[again] = 0
        pos = lambda n: (1 + n // 16, n % 16)
        ev = {cfg.pflag: S_(f"s_cmp_lg_u32 {s(S_L)}, 0\ns_cbranch_scc1 {l1}\ns_waitcnt vmcnt(0)\ns_barrier\ns_cmp_lg_u32 {s(S_WAVE)}, 0\ns_cbranch_scc1 {pf_}\nv_mov_b32 v5, {s(S_TAG)}\ns_mov_b64 exec, 1\nbuffer_store_dword v5, off, {WS}, s46 sc1\ns_mov_b64 exec, -1\n{pf_}:\n{l1}:"),
              pos(cfg.pchk - 2): [("v", f"buffer_load_dwordx4 v[156:159], v1, {WS}, s48 offen sc1", "prepfl")],
              pos(cfg.pchk): chk}
        for n_, it_ in enumerate(self.prep_store_items()): ev[(0, cfg.pst * n_)] = [it_]
        ev2 = {cfg.ct2: [("v", f"global_load_dword v5, {v(r.pf)}, s[42:43]", "ct")]}
        for key in cfg.tpos: ev2.setdefault(key, []).extend(t16(47, 128 * 2048, "touch"))
        AT.emit_att_main(self, r, 0, S_WAVE, QST, RED_A, 4, "sc1", cfg.nf, ev, ev2, p1, pos(cfg.pchk + 1), late)
        A.L("L_chain")
        vm.wait_all()
        self.stamp("att.main")
        self.I(f"v_mov_b32 v6, {M_BAD}\nds_read_b64 {v(r.Q2[0],2)}, v6")
        AT.emit_att_finish(self, r, 4, r.t + 3, r.t + 4, "", 2 * L.XTS)
        self.I(f"v_readfirstlane_b32 {s(S_MODE)}, {v(r.Q2[0]+1)}")
        self.stamp("att.fin")
        nb = A.newlabel("nobad"); bd = A.newlabel("bad")
        if self.cfg.force_bad: self.I(f"s_and_b32 s64, {s(S_WAVE)}, 1\ns_mov_b32 s65, 0")
        self.emit_list(self.take(self.w2_items, self.cfg.fin_w2))
        self.I(f"""s_cmp_lg_u32 {s(S_RETRY)}, 0
        s_cselect_b64 s[64:65], 0, s[64:65]
        s_cmp_lg_u64 s[64:65], 0
        s_cbranch_scc1 {bd}""")
        vm.wait("st")
        self.I(f"s_cmp_lg_u32 s57, 0\ns_cbranch_scc1 {nb}")
        self.signal(49); vm.q.pop()
        self.I(f"s_mov_b32 s57, {BIG}\ns_branch {nb}")
        A.L(bd)
        self.I("ds_write_b32 v6, v6")
        A.L(nb)
        self.I(f"s_waitcnt lgkmcnt(0)\ns_barrier\nds_read_b32 v7, v6")
        self.w1a = self.lin_dma((S_JP, 140 * 1024), L.W1F + W1AA * 1024, W1A_LDS + W1AA * 1024, 9, 46, 47, "w1")
        self.I(f"s_waitcnt lgkmcnt(0)\nv_readfirstlane_b32 s36, v7\ns_cmp_lg_u32 s36, 0\ns_cbranch_scc1 L_slow")
        self.I(f"s_mov_b32 {s(S_RETRY)}, 0")
        keep = self.A; A2 = Asm(); A2.uid = 100000; self.A = A2
        A2.L("L_slow")
        self.I(f"s_mov_b32 s69, {BIG}\ns_mov_b32 s70, {BIG}\ns_mov_b32 s71, {BIG}\ns_mov_b32 s72, {BIG}\nv_mov_b32 v220, 0")
        self.I(f"s_mov_b32 {s(S_RETRY)}, 1\ns_waitcnt vmcnt(0)\ns_barrier\nv_mov_b32 v7, 0\nds_write_b32 v6, v7")
        AT.emit_kv_addr(A2, r, 0, S_WAVE, 56)
        for k in range(AT.NT):
            for it in AT.kv_items(r, 4, "sc1", k): self.I(it[1])
            if k % 8 == 7: self.I("s_waitcnt vmcnt(0)")
        AT.emit_att_truemax(self, r, 0, S_WAVE, QST, RED_A)
        self.I("s_branch L_att")
        self.A = keep; self.slow = A2.ins
        self.emit_list(self.take(self.w1a, self.cfg.s1_w1a))

    def oproj_setup(self):
        self.lin(30, [(S_G, L.GS), (S_I, 4 * L.XTS, 0, 3), (S_WAVE, L.XTS)], L.OFB, layer=False)
        self.resid_setup(L.XMID, L.STATMID, L.FL_X1)
        self.lin(33, [(S_I, 128)], L.FL_O)
    def phase_oproj(self):
        vm = self.vm
        X, WB, ACC = 256, 68, 108
        sk = self.A.newlabel("cs1l")
        self.I(f"s_cmp_lg_u32 {s(S_L)}, 0\ns_cbranch_scc1 {sk}")
        self.csum_loads(24, (S_JP, 20 * 448), L.CS1P, 448, 0xfffffff, "cs")
        self.A.L(sk)
        self.I("v_bfe_u32 v66, v0, 2, 2\nv_lshlrev_b32 v66, 5, v66\nv_and_b32 v67, 3, v0\nv_lshl_add_u32 v66, v67, 2, v66")
        self.I(f"v_add_u32 v64, {WO_LDS}, v1\nv_add_u32 v65, {WO_LDS + 51200}, v1")
        self.I("v_and_b32 v6, 31, v0\nv_lshlrev_b32 v6, 2, v6")
        self.poll2(6, 33, (5, 7)) if self.cfg.pp else self.poll(6, 33)
        def load(k):
            if k and k % 4 == 0: self.I("s_add_u32 s30, s30, 4096")
            vm.issue(f"buffer_load_dwordx4 {R(X+4*k,4)}, v1, {WS}, s30 offen offset:{(k%4)*1024} sc1", ("x", k))
        nl = 0
        while nl < 7: load(nl); nl += 1
        self.stamp("o.poll")
        D, NB = self.cfg.odepth, 10
        nxt = []
        ow2 = self.take(self.w2_items, self.cfg.o_w2)
        def rd(i): self.I(f"ds_read_b128 {v(WB+4*(i%NB),4)}, v{64 + i//50} offset:{(i%50)*1024}")
        for i in range(D): rd(i)
        for i in range(100):
            k, ft = divmod(i, 5)
            if ft == 0: vm.wait(("x", k))
            self.I(f"s_waitcnt lgkmcnt({min(D - 1, 99 - i)})")
            d = ACC + 4 * ft
            self.I(f"v_mfma_f32_16x16x32_bf16 {v(d,4)}, {v(WB+4*(i%NB),4)}, {R(X+4*k,4)}, {'0' if k == 0 else v(d,4)}")
            if i + D < 100: rd(i + D)
            if i % 4 != 1 and i >= 8 and nxt: self.emit_list(nxt.pop(0))
            if i % 4 == 1:
                if nl < 20: load(nl); nl += 1
                elif self.w1a: self.emit_list(self.take(self.w1a, 1))
                else: self.emit_list(self.take(ow2, 1))
        self.emit_list(self.w1a + ow2 + sum(nxt, []))
        self.stamp("o.mm")
        self.resid_epilogue(ACC)
        self.I("s_barrier")
        b1 = self.cfg.b1n
        self.window(self.lin_dma((S_JP, 140 * 1024), L.W1F + 56 * 1024, W1B_LDS, b1, 52, 53, "w1b"), n1=self.cfg.s2_n1)
        self.w1b = self.lin_dma((S_JP, 140 * 1024), L.W1F + (56 + 4 * b1) * 1024, W1B_LDS + 4 * b1 * 1024, 21 - b1, 52, 53, "w1b")
        self.kbar = (56 + 4 * b1) // 7 - 1
        sk = self.A.newlabel("cs1a")
        self.I(f"s_cmp_lg_u32 {s(S_L)}, 0\ns_cbranch_scc1 {sk}")
        self.csum_part(24, M_CS1P, 448, 0xfffffff)
        self.A.L(sk)
        self.stamp("o.epi")

    def mlp1_setup(self):
        for e in range(2):
            self.lin(82 + e, [(S_IP, 8, 0, 1), (S_WAVE, 2)], e, layer=False)
            self.lin(80 + e, [(82 + e, L.XTS), (S_G, L.GS)], L.XMID, layer=False)
            self.lin(84 + e, [(82 + e, L.HTS), (S_G, L.GS), (S_JP, 7168, 1, None)], L.HFB, layer=False)
            self.lin(86 + e, [(S_JP, 4096, 0, 1), (84 + e, 1)], 0, layer=False)
            self.I(f"s_and_b32 s36, {s(S_JP)}, 1\ns_lshl_b32 s36, s36, 3\ns_add_u32 s{84+e}, s{84+e}, s36")
            self.lin(82 + e, [(82 + e, 4096), (S_G, L.GS)], L.STATMID, layer=False)
        self.lin(88, [(S_IP, 256), (S_WAVE, 128, 1, None), (S_JP, 8), (S_WAVE, 4, 0, 1)], L.FL_H)
        self.lin(89, [(S_IP, 256), (S_WAVE, 128, 1, None), (S_WAVE, 16, 0, 1)], L.FL_X1)
        self.I(f"s_mov_b32 s90, {hexf(math.log2(math.e))}\ns_mov_b32 s91, s90\ns_mov_b32 s92, {hexf(math.sqrt(0.5))}\ns_mov_b32 s93, s92")
    def phase_mlp1(self):
        A, vm = self.A, self.vm
        ACC, SL, ST, AD, XR, NXR, WB = 20, 76, 108, 116, 256, 8, 320
        self.poll2(66, 89, (5, 6))
        self.I(f"""v_add_u32 {v(AD)}, {W1A_LDS}, v1
        v_add_u32 {v(AD+1)}, {W1B_LDS}, v1
        v_add_u32 {v(AD+2)}, {W1B_LDS + 8*7168}, v1
        v_lshlrev_b32 {v(AD+3)}, 4, v4
        v_add_u32 {v(AD+3)}, {M_CS1}, {v(AD+3)}""")
        nxt = self.units(self.collect(self.mlp2_setup))
        def xr(k, e): return XR + 8 * (k % NXR) + 4 * e
        def load(k):
            for e in range(2):
                if k and k % 4 == 0: self.I(f"s_add_u32 s{80+e}, s{80+e}, 4096")
                vm.issue(f"buffer_load_dwordx4 {R(xr(k,e),4)}, v1, {WS}, s{80+e} offen offset:{(k%4)*1024} sc1", ("x", k))
        def wread(k, ft): return f"ds_read_b128 {R(WB + 28*(k%2) + 4*ft, 4)}, {v(AD + k//8)} offset:{(k%8)*7168 + ft*1024}"
        PD = 5
        nl = 0
        while nl < 4: load(nl); nl += 1
        self.I("s_barrier")
        self.stamp("x1.poll")
        w2_in_loop = self.take(self.w2_items, 32 - self.cfg.fin_w2 - self.cfg.o_w2)
        sl_items = []
        for e in range(2):
            for n in range(4):
                sl_items.append(("v", f"buffer_load_dwordx4 {v(SL+16*e+4*n,4)}, v1, {WS}, s{82+e} offen offset:{n*1024} sc1", "stat"))
        def stat_code():
            for e in range(2):
                self.stat_finish(SL + 16 * e, ST + 4 * e, packed=False)
                self.I(f"v_mov_b32 {v(ST+4*e+2)}, {v(ST+4*e+1)}")
        sh = self.collect(stat_code) if self.cfg.m1sh else []
        for ft in range(7): self.I(wread(0, ft))
        for k in range(20):
            vm.wait(("x", k))
            if k == self.kbar:
                vm.wait("w1b"); self.I("s_barrier")
            if k == 16 and sh: vm.wait("stat")
            self.I("s_waitcnt lgkmcnt(0)")
            n = 0
            for ft in range(7):
                for e in range(2):
                    d = ACC + 28 * e + 4 * ft
                    self.I(f"v_mfma_f32_16x16x32_bf16 {v(d,4)}, {R(WB+28*(k%2)+4*ft,4)}, {R(xr(k,e),4)}, {'0' if k == 0 else v(d,4)}")
                    if k + 1 < 20 and n < 7: self.I(wread(k + 1, n))
                    if n == 7 and nl < min(k + PD, 20): load(nl); nl += 1
                    if n == 9 and nl < min(k + 1 + PD, 20): load(nl); nl += 1
                    if n == 11 or (n == 8 and (nl == 20 or k % 2 == 0 or (self.w1b and self.kbar < 13))):
                        if self.w1b: self.emit_list(self.take(self.w1b, 1))
                        elif sl_items: self.emit_list(self.take(sl_items, 1))
                        else: self.emit_list(self.take(w2_in_loop, 1))
                    if n == 5 and nl == 20: self.emit_list(self.take(w2_in_loop, 1))
                    if k >= 16 and sh: self.emit_list(sh[:2]); sh = sh[2:]
                    if 4 <= k < 16 and nxt: self.emit_list(nxt.pop(0))
                    n += 1
            if k == 3:
                sk = A.newlabel("cs1b")
                self.I(f"s_cmp_lg_u32 {s(S_L)}, 0\ns_cbranch_scc1 {sk}")
                self.csum_final(120 - 4 * 0, M_CS1P, 448, M_CS1, 0xfffffff) if False else self.csum_final(SL + 16, M_CS1P, 448, M_CS1, 0xfffffff)
                A.L(sk)
            assert k < self.kbar - 2 or not self.w1b
            if self.cfg.fine == "m" and k in (0, 4, 9, 14): self.stamp(f"m1.k{k}")
        assert not sh and not sl_items and not nxt
        self.w2_items = w2_in_loop + self.w2_items
        self.stamp("m1.mm")
        self.I("s_barrier")
        if not self.cfg.m1sh:
            vm.wait("stat"); stat_code()
        CB = SL; T = 120; PK = [[128, 116], [92, 96]]
        def cbread(ft):
            b = CB + 8 * (ft % 2)
            self.I(f"ds_read_b128 {v(b,4)}, v7 offset:{ft*64}\nds_read_b128 {v(b+4,4)}, v7 offset:{448+ft*64}")
        self.I(f"v_mov_b32 v7, {v(AD+3)}")
        cbread(0)
        if self.cfg.fine == "m": self.stamp("m1.stat")
        for ft in range(7):
            ch = [(e, h) for e in range(2) for h in range(2)]
            D = lambda c: ACC + 28 * c[0] + 4 * ft + 2 * c[1]
            Tt = lambda c: T + 4 * c[0] + 2 * c[1]
            b = CB + 8 * (ft % 2); q = ft // 2
            self.I("s_waitcnt lgkmcnt(0)")
            if ft + 1 < 7: cbread(ft + 1)
            for c in ch: self.I(f"v_pk_fma_f32 {v(D(c),2)}, {v(ST+4*c[0],2)}, {v(b+2*c[1],2)}, {v(D(c),2)} op_sel_hi:[0,1,1]")
            for c in ch: self.I(f"v_pk_fma_f32 {v(D(c),2)}, {v(D(c),2)}, {v(ST+4*c[0]+2,2)}, {v(b+4+2*c[1],2)} op_sel_hi:[1,0,1]")
            for c in ch: self.I(f"v_pk_fma_f32 {v(Tt(c),2)}, {v(D(c),2)}, s[90:91], -0.5 op_sel_hi:[1,1,0]")
            for c in ch: self.I(f"v_exp_f32 {v(Tt(c))}, {v(Tt(c))}\nv_exp_f32 {v(Tt(c)+1)}, {v(Tt(c)+1)}")
            for c in ch: self.I(f"v_pk_add_f32 {v(Tt(c),2)}, {v(Tt(c),2)}, s[92:93]")
            for c in ch: self.I(f"v_pk_fma_f32 {v(Tt(c),2)}, {v(Tt(c),2)}, {v(Tt(c),2)}, 0.5 op_sel_hi:[1,1,0]")
            for c in ch: self.I(f"v_rcp_f32 {v(Tt(c))}, {v(Tt(c))}\nv_rcp_f32 {v(Tt(c)+1)}, {v(Tt(c)+1)}")
            for c in ch: self.I(f"v_pk_fma_f32 {v(D(c),2)}, {v(D(c),2)}, {v(Tt(c),2)}, {v(D(c),2)} neg_lo:[1,0,0] neg_hi:[1,0,0]")
            for c in ch: self.I(f"v_cvt_pk_bf16_f32 {v(PK[c[0]][q%2]+2*(ft%2)+c[1])}, {v(D(c))}, {v(D(c)+1)}")
            if ft % 2 == 1:
                for e in range(2): vm.issue(f"buffer_store_dwordx4 {v(PK[e][q%2],4)}, v1, {WS}, s{86+e} offen offset:{q*1024} {self.cfg.hst}", "st")
            elif ft == 6:
                for e in range(2): vm.issue(f"buffer_store_dwordx2 {v(PK[e][q%2],2)}, v1, {WS}, s{84+e} offen offset:3072 {self.cfg.hst}", "st")
            elif ft < self.cfg.mish_ld:
                self.emit_list(self.take(self.w2_items, 2))
        if self.cfg.fine == "m": self.stamp("m1.mish")
        self.n_left = sum(1 for it in self.w2_items if it[0] == "v")
        self.wqa = self.lin_dma((S_J, 120 * 1024), L.WQF, WQ_LDS, 30, 52, 53, "wq")
        self.window(self.w2_items + self.take(self.wqa, self.cfg.s3_wq), n1=self.cfg.s3_n1, fl=88)
        self.stamp("m1.epi")

    def mlp2_setup(self):
        NS = 14
        for p in range(4):
            self.I(f"s_add_u32 s37, {s(S_WAVE)}, {p+1}\ns_and_b32 s37, s37, 3")
            self.lin(44 + p, [(37, 5120)], RED_K, layer=False)
            self.lin(30 + p, [(37, L.HTS), (S_G, L.GS), (S_I, 4 * L.HTS, 0, 3), (S_WAVE, NS * 1024)], L.HFB, layer=False)
        self.resid_setup(L.XIN, L.STATIN, L.FL_XIN + L.LS)
        self.lin(48, [(S_I, 128), (S_WAVE, 32)], L.FL_H)
    def phase_mlp2(self):
        A, vm = self.A, self.vm
        NS, XR, NR, accs, stage, PD, P0 = 14, 276, 25, [20, 40], 60, self.cfg.pd2, 6
        fine = self.cfg.fine == "h"
        self.I("v_and_b32 v120, 7, v0\nv_lshlrev_b32 v120, 2, v120")
        self.poll2(120, 48, (5, 121))
        nxt = self.units(self.collect(lambda: self.qkv_setup(False)))
        self.stamp("h.poll")
        if self.cfg.wb:
            sk = A.newlabel("wb")
            self.I(f"s_and_b32 s36, {s(S_C)}, {self.cfg.wb - 1}\ns_or_b32 s36, s36, {s(S_WAVE)}\ns_cbranch_scc1 {sk}\nbuffer_wbl2 sc1")
            A.L(sk)
        items = [(p, st) for p in range(4) for st in range(NS)]
        def xr(k): return XR + 4 * (k % NR)
        def load(k):
            p, st = items[k]
            if st % 4 == 0: self.I(f"s_add_u32 s34, s{30+p}, {(st//4)*4096}")
            vm.issue(f"buffer_load_dwordx4 {R(xr(k),4)}, v1, {WS}, s34 offen offset:{(st%4)*1024} {self.cfg.hld}", ("x", k))
        nl = 0
        while nl < P0: load(nl); nl += 1
        NM = 5 * NS; nwq = 0
        for k, (p, st) in enumerate(items):
            acc = accs[p % 2]
            if st == 0:
                fill = {}
                T0, T1 = stage + 20 * (p % 2), stage + 20 * ((p + 1) % 2)
                if p > 0:
                    prev = accs[(p - 1) % 2]
                    fill.setdefault(0, []).append(f"v_add_u32 v7, s{44+p-1}, v1")
                    if p > 1: fill.setdefault(3, []).append("s_waitcnt lgkmcnt(0)")
                    for ft in range(5):
                        m = 4 + 5 * ft
                        if p > 1:
                            for n in range(4): fill.setdefault(m + n // 2, []).append(f"v_add_f32 {v(T1+4*ft+n)}, {v(T1+4*ft+n)}, {v(prev+4*ft+n)}")
                        fill.setdefault(m + 2, []).append(f"ds_write_b128 v7, {v((T1 if p > 1 else prev)+4*ft,4)} offset:{ft*1024}")
                    fill.setdefault(38, []).append(f"s_waitcnt lgkmcnt(0)\ns_barrier\nv_add_u32 v6, s{44+p}, v1")
                    for ft in range(5): fill.setdefault(40 + 2 * ft, []).append(f"ds_read_b128 {v(T0+4*ft,4)}, v6 offset:{ft*1024}")
            vm.wait(("x", k))
            if fine and st == 0: self.stamp(f"k.g{p}")
            for ft in range(5):
                c = "0" if st == 0 else v(acc + 4 * ft, 4)
                self.I(f"v_mfma_f32_16x16x32_bf16 {v(acc+4*ft,4)}, {R(w2_reg(5*st+ft),4)}, {R(xr(k),4)}, {c}")
                for x in fill.get(5 * st + ft, []): self.I(x)
                if ft == 1 and k % 2 == 0 and nl < min(k + PD, len(items)): load(nl); nl += 1
                if ft == 3 and k >= 4 and nxt: self.emit_list(nxt.pop(0))
            if nl < min(k + 1 + PD, len(items)): load(nl); nl += 1
            elif k == len(items) - 10 and self.cfg.wb2:
                sk = A.newlabel("wb")
                self.I(f"s_and_b32 s36, {s(S_C)}, {self.cfg.wb2 - 1}\ns_or_b32 s36, s36, {s(S_WAVE)}\ns_cbranch_scc1 {sk}\ns_cmp_eq_u32 {s(S_L)}, 0\ns_cbranch_scc1 {sk}\nbuffer_wbl2 sc1")
                A.L(sk)
            elif nl == len(items) and nwq < self.cfg.wqn: self.emit_list(self.take(self.wqa, 2)); nwq += 2
        if fine: self.stamp("k.mend")
        self.I("s_waitcnt lgkmcnt(0)")
        for i in range(0, 20, 2): self.I(f"v_pk_add_f32 {v(accs[1]+i,2)}, {v(accs[1]+i,2)}, {v(stage+20+i,2)}")
        self.stamp("m2.mm")

    def init_lds_consts(self):
        A, vm = self.A, self.vm
        self.I("s_mov_b32 s53, 0"); emit_realtile(A, S_JP, 53, 54, 56, 58)
        self.I("s_mov_b32 s53, 6"); emit_realtile(A, S_JP, 53, 55, 57, 58)
        self.I(f"""s_lshl_b32 s54, s54, 5
        v_mov_b32 v6, s57
        v_cmp_lt_u32 vcc, 23, v0
        v_cndmask_b32 v6, 0, v6, vcc
        v_add_u32 v6, v6, v2""")
        vm.issue(f"buffer_load_dwordx2 v[252:253], v6, s[12:15], s54 offen", "b1")
    def init_lds_finish(self):
        self.I(f"""v_lshlrev_b32 v20, 16, v252
        v_and_b32 v21, 0xffff0000, v252
        v_lshlrev_b32 v22, 16, v253
        v_and_b32 v23, 0xffff0000, v253
        v_add_u32 v6, {M_B1}, v1
        s_mov_b64 exec, 0x0fffffff
        ds_write_b128 v6, v[20:23]
        s_mov_b64 exec, -1
        v_mov_b32 v6, {M_BAD}
        v_mov_b32 v7, 0
        ds_write_b32 v6, v7""")

def build_main(cfg):
    G = Gen(cfg); A = G.A; vm = G.vm
    Gen.cold = []
    G.I("s_cmp_ge_u32 s2, 256\ns_cbranch_scc1 L_end")
    if cfg.ctouch:
        G.I(f"s_cmp_ge_u32 s2, {8 * cfg.ctouch}\ns_cbranch_scc1 L_noct\ns_getpc_b64 s[62:63]")
        A.L("L_pc0")
        G.I(f"""s_lshr_b32 s30, s2, 3
        s_and_b32 s30, s30, 1
        s_lshl_b32 s30, s30, 15
        v_lshlrev_b32 v5, 7, v0
        v_add_u32 v5, s30, v5
        v_min_u32 v5, L_codeend-L_pc0-4, v5
        global_load_dword v255, v5, s[62:63]""")
        A.L("L_noct")
    G.I(f"""
    s_load_dwordx8 s[36:43], s[0:1], 0
    s_load_dwordx2 s[96:97], s[0:1], 32       ; wo
    s_load_dwordx2 s[98:99], s[0:1], 48       ; w1
    s_load_dwordx2 s[56:57], s[0:1], 56       ; b1
    s_load_dwordx2 s[100:101], s[0:1], 64     ; w2
    s_load_dwordx2 s[58:59], s[0:1], 72       ; out
    s_load_dwordx2 s[60:61], s[0:1], 88       ; ws
    v_lshrrev_b32 v2, 6, v0
    v_and_b32 v0, 63, v0
    v_readfirstlane_b32 {s(S_WAVE)}, v2
    v_lshlrev_b32 v1, 4, v0
    v_lshlrev_b32 v2, 3, v0
    v_and_b32 v3, 15, v0
    v_lshrrev_b32 v4, 4, v0
    s_and_b32 {s(S_G)}, s2, 7
    s_lshr_b32 {s(S_C)}, s2, 3
    s_lshl_b32 {s(S_I)}, {s(S_G)}, 2
    s_lshr_b32 s30, {s(S_C)}, 3
    s_add_u32 {s(S_I)}, {s(S_I)}, s30
    s_and_b32 {s(S_J)}, {s(S_C)}, 7
    s_lshl_b32 {s(S_IP)}, {s(S_G)}, 1
    s_lshr_b32 s30, {s(S_C)}, 4
    s_add_u32 {s(S_IP)}, {s(S_IP)}, s30
    s_and_b32 {s(S_JP)}, {s(S_C)}, 15
    s_mov_b32 {s(S_L)}, 0
    s_mov_b32 {s(S_MODE)}, 1
    s_mov_b32 {s(S_RETRY)}, 0
    s_getreg_b32 {s(S_TAG)}, hwreg(HW_REG_XCC_ID, 0, 3)
    """)
    if cfg.prof: G.I("s_mov_b32 s77, 0\nv_mov_b32 v19, 0\ns_memrealtime s[78:79]\ns_waitcnt lgkmcnt(0)\nv_writelane_b32 v19, s78, 62")
    G.stamp("start")
    G.I(f"s_cmp_lt_u32 s2, 160\ns_cselect_b32 s73, 0, 1\ns_or_b32 s73, s73, {s(S_WAVE)}\ns_cbranch_scc1 L_nowq1")
    G.wq_unit_addr()
    G.I("s_waitcnt lgkmcnt(0)")
    srd(A, SRD_WQ, 38, 640 * 640 * 2)
    G.I(f"""s_bitcmp1_b32 s2, 1
    s_cselect_b32 {s(SRD_KV)}, s42, s40
    s_cselect_b32 {s(SRD_KV+1)}, s43, s41
    s_mov_b32 {s(SRD_KV+2)}, {640*20*2}
    s_mov_b32 {s(SRD_KV+3)}, 0x20000""")
    G.wq_unit_issue()
    A.L("L_nowq1")
    G.I("s_movk_i32 s54, 1280")
    G.x0_issue()
    G.I(f"s_load_dword {s(S_EPOCH)}, s[60:61], {L.EPOCH}")
    srd(A, 4, 60, L.WS_USED); srd(A, 8, 58, 2048 * 640 * 2); srd(A, 12, 56, 1728 * 2); srd(A, SRD_SRC, 96, 640 * 640 * 2)
    G.I("v_mov_b32 v192, 0x3f803f80\nv_mov_b32 v193, 0x3f803f80\nv_mov_b32 v194, 0x3f803f80\nv_mov_b32 v195, 0x3f803f80")
    G.I(f"""s_cmp_ge_u32 s2, 160
    s_cselect_b32 s36, 0, 1
    s_or_b32 s36, s36, {s(S_WAVE)}
    s_cbranch_scc1 L_notouch
    s_sub_u32 s36, s2, 160
    s_lshl_b32 s37, s36, 13
    s_add_u32 s37, s37, {L.KVB}
    s_cmp_eq_u32 s36, {2 * L.LS // 8192 + 1}
    s_cselect_b32 s37, {L.FL_PREP}, s37
    s_cmp_gt_u32 s36, {2 * L.LS // 8192 + 1}
    s_cbranch_scc1 L_notouch
    v_lshlrev_b32 v5, 7, v0
    buffer_load_dword v254, v5, {WS}, s37 offen""")
    A.L("L_notouch")
    G.init_lds_consts()
    G.I(f"s_waitcnt lgkmcnt(0)\ns_mul_i32 {s(S_EPOCH)}, {s(S_EPOCH)}, 1664525\ns_add_u32 {s(S_EPOCH)}, {s(S_EPOCH)}, 1013904223")
    G.I(f"s_and_b32 s36, {s(S_EPOCH)}, 0xfffffff8\ns_or_b32 {s(S_TAG)}, {s(S_TAG)}, s36")
    G.stamp("p0.issue")
    G.prep_issue()
    G.I("s_cmp_lg_u32 s73, 0\ns_cbranch_scc1 L_nowq2\ns_waitcnt vmcnt(1)")
    G.wq_unit_finish()
    G.I("s_waitcnt vmcnt(0)")
    G.signal(66, dev=True)
    G.I("s_branch L_wq3")
    A.L("L_nowq2")
    G.I("s_waitcnt vmcnt(0)")
    A.L("L_wq3")
    vm.q = []
    G.stamp("p0.x")
    if cfg.wtouch:
        per = -(-(L.PROF - L.WOF) // (256 * 128)) * 128
        G.lin(36, [(2, per)], L.WOF, layer=False)
        G.I(f"s_cmp_lg_u32 {s(S_WAVE)}, {cfg.wtouch - 1}\ns_cbranch_scc1 L_nowt\nv_lshlrev_b32 v5, 7, v0")
        for n in range(-(-per // 8192)):
            G.I(f"buffer_load_dword v254, v5, {WS}, s36 offen\ns_add_u32 s36, s36, 8192")
        A.L("L_nowt")
    G.emit_list(G.prep_dma_items())
    G.qkv_setup(True)
    G.init_lds_finish()
    G.I("s_barrier")
    G.x0_read(20, 196)
    G.I("s_barrier")
    G.stamp("p0.read")
    G.phase_qkv(True)
    G.prep_read()
    G.stamp("prep")
    A.L("L_layer")
    G.I("s_mov_b32 s57, 0")
    G.phase_att()
    G.I(f"s_cmp_lg_u32 s2, 0\ns_cbranch_scc1 L_noep\nv_mov_b32 v5, {s(S_EPOCH)}\ns_mov_b32 s36, {L.EPOCH}\ns_mov_b64 exec, 1\nbuffer_store_dword v5, off, {WS}, s36\ns_mov_b64 exec, -1")
    A.L("L_noep")
    G.phase_oproj()
    G.phase_mlp1()
    G.phase_mlp2()
    G.I(f"s_cmp_lg_u32 {s(S_L)}, 0\ns_cbranch_scc1 L_final")
    q0 = list(vm.q)
    G.resid_epilogue(40, statreg=60)
    G.window(G.wqa, n1=cfg.s4_n1)
    G.stamp("m2.epi")
    G.I(f"s_mov_b32 {s(S_L)}, {L.LS}")
    G.poll2(122, 98, (5, 7))
    G.stamp("xin.poll")
    G.phase_qkv(False)
    G.I(f"s_mov_b32 s69, {BIG}\ns_mov_b32 s70, {BIG}\ns_mov_b32 s71, {BIG}\ns_mov_b32 s72, {BIG}\nv_mov_b32 v220, 0")
    G.I("s_branch L_layer")
    A.L("L_final")
    vm.q = q0
    G.lin(36, [(S_I, 64 * 1280), (S_WAVE, 16 * 1280), (S_J, 160)], 0, layer=False, tmp=37)
    G.I("v_mul_u32_u24 v6, 1280, v3\nv_lshl_add_u32 v6, v4, 3, v6")
    if cfg.fst:
        G.I("v_and_b32 v7, 1, v4\nv_mul_u32_u24 v7, 24, v7\nv_add_u32 v7, v6, v7")
    G.resid_epilogue(40, store=False)
    if cfg.fst:
        for pr in range(2):
            b_ = XRES + 4 * pr
            G.I(f"v_permlane16_swap_b32 {v(b_)}, {v(b_+2)}\nv_permlane16_swap_b32 {v(b_+1)}, {v(b_+3)}")
            G.I(f"buffer_store_dwordx4 {v(b_,4)}, v7, s[8:11], s36 offen offset:{pr*64}")
        G.I(f"buffer_store_dwordx2 {v(XRES+8,2)}, v6, s[8:11], s36 offen offset:128")
    else:
        for ft in range(5): G.I(f"buffer_store_dwordx2 {v(XRES+2*ft,2)}, v6, s[8:11], s36 offen offset:{ft*32} {cfg.outfl}")
    if cfg.prof:
        G.I("s_waitcnt vmcnt(0)"); G.stamp("end")
        G.I("s_memrealtime s[78:79]\ns_waitcnt lgkmcnt(0)\nv_writelane_b32 v19, s78, 63")
        G.I(f"s_lshl_b32 s36, s2, 2\ns_add_u32 s36, s36, {s(S_WAVE)}\ns_lshl_b32 s36, s36, 8\ns_add_u32 s36, s36, {L.PROF}\nv_lshlrev_b32 v6, 2, v0")
        G.I(f"buffer_store_dword v19, v6, {WS}, s36 offen")
        if cfg.dbg:
            G.I(f"""s_cmp_lg_u32 s2, {cfg.dbgwg}
            s_cbranch_scc1 L_end
            s_cmp_lg_u32 {s(S_WAVE)}, 0
            s_cbranch_scc1 L_end
            s_load_dwordx2 s[36:37], s[0:1], 80
            v_readlane_b32 s38, v19, 0
            s_waitcnt lgkmcnt(0)
            v_subrev_u32 v19, s38, v19
            s_mov_b64 exec, 0xffff
            global_store_dword v6, v19, s[36:37]""")
        cfg.names = G.names
    A.L("L_end")
    G.I("s_endpgm")
    for g, j, code in Gen.cold:
        A.L(g); G.I(code); G.I(f"s_branch {j}")
    A.ins += G.slow
    A.L("L_codeend")
    if os.environ.get('V'): print('w2 left for S3 window:', G.n_left)
    npad = A.pad_hazards()
    tr = trace_two_layers(A.ins, G.loops)
    errs = check_waits([x for x in tr if x.op not in ("s_memtime", "s_memrealtime")], "main")
    assert errs == 0 or cfg.skip != ("",) and cfg.skip
    return A.text(), npad

def trace_two_layers(ins, loops):
    labels = {x.label: i for i, x in enumerate(ins) if x.is_label}
    tr = []; j = 0; left = {}; layer = 0
    while j < len(ins):
        c = ins[j]; tr.append(c)
        if c.op == "s_endpgm": break
        if c.kind == "branch":
            t = labels[c.target]
            if c.op == "s_branch":
                if c.target == "L_layer": layer = 1
                j = t; continue
            if t <= j:
                k = left.get(j, loops.get(c.target, 1))
                if k > 0: left[j] = k - 1; j = t; continue
                left.pop(j, None)
            elif (c.target == "L_final" and layer == 1) or c.target.startswith("L_prepok") or (c.target.startswith("L_pollx") and c.op == "s_cbranch_vccz"):
                j = t; continue
        j += 1
    return tr

HEADER = open(f"cdna_kernels/{NAME}.s.ref").read().split("; Override launch")[0]

def build_all(cfg):
    body, npad = build_main(cfg)
    asm = HEADER
    asm += f"; @launch grid=(256,1,1) block=(256,1,1) lds={LDS_BYTES}\n"
    asm += '.amdgcn_target "amdgcn-amd-amdhsa--gfx950"\n'
    asm += wrap_kernel(NAME + "_kernel", body, vgpr=512, acc=256)
    return asm, npad

if __name__ == "__main__":
    cfg = Cfg()
    cfg.prof = "prof" in os.environ.get("XF", "")
    asm, npad = build_all(cfg)
    open("out.s", "w").write(asm)
    print("lines", len(asm.splitlines()), "bytes", len(asm), "pad", npad)
```

```python
import sys, main3 as M
for n, c in enumerate(sys.argv[1:]):
    cfg = M.Cfg()
    for kv_ in c.split(';'):
        if kv_ and kv_ != "-": k_, v_ = kv_.split('='); setattr(cfg, k_, eval(v_))
    asm, _ = M.build_all(cfg)
    open(f"var{n}.s", "w").write(asm)
    print(n, c)
```

```python
from asmlib import *
import layout as L
import attn3 as AT
from attn3 import S_
from prep import srd, emit_xg_reduce, emit_realtile, emit_xk, BIG
import math, os, struct

NAME = "interleave_layers__grouped_kv_mqa__dense_activation_mish__prompt"
WQ_LDS = 0
X0_LDS = 0
KV0_LDS = 94208
WQP_LDS = 86016
PREP_LDS = 122880
RED_A = 122880
QST = 147456
WO_LDS = 0
W1AA = 20
W2A = 33
W1A_LDS, W1B_LDS = 102400, 0
RED_K = 122880
MISC = 159744
M_CS1, M_B1, M_CSQ, M_BAD = MISC, MISC + 448, MISC + 896, MISC + 1280
M_MODE = MISC + 1284
M_VT = MISC + 1344
M_CSQP = MISC + 2368
M_CS1P = MISC + 1344
LDS_BYTES = 163840

S_WAVE, S_G, S_C, S_I, S_J, S_IP, S_JP, S_EPOCH, S_L, S_MODE, S_RETRY, S_TAG = 20, 21, 22, 23, 24, 25, 26, 27, 28, 29, 76, 75
XRES = 8
WS = "s[4:7]"
SRD_X, SRD_WQ, SRD_KV, SRD_SRC, SRD_KV2 = 80, 84, 88, 92, 16

def hexf(x): return "0x%08x" % struct.unpack("<I", struct.pack("<f", x))[0]
def w2_reg(k):
    if k < 25: return 156 + 4 * k
    if k < 33: return 480 + 4 * (k - 25)
    if k < 59: return 376 + 4 * (k - 33)
    if k < 65: return 132 + 4 * (k - 59)
    return 256 + 4 * (k - 65)

NFIRST = int(os.environ.get('NF', 3))
class Cfg:
    fin_w2 = 0; s1_w1a = 5; s2 = 12; odepth = 9; m1sh = True
    diag = None
    b1n = 11; s2_n1 = 6
    tlb = 0; pp = True; psl = 1; fst = True
    o_w2 = 6; xm = 15
    ctouch = 2; ct2 = (3, 6)
    wtouch = 0; tpos = ((0, 14), (1, 2), (1, 10), (2, 3), (2, 10), (3, 1), (3, 8))
    wqn = 20; pd2 = 10; mish_ld = 6; s4_n1 = 6
    dst = False; kvi0 = 24
    tA = [5, 0, 1]; kvi = 36; chain = True
    hst = ''; ost = ''; hld = 'sc1'
    dbg = None; dbgwg = 0
    w2warm = 0; otouch = False
    sect = True; nf = 3
    xtouch = True; w1warm = 80
    ahead = 0; kvf = 1; pdma = 9
    ends = False; outfl = ''; wb2 = 0
    s3_wq = 0; s3_n1 = 6; fastl1 = True
    wq3 = 2; tstep = 7; wstart = 48; wstep = 2; nta = False; t0 = True
    ptouch = False; pst = 1; pflag = (0, 13); pchk = 9; wb = 0
    prof = False; rt = False; fine = None; skip = (); force_global = False; force_bad = False

class Gen:
    def __init__(self, cfg):
        self.A = Asm(); self.vm = VmTracker(self.A); self.cfg = cfg
        self.names = []; self.loops = {}
    def I(self, t): return self.A.I(t)
    def stamp(self, name=""):
        if self.cfg.dbg and name not in self.cfg.dbg: return
        if self.cfg.prof and not self.cfg.ends:
            if self.cfg.rt:
                self.I("s_memrealtime s[78:79]\ns_waitcnt lgkmcnt(0)\ns_lshl_b32 s74, s78, 18\ns_memtime s[78:79]\ns_waitcnt lgkmcnt(0)\ns_and_b32 s78, s78, 0x3ffff\ns_or_b32 s78, s78, s74")
            else:
                self.I("s_memtime s[78:79]\ns_waitcnt lgkmcnt(0)")
            self.I("s_mov_b32 m0, s77\nv_writelane_b32 v19, s78, m0\ns_add_u32 s77, s77, 1")
            self.names.append(name)
    def lin(self, out, terms, const=0, layer=True, tmp=36):
        first = True
        for t in terms:
            sreg, mul = t[0], t[1]
            src = s(sreg); dst = s(out) if first else s(tmp)
            if len(t) > 2:
                shr, mask = t[2], t[3]
                if shr: self.I(f"s_lshr_b32 {dst}, {src}, {shr}"); src = dst
                if mask is not None: self.I(f"s_and_b32 {dst}, {src}, {mask}"); src = dst
            if mul != 1: self.I(f"s_mul_i32 {dst}, {src}, {mul}"); src = dst
            if first:
                if src != dst: self.I(f"s_mov_b32 {dst}, {src}")
            else:
                self.I(f"s_add_u32 {s(out)}, {s(out)}, {src}")
            first = False
        if layer: self.I(f"s_add_u32 {s(out)}, {s(out)}, {s(S_L)}")
        if const: self.I(f"s_add_u32 {s(out)}, {s(out)}, {const}")
    def signal(self, off_s, dev=False, val=S_EPOCH):
        self.I(f"v_mov_b32 v5, {s(val)}\ns_mov_b64 exec, 1")
        if dev:
            self.vm.issue(f"buffer_store_dword v5, off, {WS}, {s(off_s)} sc1", "flag")
        else:
            g = self.A.newlabel("sg"); j = self.A.newlabel("sj")
            self.I(f"s_cmp_lg_u32 {s(S_MODE)}, 0\ns_cbranch_scc1 {g}")
            self.vm.issue(f"buffer_store_dword v5, off, {WS}, {s(off_s)}", "flag")
            self.A.L(j)
            self.cold.append((g, j, f"buffer_wbl2 sc1\ns_waitcnt vmcnt(0)\nbuffer_store_dword v5, off, {WS}, {s(off_s)} sc1"))
        self.I("s_mov_b64 exec, -1")
    def poll(self, voff, off_s, dev=False, wide=False, pre=False):
        lab = self.A.newlabel("poll"); out = self.A.newlabel("pollx"); ent = self.A.newlabel("polle")
        self.I("s_mov_b32 s35, 0")
        if pre: self.I(f"s_branch {ent}")
        self.A.L(lab)
        if wide:
            self.I(f"buffer_load_dwordx4 v[156:159], {v(voff)}, {WS}, {s(off_s)} offen sc1")
        else:
            self.I(f"buffer_load_dword v5, {v(voff)}, {WS}, {s(off_s)} offen sc1")
        self.A.L(ent)
        self.I(f"s_add_u32 s35, s35, 1\ns_cmp_gt_u32 s35, 0x40000\ns_cbranch_scc1 {out}\ns_waitcnt vmcnt(0)")
        if wide:
            for k in range(4): self.I(f"v_xor_b32 v{156+k}, {s(S_TAG)}, v{156+k}")
            self.I("v_or3_b32 v156, v156, v157, v158\nv_or_b32 v156, v156, v159\nv_cmp_lt_u32 vcc, 7, v156")
        else:
            self.I(f"v_cmp_ne_u32 vcc, {s(S_EPOCH)}, v5")
        self.I(f"s_cbranch_vccnz {lab}")
        self.A.L(out)
        if not dev:
            g = self.A.newlabel("pg"); j = self.A.newlabel("pj")
            self.I(f"s_cmp_lg_u32 {s(S_MODE)}, 0\ns_cbranch_scc1 {g}")
            self.A.L(j)
            self.cold.append((g, j, "s_waitcnt vmcnt(0)\nbuffer_inv sc1\ns_waitcnt vmcnt(0)"))
        self.I("s_waitcnt vmcnt(0)")
        self.loops[lab] = 0
        self.vm.q = []
    def poll2(self, voff, off_s, dsts, dev=False):
        A = self.A
        lab = A.newlabel("poll"); out = A.newlabel("pollx")
        ld = lambda d: f"buffer_load_dword {v(d)}, {v(voff)}, {WS}, {s(off_s)} offen sc1"
        self.I(f"{ld(dsts[0])}\ns_mov_b32 s35, 0\ns_sleep {self.cfg.psl}")
        A.L(lab)
        for a_, b_ in ((0, 1), (1, 0)):
            self.I(f"""{ld(dsts[b_])}
            s_waitcnt vmcnt(1)
            v_cmp_ne_u32 vcc, {s(S_EPOCH)}, {v(dsts[a_])}
            s_cbranch_vccz {out}""")
        self.I(f"s_add_u32 s35, s35, 1\ns_cmp_lt_u32 s35, 0x20000\ns_cbranch_scc1 {lab}")
        A.L(out)
        if not dev:
            g = A.newlabel("pg"); j = A.newlabel("pj")
            self.I(f"s_cmp_lg_u32 {s(S_MODE)}, 0\ns_cbranch_scc1 {g}")
            A.L(j)
            self.cold.append((g, j, "s_waitcnt vmcnt(0)\nbuffer_inv sc1\ns_waitcnt vmcnt(0)"))
        self.loops[lab] = 0
        self.vm.q = ["poll"]
    cold = []
    def flag_x_off(self, base, out):
        self.lin(out, [(S_I, 128), (S_J, 32, 1, None), (S_WAVE, 8), (S_J, 4, 0, 1)], base)
    @staticmethod
    def units(raw):
        out = []
        for it in raw:
            if out and (it[1].startswith("s_cselect") or it[1].endswith(":")): out[-1].append(it)
            else: out.append([it])
        return out
    def window(self, win, n1=6, fl=40):
        win = win if win is not None else []
        self.emit_list(self.take(win, n1))
        self.vm.wait("st")
        self.signal(fl)
        self.emit_list(win)
    @staticmethod
    def take(items, n):
        out = []
        while items and n > 0:
            it = items.pop(0); out.append(it)
            if it[0] == "v": n -= 1
        return out
    def emit_list(self, items):
        for it in items:
            if it[0] == "s": self.I(it[1])
            elif it[0] == "w": self.vm.wait(it[1])
            elif it[2] in self.cfg.skip: pass
            else: self.vm.issue(it[1], it[2])
    def collect(self, fn):
        keep = self.A; A2 = Asm(); self.A = A2
        fn(); self.A = keep
        return [("s", x.text) for x in A2.ins]
    def load_wfrags(self, regs, soff, tag):
        out = []
        for k, r in enumerate(regs):
            if k and k % 4 == 0: out.append(("s", f"s_add_u32 {s(soff)}, {s(soff)}, 4096"))
            out.append(("v", f"buffer_load_dwordx4 {R(r,4)}, v1, {WS}, {s(soff)} offen offset:{(k%4)*1024}", tag))
        return out
    def lin_dma(self, src_term, src_base, lds_base, n, sg, sl, tag):
        it = self.collect(lambda: (self.lin(sl, [(S_WAVE, n * 1024)], lds_base, layer=False, tmp=54),
                                   self.lin(sg, [src_term, (sl, 1)], src_base - lds_base + (1 << 32) if src_base < lds_base else src_base - lds_base, layer=False, tmp=54)))
        for k in range(n):
            if k and k % 4 == 0: it += [("s", f"s_add_u32 {s(sg)}, {s(sg)}, 4096"), ("s", f"s_add_u32 {s(sl)}, {s(sl)}, 4096")]
            it.append(("s", f"s_mov_b32 m0, {s(sl)}"))
            it.append(("v", f"buffer_load_dwordx4 v1, {WS}, {s(sg)} offen offset:{(k%4)*1024} lds", tag))
        return it
    def resid_setup(self, xbuf, statbuf, flagbuf):
        self.lin(38, [(S_G, L.GS), (S_I, 4 * L.XTS, 0, 3), (S_WAVE, L.XTS), (S_J, 5120, 1, None)], xbuf, layer=False)
        self.lin(39, [(S_J, 3072, 0, 1), (38, 1)], 0, layer=False)
        self.I(f"s_and_b32 s36, {s(S_J)}, 1\ns_lshl_b32 s36, s36, 3\ns_add_u32 s38, s38, s36")
        self.lin(41, [(S_G, L.GS), (S_I, 4 * 4096, 0, 3), (S_WAVE, 4096), (S_J, 2048, 0, 1), (S_J, 256, 1, None)], statbuf, layer=False)
        self.flag_x_off(flagbuf, 40)
        self.I("s_mov_b32 s66, 0x00003f80\ns_mov_b32 s67, 0x3f800000\ns_mov_b32 s68, 0x3f803f80")
        self.I("v_lshrrev_b32 v18, 1, v4\nv_lshlrev_b32 v18, 10, v18\nv_lshl_add_u32 v18, v3, 4, v18\nv_and_b32 v6, 1, v4\nv_lshl_add_u32 v18, v6, 3, v18")
    def resid_epilogue(self, acc, store=True, statreg=20):
        for i in range(10):
            self.I(f"v_dot2c_f32_bf16 {v(acc+2*i)}, s66, {v(XRES+i)}\nv_dot2c_f32_bf16 {v(acc+2*i+1)}, s67, {v(XRES+i)}")
        if store: self.I(f"v_mov_b32 {v(statreg)}, 0\nv_mov_b32 {v(statreg+1)}, 0")
        for i in range(10):
            self.I(f"v_cvt_pk_bf16_f32 {v(XRES+i)}, {v(acc+2*i)}, {v(acc+2*i+1)}")
            if store and i == 3: self.vm.issue(f"buffer_store_dwordx4 {v(XRES,4)}, v1, {WS}, s39 offen", "st")
            if store and i == 7: self.vm.issue(f"buffer_store_dwordx4 {v(XRES+4,4)}, v1, {WS}, s39 offen offset:1024", "st")
        if not store: return
        self.vm.issue(f"buffer_store_dwordx2 {v(XRES+8,2)}, v1, {WS}, s38 offen offset:2048", "st")
        for i in range(10):
            self.I(f"v_dot2c_f32_bf16 {v(statreg)}, s68, {v(XRES+i)}\nv_dot2c_f32_bf16 {v(statreg+1)}, {v(XRES+i)}, {v(XRES+i)}")
        self.vm.issue(f"buffer_store_dwordx2 {v(statreg,2)}, v18, {WS}, s41 offen", "st")
    def stat_loads(self, soff, voff, dst, tag):
        for n in range(4):
            self.vm.issue(f"buffer_load_dwordx4 {v(dst+4*n,4)}, v1, {WS}, {s(soff)} offen offset:{n*1024} sc1", tag)
    def stat_finish(self, src, dst, presummed=False, packed=True):
        if not packed:
            for n in range(8): self.I(f"v_add_f32 {v(src+n)}, {v(src+n)}, {v(src+8+n)}")
            for n in range(4): self.I(f"v_add_f32 {v(src+n)}, {v(src+n)}, {v(src+4+n)}")
            for n in range(2): self.I(f"v_add_f32 {v(src+n)}, {v(src+n)}, {v(src+2+n)}")
        elif not presummed:
            for n in range(4): self.I(f"v_pk_add_f32 {v(src+2*n,2)}, {v(src+2*n,2)}, {v(src+8+2*n,2)}")
            for n in range(2): self.I(f"v_pk_add_f32 {v(src+2*n,2)}, {v(src+2*n,2)}, {v(src+4+2*n,2)}")
            self.I(f"v_pk_add_f32 {v(src,2)}, {v(src,2)}, {v(src+2,2)}")
        emit_xg_reduce(self.A, [src, src + 1], src + 2)
        self.I(f"""v_mul_f32 {v(dst)}, {hexf(-1.0/640)}, {v(src)}
        v_mul_f32 {v(src+2)}, {v(dst)}, {v(dst)}
        v_mov_b32 {v(src+3)}, {hexf(1.0/640)}
        v_fma_f32 {v(src+1)}, {v(src+1)}, {v(src+3)}, -{v(src+2)}
        v_max_f32 {v(src+1)}, 0, {v(src+1)}
        v_add_f32 {v(src+1)}, {hexf(1e-5)}, {v(src+1)}
        v_rsq_f32 {v(dst+1)}, {v(src+1)}""")

    def csum_loads(self, reg, term, base, row, mask, tag):
        self.lin(36, [term, (S_WAVE, 5 * row)], base, layer=False, tmp=37)
        self.I(f"s_mov_b64 exec, {mask:#x}")
        for k in range(5): self.vm.issue(f"buffer_load_dwordx4 {v(reg+4*k,4)}, v1, {WS}, s36 offen offset:{k*row} sc1", tag)
        self.I("s_mov_b64 exec, -1")
    def csum_part(self, reg, slots, row, mask):
        for a_, b_ in ((0, 1), (2, 3), (0, 2), (0, 4)):
            for i in range(4): self.I(f"v_add_f32 {v(reg+4*a_+i)}, {v(reg+4*a_+i)}, {v(reg+4*b_+i)}")
        self.lin(36, [(S_WAVE, row)], slots, layer=False)
        self.I(f"v_add_u32 v7, s36, v1\ns_mov_b64 exec, {mask:#x}\nds_write_b128 v7, {v(reg,4)}\ns_mov_b64 exec, -1\ns_waitcnt lgkmcnt(0)")
    def csum_final(self, reg, slots, row, dst, mask):
        self.I(f"v_add_u32 v7, {slots}, v1\ns_mov_b64 exec, {mask:#x}")
        for w in range(4): self.I(f"ds_read_b128 {v(reg+4*w,4)}, v7 offset:{w*row}")
        self.I("s_waitcnt lgkmcnt(0)")
        for a_, b_ in ((0, 1), (2, 3), (0, 2)):
            for i in range(4): self.I(f"v_add_f32 {v(reg+4*a_+i)}, {v(reg+4*a_+i)}, {v(reg+4*b_+i)}")
        self.I(f"v_add_u32 v7, {dst}, v1\nds_write_b128 v7, {v(reg,4)}\ns_mov_b64 exec, -1\ns_waitcnt lgkmcnt(0)")
    def qkv_setup(self, l0):
        lo = 0 if l0 else L.LS
        self.lin(94, [(S_I, 2 * L.KVT), (S_WAVE, L.KVT, 1, None)], L.KVB + lo, layer=False)
        self.lin(95, [(S_I, 32), (S_J, 4)], L.FL_KV + lo, layer=False)
        if not l0:
            self.lin(96, [(S_G, L.GS), (S_I, 4 * L.XTS, 0, 3), (S_WAVE, L.XTS)], L.XIN, layer=False)
            self.lin(97, [(S_G, L.GS), (S_I, 4 * 4096, 0, 3), (S_WAVE, 4096)], L.STATIN, layer=False)
            self.lin(98, [(S_I, 128), (S_WAVE, 8)], L.FL_XIN + lo, layer=False)
            self.I("v_bfe_u32 v122, v0, 1, 2\nv_lshlrev_b32 v122, 5, v122\nv_and_b32 v123, 1, v0\nv_lshl_add_u32 v122, v123, 2, v122")
    def wq_round(self, n):
        it = self.collect(lambda: (self.lin(53, [(S_WAVE, 6144)], WQ_LDS + n * 24576, layer=False),
                                   self.lin(52, [(S_J, 120 * 1024), (53, 1)], L.WQF - WQ_LDS, layer=False)))
        for k in range(5):
            if k == 4: it += S_("s_add_u32 s52, s52, 4096\ns_add_u32 s53, s53, 4096")
            if k % 4 == 0: it.append(("s", "s_mov_b32 m0, s53"))
            it.append(("v", f"buffer_load_dwordx4 v1, {WS}, s52 offen offset:{(k%4)*1024} sc1 lds", ("r", n)))
        return it
    def wkv_frags(self):
        it = self.collect(lambda: (self.lin(53, [(S_WAVE, 5 * 6144)], WQ_LDS + 5120, layer=False),
                                   self.lin(52, [(S_J, 120 * 1024), (53, 1)], L.WQF - WQ_LDS, layer=False)))
        for k in range(5):
            if k: it += S_("s_add_u32 s52, s52, 6144\ns_add_u32 s53, s53, 6144")
            it += [("s", "s_mov_b32 m0, s53"), ("v", f"buffer_load_dwordx4 v1, {WS}, s52 offen sc1 lds", "kvw")]
        return it
    QX, QWB, QACC, QSL, QSTAT, QCS = 20, 100, 148, 196, 212, 216
    def qkv_sweep(self, tiles, ks, xwait=None, filler=None, first_reads=True):
        X, WB, ACC = self.QX, self.QWB, self.QACC
        n = len(tiles)
        seq = [(k, ft) for k in ks for ft in tiles]
        D = 8 if n > 1 else 6
        NB = 12
        def rd(i):
            k, ft = seq[i]
            self.I(f"ds_read_b128 {v(WB+4*(i%NB),4)}, v{240 + k//10} offset:{((k%10)*6+ft)*1024}")
        for i in range(min(D, len(seq))): rd(i)
        for i, (k, ft) in enumerate(seq):
            if xwait and ft == tiles[0]: xwait(k)
            self.I(f"s_waitcnt lgkmcnt({min(D - 1, len(seq) - 1 - i)})")
            d = ACC + 4 * ft
            self.I(f"v_mfma_f32_16x16x32_bf16 {v(d,4)}, {v(WB+4*(i%NB),4)}, {v(X+4*k,4)}, {'0' if k == 0 else v(d,4)}")
            if i + D < len(seq): rd(i + D)
            if filler: filler(i, k, ft)
    def cs_reads(self, tiles):
        self.I(f"v_lshlrev_b32 v6, 4, v4\nv_add_u32 v6, {M_CSQ}, v6")
        for ft in tiles: self.I(f"ds_read_b128 {v(self.QCS+4*ft,4)}, v6 offset:{ft*64}")
    def phase_qkv(self, l0):
        A, vm = self.A, self.vm
        X, WB, ACC, SL, ST, CS = self.QX, self.QWB, self.QACC, self.QSL, self.QSTAT, self.QCS
        if l0:
            self.I(f"v_add_u32 v240, {WQ_LDS}, v1\nv_add_u32 v241, {WQ_LDS + 61440}, v1")
            self.I(f"""v_lshrrev_b32 v5, 2, v0
            v_mul_u32_u24 v5, 40, v5
            v_and_b32 v6, 3, v0
            v_lshl_add_u32 v5, v6, 3, v5
            s_and_b32 s36, {s(S_J)}, 1
            s_lshl_b32 s36, s36, 5
            s_add_u32 s36, s36, {KV0_LDS}
            v_add_u32 v242, s36, v5""")
            self.lin(37, [(S_J, 128)], L.FL_WQ, layer=False)
            self.I("v_min_u32 v6, 19, v0\nv_lshlrev_b32 v6, 2, v6")
            def rd(k):
                for u in range(2): self.I(f"ds_read_b64_tr_b16 {v(WB+4*(k%6)+2*u,2)}, v242 offset:{L.xk(k//5, k%5, u)*40}")
            for k in range(4): rd(k)
            for k in range(20):
                c = lambda r_: '0' if k == 0 else v(r_, 4)
                self.I(f"v_mfma_f32_16x16x32_bf16 {v(SL,4)}, v[192:195], {v(X+4*k,4)}, {c(SL)}")
                self.I(f"v_mfma_f32_16x16x32_bf16 {v(SL+4,4)}, {v(X+4*k,4)}, {v(X+4*k,4)}, {c(SL+4)}")
            self.poll2(6, 37, (253, 254), dev=True) if self.cfg.pp else self.poll(6, 37, dev=True)
            self.stamp("p0.wq")
            self.csum_loads(216, (S_J, 20 * 384), L.CSQP, 384, 0xfffff, "cs")
            dm = self.wq_round(0) + self.wq_round(1) + self.wq_round(2)
            self.emit_list(self.take(dm, 5))
            for k in range(20):
                c = lambda r_: '0' if k == 0 else v(r_, 4)
                self.I(f"s_waitcnt lgkmcnt({min(6, 2*(19-k))})")
                self.I(f"v_mfma_f32_16x16x32_bf16 {v(ACC+20,4)}, {v(WB+4*(k%6),4)}, {v(X+4*k,4)}, {c(ACC+20)}")
                if k % 2 == 0: self.emit_list(self.take(dm, 1))
                self.I(f"v_mfma_f32_16x16x32_bf16 {v(CS+20,4)}, {v(WB+4*(k%6),4)}, v[192:195], {c(CS+20)}")
                if k + 4 < 20: rd(k + 4)
            assert not dm
            self.I(f"""v_and_b32 v5, 3, v3
            v_lshrrev_b32 v6, 2, v3
            v_cmp_eq_u32 vcc, 1, v5
            v_cmp_eq_u32 s[62:63], 2, v5
            v_cndmask_b32 {v(SL+4)}, {v(SL+4)}, {v(SL+5)}, vcc
            v_cmp_eq_u32 vcc, 3, v5
            v_cndmask_b32 {v(SL+4)}, {v(SL+4)}, {v(SL+6)}, s[62:63]
            v_cmp_eq_u32 s[62:63], v6, v4
            v_cndmask_b32 {v(SL+4)}, {v(SL+4)}, {v(SL+7)}, vcc
            v_mul_f32 {v(SL)}, 0.25, {v(SL)}
            v_cndmask_b32 {v(SL+1)}, 0, {v(SL+4)}, s[62:63]""")
            self.stat_finish(SL, ST, presummed=True)
            self.I(f"""v_lshlrev_b32 v6, 4, v4
            v_add_u32 v6, {M_CSQ + 320}, v6
            s_mov_b32 exec_lo, 0x00010001
            s_mov_b32 exec_hi, 0x00010001
            ds_write_b128 v6, {v(CS+20,4)}
            s_mov_b64 exec, -1""")
        else:
            nl = [0]
            def load():
                k = nl[0]; nl[0] += 1
                if k and k % 4 == 0: self.I("s_add_u32 s96, s96, 4096")
                vm.issue(f"buffer_load_dwordx4 {v(X+4*k,4)}, v1, {WS}, s96 offen offset:{(k%4)*1024} sc1", ("x", k))
            while nl[0] < 7: load()
            self.I(f"v_add_u32 v240, {WQ_LDS}, v1\nv_add_u32 v241, {WQ_LDS + 61440}, v1")
            self.cs_reads(range(6))
            self.I("s_waitcnt lgkmcnt(0)\ns_barrier")
            sh = self.collect(lambda: self.stat_finish(SL, ST, packed=False))
            tA = self.cfg.tA
            nA = len(tA)
            def fil(i, k, ft):
                if nl[0] < 20 and i % (nA - 1) == 0 + (nA > 2): load()
                if i == 2 * nA: self.stat_loads(97, 18, SL, "stat")
                if i == 10 * nA: vm.wait("stat")
                if i >= 10 * nA: self.emit_list(sh[:2 if nA > 2 else 3]); del sh[:2 if nA > 2 else 3]
            self.qkv_sweep(tA, range(20), xwait=lambda k: vm.wait(("x", k)), filler=fil)
            self.emit_list(sh)
        self.stamp("qkv.kv")
        self.I(f"v_mov_b32 {v(ST+2)}, {v(ST+1)}")
        KA = ACC + 20; KP = 172
        done = A.newlabel("kvdone"); vt = A.newlabel("kvv"); k1 = A.newlabel("kvk1"); jn = A.newlabel("kvj")
        self.I(f"s_lshr_b32 s36, {s(S_J)}, 2\ns_xor_b32 s48, s36, {s(S_WAVE)}\ns_and_b32 s48, s48, 1\ns_cbranch_scc1 {done}")
        for i in (0, 2): self.I(f"v_pk_fma_f32 {v(KA+i,2)}, {v(ST,2)}, {v(CS+20+i,2)}, {v(KA+i,2)} op_sel_hi:[0,1,1]")
        for i in (0, 2): self.I(f"v_pk_mul_f32 {v(KA+i,2)}, {v(ST+2,2)}, {v(KA+i,2)} op_sel_hi:[0,1]")
        self.I(f"v_cvt_pk_bf16_f32 {v(KP)}, {v(KA)}, {v(KA+1)}\nv_cvt_pk_bf16_f32 {v(KP+1)}, {v(KA+2)}, {v(KA+3)}")
        self.I(f"s_and_b32 s37, {s(S_WAVE)}, 1\ns_bitcmp1_b32 {s(S_J)}, 1\ns_cbranch_scc1 {vt}")
        self.I(f"s_lshl_b32 s37, s37, 4\nv_add_u32 v6, s37, v3\ns_bitcmp1_b32 {s(S_J)}, 0\ns_cbranch_scc1 {k1}")
        self.I(f"""v_lshrrev_b32 v7, 1, v4
        v_lshlrev_b32 v7, 9, v7
        v_lshl_add_u32 v7, v6, 4, v7
        v_and_b32 v6, 1, v4
        v_lshl_add_u32 v7, v6, 3, v7
        buffer_store_dwordx2 {v(KP,2)}, v7, {WS}, s94 offen sc1
        s_branch {jn}""")
        A.L(k1)
        self.I(f"""v_lshlrev_b32 v6, 3, v6
        s_mov_b64 exec, 0xffff
        buffer_store_dwordx2 {v(KP,2)}, v6, {WS}, s94 offen offset:1024 sc1
        s_mov_b64 exec, -1
        s_branch {jn}""")
        A.L(vt)
        self.I(f"""s_lshr_b32 s36, {s(S_WAVE)}, 1
        s_lshl_b32 s36, s36, 9
        s_add_u32 s36, s36, {M_VT}
        v_lshlrev_b32 v6, 7, v4
        v_lshl_add_u32 v6, v3, 1, v6
        v_add_u32 v6, s36, v6
        ds_write_b16 v6, {v(KP)}
        ds_write_b16_d16_hi v6, {v(KP)} offset:32
        ds_write_b16 v6, {v(KP+1)} offset:64
        ds_write_b16_d16_hi v6, {v(KP+1)} offset:96
        v_lshlrev_b32 v6, 5, v3
        v_lshl_add_u32 v6, v4, 3, v6
        v_add_u32 v6, s36, v6
        ds_read_b64 {v(KP+2,2)}, v6
        s_mul_i32 s37, s37, 768
        s_add_u32 s37, s94, s37
        s_and_b32 s36, {s(S_J)}, 1
        s_lshl_b32 s36, s36, 8
        s_add_u32 s37, s37, s36
        v_and_b32 v6, 1, v4
        v_mul_u32_u24 v6, 384, v6
        v_lshl_add_u32 v6, v3, 4, v6
        v_lshrrev_b32 v7, 1, v4
        v_lshl_add_u32 v6, v7, 3, v6
        s_cmp_lg_u32 s36, 0
        s_cselect_b32 s36, 4, 99
        s_cselect_b32 exec_lo, 0x00ff00ff, -1
        v_cmp_eq_u32 vcc, s36, v3
        v_mov_b32 v7, 0x3f803f80
        s_mov_b32 exec_hi, exec_lo
        s_waitcnt lgkmcnt(0)
        v_cndmask_b32 {v(KP+2)}, {v(KP+2)}, v7, vcc
        v_cndmask_b32 {v(KP+3)}, {v(KP+3)}, v7, vcc
        buffer_store_dwordx2 {v(KP+2,2)}, v6, {WS}, s37 offen offset:1280 sc1
        s_mov_b64 exec, -1""")
        self.I(f"s_branch {jn}")
        A.L(done)
        self.I(f"v_mov_b32 v6, {BIG}\nbuffer_store_dwordx2 {v(KP,2)}, v6, {WS}, 0 offen")
        A.L(jn)
        vm.q.append("kvst")
        self.stamp("qkv.kvst")
        if l0:
            later = {}
            it = self.wq_round(3) + self.wq_round(4)
            vm.wait(("r", 2))
            self.csum_part(216, M_CSQP, 384, 0xfffff)
            self.I("s_barrier")
            def filq(i, k, ft):
                if i % 2 == 1: self.emit_list(self.take(it, 1))
                if i == self.cfg.kvi0:
                    vm.wait("kvst")
                    self.I("s_barrier")
                    sk = A.newlabel("kvsig")
                    self.I(f"s_cmp_lg_u32 {s(S_WAVE)}, 0\ns_cbranch_scc1 {sk}")
                    self.signal(95, dev=True, val=S_TAG); vm.q.pop()
                    A.L(sk)
            self.qkv_sweep([0, 1, 2, 3, 4], range(12), filler=filq)
            vm.wait(("r", 4))
            self.I("s_barrier")
            self.csum_final(216, M_CSQP, 384, M_CSQ, 0xfffff)
            self.qkv_sweep([0, 1, 2, 3, 4], range(12, 20))
            self.cs_reads(range(5))
            self.emit_list(later.get(5, []))
            self.I("s_waitcnt lgkmcnt(0)")
        else:
            def filb(i, k, ft):
                if i == self.cfg.kvi:
                    self.I("s_waitcnt vmcnt(0)\ns_barrier"); vm.q = []
                    sk = A.newlabel("kvsig")
                    self.I(f"s_cmp_lg_u32 {s(S_WAVE)}, 0\ns_cbranch_scc1 {sk}")
                    self.signal(95, dev=True, val=S_TAG)
                    A.L(sk)
            self.qkv_sweep([t_ for t_ in range(5) if t_ not in tA], range(20), filler=filb)
        self.stamp("qkv.mm")
        c = math.log2(math.e) / math.sqrt(20.0)
        self.I(f"v_mul_f32 {v(ST+2)}, {hexf(c)}, {v(ST+1)}")
        for i in range(0, 20, 2): self.I(f"v_pk_fma_f32 {v(ACC+i,2)}, {v(ST,2)}, {v(CS+i,2)}, {v(ACC+i,2)} op_sel_hi:[0,1,1]")
        for i in range(0, 20, 2): self.I(f"v_pk_mul_f32 {v(ACC+i,2)}, {v(ST+2,2)}, {v(ACC+i,2)} op_sel_hi:[0,1]")
        P = 176
        for i in range(8): self.I(f"v_cvt_pk_bf16_f32 {v(P+i)}, {v(ACC+2*i)}, {v(ACC+2*i+1)}")
        self.I(f"v_cvt_pk_bf16_f32 {v(P+8)}, {v(ACC+16)}, {v(ACC+17)}\nv_mov_b32 {v(P+9)}, 0")
        self.I(f"v_cvt_pk_bf16_f32 {v(P+10)}, {v(ACC+18)}, {v(ACC+19)}\nv_mov_b32 {v(P+11)}, 0")
        self.lin(36, [(S_WAVE, AT.QST_Q, 1, None)], QST, layer=False, tmp=37)
        self.I(f"""s_and_b32 s37, {s(S_WAVE)}, 1
        s_lshl_b32 s37, s37, 4
        v_add_u32 v6, s37, v3
        v_mul_u32_u24 v7, {2*AT.QST_Q}, v4
        v_add_u32 v7, s36, v7
        v_lshl_add_u32 v5, v6, 4, v7
        v_lshl_add_u32 v6, v6, 3, v7""")
        self.I(f"""ds_write_b128 v5, {v(P,4)}
        ds_write_b128 v5, {v(P+4,4)} offset:512
        ds_write_b64 v6, {v(P+8,2)} offset:1024
        ds_write_b64 v6, {v(P+10,2)} offset:{1024+256}""")
        self.I("s_waitcnt lgkmcnt(0)\ns_barrier")
        self.stamp("qkv.epi")

    def pieces(self, n16, magic, pitch, dst, cmax=None):
        self.I(f"s_movk_i32 s52, {magic}\ns_movk_i32 s53, {pitch}\ns_add_u32 s46, s46, s44")
        for q in range(n16 // 2):
            self.I(f"""v_add_u32 v5, {64*q}, v0
            v_mul_u32_u24 v6, s52, v5
            v_lshrrev_b32 v6, 16, v6
            v_mul_u32_u24 v7, {n16}, v6
            v_sub_u32 v5, v5, v7
            v_lshrrev_b32 v7, 4, v6
            v_mul_u32_u24 v18, s32, v7
            v_bfe_u32 v7, v6, 3, 1
            v_mad_u32_u24 v18, v7, s33, v18
            v_bfe_u32 v7, v6, 2, 1
            v_mad_u32_u24 v18, v7, s34, v18
            v_and_b32 v6, 3, v6
            v_add3_u32 v18, v18, v6, s31
            v_mul_u32_u24 v18, s53, v18
            v_lshl_add_u32 v18, v5, 4, v18""")
            if cmax is not None:
                self.I(f"v_cmp_le_u32 vcc, {s(cmax)}, v5\nv_mov_b32 v7, {BIG}\nv_cndmask_b32 v7, 0, v7, vcc\nv_add_u32 v18, v18, v7")
            self.I(f"v_add_u32 {v(dst+q)}, s46, v18")
    PA = 244
    def prep_dma_items(self):
        it = []
        for q in range(7):
            it += [("s", f"s_add_u32 m0, s{72 if q < 5 else 65}, {q*1024}"), ("v", f"buffer_load_dwordx4 {v(self.PA+q)}, {s(SRD_SRC,4)}, 0 offen lds", "prep")]
        if self.cfg.ptouch:
            it += [("s", "v_lshlrev_b32 v253, 7, v0"), ("v", f"buffer_load_dword v254, v253, {WS}, s70 offen", "prep")]
        return it
    def prep_issue(self):
        A = self.A
        lab = {k: A.newlabel("pp" + k) for k in ("w2", "w1", "none", "n10", "end", "pad")}
        self.I(f"""s_lshl_b32 s30, s2, 1
        s_and_b32 s31, {s(S_WAVE)}, 1
        s_add_u32 s30, s30, s31
        s_movk_i32 s31, 192
        s_cmp_lt_u32 s2, 160
        s_cselect_b32 s31, 608, s31
        s_cmp_lt_u32 {s(S_WAVE)}, 2
        s_cselect_b32 s31, s31, 0
        s_add_u32 s30, s30, s31
        s_cmp_ge_u32 s2, 208
        s_cselect_b32 s31, 1024, 0
        s_cmp_lt_u32 {s(S_WAVE)}, 2
        s_cselect_b32 s31, s31, 0
        s_add_u32 s30, s30, s31
        s_min_u32 s31, {s(S_WAVE)}, 2
        s_mul_i32 s72, s31, 7168
        s_cmp_eq_u32 {s(S_WAVE)}, 3
        s_cselect_b32 s31, 5120, 0
        s_add_u32 s72, s72, s31
        s_add_u32 s72, s72, {PREP_LDS}
        s_cmp_lt_u32 {s(S_WAVE)}, 2
        s_cselect_b32 s65, s72, {0xffffec00 if self.cfg.pdma != 9 else 83968 - 5120}""")
        for q in range(7): self.I(f"v_mov_b32 {v(self.PA+q)}, {BIG}")
        self.I(f"s_cmp_ge_u32 s30, 928\ns_cbranch_scc1 {lab['none']}\ns_cmp_ge_u32 s30, 608\ns_cbranch_scc1 {lab['w1']}\ns_cmp_ge_u32 s30, 160\ns_cbranch_scc1 {lab['w2']}")
        self.I(f"""s_lshr_b32 s47, s30, 3          ; ks
        s_and_b32 s48, s30, 7           ; j
        s_mul_i32 s49, s47, 52
        s_lshr_b32 s49, s49, 8          ; w = ks/5
        s_mul_i32 s50, s49, 5
        s_sub_u32 s50, s47, s50         ; s
        s_mul_i32 s31, s49, 160
        s_mul_i32 s32, s50, 40
        s_cmp_gt_u32 s50, 2
        s_cselect_b32 s33, 40, 0
        s_sub_u32 s32, s32, s33
        s_cmp_eq_u32 s50, 2
        s_cselect_b32 s32, 16, s32
        s_add_u32 s31, s31, s32
        s_cmp_eq_u32 s50, 2
        s_cselect_b32 s32, 80, 8
        s_cselect_b32 s33, 40, 20
        s_cselect_b32 s34, 20, 4
        s_mov_b32 s44, 0
        s_mov_b32 s45, 0
        s_mul_i32 s46, s48, 160
        s_mul_i32 s70, s48, 20
        s_add_u32 s70, s70, s47
        s_mul_i32 s70, s70, 5120
        s_add_u32 s70, s70, {L.WOF}
        s_mov_b32 {s(SRD_SRC)}, s96
        s_mov_b32 {s(SRD_SRC+1)}, s97
        s_mov_b32 {s(SRD_SRC+2)}, {640*640*2}
        s_branch {lab['n10']}""")
        A.L(lab['w2'])
        self.I(f"""s_sub_u32 s30, s30, 160
        s_lshr_b32 s47, s30, 3          ; r = w*14+s
        s_and_b32 s48, s30, 7           ; j
        s_mul_i32 s49, s47, 37
        s_lshr_b32 s49, s49, 8
        s_mul_i32 s50, s49, 7
        s_sub_u32 s50, s47, s50         ; sp
        s_lshl_b32 s49, s49, 1          ; 2q""")
        for u in range(2):
            self.I(f"""s_cmp_gt_u32 s50, 3
            s_cselect_b32 s52, 1, 0
            s_cselect_b32 s53, 4, 0
            s_sub_u32 s53, s50, s53
            s_lshl_b32 s53, s53, 1
            s_add_u32 s53, s53, {u}
            s_cmp_eq_u32 s50, 3
            s_cselect_b32 s52, {u}, s52
            s_cselect_b32 s53, 6, s53
            s_add_u32 s52, s52, s49""")
            emit_realtile(A, 52, 53, 31 + u, 44 + u, 54)
        self.I(f"""s_lshl_b32 s31, s31, 4
        s_lshl_b32 s32, s32, 4
        s_sub_u32 s32, s32, s31
        s_mov_b32 s33, 8
        s_mov_b32 s34, 4
        s_mul_i32 s46, s48, 160
        s_mul_i32 s70, s48, 56
        s_add_u32 s70, s70, s47
        s_mul_i32 s70, s70, 5120
        s_add_u32 s70, s70, {L.W2F}
        s_mov_b32 {s(SRD_SRC)}, s100
        s_mov_b32 {s(SRD_SRC+1)}, s101
        s_mov_b32 {s(SRD_SRC+2)}, {1728*640*2}""")
        A.L(lab['n10'])
        self.pieces(10, 6554, 1280, self.PA)
        self.I(f"s_mov_b32 s69, 5\ns_branch {lab['end']}")
        A.L(lab['w1'])
        self.I(f"""s_sub_u32 s30, s30, 608
        s_lshr_b32 s47, s30, 4          ; ks
        s_and_b32 s48, s30, 15          ; j'
        s_mul_i32 s49, s47, 52
        s_lshr_b32 s49, s49, 8
        s_mul_i32 s50, s49, 5
        s_sub_u32 s50, s47, s50""")
        emit_xk(A, 49, 50, 31, 32)
        self.I("s_mov_b32 s53, 0"); emit_realtile(A, 48, 53, 46, 44, 54)
        self.I(f"""s_lshl_b32 s46, s46, 5
        s_mov_b32 s33, 8
        s_mov_b32 s34, 4
        s_mov_b32 s44, 0
        s_mov_b32 s45, 0
        s_cmp_lt_u32 s48, 12
        s_cselect_b32 s54, 14, 12
        s_mul_i32 s70, s48, 20
        s_add_u32 s70, s70, s47
        s_mul_i32 s71, s70, 448
        s_add_u32 s71, s71, {L.CS1P}
        s_mul_i32 s70, s70, 7168
        s_add_u32 s70, s70, {L.W1F}
        s_mov_b32 {s(SRD_SRC)}, s98
        s_mov_b32 {s(SRD_SRC+1)}, s99
        s_mov_b32 {s(SRD_SRC+2)}, {640*1728*2}""")
        self.pieces(14, 4682, 3456, self.PA, cmax=54)
        self.I(f"s_mov_b32 s69, 7\ns_branch {lab['end']}")
        A.L(lab['none'])
        self.I(f"s_mov_b32 s69, 0\ns_mov_b32 s70, {BIG}")
        A.L(lab['end'])
    PF = 160
    def prep_read(self):
        A = self.A; F = self.PF
        l7 = A.newlabel("pf7"); end = A.newlabel("pfe"); l0_ = A.newlabel("pf0")
        self.I(f"s_waitcnt vmcnt(0)\ns_cmp_eq_u32 s69, 0\ns_cbranch_scc1 {l0_}\ns_cmp_eq_u32 s69, 7\ns_cbranch_scc1 {l7}")
        def body(n, P):
            self.I(f"v_lshrrev_b32 v5, 2, v0\nv_and_b32 v6, 3, v0\nv_mul_u32_u24 v5, {P}, v5\nv_lshl_add_u32 v5, v6, 3, v5\nv_add_u32 v5, s72, v5")
            for ft in range(n):
                for u in range(2): self.I(f"ds_read_b64_tr_b16 {v(F+4*ft+2*u,2)}, v5 offset:{u*16*P + ft*32}")
        body(5, 160)
        self.I(f"s_add_u32 s72, s70, 4096\ns_mov_b32 s69, {BIG}\ns_mov_b32 s71, {BIG}\ns_branch {end}")
        A.L(l0_)
        self.I(f"s_mov_b32 s70, {BIG}\ns_mov_b32 s72, {BIG}\ns_mov_b32 s69, {BIG}\ns_mov_b32 s71, {BIG}\ns_branch {end}")
        A.L(l7)
        body(7, 224)
        self.I("s_add_u32 s72, s70, 4096\ns_mov_b32 s69, s72\ns_waitcnt lgkmcnt(0)")
        for i in range(4): self.I(f"v_mov_b32 v{216+i}, 0x3f803f80")
        for ft in range(7): self.I(f"v_mfma_f32_16x16x32_bf16 {v(F+28+4*ft,4)}, {v(F+4*ft,4)}, v[216:219], 0")
        for ft in range(1, 7):
            self.I(f"s_mov_b32 exec_lo, {0x00010001 << ft:#x}\ns_mov_b32 exec_hi, {0x00010001 << ft:#x}")
            for i in range(4): self.I(f"v_mov_b32 {v(F+28+i)}, {v(F+28+4*ft+i)}")
        self.I("s_mov_b64 exec, -1")
        A.L(end)
        self.I(f"v_lshlrev_b32 v220, 6, v3\nv_lshl_add_u32 v220, v4, 4, v220\nv_mov_b32 v5, {BIG}\nv_cmp_lt_u32 vcc, 6, v3\nv_cndmask_b32 v220, v220, v5, vcc\ns_waitcnt lgkmcnt(0)")
    def prep_store_items(self):
        F = self.PF
        it = [("v", f"buffer_store_dwordx4 {v(F+4*ft,4)}, v1, {WS}, s{70 if ft < 4 else 72 if ft == 4 else 69} offen offset:{(ft%4)*1024} sc1", "pst") for ft in range(7)]
        return it + [("v", f"buffer_store_dwordx4 {v(F+28,4)}, v220, {WS}, s71 offen sc1", "pst")]
    def wq_unit_addr(self):
        self.I(f"""s_lshr_b32 s47, s2, 3
        s_and_b32 s48, s2, 7
        s_mul_i32 s49, s47, 52
        s_lshr_b32 s49, s49, 8
        s_mul_i32 s50, s49, 5
        s_sub_u32 s50, s47, s50""")
        emit_xk(self.A, 49, 50, 31, 32)
        self.I(f"""s_mov_b32 s33, 8
        s_mov_b32 s34, 4
        s_mov_b32 s44, 0
        s_mov_b32 s45, 0
        s_mul_i32 s46, s48, 160
        s_mul_i32 s67, s48, 20
        s_add_u32 s67, s67, s47
        s_mul_i32 s68, s67, 384
        s_add_u32 s68, s68, {L.CSQP}
        s_mul_i32 s67, s67, 6144
        s_add_u32 s67, s67, {L.WQF}
        s_lshl_b32 s66, s48, 5
        s_add_u32 s66, s66, s47
        s_lshl_b32 s66, s66, 2
        s_add_u32 s66, s66, {L.FL_WQ}""")
        self.pieces(10, 6554, 1280, 100)
    def wq_unit_issue(self):
        for q in range(5): self.I(f"s_mov_b32 m0, {WQP_LDS + q*1024}\nbuffer_load_dwordx4 {v(100+q)}, {s(SRD_WQ,4)}, 0 offen lds")
        self.I(f"""s_mul_i32 s31, s31, 40
        s_mul_i32 s32, s32, 40
        s_add_u32 s32, s32, s31
        s_mov_b32 m0, {WQP_LDS + 5120}
        s_nop 0
        buffer_load_dwordx4 v1, {s(SRD_KV,4)}, s31 offen lds
        s_mov_b32 m0, {WQP_LDS + 6144}
        s_nop 0
        buffer_load_dwordx4 v1, {s(SRD_KV,4)}, s32 offen lds""")
    def wq_unit_finish(self):
        F = 132
        self.I(f"""v_lshrrev_b32 v5, 2, v0
        v_and_b32 v6, 3, v0
        v_mul_u32_u24 v7, 160, v5
        v_mad_u32_u24 v7, v6, 40, v7
        v_add_u32 v7, {WQP_LDS}, v7
        v_mul_u32_u24 v5, 40, v5
        v_lshl_add_u32 v5, v6, 3, v5
        s_and_b32 s36, s2, 1
        s_lshl_b32 s36, s36, 5
        s_add_u32 s36, s36, {WQP_LDS + 5120}
        v_add_u32 v5, s36, v5""")
        for ft in range(5):
            for u in range(2): self.I(f"ds_read_b64_tr_b16 {v(F+4*ft+2*u,2)}, v7 offset:{u*16*160 + ft*8}")
        for u in range(2): self.I(f"ds_read_b64_tr_b16 {v(F+20+2*u,2)}, v5 offset:{u*1024}")
        for ft in range(6):
            self.I(f"s_waitcnt lgkmcnt({2*(5-ft)})")
            if ft == 4: self.I("s_add_u32 s67, s67, 4096")
            self.I(f"buffer_store_dwordx4 {v(F+4*ft,4)}, v1, {WS}, s67 offen offset:{(ft%4)*1024} sc1")
        for ft in range(6): self.I(f"v_mfma_f32_16x16x32_bf16 {v(F+24+4*ft,4)}, {v(F+4*ft,4)}, v[192:195], 0")
        self.I("v_lshlrev_b32 v5, 4, v4\ns_mov_b32 exec_lo, 0x00010001\ns_mov_b32 exec_hi, 0x00010001")
        for ft in range(6): self.I(f"buffer_store_dwordx4 {v(F+24+4*ft,4)}, v5, {WS}, s68 offen offset:{ft*64} sc1")
        self.I("s_mov_b64 exec, -1")
    def x0_issue(self):
        self.lin(30, [(S_I, 64 * 1280), (S_WAVE, 16 * 1280)], 0, layer=False, tmp=31)
        self.lin(64, [(S_WAVE, 20480)], X0_LDS, layer=False)
        for a_ in range(4):
            self.I(f"v_add_u32 v5, {4*a_}, v4\nv_and_b32 v5, {self.cfg.xm}, v5\nv_xor_b32 v5, v5, v3\nv_lshlrev_b32 v5, 4, v5\nv_mad_u32_u24 {v(100+a_)}, v4, s54, v5")
        self.I(f"s_lshl_b32 s31, {s(S_WAVE)}, 2\nv_add_u32 v5, s31, v4\nv_and_b32 v5, {self.cfg.xm}, v5\nv_xor_b32 v5, v5, v3\nv_lshlrev_b32 v5, 4, v5\nv_mad_u32_u24 v105, v4, s54, v5")
        self.I("s_waitcnt lgkmcnt(0)")
        srd(self.A, SRD_X, 36, 2048 * 640 * 2)
        self.I(f"""s_bitcmp1_b32 {s(S_J)}, 1
        s_cselect_b32 {s(SRD_KV2)}, s42, s40
        s_cselect_b32 {s(SRD_KV2+1)}, s43, s41
        s_mov_b32 {s(SRD_KV2+2)}, {640*20*2}
        s_mov_b32 {s(SRD_KV2+3)}, 0x20000""")
        if self.cfg.fine == "p": self.stamp("p.setup")
        self.I(f"s_cmp_eq_u32 {s(S_WAVE)}, 0\ns_cbranch_scc1 L_x0done") if self.cfg.fine != "p" else None
        if self.cfg.xtouch:
            self.lin(32, [(S_I, 64 * 1280), (S_J, 10240), (S_WAVE, 8192, 1, 1)], 0, layer=False)
            self.lin(33, [(S_C, 8192, 2, 3)], 0, layer=False)
            self.I(f"""v_lshlrev_b32 v5, 7, v0
            s_cmp_eq_u32 {s(S_WAVE)}, 3
            s_cbranch_scc1 L_xt3
            buffer_load_dword v254, v5, {s(SRD_X,4)}, s32 offen
            s_branch L_xt4""")
            self.A.L("L_xt3")
            self.I(f"buffer_load_dword v254, v5, {s(SRD_KV2,4)}, s33 offen")
            self.A.L("L_xt4")
        for a_ in range(4):
            for b_ in range(5):
                self.I(f"s_add_u32 m0, s64, {(a_*5+b_)*1024}\ns_add_u32 s32, s30, {a_*5120 + b_*256}")
                self.I(f"buffer_load_dwordx4 {v(100+a_)}, {s(SRD_X,4)}, s32 offen lds")
            if self.cfg.fine == "p": self.stamp(f"p.a{a_}")
        self.lin(30, [(S_I, 64 * 1280)], 0, layer=False)
        self.lin(31, [(S_WAVE, 5120)], 0, layer=False)
        for b_ in range(5):
            self.I(f"s_add_u32 m0, s31, {X0_LDS + b_*1024}\ns_add_u32 s32, s30, s31\ns_add_u32 s32, s32, {b_*256}")
            self.I(f"buffer_load_dwordx4 v105, {s(SRD_X,4)}, s32 offen lds")
        for n in range(2):
            self.I(f"s_lshl_b32 s31, {s(S_WAVE)}, 1\ns_add_u32 s31, s31, {n}\ns_sub_u32 s31, s31, 2\ns_min_u32 s31, s31, 4")
            self.I(f"s_lshl_b32 s32, s31, 10\ns_add_u32 m0, s32, {X0_LDS}\ns_lshl_b32 s32, s31, 8\ns_add_u32 s32, s32, s30")
            self.I(f"buffer_load_dwordx4 v100, {s(SRD_X,4)}, s32 offen lds")
        if self.cfg.fine == "p": self.stamp("p.t0")
        self.I(f"s_sub_u32 s31, {s(S_WAVE)}, 1\ns_mul_i32 s52, s31, 9216\ns_add_u32 s53, s52, {KV0_LDS}")
        for k in range(9):
            if k and k % 4 == 0: self.I("s_add_u32 s52, s52, 4096\ns_add_u32 s53, s53, 4096")
            if k % 4 == 0: self.I("s_mov_b32 m0, s53")
            self.I(f"buffer_load_dwordx4 v1, {s(SRD_KV2,4)}, s52 offen offset:{(k%4)*1024} lds")
        self.A.L("L_x0done")
    def x0_read(self, X, SL):
        self.I(f"""v_lshrrev_b32 v5, 1, v4
        v_xor_b32 v5, v5, v3
        v_lshlrev_b32 v5, 4, v5
        v_and_b32 v6, 1, v4
        v_lshl_add_u32 v5, v6, 3, v5
        v_lshrrev_b32 v6, 2, v3
        v_mul_u32_u24 v6, 5120, v6
        v_and_b32 v7, 3, v3
        v_lshl_add_u32 v6, v7, 8, v6
        v_add3_u32 v104, v5, v6, s64""")
        for c in range(1, 8): self.I(f"v_xor_b32 {v(104+c)}, {c*32}, v104")
        for k in range(20):
            for u in range(2):
                x = 2 * L.xk(k // 5, k % 5, u)
                self.I(f"ds_read_b64 {v(X+4*k+2*u,2)}, {v(104 + ((x >> 5) & 7))} offset:{(x >> 8) * 1024}")
        for ft in range(5):
            self.I(f"""s_mul_i32 s36, {s(S_J)}, 160
            s_add_u32 s36, s36, {32*ft}
            s_and_b32 s37, s36, 0xe0
            s_lshr_b32 s36, s36, 8
            s_lshl_b32 s36, s36, 10
            v_xor_b32 v5, s37, v104
            v_add_u32 v5, s36, v5
            ds_read_b64 {v(XRES+2*ft,2)}, v5""")
        self.I("s_waitcnt lgkmcnt(0)")
    def x0_stats(self, X, SL):
        it = S_(f"v_mov_b32 {v(SL)}, 0\nv_mov_b32 {v(SL+1)}, 0\nv_mov_b32 {v(SL+2)}, 0\nv_mov_b32 {v(SL+3)}, 0")
        for i in range(0, 80, 2):
            it += S_(f"""v_dot2c_f32_bf16 {v(SL)}, v192, {v(X+i)}
            v_dot2c_f32_bf16 {v(SL+1)}, {v(X+i)}, {v(X+i)}
            v_dot2c_f32_bf16 {v(SL+2)}, v192, {v(X+i+1)}
            v_dot2c_f32_bf16 {v(SL+3)}, {v(X+i+1)}, {v(X+i+1)}""")
        return it + S_(f"v_pk_add_f32 {v(SL,2)}, {v(SL,2)}, {v(SL+2,2)}")

    def phase_att(self):
        A, vm, cfg = self.A, self.vm, self.cfg
        r = AT.AttRegs(20, 256)
        assert r.end <= 156
        A.L("L_att")
        pk0 = A.newlabel("kvp0")
        self.I(f"s_add_u32 s31, {s(S_L)}, {L.FL_KV}\ns_cmp_lg_u32 {s(S_WAVE)}, 0\ns_cbranch_scc1 {pk0}\nbuffer_load_dwordx4 v[156:159], v1, {WS}, s31 offen sc1")
        A.L(pk0)
        self.I(f"s_mov_b32 s59, 384\ns_mov_b32 s58, 0x3f803f80\ns_add_u32 s56, {s(S_L)}, {L.KVB}")
        AT.emit_kv_addr(A, r, 0, S_WAVE, 56)
        AT.emit_att_pre(self, r, 0, S_WAVE, QST, RED_A)
        w1w = cfg.w1warm * 128
        wo1 = self.lin_dma((S_J, 100 * 1024), L.WOF, WO_LDS, 25, 52, 53, "wo") + self.lin_dma((S_JP, 140 * 1024), L.W1F, W1A_LDS, 5, 52, 53, "wo")
        n0 = [it[0] for it in wo1].index("v") - 1
        def late_code():
            self.lin(46, [(2, 4)], L.FL_PREP, layer=False)
            assert L.GS <= 128 * 7 * 2048 and L.GS % (128 * 128) == 0
            self.lin(47, [(S_G, L.GS), (S_C, 4 * 2048), (S_WAVE, 2048)], L.GBASE, layer=False)
            self.I(f"s_cmp_eq_u32 {s(S_L)}, 0\ns_cselect_b32 s47, s47, {BIG}")
            self.I(f"v_lshrrev_b32 v6, 1, v0\nv_lshlrev_b32 v6, 6, v6\nv_and_b32 v7, 1, v0\nv_lshl_add_u32 {v(r.t+5)}, v7, 2, v6")
            self.I(f"s_mov_b32 s48, {L.FL_PREP}")
            self.lin(50, [(S_J, 280 * 1024), (S_WAVE, 70 * 1024)], L.W2F, layer=False, tmp=54)
            self.emit_list(wo1[:n0])
            self.lin(51, [(S_JP, 140 * 1024), (S_C, 4 * w1w, 4, 1), (S_WAVE, w1w)], L.W1F + W1AA * 1024, layer=False, tmp=36)
            self.I("s_getpc_b64 s[42:43]"); self.A.L("L_pc1")
            self.lin(36, [(S_C, 4), (S_WAVE, 1)], 0, layer=False, tmp=37)
            self.I(f"s_and_b32 s36, s36, 15\ns_lshl_b32 s36, s36, 11\ns_add_u32 s36, s36, L_chain-L_pc1\nv_add_u32 {v(r.pf)}, s36, {v(r.t+5)}\nv_min_u32 {v(r.pf)}, L_end-L_pc1, {v(r.pf)}")
            self.lin(44, [(S_G, L.GS), (S_I, 4 * L.XTS, 0, 3), (S_J, 5120, 1, None)], L.OFB, layer=False)
            self.lin(45, [(S_J, 8, 0, 1), (S_WAVE, 256), (44, 1)], 2048, layer=False)
            self.I(f"v_bfe_u32 v6, v0, 4, 1\nv_lshrrev_b32 {v(r.t+3)}, 5, v0\nv_mul_u32_u24 v6, {L.XTS}, v6\nv_lshlrev_b32 {v(r.t+4)}, 4, v3\nv_add3_u32 {v(r.t+4)}, {v(r.t+4)}, v6, s45")
            self.lin(45, [(S_J, 3072, 0, 1), (S_WAVE, 1024, 1, None), (S_WAVE, 512, 0, 1), (44, 1)], 0, layer=False)
            self.I(f"v_lshlrev_b32 {v(r.t+3)}, 8, {v(r.t+3)}\nv_lshl_add_u32 {v(r.t+3)}, v3, 4, {v(r.t+3)}\nv_add3_u32 {v(r.t+3)}, {v(r.t+3)}, v6, s45")
            self.flag_x_off(L.FL_O, 49)
            self.I(f"s_mov_b32 s62, {hexf(2.0**-60)}\nv_mov_b32 {v(r.t+7)}, {hexf(2.0**60)}\nv_mov_b32 {v(r.t+6)}, 0x203")
            self.oproj_setup()
            self.mlp1_setup()
        raw = self.collect(late_code); wo1 = wo1[n0:]
        late = []
        for it in raw:
            if late and (it[1].startswith("s_cselect") or it[1].endswith(":")): late[-1].append(it)
            else: late.append([it])
        self.w2_items = self.load_wfrags([w2_reg(k) for k in range(70)], 50, "w2")
        w2a = self.take(self.w2_items, W2A)
        t16 = lambda sg, step, tag: [("v", f"buffer_load_dword v5, {v(r.t+5)}, {WS}, s{sg} offen", tag), ("s", f"s_add_u32 s{sg}, s{sg}, {step}")]
        warm = [t16(51, 2048, "pf51") for _ in range(-(-w1w // 2048))]
        p1 = []
        for n in range(63):
            p1 += self.take(w2a if (n % 2 == 0 and w2a) or not wo1 else wo1, 1)
            if n >= cfg.wstart and (n - cfg.wstart) % cfg.wstep == 0 and warm: p1 += warm.pop(0)
        p1 += w2a + wo1 + sum(warm, [])
        pk = A.newlabel("kvp")
        self.I(f"s_cmp_lg_u32 {s(S_WAVE)}, 0\ns_cbranch_scc1 {pk}")
        self.poll(1, 31, dev=True, wide=True, pre=True)
        self.I(f"""v_cmp_ne_u32 vcc, 0, v156
        s_lshl_b32 s36, {s(S_G)}, 3
        v_mov_b32 v6, {M_MODE}
        s_lshr_b64 s[64:65], vcc, s36
        s_and_b32 s64, s64, 0xff
        s_cselect_b32 s64, 1, {1 if cfg.force_global else 0}
        v_mov_b32 v7, s64
        ds_write_b32 v6, v7
        s_waitcnt lgkmcnt(0)""")
        A.L(pk)
        self.I("s_barrier")
        self.stamp("kv.poll")
        pf_ = A.newlabel('pfl'); ok = A.newlabel("prepok"); again = A.newlabel("prepagain"); l1 = A.newlabel("l1skip"); l2 = A.newlabel("l1skip")
        chk = S_(f"s_cmp_lg_u32 {s(S_L)}, 0\ns_cbranch_scc1 {l2}\ns_mov_b32 s35, 0\n{again}:\ns_waitcnt vmcnt(0)")
        chk += S_("\n".join(f"v_xor_b32 v{156+k}, {s(S_TAG)}, v{156+k}" for k in range(4)))
        chk += S_(f"""v_or3_b32 v156, v156, v157, v158
        v_or_b32 v156, v156, v159
        v_cmp_lt_u32 vcc, 7, v156
        s_add_u32 s35, s35, 1
        s_cmp_gt_u32 s35, 0x40000
        s_cbranch_scc1 {ok}
        s_cbranch_vccz {ok}
        buffer_load_dwordx4 v[156:159], v1, {WS}, s48 offen sc1
        s_branch {again}
        {ok}:
        {l2}:""")
        self.loops[again] = 0
        pos = lambda n: (1 + n // 16, n % 16)
        ev = {cfg.pflag: S_(f"s_cmp_lg_u32 {s(S_L)}, 0\ns_cbranch_scc1 {l1}\ns_waitcnt vmcnt(0)\ns_barrier\ns_cmp_lg_u32 {s(S_WAVE)}, 0\ns_cbranch_scc1 {pf_}\nv_mov_b32 v5, {s(S_TAG)}\ns_mov_b64 exec, 1\nbuffer_store_dword v5, off, {WS}, s46 sc1\ns_mov_b64 exec, -1\n{pf_}:\n{l1}:"),
              pos(cfg.pchk - 2): [("v", f"buffer_load_dwordx4 v[156:159], v1, {WS}, s48 offen sc1", "prepfl")],
              pos(cfg.pchk): chk}
        for n_, it_ in enumerate(self.prep_store_items()): ev[(0, cfg.pst * n_)] = [it_]
        ev2 = {cfg.ct2: [("v", f"global_load_dword v5, {v(r.pf)}, s[42:43]", "ct")]}
        for key in cfg.tpos: ev2.setdefault(key, []).extend(t16(47, 128 * 2048, "touch"))
        AT.emit_att_main(self, r, 0, S_WAVE, QST, RED_A, 4, "sc1", cfg.nf, ev, ev2, p1, pos(cfg.pchk + 1), late)
        A.L("L_chain")
        vm.wait_all()
        self.stamp("att.main")
        self.I(f"v_mov_b32 v6, {M_BAD}\nds_read_b64 {v(r.Q2[0],2)}, v6")
        AT.emit_att_finish(self, r, 4, r.t + 3, r.t + 4, "", 2 * L.XTS)
        self.I(f"v_readfirstlane_b32 {s(S_MODE)}, {v(r.Q2[0]+1)}")
        self.stamp("att.fin")
        nb = A.newlabel("nobad"); bd = A.newlabel("bad")
        if self.cfg.force_bad: self.I(f"s_and_b32 s64, {s(S_WAVE)}, 1\ns_mov_b32 s65, 0")
        self.emit_list(self.take(self.w2_items, self.cfg.fin_w2))
        self.I(f"""s_cmp_lg_u32 {s(S_RETRY)}, 0
        s_cselect_b64 s[64:65], 0, s[64:65]
        s_cmp_lg_u64 s[64:65], 0
        s_cbranch_scc1 {bd}""")
        vm.wait("st")
        self.I(f"s_cmp_lg_u32 s57, 0\ns_cbranch_scc1 {nb}")
        self.signal(49); vm.q.pop()
        self.I(f"s_mov_b32 s57, {BIG}\ns_branch {nb}")
        A.L(bd)
        self.I("ds_write_b32 v6, v6")
        A.L(nb)
        self.I(f"s_waitcnt lgkmcnt(0)\ns_barrier\nds_read_b32 v7, v6")
        self.w1a = self.lin_dma((S_JP, 140 * 1024), L.W1F + W1AA * 1024, W1A_LDS + W1AA * 1024, 9, 46, 47, "w1")
        self.I(f"s_waitcnt lgkmcnt(0)\nv_readfirstlane_b32 s36, v7\ns_cmp_lg_u32 s36, 0\ns_cbranch_scc1 L_slow")
        self.I(f"s_mov_b32 {s(S_RETRY)}, 0")
        keep = self.A; A2 = Asm(); A2.uid = 100000; self.A = A2
        A2.L("L_slow")
        self.I(f"s_mov_b32 s69, {BIG}\ns_mov_b32 s70, {BIG}\ns_mov_b32 s71, {BIG}\ns_mov_b32 s72, {BIG}\nv_mov_b32 v220, 0")
        self.I(f"s_mov_b32 {s(S_RETRY)}, 1\ns_waitcnt vmcnt(0)\ns_barrier\nv_mov_b32 v7, 0\nds_write_b32 v6, v7")
        if self.cfg.diag == "att2": self.I("s_waitcnt lgkmcnt(0)\ns_barrier\ns_branch L_att")
        AT.emit_kv_addr(A2, r, 0, S_WAVE, 56)
        for k in range(AT.NT):
            for it in AT.kv_items(r, 4, "sc1", k): self.I(it[1])
            if k % 8 == 7: self.I("s_waitcnt vmcnt(0)")
        AT.emit_att_truemax(self, r, 0, S_WAVE, QST, RED_A)
        self.I("s_branch L_att")
        self.A = keep; self.slow = A2.ins
        self.emit_list(self.take(self.w1a, self.cfg.s1_w1a))

    def oproj_setup(self):
        self.lin(30, [(S_G, L.GS), (S_I, 4 * L.XTS, 0, 3), (S_WAVE, L.XTS)], L.OFB, layer=False)
        self.resid_setup(L.XMID, L.STATMID, L.FL_X1)
        self.lin(33, [(S_I, 128)], L.FL_O)
    def phase_oproj(self):
        vm = self.vm
        X, WB, ACC = 256, 68, 108
        sk = self.A.newlabel("cs1l")
        self.I(f"s_cmp_lg_u32 {s(S_L)}, 0\ns_cbranch_scc1 {sk}")
        self.csum_loads(24, (S_JP, 20 * 448), L.CS1P, 448, 0xfffffff, "cs")
        self.A.L(sk)
        self.I("v_bfe_u32 v66, v0, 2, 2\nv_lshlrev_b32 v66, 5, v66\nv_and_b32 v67, 3, v0\nv_lshl_add_u32 v66, v67, 2, v66")
        self.I(f"v_add_u32 v64, {WO_LDS}, v1\nv_add_u32 v65, {WO_LDS + 51200}, v1")
        self.I("v_and_b32 v6, 31, v0\nv_lshlrev_b32 v6, 2, v6")
        self.poll2(6, 33, (5, 7)) if self.cfg.pp else self.poll(6, 33)
        def load(k):
            if k and k % 4 == 0: self.I("s_add_u32 s30, s30, 4096")
            vm.issue(f"buffer_load_dwordx4 {R(X+4*k,4)}, v1, {WS}, s30 offen offset:{(k%4)*1024} sc1", ("x", k))
        nl = 0
        while nl < 7: load(nl); nl += 1
        self.stamp("o.poll")
        D, NB = self.cfg.odepth, 10
        nxt = []
        ow2 = self.take(self.w2_items, self.cfg.o_w2)
        def rd(i): self.I(f"ds_read_b128 {v(WB+4*(i%NB),4)}, v{64 + i//50} offset:{(i%50)*1024}")
        for i in range(D): rd(i)
        for i in range(100):
            k, ft = divmod(i, 5)
            if ft == 0: vm.wait(("x", k))
            self.I(f"s_waitcnt lgkmcnt({min(D - 1, 99 - i)})")
            d = ACC + 4 * ft
            self.I(f"v_mfma_f32_16x16x32_bf16 {v(d,4)}, {v(WB+4*(i%NB),4)}, {R(X+4*k,4)}, {'0' if k == 0 else v(d,4)}")
            if i + D < 100: rd(i + D)
            if i % 4 != 1 and i >= 8 and nxt: self.emit_list(nxt.pop(0))
            if i % 4 == 1:
                if nl < 20: load(nl); nl += 1
                elif self.w1a: self.emit_list(self.take(self.w1a, 1))
                else: self.emit_list(self.take(ow2, 1))
        self.emit_list(self.w1a + ow2 + sum(nxt, []))
        self.stamp("o.mm")
        self.resid_epilogue(ACC)
        self.I("s_barrier")
        b1 = self.cfg.b1n
        self.window(self.lin_dma((S_JP, 140 * 1024), L.W1F + 56 * 1024, W1B_LDS, b1, 52, 53, "w1b"), n1=self.cfg.s2_n1)
        self.w1b = self.lin_dma((S_JP, 140 * 1024), L.W1F + (56 + 4 * b1) * 1024, W1B_LDS + 4 * b1 * 1024, 21 - b1, 52, 53, "w1b")
        self.kbar = (56 + 4 * b1) // 7 - 1
        sk = self.A.newlabel("cs1a")
        self.I(f"s_cmp_lg_u32 {s(S_L)}, 0\ns_cbranch_scc1 {sk}")
        self.csum_part(24, M_CS1P, 448, 0xfffffff)
        self.A.L(sk)
        self.stamp("o.epi")

    def mlp1_setup(self):
        for e in range(2):
            self.lin(82 + e, [(S_IP, 8, 0, 1), (S_WAVE, 2)], e, layer=False)
            self.lin(80 + e, [(82 + e, L.XTS), (S_G, L.GS)], L.XMID, layer=False)
            self.lin(84 + e, [(82 + e, L.HTS), (S_G, L.GS), (S_JP, 7168, 1, None)], L.HFB, layer=False)
            self.lin(86 + e, [(S_JP, 4096, 0, 1), (84 + e, 1)], 0, layer=False)
            self.I(f"s_and_b32 s36, {s(S_JP)}, 1\ns_lshl_b32 s36, s36, 3\ns_add_u32 s{84+e}, s{84+e}, s36")
            self.lin(82 + e, [(82 + e, 4096), (S_G, L.GS)], L.STATMID, layer=False)
        self.lin(88, [(S_IP, 256), (S_WAVE, 128, 1, None), (S_JP, 8), (S_WAVE, 4, 0, 1)], L.FL_H)
        self.lin(89, [(S_IP, 256), (S_WAVE, 128, 1, None), (S_WAVE, 16, 0, 1)], L.FL_X1)
        self.I(f"s_mov_b32 s90, {hexf(math.log2(math.e))}\ns_mov_b32 s91, s90\ns_mov_b32 s92, {hexf(math.sqrt(0.5))}\ns_mov_b32 s93, s92")
    def phase_mlp1(self):
        A, vm = self.A, self.vm
        ACC, SL, ST, AD, XR, NXR, WB = 20, 76, 108, 116, 256, 8, 320
        self.poll2(66, 89, (5, 6))
        self.I(f"""v_add_u32 {v(AD)}, {W1A_LDS}, v1
        v_add_u32 {v(AD+1)}, {W1B_LDS}, v1
        v_add_u32 {v(AD+2)}, {W1B_LDS + 8*7168}, v1
        v_lshlrev_b32 {v(AD+3)}, 4, v4
        v_add_u32 {v(AD+3)}, {M_CS1}, {v(AD+3)}""")
        nxt = self.units(self.collect(self.mlp2_setup))
        def xr(k, e): return XR + 8 * (k % NXR) + 4 * e
        def load(k):
            for e in range(2):
                if k and k % 4 == 0: self.I(f"s_add_u32 s{80+e}, s{80+e}, 4096")
                vm.issue(f"buffer_load_dwordx4 {R(xr(k,e),4)}, v1, {WS}, s{80+e} offen offset:{(k%4)*1024} sc1", ("x", k))
        def wread(k, ft): return f"ds_read_b128 {R(WB + 28*(k%2) + 4*ft, 4)}, {v(AD + k//8)} offset:{(k%8)*7168 + ft*1024}"
        PD = 5
        nl = 0
        while nl < 4: load(nl); nl += 1
        self.I("s_barrier")
        self.stamp("x1.poll")
        w2_in_loop = self.take(self.w2_items, 32 - self.cfg.fin_w2 - self.cfg.o_w2)
        sl_items = []
        for e in range(2):
            for n in range(4):
                sl_items.append(("v", f"buffer_load_dwordx4 {v(SL+16*e+4*n,4)}, v1, {WS}, s{82+e} offen offset:{n*1024} sc1", "stat"))
        def stat_code():
            for e in range(2):
                self.stat_finish(SL + 16 * e, ST + 4 * e, packed=False)
                self.I(f"v_mov_b32 {v(ST+4*e+2)}, {v(ST+4*e+1)}")
        sh = self.collect(stat_code) if self.cfg.m1sh else []
        for ft in range(7): self.I(wread(0, ft))
        for k in range(20):
            vm.wait(("x", k))
            if k == self.kbar:
                vm.wait("w1b"); self.I("s_barrier")
            if k == 16 and sh: vm.wait("stat")
            self.I("s_waitcnt lgkmcnt(0)")
            n = 0
            for ft in range(7):
                for e in range(2):
                    d = ACC + 28 * e + 4 * ft
                    self.I(f"v_mfma_f32_16x16x32_bf16 {v(d,4)}, {R(WB+28*(k%2)+4*ft,4)}, {R(xr(k,e),4)}, {'0' if k == 0 else v(d,4)}")
                    if k + 1 < 20 and n < 7: self.I(wread(k + 1, n))
                    if n == 7 and nl < min(k + PD, 20): load(nl); nl += 1
                    if n == 9 and nl < min(k + 1 + PD, 20): load(nl); nl += 1
                    if n == 11 or (n == 8 and (nl == 20 or k % 2 == 0 or (self.w1b and self.kbar < 13))):
                        if self.w1b: self.emit_list(self.take(self.w1b, 1))
                        elif sl_items: self.emit_list(self.take(sl_items, 1))
                        else: self.emit_list(self.take(w2_in_loop, 1))
                    if n == 5 and nl == 20: self.emit_list(self.take(w2_in_loop, 1))
                    if k >= 16 and sh: self.emit_list(sh[:2]); sh = sh[2:]
                    if 4 <= k < 16 and nxt: self.emit_list(nxt.pop(0))
                    n += 1
            if k == 3:
                sk = A.newlabel("cs1b")
                self.I(f"s_cmp_lg_u32 {s(S_L)}, 0\ns_cbranch_scc1 {sk}")
                self.csum_final(120 - 4 * 0, M_CS1P, 448, M_CS1, 0xfffffff) if False else self.csum_final(SL + 16, M_CS1P, 448, M_CS1, 0xfffffff)
                A.L(sk)
            assert k < self.kbar - 2 or not self.w1b
            if self.cfg.fine == "m" and k in (0, 4, 9, 14): self.stamp(f"m1.k{k}")
        assert not sh and not sl_items and not nxt
        self.w2_items = w2_in_loop + self.w2_items
        self.stamp("m1.mm")
        self.I("s_barrier")
        if not self.cfg.m1sh:
            vm.wait("stat"); stat_code()
        CB = SL; T = 120; PK = [[128, 116], [92, 96]]
        def cbread(ft):
            b = CB + 8 * (ft % 2)
            self.I(f"ds_read_b128 {v(b,4)}, v7 offset:{ft*64}\nds_read_b128 {v(b+4,4)}, v7 offset:{448+ft*64}")
        self.I(f"v_mov_b32 v7, {v(AD+3)}")
        cbread(0)
        if self.cfg.fine == "m": self.stamp("m1.stat")
        for ft in range(7):
            ch = [(e, h) for e in range(2) for h in range(2)]
            D = lambda c: ACC + 28 * c[0] + 4 * ft + 2 * c[1]
            Tt = lambda c: T + 4 * c[0] + 2 * c[1]
            b = CB + 8 * (ft % 2); q = ft // 2
            self.I("s_waitcnt lgkmcnt(0)")
            if ft + 1 < 7: cbread(ft + 1)
            for c in ch: self.I(f"v_pk_fma_f32 {v(D(c),2)}, {v(ST+4*c[0],2)}, {v(b+2*c[1],2)}, {v(D(c),2)} op_sel_hi:[0,1,1]")
            for c in ch: self.I(f"v_pk_fma_f32 {v(D(c),2)}, {v(D(c),2)}, {v(ST+4*c[0]+2,2)}, {v(b+4+2*c[1],2)} op_sel_hi:[1,0,1]")
            for c in ch: self.I(f"v_pk_fma_f32 {v(Tt(c),2)}, {v(D(c),2)}, s[90:91], -0.5 op_sel_hi:[1,1,0]")
            for c in ch: self.I(f"v_exp_f32 {v(Tt(c))}, {v(Tt(c))}\nv_exp_f32 {v(Tt(c)+1)}, {v(Tt(c)+1)}")
            for c in ch: self.I(f"v_pk_add_f32 {v(Tt(c),2)}, {v(Tt(c),2)}, s[92:93]")
            for c in ch: self.I(f"v_pk_fma_f32 {v(Tt(c),2)}, {v(Tt(c),2)}, {v(Tt(c),2)}, 0.5 op_sel_hi:[1,1,0]")
            for c in ch: self.I(f"v_rcp_f32 {v(Tt(c))}, {v(Tt(c))}\nv_rcp_f32 {v(Tt(c)+1)}, {v(Tt(c)+1)}")
            for c in ch: self.I(f"v_pk_fma_f32 {v(D(c),2)}, {v(D(c),2)}, {v(Tt(c),2)}, {v(D(c),2)} neg_lo:[1,0,0] neg_hi:[1,0,0]")
            for c in ch: self.I(f"v_cvt_pk_bf16_f32 {v(PK[c[0]][q%2]+2*(ft%2)+c[1])}, {v(D(c))}, {v(D(c)+1)}")
            if ft % 2 == 1:
                for e in range(2): vm.issue(f"buffer_store_dwordx4 {v(PK[e][q%2],4)}, v1, {WS}, s{86+e} offen offset:{q*1024} {self.cfg.hst}", "st")
            elif ft == 6:
                for e in range(2): vm.issue(f"buffer_store_dwordx2 {v(PK[e][q%2],2)}, v1, {WS}, s{84+e} offen offset:3072 {self.cfg.hst}", "st")
            elif ft < self.cfg.mish_ld:
                self.emit_list(self.take(self.w2_items, 2))
        if self.cfg.fine == "m": self.stamp("m1.mish")
        self.n_left = sum(1 for it in self.w2_items if it[0] == "v")
        self.wqa = self.lin_dma((S_J, 120 * 1024), L.WQF, WQ_LDS, 30, 52, 53, "wq")
        self.window(self.w2_items + self.take(self.wqa, self.cfg.s3_wq), n1=self.cfg.s3_n1, fl=88)
        self.stamp("m1.epi")

    def mlp2_setup(self):
        NS = 14
        for p in range(4):
            self.I(f"s_add_u32 s37, {s(S_WAVE)}, {p+1}\ns_and_b32 s37, s37, 3")
            self.lin(44 + p, [(37, 5120)], RED_K, layer=False)
            self.lin(30 + p, [(37, L.HTS), (S_G, L.GS), (S_I, 4 * L.HTS, 0, 3), (S_WAVE, NS * 1024)], L.HFB, layer=False)
        self.resid_setup(L.XIN, L.STATIN, L.FL_XIN + L.LS)
        self.lin(48, [(S_I, 128), (S_WAVE, 32)], L.FL_H)
    def phase_mlp2(self):
        A, vm = self.A, self.vm
        NS, XR, NR, accs, stage, PD, P0 = 14, 276, 25, [20, 40], 60, self.cfg.pd2, 6
        fine = self.cfg.fine == "h"
        self.I("v_and_b32 v120, 7, v0\nv_lshlrev_b32 v120, 2, v120")
        self.poll2(120, 48, (5, 121))
        nxt = self.units(self.collect(lambda: self.qkv_setup(False)))
        self.stamp("h.poll")
        if self.cfg.wb:
            sk = A.newlabel("wb")
            self.I(f"s_and_b32 s36, {s(S_C)}, {self.cfg.wb - 1}\ns_or_b32 s36, s36, {s(S_WAVE)}\ns_cbranch_scc1 {sk}\nbuffer_wbl2 sc1")
            A.L(sk)
        items = [(p, st) for p in range(4) for st in range(NS)]
        def xr(k): return XR + 4 * (k % NR)
        def load(k):
            p, st = items[k]
            if st % 4 == 0: self.I(f"s_add_u32 s34, s{30+p}, {(st//4)*4096}")
            vm.issue(f"buffer_load_dwordx4 {R(xr(k),4)}, v1, {WS}, s34 offen offset:{(st%4)*1024} {self.cfg.hld}", ("x", k))
        nl = 0
        while nl < P0: load(nl); nl += 1
        NM = 5 * NS; nwq = 0
        for k, (p, st) in enumerate(items):
            acc = accs[p % 2]
            if st == 0:
                fill = {}
                T0, T1 = stage + 20 * (p % 2), stage + 20 * ((p + 1) % 2)
                if p > 0:
                    prev = accs[(p - 1) % 2]
                    fill.setdefault(0, []).append(f"v_add_u32 v7, s{44+p-1}, v1")
                    if p > 1: fill.setdefault(3, []).append("s_waitcnt lgkmcnt(0)")
                    for ft in range(5):
                        m = 4 + 5 * ft
                        if p > 1:
                            for n in range(4): fill.setdefault(m + n // 2, []).append(f"v_add_f32 {v(T1+4*ft+n)}, {v(T1+4*ft+n)}, {v(prev+4*ft+n)}")
                        fill.setdefault(m + 2, []).append(f"ds_write_b128 v7, {v((T1 if p > 1 else prev)+4*ft,4)} offset:{ft*1024}")
                    fill.setdefault(38, []).append(f"s_waitcnt lgkmcnt(0)\ns_barrier\nv_add_u32 v6, s{44+p}, v1")
                    for ft in range(5): fill.setdefault(40 + 2 * ft, []).append(f"ds_read_b128 {v(T0+4*ft,4)}, v6 offset:{ft*1024}")
            vm.wait(("x", k))
            if fine and st == 0: self.stamp(f"k.g{p}")
            for ft in range(5):
                c = "0" if st == 0 else v(acc + 4 * ft, 4)
                self.I(f"v_mfma_f32_16x16x32_bf16 {v(acc+4*ft,4)}, {R(w2_reg(5*st+ft),4)}, {R(xr(k),4)}, {c}")
                for x in fill.get(5 * st + ft, []): self.I(x)
                if ft == 1 and k % 2 == 0 and nl < min(k + PD, len(items)): load(nl); nl += 1
                if ft == 3 and k >= 4 and nxt: self.emit_list(nxt.pop(0))
            if nl < min(k + 1 + PD, len(items)): load(nl); nl += 1
            elif k == len(items) - 10 and self.cfg.wb2:
                sk = A.newlabel("wb")
                self.I(f"s_and_b32 s36, {s(S_C)}, {self.cfg.wb2 - 1}\ns_or_b32 s36, s36, {s(S_WAVE)}\ns_cbranch_scc1 {sk}\ns_cmp_eq_u32 {s(S_L)}, 0\ns_cbranch_scc1 {sk}\nbuffer_wbl2 sc1")
                A.L(sk)
            elif nl == len(items) and nwq < self.cfg.wqn: self.emit_list(self.take(self.wqa, 2)); nwq += 2
        if fine: self.stamp("k.mend")
        self.I("s_waitcnt lgkmcnt(0)")
        for i in range(0, 20, 2): self.I(f"v_pk_add_f32 {v(accs[1]+i,2)}, {v(accs[1]+i,2)}, {v(stage+20+i,2)}")
        self.stamp("m2.mm")

    def init_lds_consts(self):
        A, vm = self.A, self.vm
        self.I("s_mov_b32 s53, 0"); emit_realtile(A, S_JP, 53, 54, 56, 58)
        self.I("s_mov_b32 s53, 6"); emit_realtile(A, S_JP, 53, 55, 57, 58)
        self.I(f"""s_lshl_b32 s54, s54, 5
        v_mov_b32 v6, s57
        v_cmp_lt_u32 vcc, 23, v0
        v_cndmask_b32 v6, 0, v6, vcc
        v_add_u32 v6, v6, v2""")
        vm.issue(f"buffer_load_dwordx2 v[252:253], v6, s[12:15], s54 offen", "b1")
    def init_lds_finish(self):
        self.I(f"""v_lshlrev_b32 v20, 16, v252
        v_and_b32 v21, 0xffff0000, v252
        v_lshlrev_b32 v22, 16, v253
        v_and_b32 v23, 0xffff0000, v253
        v_add_u32 v6, {M_B1}, v1
        s_mov_b64 exec, 0x0fffffff
        ds_write_b128 v6, v[20:23]
        s_mov_b64 exec, -1
        v_mov_b32 v6, {M_BAD}
        v_mov_b32 v7, 0
        ds_write_b32 v6, v7""")

def build_main(cfg):
    G = Gen(cfg); A = G.A; vm = G.vm
    Gen.cold = []
    G.I("s_cmp_ge_u32 s2, 256\ns_cbranch_scc1 L_end")
    if cfg.ctouch:
        G.I(f"s_cmp_ge_u32 s2, {8 * cfg.ctouch}\ns_cbranch_scc1 L_noct\ns_getpc_b64 s[62:63]")
        A.L("L_pc0")
        G.I(f"""s_lshr_b32 s30, s2, 3
        s_and_b32 s30, s30, 1
        s_lshl_b32 s30, s30, 15
        v_lshlrev_b32 v5, 7, v0
        v_add_u32 v5, s30, v5
        v_min_u32 v5, L_codeend-L_pc0-4, v5
        global_load_dword v255, v5, s[62:63]""")
        A.L("L_noct")
    G.I(f"""
    s_load_dwordx8 s[36:43], s[0:1], 0
    s_load_dwordx2 s[96:97], s[0:1], 32       ; wo
    s_load_dwordx2 s[98:99], s[0:1], 48       ; w1
    s_load_dwordx2 s[56:57], s[0:1], 56       ; b1
    s_load_dwordx2 s[100:101], s[0:1], 64     ; w2
    s_load_dwordx2 s[58:59], s[0:1], 72       ; out
    s_load_dwordx2 s[60:61], s[0:1], 88       ; ws
    v_lshrrev_b32 v2, 6, v0
    v_and_b32 v0, 63, v0
    v_readfirstlane_b32 {s(S_WAVE)}, v2
    v_lshlrev_b32 v1, 4, v0
    v_lshlrev_b32 v2, 3, v0
    v_and_b32 v3, 15, v0
    v_lshrrev_b32 v4, 4, v0
    s_and_b32 {s(S_G)}, s2, 7
    s_lshr_b32 {s(S_C)}, s2, 3
    s_lshl_b32 {s(S_I)}, {s(S_G)}, 2
    s_lshr_b32 s30, {s(S_C)}, 3
    s_add_u32 {s(S_I)}, {s(S_I)}, s30
    s_and_b32 {s(S_J)}, {s(S_C)}, 7
    s_lshl_b32 {s(S_IP)}, {s(S_G)}, 1
    s_lshr_b32 s30, {s(S_C)}, 4
    s_add_u32 {s(S_IP)}, {s(S_IP)}, s30
    s_and_b32 {s(S_JP)}, {s(S_C)}, 15
    s_mov_b32 {s(S_L)}, 0
    s_mov_b32 {s(S_MODE)}, 1
    s_mov_b32 {s(S_RETRY)}, 0
    s_getreg_b32 {s(S_TAG)}, hwreg(HW_REG_XCC_ID, 0, 3)
    """)
    if cfg.prof: G.I("s_mov_b32 s77, 0\nv_mov_b32 v19, 0\ns_memrealtime s[78:79]\ns_waitcnt lgkmcnt(0)\nv_writelane_b32 v19, s78, 62")
    G.stamp("start")
    G.I(f"s_cmp_lt_u32 s2, 160\ns_cselect_b32 s73, 0, 1\ns_or_b32 s73, s73, {s(S_WAVE)}\ns_cbranch_scc1 L_nowq1")
    G.wq_unit_addr()
    G.I("s_waitcnt lgkmcnt(0)")
    srd(A, SRD_WQ, 38, 640 * 640 * 2)
    G.I(f"""s_bitcmp1_b32 s2, 1
    s_cselect_b32 {s(SRD_KV)}, s42, s40
    s_cselect_b32 {s(SRD_KV+1)}, s43, s41
    s_mov_b32 {s(SRD_KV+2)}, {640*20*2}
    s_mov_b32 {s(SRD_KV+3)}, 0x20000""")
    G.wq_unit_issue()
    A.L("L_nowq1")
    G.I("s_movk_i32 s54, 1280")
    G.x0_issue()
    G.I(f"s_load_dword {s(S_EPOCH)}, s[60:61], {L.EPOCH}")
    srd(A, 4, 60, L.WS_USED); srd(A, 8, 58, 2048 * 640 * 2); srd(A, 12, 56, 1728 * 2); srd(A, SRD_SRC, 96, 640 * 640 * 2)
    G.I("v_mov_b32 v192, 0x3f803f80\nv_mov_b32 v193, 0x3f803f80\nv_mov_b32 v194, 0x3f803f80\nv_mov_b32 v195, 0x3f803f80")
    G.I(f"""s_cmp_ge_u32 s2, 160
    s_cselect_b32 s36, 0, 1
    s_or_b32 s36, s36, {s(S_WAVE)}
    s_cbranch_scc1 L_notouch
    s_sub_u32 s36, s2, 160
    s_lshl_b32 s37, s36, 13
    s_add_u32 s37, s37, {L.KVB}
    s_cmp_eq_u32 s36, {2 * L.LS // 8192 + 1}
    s_cselect_b32 s37, {L.FL_PREP}, s37
    s_cmp_gt_u32 s36, {2 * L.LS // 8192 + 1}
    s_cbranch_scc1 L_notouch
    v_lshlrev_b32 v5, 7, v0
    buffer_load_dword v254, v5, {WS}, s37 offen""")
    A.L("L_notouch")
    G.init_lds_consts()
    G.I(f"s_waitcnt lgkmcnt(0)\ns_mul_i32 {s(S_EPOCH)}, {s(S_EPOCH)}, 1664525\ns_add_u32 {s(S_EPOCH)}, {s(S_EPOCH)}, 1013904223")
    G.I(f"s_and_b32 s36, {s(S_EPOCH)}, 0xfffffff8\ns_or_b32 {s(S_TAG)}, {s(S_TAG)}, s36")
    G.stamp("p0.issue")
    G.prep_issue()
    G.I("s_cmp_lg_u32 s73, 0\ns_cbranch_scc1 L_nowq2\ns_waitcnt vmcnt(1)")
    G.wq_unit_finish()
    G.I("s_waitcnt vmcnt(0)")
    G.signal(66, dev=True)
    G.I("s_branch L_wq3")
    A.L("L_nowq2")
    G.I("s_waitcnt vmcnt(0)")
    A.L("L_wq3")
    vm.q = []
    G.stamp("p0.x")
    if cfg.wtouch:
        per = -(-(L.PROF - L.WOF) // (256 * 128)) * 128
        G.lin(36, [(2, per)], L.WOF, layer=False)
        G.I(f"s_cmp_lg_u32 {s(S_WAVE)}, {cfg.wtouch - 1}\ns_cbranch_scc1 L_nowt\nv_lshlrev_b32 v5, 7, v0")
        for n in range(-(-per // 8192)):
            G.I(f"buffer_load_dword v254, v5, {WS}, s36 offen\ns_add_u32 s36, s36, 8192")
        A.L("L_nowt")
    G.emit_list(G.prep_dma_items())
    G.qkv_setup(True)
    G.init_lds_finish()
    G.I("s_barrier")
    G.x0_read(20, 196)
    G.I("s_barrier")
    G.stamp("p0.read")
    G.phase_qkv(True)
    G.prep_read()
    G.stamp("prep")
    A.L("L_layer")
    G.I("s_mov_b32 s57, 0")
    G.phase_att()
    G.I(f"s_cmp_lg_u32 s2, 0\ns_cbranch_scc1 L_noep\nv_mov_b32 v5, {s(S_EPOCH)}\ns_mov_b32 s36, {L.EPOCH}\ns_mov_b64 exec, 1\nbuffer_store_dword v5, off, {WS}, s36\ns_mov_b64 exec, -1")
    A.L("L_noep")
    G.phase_oproj()
    G.phase_mlp1()
    G.phase_mlp2()
    G.I(f"s_cmp_lg_u32 {s(S_L)}, 0\ns_cbranch_scc1 L_final")
    q0 = list(vm.q)
    G.resid_epilogue(40, statreg=60)
    G.window(G.wqa, n1=cfg.s4_n1)
    G.stamp("m2.epi")
    G.I(f"s_mov_b32 {s(S_L)}, {L.LS}")
    G.poll2(122, 98, (5, 7))
    G.stamp("xin.poll")
    G.phase_qkv(False)
    G.I(f"s_mov_b32 s69, {BIG}\ns_mov_b32 s70, {BIG}\ns_mov_b32 s71, {BIG}\ns_mov_b32 s72, {BIG}\nv_mov_b32 v220, 0")
    G.I("s_branch L_layer")
    A.L("L_final")
    if cfg.diag == "delay":
        G.I("s_memtime s[78:79]\ns_waitcnt lgkmcnt(0)\ns_add_u32 s74, s78, 40000")
        A.L("L_dly")
        G.I("s_memtime s[78:79]\ns_waitcnt lgkmcnt(0)\ns_sub_u32 s79, s78, s74\ns_cmp_lt_i32 s79, 0\ns_cbranch_scc1 L_dly")
        G.loops["L_dly"] = 0
    vm.q = q0
    G.lin(36, [(S_I, 64 * 1280), (S_WAVE, 16 * 1280), (S_J, 160)], 0, layer=False, tmp=37)
    G.I("v_mul_u32_u24 v6, 1280, v3\nv_lshl_add_u32 v6, v4, 3, v6")
    if cfg.fst:
        G.I("v_and_b32 v7, 1, v4\nv_mul_u32_u24 v7, 24, v7\nv_add_u32 v7, v6, v7")
    G.resid_epilogue(40, store=False)
    if cfg.fst:
        for pr in range(2):
            b_ = XRES + 4 * pr
            G.I(f"v_permlane16_swap_b32 {v(b_)}, {v(b_+2)}\nv_permlane16_swap_b32 {v(b_+1)}, {v(b_+3)}")
            G.I(f"buffer_store_dwordx4 {v(b_,4)}, v7, s[8:11], s36 offen offset:{pr*64}")
        G.I(f"buffer_store_dwordx2 {v(XRES+8,2)}, v6, s[8:11], s36 offen offset:128")
    else:
        for ft in range(5): G.I(f"buffer_store_dwordx2 {v(XRES+2*ft,2)}, v6, s[8:11], s36 offen offset:{ft*32} {cfg.outfl}")
    if cfg.prof:
        G.I("s_waitcnt vmcnt(0)"); G.stamp("end")
        G.I("s_memrealtime s[78:79]\ns_waitcnt lgkmcnt(0)\nv_writelane_b32 v19, s78, 63")
        G.I(f"s_lshl_b32 s36, s2, 2\ns_add_u32 s36, s36, {s(S_WAVE)}\ns_lshl_b32 s36, s36, 8\ns_add_u32 s36, s36, {L.PROF}\nv_lshlrev_b32 v6, 2, v0")
        G.I(f"buffer_store_dword v19, v6, {WS}, s36 offen")
        if cfg.dbg:
            G.I(f"""s_cmp_lg_u32 s2, {cfg.dbgwg}
            s_cbranch_scc1 L_end
            s_cmp_lg_u32 {s(S_WAVE)}, 0
            s_cbranch_scc1 L_end
            s_load_dwordx2 s[36:37], s[0:1], 80
            v_readlane_b32 s38, v19, 0
            s_waitcnt lgkmcnt(0)
            v_subrev_u32 v19, s38, v19
            s_mov_b64 exec, 0xffff
            global_store_dword v6, v19, s[36:37]""")
        cfg.names = G.names
    A.L("L_end")
    G.I("s_endpgm")
    for g, j, code in Gen.cold:
        A.L(g); G.I(code); G.I(f"s_branch {j}")
    A.ins += G.slow
    A.L("L_codeend")
    if os.environ.get('V'): print('w2 left for S3 window:', G.n_left)
    npad = A.pad_hazards()
    tr = trace_two_layers(A.ins, G.loops)
    errs = check_waits([x for x in tr if x.op not in ("s_memtime", "s_memrealtime")], "main")
    assert errs == 0 or cfg.skip != ("",) and cfg.skip
    return A.text(), npad

def trace_two_layers(ins, loops):
    labels = {x.label: i for i, x in enumerate(ins) if x.is_label}
    tr = []; j = 0; left = {}; layer = 0
    while j < len(ins):
        c = ins[j]; tr.append(c)
        if c.op == "s_endpgm": break
        if c.kind == "branch":
            t = labels[c.target]
            if c.op == "s_branch":
                if c.target == "L_layer": layer = 1
                j = t; continue
            if t <= j:
                k = left.get(j, loops.get(c.target, 1))
                if k > 0: left[j] = k - 1; j = t; continue
                left.pop(j, None)
            elif (c.target == "L_final" and layer == 1) or c.target.startswith("L_prepok") or (c.target.startswith("L_pollx") and c.op == "s_cbranch_vccz"):
                j = t; continue
        j += 1
    return tr

HEADER = open(f"cdna_kernels/{NAME}.s.ref").read().split("; Override launch")[0]

def build_all(cfg):
    body, npad = build_main(cfg)
    asm = HEADER
    asm += f"; @launch grid=(256,1,1) block=(256,1,1) lds={LDS_BYTES}\n"
    asm += '.amdgcn_target "amdgcn-amd-amdhsa--gfx950"\n'
    asm += wrap_kernel(NAME + "_kernel", body, vgpr=512, acc=256)
    return asm, npad

if __name__ == "__main__":
    cfg = Cfg()
    cfg.prof = "prof" in os.environ.get("XF", "")
    asm, npad = build_all(cfg)
    open("out.s", "w").write(asm)
    print("lines", len(asm.splitlines()), "bytes", len(asm), "pad", npad)
```

```python
from asmlib import *
import layout as L
import attn3 as AT
from attn3 import S_
from prep import srd, emit_xg_reduce, emit_realtile, emit_xk, BIG
import math, os, struct

NAME = "interleave_layers__grouped_kv_mqa__dense_activation_mish__prompt"
WQ_LDS = 0
X0_LDS = 0
KV0_LDS = 94208
WQP_LDS = 86016
PREP_LDS = 122880
RED_A = 122880
QST = 147456
WO_LDS = 0
W1AA = 20
W2A = 33
W1A_LDS, W1B_LDS = 102400, 0
RED_K = 122880
MISC = 159744
M_CS1, M_B1, M_CSQ, M_BAD = MISC, MISC + 448, MISC + 896, MISC + 1280
M_MODE = MISC + 1284
M_VT = MISC + 1344
M_CSQP = MISC + 2368
M_CS1P = MISC + 1344
LDS_BYTES = 163840

S_WAVE, S_G, S_C, S_I, S_J, S_IP, S_JP, S_EPOCH, S_L, S_MODE, S_RETRY, S_TAG = 20, 21, 22, 23, 24, 25, 26, 27, 28, 29, 76, 75
XRES = 8
WS = "s[4:7]"
SRD_X, SRD_WQ, SRD_KV, SRD_SRC, SRD_KV2 = 80, 92, 88, 84, 16

def hexf(x): return "0x%08x" % struct.unpack("<I", struct.pack("<f", x))[0]
def w2_reg(k):
    if k < 25: return 156 + 4 * k
    if k < 33: return 480 + 4 * (k - 25)
    if k < 59: return 376 + 4 * (k - 33)
    if k < 65: return 132 + 4 * (k - 59)
    return 256 + 4 * (k - 65)

NFIRST = int(os.environ.get('NF', 3))
class Cfg:
    fin_w2 = 0; s1_w1a = 5; s2 = 12; odepth = 9; m1sh = True
    diag = None
    b1n = 11; s2_n1 = 6
    tlb = 0; pp = True; psl = 1; fst = True
    o_w2 = 6; xm = 15
    ctouch = 2; ct2 = (3, 6)
    wtouch = 0; tpos = ((0, 14), (1, 2), (1, 10), (2, 3), (2, 10), (3, 1), (3, 8))
    wqn = 20; pd2 = 10; mish_ld = 6; s4_n1 = 6
    dst = False; kvi0 = 24
    tA = [5, 0, 1]; kvi = 36; chain = True
    hst = ''; ost = ''; hld = 'sc1'
    dbg = None; dbgwg = 0
    w2warm = 0; otouch = False
    sect = True; nf = 3
    xtouch = True; w1warm = 80
    ahead = 0; kvf = 1; pdma = 9
    ends = False; outfl = ''; wb2 = 0
    s3_wq = 0; s3_n1 = 6; fastl1 = True
    wq3 = 2; tstep = 7; wstart = 48; wstep = 2; nta = False; t0 = True
    ptouch = False; pst = 1; pflag = (0, 13); pchk = 9; wb = 0
    prof = False; rt = False; fine = None; skip = (); force_global = False; force_bad = False

class Gen:
    def __init__(self, cfg):
        self.A = Asm(); self.vm = VmTracker(self.A); self.cfg = cfg
        self.names = []; self.loops = {}
    def I(self, t): return self.A.I(t)
    def stamp(self, name=""):
        if self.cfg.dbg and name not in self.cfg.dbg: return
        if self.cfg.prof and not self.cfg.ends:
            if self.cfg.rt:
                self.I("s_memrealtime s[78:79]\ns_waitcnt lgkmcnt(0)\ns_lshl_b32 s74, s78, 18\ns_memtime s[78:79]\ns_waitcnt lgkmcnt(0)\ns_and_b32 s78, s78, 0x3ffff\ns_or_b32 s78, s78, s74")
            else:
                self.I("s_memtime s[78:79]\ns_waitcnt lgkmcnt(0)")
            self.I("s_mov_b32 m0, s77\nv_writelane_b32 v19, s78, m0\ns_add_u32 s77, s77, 1")
            self.names.append(name)
    def lin(self, out, terms, const=0, layer=True, tmp=36):
        first = True
        for t in terms:
            sreg, mul = t[0], t[1]
            src = s(sreg); dst = s(out) if first else s(tmp)
            if len(t) > 2:
                shr, mask = t[2], t[3]
                if shr: self.I(f"s_lshr_b32 {dst}, {src}, {shr}"); src = dst
                if mask is not None: self.I(f"s_and_b32 {dst}, {src}, {mask}"); src = dst
            if mul != 1: self.I(f"s_mul_i32 {dst}, {src}, {mul}"); src = dst
            if first:
                if src != dst: self.I(f"s_mov_b32 {dst}, {src}")
            else:
                self.I(f"s_add_u32 {s(out)}, {s(out)}, {src}")
            first = False
        if layer: self.I(f"s_add_u32 {s(out)}, {s(out)}, {s(S_L)}")
        if const: self.I(f"s_add_u32 {s(out)}, {s(out)}, {const}")
    def signal(self, off_s, dev=False, val=S_EPOCH):
        self.I(f"v_mov_b32 v5, {s(val)}\ns_mov_b64 exec, 1")
        if dev:
            self.vm.issue(f"buffer_store_dword v5, off, {WS}, {s(off_s)} sc1", "flag")
        else:
            g = self.A.newlabel("sg"); j = self.A.newlabel("sj")
            self.I(f"s_cmp_lg_u32 {s(S_MODE)}, 0\ns_cbranch_scc1 {g}")
            self.vm.issue(f"buffer_store_dword v5, off, {WS}, {s(off_s)}", "flag")
            self.A.L(j)
            self.cold.append((g, j, f"buffer_wbl2 sc1\ns_waitcnt vmcnt(0)\nbuffer_store_dword v5, off, {WS}, {s(off_s)} sc1"))
        self.I("s_mov_b64 exec, -1")
    def poll(self, voff, off_s, dev=False, wide=False, pre=False):
        lab = self.A.newlabel("poll"); out = self.A.newlabel("pollx"); ent = self.A.newlabel("polle")
        self.I("s_mov_b32 s35, 0")
        if pre: self.I(f"s_branch {ent}")
        self.A.L(lab)
        if wide:
            self.I(f"buffer_load_dwordx4 v[156:159], {v(voff)}, {WS}, {s(off_s)} offen sc1")
        else:
            self.I(f"buffer_load_dword v5, {v(voff)}, {WS}, {s(off_s)} offen sc1")
        self.A.L(ent)
        self.I(f"s_add_u32 s35, s35, 1\ns_cmp_gt_u32 s35, 0x100000\ns_cbranch_scc1 {out}\ns_waitcnt vmcnt(0)")
        if wide:
            for k in range(4): self.I(f"v_xor_b32 v{156+k}, {s(S_TAG)}, v{156+k}")
            self.I("v_or3_b32 v156, v156, v157, v158\nv_or_b32 v156, v156, v159\nv_cmp_lt_u32 vcc, 7, v156")
        else:
            self.I(f"v_cmp_ne_u32 vcc, {s(S_EPOCH)}, v5")
        self.I(f"s_cbranch_vccnz {lab}")
        self.A.L(out)
        if not dev:
            g = self.A.newlabel("pg"); j = self.A.newlabel("pj")
            self.I(f"s_cmp_lg_u32 {s(S_MODE)}, 0\ns_cbranch_scc1 {g}")
            self.A.L(j)
            self.cold.append((g, j, "s_waitcnt vmcnt(0)\nbuffer_inv sc1\ns_waitcnt vmcnt(0)"))
        self.I("s_waitcnt vmcnt(0)")
        self.loops[lab] = 0
        self.vm.q = []
    def poll2(self, voff, off_s, dsts, dev=False):
        A = self.A
        lab = A.newlabel("poll"); out = A.newlabel("pollx")
        ld = lambda d: f"buffer_load_dword {v(d)}, {v(voff)}, {WS}, {s(off_s)} offen sc1"
        self.I(f"{ld(dsts[0])}\ns_mov_b32 s35, 0\ns_sleep {self.cfg.psl}")
        A.L(lab)
        for a_, b_ in ((0, 1), (1, 0)):
            self.I(f"""{ld(dsts[b_])}
            s_waitcnt vmcnt(1)
            v_cmp_ne_u32 vcc, {s(S_EPOCH)}, {v(dsts[a_])}
            s_cbranch_vccz {out}""")
        self.I(f"s_add_u32 s35, s35, 1\ns_cmp_lt_u32 s35, 0x80000\ns_cbranch_scc1 {lab}")
        A.L(out)
        if not dev:
            g = A.newlabel("pg"); j = A.newlabel("pj")
            self.I(f"s_cmp_lg_u32 {s(S_MODE)}, 0\ns_cbranch_scc1 {g}")
            A.L(j)
            self.cold.append((g, j, "s_waitcnt vmcnt(0)\nbuffer_inv sc1\ns_waitcnt vmcnt(0)"))
        self.loops[lab] = 0
        self.vm.q = ["poll"]
    cold = []
    def flag_x_off(self, base, out):
        self.lin(out, [(S_I, 128), (S_J, 32, 1, None), (S_WAVE, 8), (S_J, 4, 0, 1)], base)
    @staticmethod
    def units(raw):
        out = []
        for it in raw:
            if out and (it[1].startswith("s_cselect") or it[1].endswith(":")): out[-1].append(it)
            else: out.append([it])
        return out
    def window(self, win, n1=6, fl=40):
        win = win if win is not None else []
        if self.cfg.diag != "noack":
            self.emit_list(self.take(win, n1))
            self.vm.wait("st")
        self.signal(fl)
        self.emit_list(win)
    @staticmethod
    def take(items, n):
        out = []
        while items and n > 0:
            it = items.pop(0); out.append(it)
            if it[0] == "v": n -= 1
        return out
    def emit_list(self, items):
        for it in items:
            if it[0] == "s": self.I(it[1])
            elif it[0] == "w": self.vm.wait(it[1])
            elif it[2] in self.cfg.skip: pass
            else: self.vm.issue(it[1], it[2])
    def collect(self, fn):
        keep = self.A; A2 = Asm(); self.A = A2
        fn(); self.A = keep
        return [("s", x.text) for x in A2.ins]
    def load_wfrags(self, regs, soff, tag):
        out = []
        for k, r in enumerate(regs):
            if k and k % 4 == 0: out.append(("s", f"s_add_u32 {s(soff)}, {s(soff)}, 4096"))
            out.append(("v", f"buffer_load_dwordx4 {R(r,4)}, v1, {WS}, {s(soff)} offen offset:{(k%4)*1024}", tag))
        return out
    def lin_dma(self, src_term, src_base, lds_base, n, sg, sl, tag):
        it = self.collect(lambda: (self.lin(sl, [(S_WAVE, n * 1024)], lds_base, layer=False, tmp=54),
                                   self.lin(sg, [src_term, (sl, 1)], src_base - lds_base + (1 << 32) if src_base < lds_base else src_base - lds_base, layer=False, tmp=54)))
        for k in range(n):
            if k and k % 4 == 0: it += [("s", f"s_add_u32 {s(sg)}, {s(sg)}, 4096"), ("s", f"s_add_u32 {s(sl)}, {s(sl)}, 4096")]
            it.append(("s", f"s_mov_b32 m0, {s(sl)}"))
            it.append(("v", f"buffer_load_dwordx4 v1, {WS}, {s(sg)} offen offset:{(k%4)*1024} lds", tag))
        return it
    def resid_setup(self, xbuf, statbuf, flagbuf):
        self.lin(38, [(S_G, L.GS), (S_I, 4 * L.XTS, 0, 3), (S_WAVE, L.XTS), (S_J, 5120, 1, None)], xbuf, layer=False)
        self.lin(39, [(S_J, 3072, 0, 1), (38, 1)], 0, layer=False)
        self.I(f"s_and_b32 s36, {s(S_J)}, 1\ns_lshl_b32 s36, s36, 3\ns_add_u32 s38, s38, s36")
        self.lin(41, [(S_G, L.GS), (S_I, 4 * 4096, 0, 3), (S_WAVE, 4096), (S_J, 2048, 0, 1), (S_J, 256, 1, None)], statbuf, layer=False)
        self.flag_x_off(flagbuf, 40)
        self.I("s_mov_b32 s66, 0x00003f80\ns_mov_b32 s67, 0x3f800000\ns_mov_b32 s68, 0x3f803f80")
        self.I("v_lshrrev_b32 v18, 1, v4\nv_lshlrev_b32 v18, 10, v18\nv_lshl_add_u32 v18, v3, 4, v18\nv_and_b32 v6, 1, v4\nv_lshl_add_u32 v18, v6, 3, v18")
    def resid_epilogue(self, acc, store=True, statreg=20):
        for i in range(10):
            self.I(f"v_dot2c_f32_bf16 {v(acc+2*i)}, s66, {v(XRES+i)}\nv_dot2c_f32_bf16 {v(acc+2*i+1)}, s67, {v(XRES+i)}")
        if store: self.I(f"v_mov_b32 {v(statreg)}, 0\nv_mov_b32 {v(statreg+1)}, 0")
        for i in range(10):
            self.I(f"v_cvt_pk_bf16_f32 {v(XRES+i)}, {v(acc+2*i)}, {v(acc+2*i+1)}")
            if store and i == 3: self.vm.issue(f"buffer_store_dwordx4 {v(XRES,4)}, v1, {WS}, s39 offen", "st")
            if store and i == 7: self.vm.issue(f"buffer_store_dwordx4 {v(XRES+4,4)}, v1, {WS}, s39 offen offset:1024", "st")
        if not store: return
        self.vm.issue(f"buffer_store_dwordx2 {v(XRES+8,2)}, v1, {WS}, s38 offen offset:2048", "st")
        for i in range(10):
            self.I(f"v_dot2c_f32_bf16 {v(statreg)}, s68, {v(XRES+i)}\nv_dot2c_f32_bf16 {v(statreg+1)}, {v(XRES+i)}, {v(XRES+i)}")
        self.vm.issue(f"buffer_store_dwordx2 {v(statreg,2)}, v18, {WS}, s41 offen", "st")
    def stat_loads(self, soff, voff, dst, tag):
        for n in range(4):
            self.vm.issue(f"buffer_load_dwordx4 {v(dst+4*n,4)}, v1, {WS}, {s(soff)} offen offset:{n*1024} sc1", tag)
    def stat_finish(self, src, dst, presummed=False, packed=True):
        if not packed:
            for n in range(8): self.I(f"v_add_f32 {v(src+n)}, {v(src+n)}, {v(src+8+n)}")
            for n in range(4): self.I(f"v_add_f32 {v(src+n)}, {v(src+n)}, {v(src+4+n)}")
            for n in range(2): self.I(f"v_add_f32 {v(src+n)}, {v(src+n)}, {v(src+2+n)}")
        elif not presummed:
            for n in range(4): self.I(f"v_pk_add_f32 {v(src+2*n,2)}, {v(src+2*n,2)}, {v(src+8+2*n,2)}")
            for n in range(2): self.I(f"v_pk_add_f32 {v(src+2*n,2)}, {v(src+2*n,2)}, {v(src+4+2*n,2)}")
            self.I(f"v_pk_add_f32 {v(src,2)}, {v(src,2)}, {v(src+2,2)}")
        emit_xg_reduce(self.A, [src, src + 1], src + 2)
        self.I(f"""v_mul_f32 {v(dst)}, {hexf(-1.0/640)}, {v(src)}
        v_mul_f32 {v(src+2)}, {v(dst)}, {v(dst)}
        v_mov_b32 {v(src+3)}, {hexf(1.0/640)}
        v_fma_f32 {v(src+1)}, {v(src+1)}, {v(src+3)}, -{v(src+2)}
        v_max_f32 {v(src+1)}, 0, {v(src+1)}
        v_add_f32 {v(src+1)}, {hexf(1e-5)}, {v(src+1)}
        v_rsq_f32 {v(dst+1)}, {v(src+1)}""")

    def csum_loads(self, reg, term, base, row, mask, tag):
        self.lin(36, [term, (S_WAVE, 5 * row)], base, layer=False, tmp=37)
        self.I(f"s_mov_b64 exec, {mask:#x}")
        for k in range(5): self.vm.issue(f"buffer_load_dwordx4 {v(reg+4*k,4)}, v1, {WS}, s36 offen offset:{k*row} sc1", tag)
        self.I("s_mov_b64 exec, -1")
    def csum_part(self, reg, slots, row, mask):
        for a_, b_ in ((0, 1), (2, 3), (0, 2), (0, 4)):
            for i in range(4): self.I(f"v_add_f32 {v(reg+4*a_+i)}, {v(reg+4*a_+i)}, {v(reg+4*b_+i)}")
        self.lin(36, [(S_WAVE, row)], slots, layer=False)
        self.I(f"v_add_u32 v7, s36, v1\ns_mov_b64 exec, {mask:#x}\nds_write_b128 v7, {v(reg,4)}\ns_mov_b64 exec, -1\ns_waitcnt lgkmcnt(0)")
    def csum_final(self, reg, slots, row, dst, mask):
        self.I(f"v_add_u32 v7, {slots}, v1\ns_mov_b64 exec, {mask:#x}")
        for w in range(4): self.I(f"ds_read_b128 {v(reg+4*w,4)}, v7 offset:{w*row}")
        self.I("s_waitcnt lgkmcnt(0)")
        for a_, b_ in ((0, 1), (2, 3), (0, 2)):
            for i in range(4): self.I(f"v_add_f32 {v(reg+4*a_+i)}, {v(reg+4*a_+i)}, {v(reg+4*b_+i)}")
        self.I(f"v_add_u32 v7, {dst}, v1\nds_write_b128 v7, {v(reg,4)}\ns_mov_b64 exec, -1\ns_waitcnt lgkmcnt(0)")
    def qkv_setup(self, l0):
        lo = 0 if l0 else L.LS
        self.lin(94, [(S_I, 2 * L.KVT), (S_WAVE, L.KVT, 1, None)], L.KVB + lo, layer=False)
        self.lin(95, [(S_I, 32), (S_J, 4)], L.FL_KV + lo, layer=False)
        if not l0:
            self.lin(96, [(S_G, L.GS), (S_I, 4 * L.XTS, 0, 3), (S_WAVE, L.XTS)], L.XIN, layer=False)
            self.lin(97, [(S_G, L.GS), (S_I, 4 * 4096, 0, 3), (S_WAVE, 4096)], L.STATIN, layer=False)
            self.lin(98, [(S_I, 128), (S_WAVE, 8)], L.FL_XIN + lo, layer=False)
            self.I("v_bfe_u32 v122, v0, 1, 2\nv_lshlrev_b32 v122, 5, v122\nv_and_b32 v123, 1, v0\nv_lshl_add_u32 v122, v123, 2, v122")
    def wq_round(self, n):
        it = self.collect(lambda: (self.lin(53, [(S_WAVE, 6144)], WQ_LDS + n * 24576, layer=False),
                                   self.lin(52, [(S_J, 120 * 1024), (53, 1)], L.WQF - WQ_LDS, layer=False)))
        for k in range(5):
            if k == 4: it += S_("s_add_u32 s52, s52, 4096\ns_add_u32 s53, s53, 4096")
            if k % 4 == 0: it.append(("s", "s_mov_b32 m0, s53"))
            it.append(("v", f"buffer_load_dwordx4 v1, {WS}, s52 offen offset:{(k%4)*1024} sc1 lds", ("r", n)))
        return it
    def wkv_frags(self):
        it = self.collect(lambda: (self.lin(53, [(S_WAVE, 5 * 6144)], WQ_LDS + 5120, layer=False),
                                   self.lin(52, [(S_J, 120 * 1024), (53, 1)], L.WQF - WQ_LDS, layer=False)))
        for k in range(5):
            if k: it += S_("s_add_u32 s52, s52, 6144\ns_add_u32 s53, s53, 6144")
            it += [("s", "s_mov_b32 m0, s53"), ("v", f"buffer_load_dwordx4 v1, {WS}, s52 offen sc1 lds", "kvw")]
        return it
    QX, QWB, QACC, QSL, QSTAT, QCS = 20, 100, 148, 196, 212, 216
    def qkv_sweep(self, tiles, ks, xwait=None, filler=None, first_reads=True):
        X, WB, ACC = self.QX, self.QWB, self.QACC
        n = len(tiles)
        seq = [(k, ft) for k in ks for ft in tiles]
        D = 8 if n > 1 else 6
        NB = 12
        def rd(i):
            k, ft = seq[i]
            self.I(f"ds_read_b128 {v(WB+4*(i%NB),4)}, v{240 + k//10} offset:{((k%10)*6+ft)*1024}")
        for i in range(min(D, len(seq))): rd(i)
        for i, (k, ft) in enumerate(seq):
            if xwait and ft == tiles[0]: xwait(k)
            self.I(f"s_waitcnt lgkmcnt({min(D - 1, len(seq) - 1 - i)})")
            d = ACC + 4 * ft
            self.I(f"v_mfma_f32_16x16x32_bf16 {v(d,4)}, {v(WB+4*(i%NB),4)}, {v(X+4*k,4)}, {'0' if k == 0 else v(d,4)}")
            if i + D < len(seq): rd(i + D)
            if filler: filler(i, k, ft)
    def cs_reads(self, tiles):
        self.I(f"v_lshlrev_b32 v6, 4, v4\nv_add_u32 v6, {M_CSQ}, v6")
        for ft in tiles: self.I(f"ds_read_b128 {v(self.QCS+4*ft,4)}, v6 offset:{ft*64}")
    def phase_qkv(self, l0):
        A, vm = self.A, self.vm
        X, WB, ACC, SL, ST, CS = self.QX, self.QWB, self.QACC, self.QSL, self.QSTAT, self.QCS
        if l0:
            self.I(f"v_add_u32 v240, {WQ_LDS}, v1\nv_add_u32 v241, {WQ_LDS + 61440}, v1")
            self.I(f"""v_lshrrev_b32 v5, 2, v0
            v_mul_u32_u24 v5, 40, v5
            v_and_b32 v6, 3, v0
            v_lshl_add_u32 v5, v6, 3, v5
            s_and_b32 s36, {s(S_J)}, 1
            s_lshl_b32 s36, s36, 5
            s_add_u32 s36, s36, {KV0_LDS}
            v_add_u32 v242, s36, v5""")
            self.lin(37, [(S_J, 128)], L.FL_WQ, layer=False)
            self.I("v_min_u32 v6, 19, v0\nv_lshlrev_b32 v6, 2, v6")
            def rd(k):
                for u in range(2): self.I(f"ds_read_b64_tr_b16 {v(WB+4*(k%6)+2*u,2)}, v242 offset:{L.xk(k//5, k%5, u)*40}")
            for k in range(4): rd(k)
            for k in range(20):
                c = lambda r_: '0' if k == 0 else v(r_, 4)
                self.I(f"v_mfma_f32_16x16x32_bf16 {v(SL,4)}, v[192:195], {v(X+4*k,4)}, {c(SL)}")
                self.I(f"v_mfma_f32_16x16x32_bf16 {v(SL+4,4)}, {v(X+4*k,4)}, {v(X+4*k,4)}, {c(SL+4)}")
            self.poll2(6, 37, (253, 254), dev=True) if self.cfg.pp else self.poll(6, 37, dev=True)
            self.stamp("p0.wq")
            self.csum_loads(216, (S_J, 20 * 384), L.CSQP, 384, 0xfffff, "cs")
            dm = self.wq_round(0) + self.wq_round(1) + self.wq_round(2)
            self.emit_list(self.take(dm, 5))
            for k in range(20):
                c = lambda r_: '0' if k == 0 else v(r_, 4)
                self.I(f"s_waitcnt lgkmcnt({min(6, 2*(19-k))})")
                self.I(f"v_mfma_f32_16x16x32_bf16 {v(ACC+20,4)}, {v(WB+4*(k%6),4)}, {v(X+4*k,4)}, {c(ACC+20)}")
                if k % 2 == 0: self.emit_list(self.take(dm, 1))
                self.I(f"v_mfma_f32_16x16x32_bf16 {v(CS+20,4)}, {v(WB+4*(k%6),4)}, v[192:195], {c(CS+20)}")
                if k + 4 < 20: rd(k + 4)
            assert not dm
            self.I(f"""v_and_b32 v5, 3, v3
            v_lshrrev_b32 v6, 2, v3
            v_cmp_eq_u32 vcc, 1, v5
            v_cmp_eq_u32 s[62:63], 2, v5
            v_cndmask_b32 {v(SL+4)}, {v(SL+4)}, {v(SL+5)}, vcc
            v_cmp_eq_u32 vcc, 3, v5
            v_cndmask_b32 {v(SL+4)}, {v(SL+4)}, {v(SL+6)}, s[62:63]
            v_cmp_eq_u32 s[62:63], v6, v4
            v_cndmask_b32 {v(SL+4)}, {v(SL+4)}, {v(SL+7)}, vcc
            v_mul_f32 {v(SL)}, 0.25, {v(SL)}
            v_cndmask_b32 {v(SL+1)}, 0, {v(SL+4)}, s[62:63]""")
            self.stat_finish(SL, ST, presummed=True)
            self.I(f"""v_lshlrev_b32 v6, 4, v4
            v_add_u32 v6, {M_CSQ + 320}, v6
            s_mov_b32 exec_lo, 0x00010001
            s_mov_b32 exec_hi, 0x00010001
            ds_write_b128 v6, {v(CS+20,4)}
            s_mov_b64 exec, -1""")
        else:
            nl = [0]
            def load():
                k = nl[0]; nl[0] += 1
                if k and k % 4 == 0: self.I("s_add_u32 s96, s96, 4096")
                vm.issue(f"buffer_load_dwordx4 {v(X+4*k,4)}, v1, {WS}, s96 offen offset:{(k%4)*1024} sc1", ("x", k))
            while nl[0] < 7: load()
            self.I(f"v_add_u32 v240, {WQ_LDS}, v1\nv_add_u32 v241, {WQ_LDS + 61440}, v1")
            self.cs_reads(range(6))
            self.I("s_waitcnt lgkmcnt(0)\ns_barrier")
            sh = self.collect(lambda: self.stat_finish(SL, ST, packed=False))
            tA = self.cfg.tA
            nA = len(tA)
            def fil(i, k, ft):
                if nl[0] < 20 and i % (nA - 1) == 0 + (nA > 2): load()
                if i == 2 * nA: self.stat_loads(97, 18, SL, "stat")
                if i == 10 * nA: vm.wait("stat")
                if i >= 10 * nA: self.emit_list(sh[:2 if nA > 2 else 3]); del sh[:2 if nA > 2 else 3]
            self.qkv_sweep(tA, range(20), xwait=lambda k: vm.wait(("x", k)), filler=fil)
            self.emit_list(sh)
        self.stamp("qkv.kv")
        self.I(f"v_mov_b32 {v(ST+2)}, {v(ST+1)}")
        KA = ACC + 20; KP = 172
        done = A.newlabel("kvdone"); vt = A.newlabel("kvv"); k1 = A.newlabel("kvk1"); jn = A.newlabel("kvj")
        self.I(f"s_lshr_b32 s36, {s(S_J)}, 2\ns_xor_b32 s48, s36, {s(S_WAVE)}\ns_and_b32 s48, s48, 1\ns_cbranch_scc1 {done}")
        for i in (0, 2): self.I(f"v_pk_fma_f32 {v(KA+i,2)}, {v(ST,2)}, {v(CS+20+i,2)}, {v(KA+i,2)} op_sel_hi:[0,1,1]")
        for i in (0, 2): self.I(f"v_pk_mul_f32 {v(KA+i,2)}, {v(ST+2,2)}, {v(KA+i,2)} op_sel_hi:[0,1]")
        self.I(f"v_cvt_pk_bf16_f32 {v(KP)}, {v(KA)}, {v(KA+1)}\nv_cvt_pk_bf16_f32 {v(KP+1)}, {v(KA+2)}, {v(KA+3)}")
        self.I(f"s_and_b32 s37, {s(S_WAVE)}, 1\ns_bitcmp1_b32 {s(S_J)}, 1\ns_cbranch_scc1 {vt}")
        self.I(f"s_lshl_b32 s37, s37, 4\nv_add_u32 v6, s37, v3\ns_bitcmp1_b32 {s(S_J)}, 0\ns_cbranch_scc1 {k1}")
        self.I(f"""v_lshrrev_b32 v7, 1, v4
        v_lshlrev_b32 v7, 9, v7
        v_lshl_add_u32 v7, v6, 4, v7
        v_and_b32 v6, 1, v4
        v_lshl_add_u32 v7, v6, 3, v7
        buffer_store_dwordx2 {v(KP,2)}, v7, {WS}, s94 offen sc1
        s_branch {jn}""")
        A.L(k1)
        self.I(f"""v_lshlrev_b32 v6, 3, v6
        s_mov_b64 exec, 0xffff
        buffer_store_dwordx2 {v(KP,2)}, v6, {WS}, s94 offen offset:1024 sc1
        s_mov_b64 exec, -1
        s_branch {jn}""")
        A.L(vt)
        self.I(f"""s_lshr_b32 s36, {s(S_WAVE)}, 1
        s_lshl_b32 s36, s36, 9
        s_add_u32 s36, s36, {M_VT}
        v_lshlrev_b32 v6, 7, v4
        v_lshl_add_u32 v6, v3, 1, v6
        v_add_u32 v6, s36, v6
        ds_write_b16 v6, {v(KP)}
        ds_write_b16_d16_hi v6, {v(KP)} offset:32
        ds_write_b16 v6, {v(KP+1)} offset:64
        ds_write_b16_d16_hi v6, {v(KP+1)} offset:96
        v_lshlrev_b32 v6, 5, v3
        v_lshl_add_u32 v6, v4, 3, v6
        v_add_u32 v6, s36, v6
        ds_read_b64 {v(KP+2,2)}, v6
        s_mul_i32 s37, s37, 768
        s_add_u32 s37, s94, s37
        s_and_b32 s36, {s(S_J)}, 1
        s_lshl_b32 s36, s36, 8
        s_add_u32 s37, s37, s36
        v_and_b32 v6, 1, v4
        v_mul_u32_u24 v6, 384, v6
        v_lshl_add_u32 v6, v3, 4, v6
        v_lshrrev_b32 v7, 1, v4
        v_lshl_add_u32 v6, v7, 3, v6
        s_cmp_lg_u32 s36, 0
        s_cselect_b32 s36, 4, 99
        s_cselect_b32 exec_lo, 0x00ff00ff, -1
        v_cmp_eq_u32 vcc, s36, v3
        v_mov_b32 v7, 0x3f803f80
        s_mov_b32 exec_hi, exec_lo
        s_waitcnt lgkmcnt(0)
        v_cndmask_b32 {v(KP+2)}, {v(KP+2)}, v7, vcc
        v_cndmask_b32 {v(KP+3)}, {v(KP+3)}, v7, vcc
        buffer_store_dwordx2 {v(KP+2,2)}, v6, {WS}, s37 offen offset:1280 sc1
        s_mov_b64 exec, -1""")
        self.I(f"s_branch {jn}")
        A.L(done)
        self.I(f"v_mov_b32 v6, {BIG}\nbuffer_store_dwordx2 {v(KP,2)}, v6, {WS}, 0 offen")
        A.L(jn)
        vm.q.append("kvst")
        self.stamp("qkv.kvst")
        if l0:
            later = {}
            it = self.wq_round(3) + self.wq_round(4)
            if self.cfg.pdma == 1: it += self.prep_dma_items()
            it2 = self.prep_dma_items() if self.cfg.pdma == 2 else []
            vm.wait(("r", 2))
            self.csum_part(216, M_CSQP, 384, 0xfffff)
            self.I("s_barrier")
            def filq(i, k, ft):
                if i % 2 == 1 and (i < 20 or i % 4 == 1): self.emit_list(self.take(it, 1))
                if i == self.cfg.kvi0:
                    vm.wait("kvst")
                    self.I("s_barrier")
                    sk = A.newlabel("kvsig")
                    self.I(f"s_cmp_lg_u32 {s(S_WAVE)}, 0\ns_cbranch_scc1 {sk}")
                    self.signal(95, dev=True, val=S_TAG); vm.q.pop()
                    A.L(sk)
            self.qkv_sweep([0, 1, 2, 3, 4], range(12), filler=filq)
            vm.wait(("r", 4))
            self.I("s_barrier")
            self.csum_final(216, M_CSQP, 384, M_CSQ, 0xfffff)
            self.qkv_sweep([0, 1, 2, 3, 4], range(12, 20), filler=lambda i, k, ft: self.emit_list(self.take(it2, 1)) if i % 4 == 1 else None)
            assert not it and not it2
            self.cs_reads(range(5))
            self.emit_list(later.get(5, []))
            self.I("s_waitcnt lgkmcnt(0)")
        else:
            def filb(i, k, ft):
                if i == self.cfg.kvi:
                    self.I("s_waitcnt vmcnt(0)\ns_barrier"); vm.q = []
                    sk = A.newlabel("kvsig")
                    self.I(f"s_cmp_lg_u32 {s(S_WAVE)}, 0\ns_cbranch_scc1 {sk}")
                    self.signal(95, dev=True, val=S_TAG)
                    A.L(sk)
            self.qkv_sweep([t_ for t_ in range(5) if t_ not in tA], range(20), filler=filb)
        self.stamp("qkv.mm")
        c = math.log2(math.e) / math.sqrt(20.0)
        self.I(f"v_mul_f32 {v(ST+2)}, {hexf(c)}, {v(ST+1)}")
        for i in range(0, 20, 2): self.I(f"v_pk_fma_f32 {v(ACC+i,2)}, {v(ST,2)}, {v(CS+i,2)}, {v(ACC+i,2)} op_sel_hi:[0,1,1]")
        for i in range(0, 20, 2): self.I(f"v_pk_mul_f32 {v(ACC+i,2)}, {v(ST+2,2)}, {v(ACC+i,2)} op_sel_hi:[0,1]")
        P = 176
        for i in range(8): self.I(f"v_cvt_pk_bf16_f32 {v(P+i)}, {v(ACC+2*i)}, {v(ACC+2*i+1)}")
        self.I(f"v_cvt_pk_bf16_f32 {v(P+8)}, {v(ACC+16)}, {v(ACC+17)}\nv_mov_b32 {v(P+9)}, 0")
        self.I(f"v_cvt_pk_bf16_f32 {v(P+10)}, {v(ACC+18)}, {v(ACC+19)}\nv_mov_b32 {v(P+11)}, 0")
        self.lin(36, [(S_WAVE, AT.QST_Q, 1, None)], QST, layer=False, tmp=37)
        self.I(f"""s_and_b32 s37, {s(S_WAVE)}, 1
        s_lshl_b32 s37, s37, 4
        v_add_u32 v6, s37, v3
        v_mul_u32_u24 v7, {2*AT.QST_Q}, v4
        v_add_u32 v7, s36, v7
        v_lshl_add_u32 v5, v6, 4, v7
        v_lshl_add_u32 v6, v6, 3, v7""")
        self.I(f"""ds_write_b128 v5, {v(P,4)}
        ds_write_b128 v5, {v(P+4,4)} offset:512
        ds_write_b64 v6, {v(P+8,2)} offset:1024
        ds_write_b64 v6, {v(P+10,2)} offset:{1024+256}""")
        self.I("s_waitcnt lgkmcnt(0)\ns_barrier")
        self.stamp("qkv.epi")

    def pieces(self, n16, magic, pitch, dst, cmax=None):
        self.I(f"s_movk_i32 s52, {magic}\ns_movk_i32 s53, {pitch}\ns_add_u32 s46, s46, s44")
        for q in range(n16 // 2):
            self.I(f"""v_add_u32 v5, {64*q}, v0
            v_mul_u32_u24 v6, s52, v5
            v_lshrrev_b32 v6, 16, v6
            v_mul_u32_u24 v7, {n16}, v6
            v_sub_u32 v5, v5, v7
            v_lshrrev_b32 v7, 4, v6
            v_mul_u32_u24 v18, s32, v7
            v_bfe_u32 v7, v6, 3, 1
            v_mad_u32_u24 v18, v7, s33, v18
            v_bfe_u32 v7, v6, 2, 1
            v_mad_u32_u24 v18, v7, s34, v18
            v_and_b32 v6, 3, v6
            v_add3_u32 v18, v18, v6, s31
            v_mul_u32_u24 v18, s53, v18
            v_lshl_add_u32 v18, v5, 4, v18""")
            if cmax is not None:
                self.I(f"v_cmp_le_u32 vcc, {s(cmax)}, v5\nv_mov_b32 v7, {BIG}\nv_cndmask_b32 v7, 0, v7, vcc\nv_add_u32 v18, v18, v7")
            self.I(f"v_add_u32 {v(dst+q)}, s46, v18")
    PA = 244
    def prep_dma_items(self):
        it = []
        for q in range(7):
            it += [("s", f"s_add_u32 m0, s{72 if q < 5 else 65}, {q*1024}"), ("v", f"buffer_load_dwordx4 {v(self.PA+q)}, {s(SRD_SRC,4)}, 0 offen lds", "prep")]
        if self.cfg.ptouch:
            it += [("s", "v_lshlrev_b32 v253, 7, v0"), ("v", f"buffer_load_dword v254, v253, {WS}, s70 offen", "prep")]
        return it
    def prep_issue(self):
        A = self.A
        lab = {k: A.newlabel("pp" + k) for k in ("w2", "w1", "none", "n10", "end", "pad")}
        self.I(f"""s_lshl_b32 s30, s2, 1
        s_and_b32 s31, {s(S_WAVE)}, 1
        s_add_u32 s30, s30, s31
        s_movk_i32 s31, 192
        s_cmp_lt_u32 s2, 160
        s_cselect_b32 s31, 608, s31
        s_cmp_lt_u32 {s(S_WAVE)}, 2
        s_cselect_b32 s31, s31, 0
        s_add_u32 s30, s30, s31
        s_cmp_ge_u32 s2, 208
        s_cselect_b32 s31, 1024, 0
        s_cmp_lt_u32 {s(S_WAVE)}, 2
        s_cselect_b32 s31, s31, 0
        s_add_u32 s30, s30, s31
        s_min_u32 s31, {s(S_WAVE)}, 2
        s_mul_i32 s72, s31, 7168
        s_cmp_eq_u32 {s(S_WAVE)}, 3
        s_cselect_b32 s31, 5120, 0
        s_add_u32 s72, s72, s31
        s_add_u32 s72, s72, {PREP_LDS}
        s_cmp_lt_u32 {s(S_WAVE)}, 2
        s_cselect_b32 s65, s72, {0xffffec00 if self.cfg.pdma != 9 else 83968 - 5120}""")
        for q in range(7): self.I(f"v_mov_b32 {v(self.PA+q)}, {BIG}")
        self.I(f"s_cmp_ge_u32 s30, 928\ns_cbranch_scc1 {lab['none']}\ns_cmp_ge_u32 s30, 608\ns_cbranch_scc1 {lab['w1']}\ns_cmp_ge_u32 s30, 160\ns_cbranch_scc1 {lab['w2']}")
        self.I(f"""s_lshr_b32 s47, s30, 3          ; ks
        s_and_b32 s48, s30, 7           ; j
        s_mul_i32 s49, s47, 52
        s_lshr_b32 s49, s49, 8          ; w = ks/5
        s_mul_i32 s50, s49, 5
        s_sub_u32 s50, s47, s50         ; s
        s_mul_i32 s31, s49, 160
        s_mul_i32 s32, s50, 40
        s_cmp_gt_u32 s50, 2
        s_cselect_b32 s33, 40, 0
        s_sub_u32 s32, s32, s33
        s_cmp_eq_u32 s50, 2
        s_cselect_b32 s32, 16, s32
        s_add_u32 s31, s31, s32
        s_cmp_eq_u32 s50, 2
        s_cselect_b32 s32, 80, 8
        s_cselect_b32 s33, 40, 20
        s_cselect_b32 s34, 20, 4
        s_mov_b32 s44, 0
        s_mov_b32 s45, 0
        s_mul_i32 s46, s48, 160
        s_mul_i32 s70, s48, 20
        s_add_u32 s70, s70, s47
        s_mul_i32 s70, s70, 5120
        s_add_u32 s70, s70, {L.WOF}
        s_mov_b32 {s(SRD_SRC)}, s96
        s_mov_b32 {s(SRD_SRC+1)}, s97
        s_mov_b32 {s(SRD_SRC+2)}, {640*640*2}
        s_branch {lab['n10']}""")
        A.L(lab['w2'])
        self.I(f"""s_sub_u32 s30, s30, 160
        s_lshr_b32 s47, s30, 3          ; r = w*14+s
        s_and_b32 s48, s30, 7           ; j
        s_mul_i32 s49, s47, 37
        s_lshr_b32 s49, s49, 8
        s_mul_i32 s50, s49, 7
        s_sub_u32 s50, s47, s50         ; sp
        s_lshl_b32 s49, s49, 1          ; 2q""")
        for u in range(2):
            self.I(f"""s_cmp_gt_u32 s50, 3
            s_cselect_b32 s52, 1, 0
            s_cselect_b32 s53, 4, 0
            s_sub_u32 s53, s50, s53
            s_lshl_b32 s53, s53, 1
            s_add_u32 s53, s53, {u}
            s_cmp_eq_u32 s50, 3
            s_cselect_b32 s52, {u}, s52
            s_cselect_b32 s53, 6, s53
            s_add_u32 s52, s52, s49""")
            emit_realtile(A, 52, 53, 31 + u, 44 + u, 54)
        self.I(f"""s_lshl_b32 s31, s31, 4
        s_lshl_b32 s32, s32, 4
        s_sub_u32 s32, s32, s31
        s_mov_b32 s33, 8
        s_mov_b32 s34, 4
        s_mul_i32 s46, s48, 160
        s_mul_i32 s70, s48, 56
        s_add_u32 s70, s70, s47
        s_mul_i32 s70, s70, 5120
        s_add_u32 s70, s70, {L.W2F}
        s_mov_b32 {s(SRD_SRC)}, s100
        s_mov_b32 {s(SRD_SRC+1)}, s101
        s_mov_b32 {s(SRD_SRC+2)}, {1728*640*2}""")
        A.L(lab['n10'])
        self.pieces(10, 6554, 1280, self.PA)
        self.I(f"s_mov_b32 s69, 5\ns_branch {lab['end']}")
        A.L(lab['w1'])
        self.I(f"""s_sub_u32 s30, s30, 608
        s_lshr_b32 s47, s30, 4          ; ks
        s_and_b32 s48, s30, 15          ; j'
        s_mul_i32 s49, s47, 52
        s_lshr_b32 s49, s49, 8
        s_mul_i32 s50, s49, 5
        s_sub_u32 s50, s47, s50""")
        emit_xk(A, 49, 50, 31, 32)
        self.I("s_mov_b32 s53, 0"); emit_realtile(A, 48, 53, 46, 44, 54)
        self.I(f"""s_lshl_b32 s46, s46, 5
        s_mov_b32 s33, 8
        s_mov_b32 s34, 4
        s_mov_b32 s44, 0
        s_mov_b32 s45, 0
        s_cmp_lt_u32 s48, 12
        s_cselect_b32 s54, 14, 12
        s_mul_i32 s70, s48, 20
        s_add_u32 s70, s70, s47
        s_mul_i32 s71, s70, 448
        s_add_u32 s71, s71, {L.CS1P}
        s_mul_i32 s70, s70, 7168
        s_add_u32 s70, s70, {L.W1F}
        s_mov_b32 {s(SRD_SRC)}, s98
        s_mov_b32 {s(SRD_SRC+1)}, s99
        s_mov_b32 {s(SRD_SRC+2)}, {640*1728*2}""")
        self.pieces(14, 4682, 3456, self.PA, cmax=54)
        self.I(f"s_mov_b32 s69, 7\ns_branch {lab['end']}")
        A.L(lab['none'])
        self.I(f"s_mov_b32 s69, 0\ns_mov_b32 s70, {BIG}")
        A.L(lab['end'])
    PF = 160
    def prep_read(self):
        A = self.A; F = self.PF
        l7 = A.newlabel("pf7"); end = A.newlabel("pfe"); l0_ = A.newlabel("pf0")
        self.I(f"s_waitcnt vmcnt(0)\ns_cmp_eq_u32 s69, 0\ns_cbranch_scc1 {l0_}\ns_cmp_eq_u32 s69, 7\ns_cbranch_scc1 {l7}")
        def body(n, P):
            self.I(f"v_lshrrev_b32 v5, 2, v0\nv_and_b32 v6, 3, v0\nv_mul_u32_u24 v5, {P}, v5\nv_lshl_add_u32 v5, v6, 3, v5\nv_add_u32 v5, s72, v5")
            for ft in range(n):
                for u in range(2): self.I(f"ds_read_b64_tr_b16 {v(F+4*ft+2*u,2)}, v5 offset:{u*16*P + ft*32}")
        body(5, 160)
        self.I(f"s_add_u32 s72, s70, 4096\ns_mov_b32 s69, {BIG}\ns_mov_b32 s71, {BIG}\ns_branch {end}")
        A.L(l0_)
        self.I(f"s_mov_b32 s70, {BIG}\ns_mov_b32 s72, {BIG}\ns_mov_b32 s69, {BIG}\ns_mov_b32 s71, {BIG}\ns_branch {end}")
        A.L(l7)
        body(7, 224)
        self.I("s_add_u32 s72, s70, 4096\ns_mov_b32 s69, s72\ns_waitcnt lgkmcnt(0)")
        for i in range(4): self.I(f"v_mov_b32 v{216+i}, 0x3f803f80")
        for ft in range(7): self.I(f"v_mfma_f32_16x16x32_bf16 {v(F+28+4*ft,4)}, {v(F+4*ft,4)}, v[216:219], 0")
        for ft in range(1, 7):
            self.I(f"s_mov_b32 exec_lo, {0x00010001 << ft:#x}\ns_mov_b32 exec_hi, {0x00010001 << ft:#x}")
            for i in range(4): self.I(f"v_mov_b32 {v(F+28+i)}, {v(F+28+4*ft+i)}")
        self.I("s_mov_b64 exec, -1")
        A.L(end)
        self.I(f"v_lshlrev_b32 v220, 6, v3\nv_lshl_add_u32 v220, v4, 4, v220\nv_mov_b32 v5, {BIG}\nv_cmp_lt_u32 vcc, 6, v3\nv_cndmask_b32 v220, v220, v5, vcc\ns_waitcnt lgkmcnt(0)")
    def prep_store_items(self):
        F = self.PF
        it = [("v", f"buffer_store_dwordx4 {v(F+4*ft,4)}, v1, {WS}, s{70 if ft < 4 else 72 if ft == 4 else 69} offen offset:{(ft%4)*1024} sc1", "pst") for ft in range(7)]
        return it + [("v", f"buffer_store_dwordx4 {v(F+28,4)}, v220, {WS}, s71 offen sc1", "pst")]
    def wq_unit_addr(self):
        self.I(f"""s_lshr_b32 s47, s2, 3
        s_and_b32 s48, s2, 7
        s_mul_i32 s49, s47, 52
        s_lshr_b32 s49, s49, 8
        s_mul_i32 s50, s49, 5
        s_sub_u32 s50, s47, s50""")
        emit_xk(self.A, 49, 50, 31, 32)
        self.I(f"""s_mov_b32 s33, 8
        s_mov_b32 s34, 4
        s_mov_b32 s44, 0
        s_mov_b32 s45, 0
        s_mul_i32 s46, s48, 160
        s_mul_i32 s67, s48, 20
        s_add_u32 s67, s67, s47
        s_mul_i32 s68, s67, 384
        s_add_u32 s68, s68, {L.CSQP}
        s_mul_i32 s67, s67, 6144
        s_add_u32 s67, s67, {L.WQF}
        s_lshl_b32 s66, s48, 5
        s_add_u32 s66, s66, s47
        s_lshl_b32 s66, s66, 2
        s_add_u32 s66, s66, {L.FL_WQ}""")
        self.pieces(10, 6554, 1280, 100)
    def wq_unit_issue(self):
        for q in range(5): self.I(f"s_mov_b32 m0, {WQP_LDS + q*1024}\nbuffer_load_dwordx4 {v(100+q)}, {s(SRD_WQ,4)}, 0 offen lds")
        self.I(f"""s_mul_i32 s31, s31, 40
        s_mul_i32 s32, s32, 40
        s_add_u32 s32, s32, s31
        s_mov_b32 m0, {WQP_LDS + 5120}
        s_nop 0
        buffer_load_dwordx4 v1, {s(SRD_KV,4)}, s31 offen lds
        s_mov_b32 m0, {WQP_LDS + 6144}
        s_nop 0
        buffer_load_dwordx4 v1, {s(SRD_KV,4)}, s32 offen lds""")
    def wq_unit_finish(self):
        F = 132
        self.I(f"""v_lshrrev_b32 v5, 2, v0
        v_and_b32 v6, 3, v0
        v_mul_u32_u24 v7, 160, v5
        v_mad_u32_u24 v7, v6, 40, v7
        v_add_u32 v7, {WQP_LDS}, v7
        v_mul_u32_u24 v5, 40, v5
        v_lshl_add_u32 v5, v6, 3, v5
        s_and_b32 s36, s2, 1
        s_lshl_b32 s36, s36, 5
        s_add_u32 s36, s36, {WQP_LDS + 5120}
        v_add_u32 v5, s36, v5""")
        for ft in range(5):
            for u in range(2): self.I(f"ds_read_b64_tr_b16 {v(F+4*ft+2*u,2)}, v7 offset:{u*16*160 + ft*8}")
        for u in range(2): self.I(f"ds_read_b64_tr_b16 {v(F+20+2*u,2)}, v5 offset:{u*1024}")
        for ft in range(6):
            self.I(f"s_waitcnt lgkmcnt({2*(5-ft)})")
            if ft == 4: self.I("s_add_u32 s67, s67, 4096")
            self.I(f"buffer_store_dwordx4 {v(F+4*ft,4)}, v1, {WS}, s67 offen offset:{(ft%4)*1024} sc1")
        for ft in range(6): self.I(f"v_mfma_f32_16x16x32_bf16 {v(F+24+4*ft,4)}, {v(F+4*ft,4)}, v[192:195], 0")
        self.I("v_lshlrev_b32 v5, 4, v4\ns_mov_b32 exec_lo, 0x00010001\ns_mov_b32 exec_hi, 0x00010001")
        for ft in range(6): self.I(f"buffer_store_dwordx4 {v(F+24+4*ft,4)}, v5, {WS}, s68 offen offset:{ft*64} sc1")
        self.I("s_mov_b64 exec, -1")
    def x0_issue(self):
        self.lin(30, [(S_I, 64 * 1280), (S_WAVE, 16 * 1280)], 0, layer=False, tmp=31)
        self.lin(64, [(S_WAVE, 20480)], X0_LDS, layer=False)
        for a_ in range(4):
            self.I(f"v_add_u32 v5, {4*a_}, v4\nv_and_b32 v5, {self.cfg.xm}, v5\nv_xor_b32 v5, v5, v3\nv_lshlrev_b32 v5, 4, v5\nv_mad_u32_u24 {v(100+a_)}, v4, s54, v5")
        self.I(f"s_lshl_b32 s31, {s(S_WAVE)}, 2\nv_add_u32 v5, s31, v4\nv_and_b32 v5, {self.cfg.xm}, v5\nv_xor_b32 v5, v5, v3\nv_lshlrev_b32 v5, 4, v5\nv_mad_u32_u24 v105, v4, s54, v5")
        self.I("s_waitcnt lgkmcnt(0)")
        srd(self.A, SRD_X, 36, 2048 * 640 * 2)
        self.I(f"""s_bitcmp1_b32 {s(S_J)}, 1
        s_cselect_b32 {s(SRD_KV2)}, s42, s40
        s_cselect_b32 {s(SRD_KV2+1)}, s43, s41
        s_mov_b32 {s(SRD_KV2+2)}, {640*20*2}
        s_mov_b32 {s(SRD_KV2+3)}, 0x20000""")
        if self.cfg.fine == "p": self.stamp("p.setup")
        self.I(f"s_cmp_eq_u32 {s(S_WAVE)}, 0\ns_cbranch_scc1 L_x0done") if self.cfg.fine != "p" else None
        if self.cfg.xtouch:
            self.lin(32, [(S_I, 64 * 1280), (S_J, 10240), (S_WAVE, 8192, 1, 1)], 0, layer=False)
            self.lin(33, [(S_C, 8192, 2, 3)], 0, layer=False)
            self.I(f"""v_lshlrev_b32 v5, 7, v0
            s_cmp_eq_u32 {s(S_WAVE)}, 3
            s_cbranch_scc1 L_xt3
            buffer_load_dword v254, v5, {s(SRD_X,4)}, s32 offen
            s_branch L_xt4""")
            self.A.L("L_xt3")
            self.I(f"buffer_load_dword v254, v5, {s(SRD_KV2,4)}, s33 offen")
            self.A.L("L_xt4")
        for a_ in range(4):
            for b_ in range(5):
                self.I(f"s_add_u32 m0, s64, {(a_*5+b_)*1024}\ns_add_u32 s32, s30, {a_*5120 + b_*256}")
                self.I(f"buffer_load_dwordx4 {v(100+a_)}, {s(SRD_X,4)}, s32 offen lds")
            if self.cfg.fine == "p": self.stamp(f"p.a{a_}")
        self.lin(30, [(S_I, 64 * 1280)], 0, layer=False)
        self.lin(31, [(S_WAVE, 5120)], 0, layer=False)
        for b_ in range(5):
            self.I(f"s_add_u32 m0, s31, {X0_LDS + b_*1024}\ns_add_u32 s32, s30, s31\ns_add_u32 s32, s32, {b_*256}")
            self.I(f"buffer_load_dwordx4 v105, {s(SRD_X,4)}, s32 offen lds")
        for n in range(2):
            self.I(f"s_lshl_b32 s31, {s(S_WAVE)}, 1\ns_add_u32 s31, s31, {n}\ns_sub_u32 s31, s31, 2\ns_min_u32 s31, s31, 4")
            self.I(f"s_lshl_b32 s32, s31, 10\ns_add_u32 m0, s32, {X0_LDS}\ns_lshl_b32 s32, s31, 8\ns_add_u32 s32, s32, s30")
            self.I(f"buffer_load_dwordx4 v100, {s(SRD_X,4)}, s32 offen lds")
        if self.cfg.fine == "p": self.stamp("p.t0")
        self.I(f"s_sub_u32 s31, {s(S_WAVE)}, 1\ns_mul_i32 s52, s31, 9216\ns_add_u32 s53, s52, {KV0_LDS}")
        for k in range(9):
            if k and k % 4 == 0: self.I("s_add_u32 s52, s52, 4096\ns_add_u32 s53, s53, 4096")
            if k % 4 == 0: self.I("s_mov_b32 m0, s53")
            self.I(f"buffer_load_dwordx4 v1, {s(SRD_KV2,4)}, s52 offen offset:{(k%4)*1024} lds")
        self.A.L("L_x0done")
    def x0_read(self, X, SL):
        self.I(f"""v_lshrrev_b32 v5, 1, v4
        v_xor_b32 v5, v5, v3
        v_lshlrev_b32 v5, 4, v5
        v_and_b32 v6, 1, v4
        v_lshl_add_u32 v5, v6, 3, v5
        v_lshrrev_b32 v6, 2, v3
        v_mul_u32_u24 v6, 5120, v6
        v_and_b32 v7, 3, v3
        v_lshl_add_u32 v6, v7, 8, v6
        v_add3_u32 v104, v5, v6, s64""")
        for c in range(1, 8): self.I(f"v_xor_b32 {v(104+c)}, {c*32}, v104")
        for k in range(20):
            for u in range(2):
                x = 2 * L.xk(k // 5, k % 5, u)
                self.I(f"ds_read_b64 {v(X+4*k+2*u,2)}, {v(104 + ((x >> 5) & 7))} offset:{(x >> 8) * 1024}")
        for ft in range(5):
            self.I(f"""s_mul_i32 s36, {s(S_J)}, 160
            s_add_u32 s36, s36, {32*ft}
            s_and_b32 s37, s36, 0xe0
            s_lshr_b32 s36, s36, 8
            s_lshl_b32 s36, s36, 10
            v_xor_b32 v5, s37, v104
            v_add_u32 v5, s36, v5
            ds_read_b64 {v(XRES+2*ft,2)}, v5""")
        self.I("s_waitcnt lgkmcnt(0)")
    def x0_stats(self, X, SL):
        it = S_(f"v_mov_b32 {v(SL)}, 0\nv_mov_b32 {v(SL+1)}, 0\nv_mov_b32 {v(SL+2)}, 0\nv_mov_b32 {v(SL+3)}, 0")
        for i in range(0, 80, 2):
            it += S_(f"""v_dot2c_f32_bf16 {v(SL)}, v192, {v(X+i)}
            v_dot2c_f32_bf16 {v(SL+1)}, {v(X+i)}, {v(X+i)}
            v_dot2c_f32_bf16 {v(SL+2)}, v192, {v(X+i+1)}
            v_dot2c_f32_bf16 {v(SL+3)}, {v(X+i+1)}, {v(X+i+1)}""")
        return it + S_(f"v_pk_add_f32 {v(SL,2)}, {v(SL,2)}, {v(SL+2,2)}")

    def phase_att(self):
        A, vm, cfg = self.A, self.vm, self.cfg
        r = AT.AttRegs(20, 256)
        assert r.end <= 156
        A.L("L_att")
        pk0 = A.newlabel("kvp0")
        self.I(f"s_add_u32 s31, {s(S_L)}, {L.FL_KV}\ns_cmp_lg_u32 {s(S_WAVE)}, 0\ns_cbranch_scc1 {pk0}\nbuffer_load_dwordx4 v[156:159], v1, {WS}, s31 offen sc1")
        A.L(pk0)
        self.I(f"s_mov_b32 s59, 384\ns_mov_b32 s58, 0x3f803f80\ns_add_u32 s56, {s(S_L)}, {L.KVB}")
        AT.emit_kv_addr(A, r, 0, S_WAVE, 56)
        AT.emit_att_pre(self, r, 0, S_WAVE, QST, RED_A)
        w1w = cfg.w1warm * 128
        wo1 = self.lin_dma((S_J, 100 * 1024), L.WOF, WO_LDS, 25, 52, 53, "wo") + self.lin_dma((S_JP, 140 * 1024), L.W1F, W1A_LDS, 5, 52, 53, "wo")
        n0 = [it[0] for it in wo1].index("v") - 1
        def late_code():
            self.lin(46, [(2, 4)], L.FL_PREP, layer=False)
            assert L.GS <= 128 * 7 * 2048 and L.GS % (128 * 128) == 0
            self.lin(47, [(S_G, L.GS), (S_C, 4 * 2048), (S_WAVE, 2048)], L.GBASE, layer=False)
            self.I(f"s_cmp_eq_u32 {s(S_L)}, 0\ns_cselect_b32 s47, s47, {BIG}")
            self.I(f"v_lshrrev_b32 v6, 1, v0\nv_lshlrev_b32 v6, 6, v6\nv_and_b32 v7, 1, v0\nv_lshl_add_u32 {v(r.t+5)}, v7, 2, v6")
            self.I(f"s_mov_b32 s48, {L.FL_PREP}")
            self.lin(50, [(S_J, 280 * 1024), (S_WAVE, 70 * 1024)], L.W2F, layer=False, tmp=54)
            self.emit_list(wo1[:n0])
            self.lin(51, [(S_JP, 140 * 1024), (S_C, 4 * w1w, 4, 1), (S_WAVE, w1w)], L.W1F + W1AA * 1024, layer=False, tmp=36)
            self.I("s_getpc_b64 s[42:43]"); self.A.L("L_pc1")
            self.lin(36, [(S_C, 4), (S_WAVE, 1)], 0, layer=False, tmp=37)
            self.I(f"s_and_b32 s36, s36, 15\ns_lshl_b32 s36, s36, 11\ns_add_u32 s36, s36, L_chain-L_pc1\nv_add_u32 {v(r.pf)}, s36, {v(r.t+5)}\nv_min_u32 {v(r.pf)}, L_end-L_pc1, {v(r.pf)}")
            self.lin(44, [(S_G, L.GS), (S_I, 4 * L.XTS, 0, 3), (S_J, 5120, 1, None)], L.OFB, layer=False)
            self.lin(45, [(S_J, 8, 0, 1), (S_WAVE, 256), (44, 1)], 2048, layer=False)
            self.I(f"v_bfe_u32 v6, v0, 4, 1\nv_lshrrev_b32 {v(r.t+3)}, 5, v0\nv_mul_u32_u24 v6, {L.XTS}, v6\nv_lshlrev_b32 {v(r.t+4)}, 4, v3\nv_add3_u32 {v(r.t+4)}, {v(r.t+4)}, v6, s45")
            self.lin(45, [(S_J, 3072, 0, 1), (S_WAVE, 1024, 1, None), (S_WAVE, 512, 0, 1), (44, 1)], 0, layer=False)
            self.I(f"v_lshlrev_b32 {v(r.t+3)}, 8, {v(r.t+3)}\nv_lshl_add_u32 {v(r.t+3)}, v3, 4, {v(r.t+3)}\nv_add3_u32 {v(r.t+3)}, {v(r.t+3)}, v6, s45")
            self.flag_x_off(L.FL_O, 49)
            self.I(f"s_mov_b32 s62, {hexf(2.0**-60)}\nv_mov_b32 {v(r.t+7)}, {hexf(2.0**60)}\nv_mov_b32 {v(r.t+6)}, 0x203")
            self.oproj_setup()
            self.mlp1_setup()
        raw = self.collect(late_code); wo1 = wo1[n0:]
        late = []
        for it in raw:
            if late and (it[1].startswith("s_cselect") or it[1].endswith(":")): late[-1].append(it)
            else: late.append([it])
        self.w2_items = self.load_wfrags([w2_reg(k) for k in range(70)], 50, "w2")
        w2a = self.take(self.w2_items, W2A)
        t16 = lambda sg, step, tag: [("v", f"buffer_load_dword v5, {v(r.t+5)}, {WS}, s{sg} offen", tag), ("s", f"s_add_u32 s{sg}, s{sg}, {step}")]
        warm = [t16(51, 2048, "pf51") for _ in range(-(-w1w // 2048))]
        p1 = []
        for n in range(63):
            p1 += self.take(w2a if (n % 2 == 0 and w2a) or not wo1 else wo1, 1)
            if n >= cfg.wstart and (n - cfg.wstart) % cfg.wstep == 0 and warm: p1 += warm.pop(0)
        p1 += w2a + wo1 + sum(warm, [])
        pk = A.newlabel("kvp")
        self.I(f"s_cmp_lg_u32 {s(S_WAVE)}, 0\ns_cbranch_scc1 {pk}")
        self.poll(1, 31, dev=True, wide=True, pre=True)
        self.I(f"""v_cmp_ne_u32 vcc, 0, v156
        s_lshl_b32 s36, {s(S_G)}, 3
        v_mov_b32 v6, {M_MODE}
        s_lshr_b64 s[64:65], vcc, s36
        s_and_b32 s64, s64, 0xff
        s_cselect_b32 s64, 1, {1 if cfg.force_global else 0}
        v_mov_b32 v7, s64
        ds_write_b32 v6, v7
        s_waitcnt lgkmcnt(0)""")
        A.L(pk)
        self.I("s_barrier")
        self.stamp("kv.poll")
        pf_ = A.newlabel('pfl'); ok = A.newlabel("prepok"); again = A.newlabel("prepagain"); l1 = A.newlabel("l1skip"); l2 = A.newlabel("l1skip")
        chk = S_(f"s_cmp_lg_u32 {s(S_L)}, 0\ns_cbranch_scc1 {l2}\ns_mov_b32 s35, 0\n{again}:\ns_waitcnt vmcnt(0)")
        chk += S_("\n".join(f"v_xor_b32 v{156+k}, {s(S_TAG)}, v{156+k}" for k in range(4)))
        chk += S_(f"""v_or3_b32 v156, v156, v157, v158
        v_or_b32 v156, v156, v159
        v_cmp_lt_u32 vcc, 7, v156
        s_add_u32 s35, s35, 1
        s_cmp_gt_u32 s35, 0x100000
        s_cbranch_scc1 {ok}
        s_cbranch_vccz {ok}
        buffer_load_dwordx4 v[156:159], v1, {WS}, s48 offen sc1
        s_branch {again}
        {ok}:
        {l2}:""")
        self.loops[again] = 0
        pos = lambda n: (1 + n // 16, n % 16)
        ev = {cfg.pflag: S_(f"s_cmp_lg_u32 {s(S_L)}, 0\ns_cbranch_scc1 {l1}\ns_waitcnt vmcnt(0)\ns_barrier\ns_cmp_lg_u32 {s(S_WAVE)}, 0\ns_cbranch_scc1 {pf_}\nv_mov_b32 v5, {s(S_TAG)}\ns_mov_b64 exec, 1\nbuffer_store_dword v5, off, {WS}, s46 sc1\ns_mov_b64 exec, -1\n{pf_}:\n{l1}:"),
              pos(cfg.pchk - 2): [("v", f"buffer_load_dwordx4 v[156:159], v1, {WS}, s48 offen sc1", "prepfl")],
              pos(cfg.pchk): chk}
        for n_, it_ in enumerate(self.prep_store_items()): ev[(0, cfg.pst * n_)] = [it_]
        ev2 = {cfg.ct2: [("v", f"global_load_dword v5, {v(r.pf)}, s[42:43]", "ct")]}
        for key in cfg.tpos: ev2.setdefault(key, []).extend(t16(47, 128 * 2048, "touch"))
        AT.emit_att_main(self, r, 0, S_WAVE, QST, RED_A, 4, "sc1", cfg.nf, ev, ev2, p1, pos(cfg.pchk + 1), late)
        A.L("L_chain")
        vm.wait_all()
        self.stamp("att.main")
        self.I(f"v_mov_b32 v6, {M_BAD}\nds_read_b64 {v(r.Q2[0],2)}, v6")
        AT.emit_att_finish(self, r, 4, r.t + 3, r.t + 4, "", 2 * L.XTS)
        self.I(f"v_readfirstlane_b32 {s(S_MODE)}, {v(r.Q2[0]+1)}")
        self.stamp("att.fin")
        nb = A.newlabel("nobad"); bd = A.newlabel("bad")
        if self.cfg.force_bad: self.I(f"s_and_b32 s64, {s(S_WAVE)}, 1\ns_mov_b32 s65, 0")
        self.emit_list(self.take(self.w2_items, self.cfg.fin_w2))
        self.I(f"""s_cmp_lg_u32 {s(S_RETRY)}, 0
        s_cselect_b64 s[64:65], 0, s[64:65]
        s_cmp_lg_u64 s[64:65], 0
        s_cbranch_scc1 {bd}""")
        if self.cfg.diag != "noack": vm.wait("st")
        self.I(f"s_cmp_lg_u32 s57, 0\ns_cbranch_scc1 {nb}")
        self.signal(49); vm.q.pop()
        self.I(f"s_mov_b32 s57, {BIG}\ns_branch {nb}")
        A.L(bd)
        self.I("ds_write_b32 v6, v6")
        A.L(nb)
        self.I(f"s_waitcnt lgkmcnt(0)\ns_barrier\nds_read_b32 v7, v6")
        self.w1a = self.lin_dma((S_JP, 140 * 1024), L.W1F + W1AA * 1024, W1A_LDS + W1AA * 1024, 9, 46, 47, "w1")
        self.I(f"s_waitcnt lgkmcnt(0)\nv_readfirstlane_b32 s36, v7\ns_cmp_lg_u32 s36, 0\ns_cbranch_scc1 L_slow")
        self.I(f"s_mov_b32 {s(S_RETRY)}, 0")
        keep = self.A; A2 = Asm(); A2.uid = 100000; self.A = A2
        A2.L("L_slow")
        self.I(f"s_mov_b32 s69, {BIG}\ns_mov_b32 s70, {BIG}\ns_mov_b32 s71, {BIG}\ns_mov_b32 s72, {BIG}\nv_mov_b32 v220, 0")
        self.I(f"s_mov_b32 {s(S_RETRY)}, 1\ns_waitcnt vmcnt(0)\ns_barrier\nv_mov_b32 v7, 0\nds_write_b32 v6, v7")
        if self.cfg.diag == "att2": self.I("s_waitcnt lgkmcnt(0)\ns_barrier\ns_branch L_att")
        AT.emit_kv_addr(A2, r, 0, S_WAVE, 56)
        for k in range(AT.NT):
            for it in AT.kv_items(r, 4, "sc1", k): self.I(it[1])
            if k % 8 == 7: self.I("s_waitcnt vmcnt(0)")
        AT.emit_att_truemax(self, r, 0, S_WAVE, QST, RED_A)
        self.I("s_branch L_att")
        self.A = keep; self.slow = A2.ins
        self.emit_list(self.take(self.w1a, self.cfg.s1_w1a))

    def oproj_setup(self):
        self.lin(30, [(S_G, L.GS), (S_I, 4 * L.XTS, 0, 3), (S_WAVE, L.XTS)], L.OFB, layer=False)
        self.resid_setup(L.XMID, L.STATMID, L.FL_X1)
        self.lin(33, [(S_I, 128)], L.FL_O)
    def phase_oproj(self):
        vm = self.vm
        X, WB, ACC = 256, 68, 108
        sk = self.A.newlabel("cs1l")
        self.I(f"s_cmp_lg_u32 {s(S_L)}, 0\ns_cbranch_scc1 {sk}")
        self.csum_loads(24, (S_JP, 20 * 448), L.CS1P, 448, 0xfffffff, "cs")
        self.A.L(sk)
        self.I("v_bfe_u32 v66, v0, 2, 2\nv_lshlrev_b32 v66, 5, v66\nv_and_b32 v67, 3, v0\nv_lshl_add_u32 v66, v67, 2, v66")
        self.I(f"v_add_u32 v64, {WO_LDS}, v1\nv_add_u32 v65, {WO_LDS + 51200}, v1")
        self.I("v_and_b32 v6, 31, v0\nv_lshlrev_b32 v6, 2, v6")
        self.poll2(6, 33, (5, 7)) if self.cfg.pp else self.poll(6, 33)
        def load(k):
            if k and k % 4 == 0: self.I("s_add_u32 s30, s30, 4096")
            vm.issue(f"buffer_load_dwordx4 {R(X+4*k,4)}, v1, {WS}, s30 offen offset:{(k%4)*1024} sc1", ("x", k))
        nl = 0
        while nl < 7: load(nl); nl += 1
        self.stamp("o.poll")
        D, NB = self.cfg.odepth, 10
        nxt = []
        ow2 = self.take(self.w2_items, self.cfg.o_w2)
        def rd(i): self.I(f"ds_read_b128 {v(WB+4*(i%NB),4)}, v{64 + i//50} offset:{(i%50)*1024}")
        for i in range(D): rd(i)
        for i in range(100):
            k, ft = divmod(i, 5)
            if ft == 0: vm.wait(("x", k))
            self.I(f"s_waitcnt lgkmcnt({min(D - 1, 99 - i)})")
            d = ACC + 4 * ft
            self.I(f"v_mfma_f32_16x16x32_bf16 {v(d,4)}, {v(WB+4*(i%NB),4)}, {R(X+4*k,4)}, {'0' if k == 0 else v(d,4)}")
            if i + D < 100: rd(i + D)
            if i % 4 != 1 and i >= 8 and nxt: self.emit_list(nxt.pop(0))
            if i % 4 == 1:
                if nl < 20: load(nl); nl += 1
                elif self.w1a: self.emit_list(self.take(self.w1a, 1))
                else: self.emit_list(self.take(ow2, 1))
        self.emit_list(self.w1a + ow2 + sum(nxt, []))
        self.stamp("o.mm")
        self.resid_epilogue(ACC)
        self.I("s_barrier")
        b1 = self.cfg.b1n
        self.window(self.lin_dma((S_JP, 140 * 1024), L.W1F + 56 * 1024, W1B_LDS, b1, 52, 53, "w1b"), n1=self.cfg.s2_n1)
        self.w1b = self.lin_dma((S_JP, 140 * 1024), L.W1F + (56 + 4 * b1) * 1024, W1B_LDS + 4 * b1 * 1024, 21 - b1, 52, 53, "w1b")
        self.kbar = (56 + 4 * b1) // 7 - 1
        sk = self.A.newlabel("cs1a")
        self.I(f"s_cmp_lg_u32 {s(S_L)}, 0\ns_cbranch_scc1 {sk}")
        self.csum_part(24, M_CS1P, 448, 0xfffffff)
        self.A.L(sk)
        self.stamp("o.epi")

    def mlp1_setup(self):
        for e in range(2):
            self.lin(82 + e, [(S_IP, 8, 0, 1), (S_WAVE, 2)], e, layer=False)
            self.lin(80 + e, [(82 + e, L.XTS), (S_G, L.GS)], L.XMID, layer=False)
            self.lin(84 + e, [(82 + e, L.HTS), (S_G, L.GS), (S_JP, 7168, 1, None)], L.HFB, layer=False)
            self.lin(86 + e, [(S_JP, 4096, 0, 1), (84 + e, 1)], 0, layer=False)
            self.I(f"s_and_b32 s36, {s(S_JP)}, 1\ns_lshl_b32 s36, s36, 3\ns_add_u32 s{84+e}, s{84+e}, s36")
            self.lin(82 + e, [(82 + e, 4096), (S_G, L.GS)], L.STATMID, layer=False)
        self.lin(88, [(S_IP, 256), (S_WAVE, 128, 1, None), (S_JP, 8), (S_WAVE, 4, 0, 1)], L.FL_H)
        self.lin(89, [(S_IP, 256), (S_WAVE, 128, 1, None), (S_WAVE, 16, 0, 1)], L.FL_X1)
        self.I(f"s_mov_b32 s90, {hexf(math.log2(math.e))}\ns_mov_b32 s91, s90\ns_mov_b32 s92, {hexf(math.sqrt(0.5))}\ns_mov_b32 s93, s92")
    def phase_mlp1(self):
        A, vm = self.A, self.vm
        ACC, SL, ST, AD, XR, NXR, WB = 20, 76, 108, 116, 256, 8, 320
        self.poll2(66, 89, (5, 6))
        self.I(f"""v_add_u32 {v(AD)}, {W1A_LDS}, v1
        v_add_u32 {v(AD+1)}, {W1B_LDS}, v1
        v_add_u32 {v(AD+2)}, {W1B_LDS + 8*7168}, v1
        v_lshlrev_b32 {v(AD+3)}, 4, v4
        v_add_u32 {v(AD+3)}, {M_CS1}, {v(AD+3)}""")
        nxt = self.units(self.collect(self.mlp2_setup))
        def xr(k, e): return XR + 8 * (k % NXR) + 4 * e
        def load(k):
            for e in range(2):
                if k and k % 4 == 0: self.I(f"s_add_u32 s{80+e}, s{80+e}, 4096")
                vm.issue(f"buffer_load_dwordx4 {R(xr(k,e),4)}, v1, {WS}, s{80+e} offen offset:{(k%4)*1024} sc1", ("x", k))
        def wread(k, ft): return f"ds_read_b128 {R(WB + 28*(k%2) + 4*ft, 4)}, {v(AD + k//8)} offset:{(k%8)*7168 + ft*1024}"
        PD = 5
        nl = 0
        while nl < 4: load(nl); nl += 1
        self.I("s_barrier")
        self.stamp("x1.poll")
        w2_in_loop = self.take(self.w2_items, 32 - self.cfg.fin_w2 - self.cfg.o_w2)
        sl_items = []
        for e in range(2):
            for n in range(4):
                sl_items.append(("v", f"buffer_load_dwordx4 {v(SL+16*e+4*n,4)}, v1, {WS}, s{82+e} offen offset:{n*1024} sc1", "stat"))
        def stat_code():
            for e in range(2):
                self.stat_finish(SL + 16 * e, ST + 4 * e, packed=False)
                self.I(f"v_mov_b32 {v(ST+4*e+2)}, {v(ST+4*e+1)}")
        sh = self.collect(stat_code) if self.cfg.m1sh else []
        for ft in range(7): self.I(wread(0, ft))
        for k in range(20):
            vm.wait(("x", k))
            if k == self.kbar:
                vm.wait("w1b"); self.I("s_barrier")
            if k == 16 and sh: vm.wait("stat")
            self.I("s_waitcnt lgkmcnt(0)")
            n = 0
            for ft in range(7):
                for e in range(2):
                    d = ACC + 28 * e + 4 * ft
                    self.I(f"v_mfma_f32_16x16x32_bf16 {v(d,4)}, {R(WB+28*(k%2)+4*ft,4)}, {R(xr(k,e),4)}, {'0' if k == 0 else v(d,4)}")
                    if k + 1 < 20 and n < 7: self.I(wread(k + 1, n))
                    if n == 7 and nl < min(k + PD, 20): load(nl); nl += 1
                    if n == 9 and nl < min(k + 1 + PD, 20): load(nl); nl += 1
                    if n == 11 or (n == 8 and (nl == 20 or k % 2 == 0 or (self.w1b and self.kbar < 13))):
                        if self.w1b: self.emit_list(self.take(self.w1b, 1))
                        elif sl_items: self.emit_list(self.take(sl_items, 1))
                        else: self.emit_list(self.take(w2_in_loop, 1))
                    if n == 5 and nl == 20: self.emit_list(self.take(w2_in_loop, 1))
                    if k >= 16 and sh: self.emit_list(sh[:2]); sh = sh[2:]
                    if 4 <= k < 16 and nxt: self.emit_list(nxt.pop(0))
                    n += 1
            if k == 3:
                sk = A.newlabel("cs1b")
                self.I(f"s_cmp_lg_u32 {s(S_L)}, 0\ns_cbranch_scc1 {sk}")
                self.csum_final(120 - 4 * 0, M_CS1P, 448, M_CS1, 0xfffffff) if False else self.csum_final(SL + 16, M_CS1P, 448, M_CS1, 0xfffffff)
                A.L(sk)
            assert k < self.kbar - 2 or not self.w1b
            if self.cfg.fine == "m" and k in (0, 4, 9, 14): self.stamp(f"m1.k{k}")
        assert not sh and not sl_items and not nxt
        self.w2_items = w2_in_loop + self.w2_items
        self.stamp("m1.mm")
        self.I("s_barrier")
        if not self.cfg.m1sh:
            vm.wait("stat"); stat_code()
        CB = SL; T = 120; PK = [[128, 116], [92, 96]]
        def cbread(ft):
            b = CB + 8 * (ft % 2)
            self.I(f"ds_read_b128 {v(b,4)}, v7 offset:{ft*64}\nds_read_b128 {v(b+4,4)}, v7 offset:{448+ft*64}")
        self.I(f"v_mov_b32 v7, {v(AD+3)}")
        cbread(0)
        if self.cfg.fine == "m": self.stamp("m1.stat")
        for ft in range(7):
            ch = [(e, h) for e in range(2) for h in range(2)]
            D = lambda c: ACC + 28 * c[0] + 4 * ft + 2 * c[1]
            Tt = lambda c: T + 4 * c[0] + 2 * c[1]
            b = CB + 8 * (ft % 2); q = ft // 2
            self.I("s_waitcnt lgkmcnt(0)")
            if ft + 1 < 7: cbread(ft + 1)
            for c in ch: self.I(f"v_pk_fma_f32 {v(D(c),2)}, {v(ST+4*c[0],2)}, {v(b+2*c[1],2)}, {v(D(c),2)} op_sel_hi:[0,1,1]")
            for c in ch: self.I(f"v_pk_fma_f32 {v(D(c),2)}, {v(D(c),2)}, {v(ST+4*c[0]+2,2)}, {v(b+4+2*c[1],2)} op_sel_hi:[1,0,1]")
            for c in ch: self.I(f"v_pk_fma_f32 {v(Tt(c),2)}, {v(D(c),2)}, s[90:91], -0.5 op_sel_hi:[1,1,0]")
            for c in ch: self.I(f"v_exp_f32 {v(Tt(c))}, {v(Tt(c))}\nv_exp_f32 {v(Tt(c)+1)}, {v(Tt(c)+1)}")
            for c in ch: self.I(f"v_pk_add_f32 {v(Tt(c),2)}, {v(Tt(c),2)}, s[92:93]")
            for c in ch: self.I(f"v_pk_fma_f32 {v(Tt(c),2)}, {v(Tt(c),2)}, {v(Tt(c),2)}, 0.5 op_sel_hi:[1,1,0]")
            for c in ch: self.I(f"v_rcp_f32 {v(Tt(c))}, {v(Tt(c))}\nv_rcp_f32 {v(Tt(c)+1)}, {v(Tt(c)+1)}")
            for c in ch: self.I(f"v_pk_fma_f32 {v(D(c),2)}, {v(D(c),2)}, {v(Tt(c),2)}, {v(D(c),2)} neg_lo:[1,0,0] neg_hi:[1,0,0]")
            for c in ch: self.I(f"v_cvt_pk_bf16_f32 {v(PK[c[0]][q%2]+2*(ft%2)+c[1])}, {v(D(c))}, {v(D(c)+1)}")
            if ft % 2 == 1:
                for e in range(2): vm.issue(f"buffer_store_dwordx4 {v(PK[e][q%2],4)}, v1, {WS}, s{86+e} offen offset:{q*1024} {self.cfg.hst}", "st")
            elif ft == 6:
                for e in range(2): vm.issue(f"buffer_store_dwordx2 {v(PK[e][q%2],2)}, v1, {WS}, s{84+e} offen offset:3072 {self.cfg.hst}", "st")
            elif ft < self.cfg.mish_ld:
                self.emit_list(self.take(self.w2_items, 2))
        if self.cfg.fine == "m": self.stamp("m1.mish")
        self.n_left = sum(1 for it in self.w2_items if it[0] == "v")
        self.wqa = self.lin_dma((S_J, 120 * 1024), L.WQF, WQ_LDS, 30, 52, 53, "wq")
        self.window(self.w2_items + self.take(self.wqa, self.cfg.s3_wq), n1=self.cfg.s3_n1, fl=88)
        self.stamp("m1.epi")

    def mlp2_setup(self):
        NS = 14
        for p in range(4):
            self.I(f"s_add_u32 s37, {s(S_WAVE)}, {p+1}\ns_and_b32 s37, s37, 3")
            self.lin(44 + p, [(37, 5120)], RED_K, layer=False)
            self.lin(30 + p, [(37, L.HTS), (S_G, L.GS), (S_I, 4 * L.HTS, 0, 3), (S_WAVE, NS * 1024)], L.HFB, layer=False)
        self.resid_setup(L.XIN, L.STATIN, L.FL_XIN + L.LS)
        self.lin(48, [(S_I, 128), (S_WAVE, 32)], L.FL_H)
    def phase_mlp2(self):
        A, vm = self.A, self.vm
        NS, XR, NR, accs, stage, PD, P0 = 14, 276, 25, [20, 40], 60, self.cfg.pd2, 6
        fine = self.cfg.fine == "h"
        self.I("v_and_b32 v120, 7, v0\nv_lshlrev_b32 v120, 2, v120")
        self.poll2(120, 48, (5, 121))
        nxt = self.units(self.collect(lambda: self.qkv_setup(False)))
        self.stamp("h.poll")
        if self.cfg.wb:
            sk = A.newlabel("wb")
            self.I(f"s_and_b32 s36, {s(S_C)}, {self.cfg.wb - 1}\ns_or_b32 s36, s36, {s(S_WAVE)}\ns_cbranch_scc1 {sk}\nbuffer_wbl2 sc1")
            A.L(sk)
        items = [(p, st) for p in range(4) for st in range(NS)]
        def xr(k): return XR + 4 * (k % NR)
        def load(k):
            p, st = items[k]
            if st % 4 == 0: self.I(f"s_add_u32 s34, s{30+p}, {(st//4)*4096}")
            vm.issue(f"buffer_load_dwordx4 {R(xr(k),4)}, v1, {WS}, s34 offen offset:{(st%4)*1024} {self.cfg.hld}", ("x", k))
        nl = 0
        while nl < P0: load(nl); nl += 1
        NM = 5 * NS; nwq = 0
        for k, (p, st) in enumerate(items):
            acc = accs[p % 2]
            if st == 0:
                fill = {}
                T0, T1 = stage + 20 * (p % 2), stage + 20 * ((p + 1) % 2)
                if p > 0:
                    prev = accs[(p - 1) % 2]
                    fill.setdefault(0, []).append(f"v_add_u32 v7, s{44+p-1}, v1")
                    if p > 1: fill.setdefault(3, []).append("s_waitcnt lgkmcnt(0)")
                    for ft in range(5):
                        m = 4 + 5 * ft
                        if p > 1:
                            for n in range(4): fill.setdefault(m + n // 2, []).append(f"v_add_f32 {v(T1+4*ft+n)}, {v(T1+4*ft+n)}, {v(prev+4*ft+n)}")
                        fill.setdefault(m + 2, []).append(f"ds_write_b128 v7, {v((T1 if p > 1 else prev)+4*ft,4)} offset:{ft*1024}")
                    fill.setdefault(38, []).append(f"s_waitcnt lgkmcnt(0)\ns_barrier\nv_add_u32 v6, s{44+p}, v1")
                    for ft in range(5): fill.setdefault(40 + 2 * ft, []).append(f"ds_read_b128 {v(T0+4*ft,4)}, v6 offset:{ft*1024}")
            vm.wait(("x", k))
            if fine and st == 0: self.stamp(f"k.g{p}")
            for ft in range(5):
                c = "0" if st == 0 else v(acc + 4 * ft, 4)
                self.I(f"v_mfma_f32_16x16x32_bf16 {v(acc+4*ft,4)}, {R(w2_reg(5*st+ft),4)}, {R(xr(k),4)}, {c}")
                for x in fill.get(5 * st + ft, []): self.I(x)
                if ft == 1 and k % 2 == 0 and nl < min(k + PD, len(items)): load(nl); nl += 1
                if ft == 3 and k >= 4 and nxt: self.emit_list(nxt.pop(0))
            if nl < min(k + 1 + PD, len(items)): load(nl); nl += 1
            elif k == len(items) - 10 and self.cfg.wb2:
                sk = A.newlabel("wb")
                self.I(f"s_and_b32 s36, {s(S_C)}, {self.cfg.wb2 - 1}\ns_or_b32 s36, s36, {s(S_WAVE)}\ns_cbranch_scc1 {sk}\ns_cmp_eq_u32 {s(S_L)}, 0\ns_cbranch_scc1 {sk}\nbuffer_wbl2 sc1")
                A.L(sk)
            elif nl == len(items) and nwq < self.cfg.wqn: self.emit_list(self.take(self.wqa, 2)); nwq += 2
        if fine: self.stamp("k.mend")
        self.I("s_waitcnt lgkmcnt(0)")
        for i in range(0, 20, 2): self.I(f"v_pk_add_f32 {v(accs[1]+i,2)}, {v(accs[1]+i,2)}, {v(stage+20+i,2)}")
        self.stamp("m2.mm")

    def init_lds_consts(self):
        A, vm = self.A, self.vm
        self.I("s_mov_b32 s53, 0"); emit_realtile(A, S_JP, 53, 54, 56, 58)
        self.I("s_mov_b32 s53, 6"); emit_realtile(A, S_JP, 53, 55, 57, 58)
        self.I(f"""s_lshl_b32 s54, s54, 5
        v_mov_b32 v6, s57
        v_cmp_lt_u32 vcc, 23, v0
        v_cndmask_b32 v6, 0, v6, vcc
        v_add_u32 v6, v6, v2""")
        vm.issue(f"buffer_load_dwordx2 v[252:253], v6, s[12:15], s54 offen", "b1")
    def init_lds_finish(self):
        self.I(f"""v_lshlrev_b32 v20, 16, v252
        v_and_b32 v21, 0xffff0000, v252
        v_lshlrev_b32 v22, 16, v253
        v_and_b32 v23, 0xffff0000, v253
        v_add_u32 v6, {M_B1}, v1
        s_mov_b64 exec, 0x0fffffff
        ds_write_b128 v6, v[20:23]
        s_mov_b64 exec, -1
        v_mov_b32 v6, {M_BAD}
        v_mov_b32 v7, 0
        ds_write_b32 v6, v7""")

def build_main(cfg):
    G = Gen(cfg); A = G.A; vm = G.vm
    Gen.cold = []
    G.I("s_cmp_ge_u32 s2, 256\ns_cbranch_scc1 L_end")
    if cfg.ctouch:
        G.I(f"s_cmp_ge_u32 s2, {8 * cfg.ctouch}\ns_cbranch_scc1 L_noct\ns_getpc_b64 s[62:63]")
        A.L("L_pc0")
        G.I(f"""s_lshr_b32 s30, s2, 3
        s_and_b32 s30, s30, 1
        s_lshl_b32 s30, s30, 15
        v_lshlrev_b32 v5, 7, v0
        v_add_u32 v5, s30, v5
        v_min_u32 v5, L_codeend-L_pc0-4, v5
        global_load_dword v255, v5, s[62:63]""")
        A.L("L_noct")
    G.I(f"""
    s_load_dwordx8 s[36:43], s[0:1], 0
    s_load_dwordx2 s[96:97], s[0:1], 32       ; wo
    s_load_dwordx2 s[98:99], s[0:1], 48       ; w1
    s_load_dwordx2 s[56:57], s[0:1], 56       ; b1
    s_load_dwordx2 s[100:101], s[0:1], 64     ; w2
    s_load_dwordx2 s[58:59], s[0:1], 72       ; out
    s_load_dwordx2 s[60:61], s[0:1], 88       ; ws
    v_lshrrev_b32 v2, 6, v0
    v_and_b32 v0, 63, v0
    v_readfirstlane_b32 {s(S_WAVE)}, v2
    v_lshlrev_b32 v1, 4, v0
    v_lshlrev_b32 v2, 3, v0
    v_and_b32 v3, 15, v0
    v_lshrrev_b32 v4, 4, v0
    s_and_b32 {s(S_G)}, s2, 7
    s_lshr_b32 {s(S_C)}, s2, 3
    s_lshl_b32 {s(S_I)}, {s(S_G)}, 2
    s_lshr_b32 s30, {s(S_C)}, 3
    s_add_u32 {s(S_I)}, {s(S_I)}, s30
    s_and_b32 {s(S_J)}, {s(S_C)}, 7
    s_lshl_b32 {s(S_IP)}, {s(S_G)}, 1
    s_lshr_b32 s30, {s(S_C)}, 4
    s_add_u32 {s(S_IP)}, {s(S_IP)}, s30
    s_and_b32 {s(S_JP)}, {s(S_C)}, 15
    s_mov_b32 {s(S_L)}, 0
    s_mov_b32 {s(S_MODE)}, 1
    s_mov_b32 {s(S_RETRY)}, 0
    s_getreg_b32 {s(S_TAG)}, hwreg(HW_REG_XCC_ID, 0, 3)
    """)
    if cfg.prof: G.I("s_mov_b32 s77, 0\nv_mov_b32 v19, 0\ns_memrealtime s[78:79]\ns_waitcnt lgkmcnt(0)\nv_writelane_b32 v19, s78, 62")
    G.stamp("start")
    G.I(f"s_cmp_lt_u32 s2, 160\ns_cselect_b32 s73, 0, 1\ns_or_b32 s73, s73, {s(S_WAVE)}\ns_cbranch_scc1 L_nowq1")
    G.wq_unit_addr()
    G.I("s_waitcnt lgkmcnt(0)")
    srd(A, SRD_WQ, 38, 640 * 640 * 2)
    G.I(f"""s_bitcmp1_b32 s2, 1
    s_cselect_b32 {s(SRD_KV)}, s42, s40
    s_cselect_b32 {s(SRD_KV+1)}, s43, s41
    s_mov_b32 {s(SRD_KV+2)}, {640*20*2}
    s_mov_b32 {s(SRD_KV+3)}, 0x20000""")
    G.wq_unit_issue()
    A.L("L_nowq1")
    G.I("s_movk_i32 s54, 1280")
    G.x0_issue()
    G.I(f"s_load_dword {s(S_EPOCH)}, s[60:61], {L.EPOCH}")
    srd(A, 4, 60, L.WS_USED); srd(A, 8, 58, 2048 * 640 * 2); srd(A, 12, 56, 1728 * 2); srd(A, SRD_SRC, 96, 640 * 640 * 2)
    G.I("v_mov_b32 v192, 0x3f803f80\nv_mov_b32 v193, 0x3f803f80\nv_mov_b32 v194, 0x3f803f80\nv_mov_b32 v195, 0x3f803f80")
    G.I(f"""s_cmp_ge_u32 s2, 160
    s_cselect_b32 s36, 0, 1
    s_or_b32 s36, s36, {s(S_WAVE)}
    s_cbranch_scc1 L_notouch
    s_sub_u32 s36, s2, 160
    s_lshl_b32 s37, s36, 13
    s_add_u32 s37, s37, {L.KVB}
    s_cmp_eq_u32 s36, {2 * L.LS // 8192 + 1}
    s_cselect_b32 s37, {L.FL_PREP}, s37
    s_cmp_gt_u32 s36, {2 * L.LS // 8192 + 1}
    s_cbranch_scc1 L_notouch
    v_lshlrev_b32 v5, 7, v0
    buffer_load_dword v254, v5, {WS}, s37 offen""")
    A.L("L_notouch")
    G.init_lds_consts()
    G.I(f"s_waitcnt lgkmcnt(0)\ns_mul_i32 {s(S_EPOCH)}, {s(S_EPOCH)}, 1664525\ns_add_u32 {s(S_EPOCH)}, {s(S_EPOCH)}, 1013904223")
    G.I(f"s_and_b32 s36, {s(S_EPOCH)}, 0xfffffff8\ns_or_b32 {s(S_TAG)}, {s(S_TAG)}, s36")
    G.stamp("p0.issue")
    G.prep_issue()
    G.I("s_cmp_lg_u32 s73, 0\ns_cbranch_scc1 L_nowq2\ns_waitcnt vmcnt(1)")
    G.wq_unit_finish()
    G.I("s_waitcnt vmcnt(0)")
    G.signal(66, dev=True)
    G.I("s_branch L_wq3")
    A.L("L_nowq2")
    G.I("s_waitcnt vmcnt(0)")
    A.L("L_wq3")
    vm.q = []
    G.stamp("p0.x")
    if cfg.wtouch:
        per = -(-(L.PROF - L.WOF) // (256 * 128)) * 128
        G.lin(36, [(2, per)], L.WOF, layer=False)
        G.I(f"s_cmp_lg_u32 {s(S_WAVE)}, {cfg.wtouch - 1}\ns_cbranch_scc1 L_nowt\nv_lshlrev_b32 v5, 7, v0")
        for n in range(-(-per // 8192)):
            G.I(f"buffer_load_dword v254, v5, {WS}, s36 offen\ns_add_u32 s36, s36, 8192")
        A.L("L_nowt")
    if cfg.pdma == 9: G.emit_list(G.prep_dma_items())
    G.qkv_setup(True)
    G.init_lds_finish()
    G.I("s_barrier")
    G.x0_read(20, 196)
    G.I("s_barrier")
    G.stamp("p0.read")
    G.phase_qkv(True)
    G.prep_read()
    G.stamp("prep")
    A.L("L_layer")
    G.I("s_mov_b32 s57, 0")
    G.phase_att()
    G.I(f"s_cmp_lg_u32 s2, 0\ns_cbranch_scc1 L_noep\nv_mov_b32 v5, {s(S_EPOCH)}\ns_mov_b32 s36, {L.EPOCH}\ns_mov_b64 exec, 1\nbuffer_store_dword v5, off, {WS}, s36\ns_mov_b64 exec, -1")
    A.L("L_noep")
    G.phase_oproj()
    G.phase_mlp1()
    G.phase_mlp2()
    G.I(f"s_cmp_lg_u32 {s(S_L)}, 0\ns_cbranch_scc1 L_final")
    q0 = list(vm.q)
    G.resid_epilogue(40, statreg=60)
    G.window(G.wqa, n1=cfg.s4_n1)
    G.stamp("m2.epi")
    G.I(f"s_mov_b32 {s(S_L)}, {L.LS}")
    G.poll2(122, 98, (5, 7))
    G.stamp("xin.poll")
    G.phase_qkv(False)
    G.I(f"s_mov_b32 s69, {BIG}\ns_mov_b32 s70, {BIG}\ns_mov_b32 s71, {BIG}\ns_mov_b32 s72, {BIG}\nv_mov_b32 v220, 0")
    G.I("s_branch L_layer")
    A.L("L_final")
    if cfg.diag == "delay":
        G.I("s_memtime s[78:79]\ns_waitcnt lgkmcnt(0)\ns_add_u32 s74, s78, 40000")
        A.L("L_dly")
        G.I("s_memtime s[78:79]\ns_waitcnt lgkmcnt(0)\ns_sub_u32 s79, s78, s74\ns_cmp_lt_i32 s79, 0\ns_cbranch_scc1 L_dly")
        G.loops["L_dly"] = 0
    vm.q = q0
    G.lin(36, [(S_I, 64 * 1280), (S_WAVE, 16 * 1280), (S_J, 160)], 0, layer=False, tmp=37)
    G.I("v_mul_u32_u24 v6, 1280, v3\nv_lshl_add_u32 v6, v4, 3, v6")
    if cfg.fst:
        G.I("v_and_b32 v7, 1, v4\nv_mul_u32_u24 v7, 24, v7\nv_add_u32 v7, v6, v7")
    G.resid_epilogue(40, store=False)
    if cfg.fst:
        for pr in range(2):
            b_ = XRES + 4 * pr
            G.I(f"v_permlane16_swap_b32 {v(b_)}, {v(b_+2)}\nv_permlane16_swap_b32 {v(b_+1)}, {v(b_+3)}")
            G.I(f"buffer_store_dwordx4 {v(b_,4)}, v7, s[8:11], s36 offen offset:{pr*64}")
        G.I(f"buffer_store_dwordx2 {v(XRES+8,2)}, v6, s[8:11], s36 offen offset:128")
    else:
        for ft in range(5): G.I(f"buffer_store_dwordx2 {v(XRES+2*ft,2)}, v6, s[8:11], s36 offen offset:{ft*32} {cfg.outfl}")
    if cfg.prof:
        G.I("s_waitcnt vmcnt(0)"); G.stamp("end")
        G.I("s_memrealtime s[78:79]\ns_waitcnt lgkmcnt(0)\nv_writelane_b32 v19, s78, 63")
        G.I(f"s_lshl_b32 s36, s2, 2\ns_add_u32 s36, s36, {s(S_WAVE)}\ns_lshl_b32 s36, s36, 8\ns_add_u32 s36, s36, {L.PROF}\nv_lshlrev_b32 v6, 2, v0")
        G.I(f"buffer_store_dword v19, v6, {WS}, s36 offen")
        if cfg.dbg:
            G.I(f"""s_cmp_lg_u32 s2, {cfg.dbgwg}
            s_cbranch_scc1 L_end
            s_cmp_lg_u32 {s(S_WAVE)}, 0
            s_cbranch_scc1 L_end
            s_load_dwordx2 s[36:37], s[0:1], 80
            v_readlane_b32 s38, v19, 0
            s_waitcnt lgkmcnt(0)
            v_subrev_u32 v19, s38, v19
            s_mov_b64 exec, 0xffff
            global_store_dword v6, v19, s[36:37]""")
        cfg.names = G.names
    A.L("L_end")
    G.I("s_endpgm")
    for g, j, code in Gen.cold:
        A.L(g); G.I(code); G.I(f"s_branch {j}")
    A.ins += G.slow
    A.L("L_codeend")
    if os.environ.get('V'): print('w2 left for S3 window:', G.n_left)
    npad = A.pad_hazards()
    tr = trace_two_layers(A.ins, G.loops)
    errs = check_waits([x for x in tr if x.op not in ("s_memtime", "s_memrealtime")], "main")
    assert errs == 0 or cfg.skip != ("",) and cfg.skip
    return A.text(), npad

def trace_two_layers(ins, loops):
    labels = {x.label: i for i, x in enumerate(ins) if x.is_label}
    tr = []; j = 0; left = {}; layer = 0
    while j < len(ins):
        c = ins[j]; tr.append(c)
        if c.op == "s_endpgm": break
        if c.kind == "branch":
            t = labels[c.target]
            if c.op == "s_branch":
                if c.target == "L_layer": layer = 1
                j = t; continue
            if t <= j:
                k = left.get(j, loops.get(c.target, 1))
                if k > 0: left[j] = k - 1; j = t; continue
                left.pop(j, None)
            elif (c.target == "L_final" and layer == 1) or c.target.startswith("L_prepok") or (c.target.startswith("L_pollx") and c.op == "s_cbranch_vccz"):
                j = t; continue
        j += 1
    return tr

HEADER = open(f"cdna_kernels/{NAME}.s.ref").read().split("; Override launch")[0]

def build_all(cfg):
    body, npad = build_main(cfg)
    asm = HEADER
    asm += f"; @launch grid=(256,1,1) block=(256,1,1) lds={LDS_BYTES}\n"
    asm += '.amdgcn_target "amdgcn-amd-amdhsa--gfx950"\n'
    asm += wrap_kernel(NAME + "_kernel", body, vgpr=512, acc=256)
    return asm, npad

if __name__ == "__main__":
    cfg = Cfg()
    cfg.prof = "prof" in os.environ.get("XF", "")
    asm, npad = build_all(cfg)
    open("out.s", "w").write(asm)
    print("lines", len(asm.splitlines()), "bytes", len(asm), "pad", npad)
```

```python
from asmlib import *
import layout as L
import attn3 as AT
from attn3 import S_
from prep import srd, emit_xg_reduce, emit_realtile, emit_xk, BIG
import math, os, struct

NAME = "interleave_layers__grouped_kv_mqa__dense_activation_mish__prompt"
WQ_LDS = 0
X0_LDS = 0
KV0_LDS = 94208
WQP_LDS = 86016
PREP_LDS = 122880
RED_A = 122880
QST = 147456
WO_LDS = 0
W1AA = 20
W2A = 33
W1A_LDS, W1B_LDS = 102400, 0
RED_K = 122880
MISC = 159744
M_CS1, M_B1, M_CSQ, M_BAD = MISC, MISC + 448, MISC + 896, MISC + 1280
M_MODE = MISC + 1284
M_VT = MISC + 1344
M_CSQP = MISC + 2368
M_CS1P = MISC + 1344
LDS_BYTES = 163840

S_WAVE, S_G, S_C, S_I, S_J, S_IP, S_JP, S_EPOCH, S_L, S_MODE, S_RETRY, S_TAG = 20, 21, 22, 23, 24, 25, 26, 27, 28, 29, 76, 75
XRES = 8
WS = "s[4:7]"
SRD_X, SRD_WQ, SRD_KV, SRD_SRC, SRD_KV2 = 80, 92, 88, 84, 16

def hexf(x): return "0x%08x" % struct.unpack("<I", struct.pack("<f", x))[0]
def w2_reg(k):
    if k < 25: return 156 + 4 * k
    if k < 33: return 480 + 4 * (k - 25)
    if k < 59: return 376 + 4 * (k - 33)
    if k < 65: return 132 + 4 * (k - 59)
    return 256 + 4 * (k - 65)

NFIRST = int(os.environ.get('NF', 3))
class Cfg:
    fin_w2 = 0; s1_w1a = 5; s2 = 12; odepth = 9; m1sh = True
    diag = None; ct1 = None; ct3 = None
    b1n = 11; s2_n1 = 6
    tlb = 0; pp = True; psl = 1; fst = True
    o_w2 = 6; xm = 15
    ctouch = 2; ct2 = (3, 6)
    wtouch = 0; tpos = ((0, 14), (1, 2), (1, 10), (2, 3), (2, 10), (3, 1), (3, 8))
    wqn = 20; pd2 = 10; mish_ld = 6; s4_n1 = 6
    dst = False; kvi0 = 24
    tA = [5, 0, 1]; kvi = 36; chain = True
    hst = ''; ost = ''; hld = 'sc1'
    dbg = None; dbgwg = 0
    w2warm = 0; otouch = False
    sect = True; nf = 3
    xtouch = True; w1warm = 80
    ahead = 0; kvf = 1; pdma = 9
    ends = False; outfl = ''; wb2 = 0
    s3_wq = 0; s3_n1 = 6; fastl1 = True
    wq3 = 2; tstep = 7; wstart = 48; wstep = 2; nta = False; t0 = True
    ptouch = False; pst = 1; pflag = (0, 13); pchk = 9; wb = 0
    prof = False; rt = False; fine = None; skip = (); force_global = False; force_bad = False

class Gen:
    def __init__(self, cfg):
        self.A = Asm(); self.vm = VmTracker(self.A); self.cfg = cfg
        self.names = []; self.loops = {}
    def I(self, t): return self.A.I(t)
    def stamp(self, name=""):
        if self.cfg.dbg and name not in self.cfg.dbg: return
        if self.cfg.prof and not self.cfg.ends:
            if self.cfg.rt:
                self.I("s_memrealtime s[78:79]\ns_waitcnt lgkmcnt(0)\ns_lshl_b32 s74, s78, 18\ns_memtime s[78:79]\ns_waitcnt lgkmcnt(0)\ns_and_b32 s78, s78, 0x3ffff\ns_or_b32 s78, s78, s74")
            else:
                self.I("s_memtime s[78:79]\ns_waitcnt lgkmcnt(0)")
            self.I("s_mov_b32 m0, s77\nv_writelane_b32 v19, s78, m0\ns_add_u32 s77, s77, 1")
            self.names.append(name)
    def lin(self, out, terms, const=0, layer=True, tmp=36):
        first = True
        for t in terms:
            sreg, mul = t[0], t[1]
            src = s(sreg); dst = s(out) if first else s(tmp)
            if len(t) > 2:
                shr, mask = t[2], t[3]
                if shr: self.I(f"s_lshr_b32 {dst}, {src}, {shr}"); src = dst
                if mask is not None: self.I(f"s_and_b32 {dst}, {src}, {mask}"); src = dst
            if mul != 1: self.I(f"s_mul_i32 {dst}, {src}, {mul}"); src = dst
            if first:
                if src != dst: self.I(f"s_mov_b32 {dst}, {src}")
            else:
                self.I(f"s_add_u32 {s(out)}, {s(out)}, {src}")
            first = False
        if layer: self.I(f"s_add_u32 {s(out)}, {s(out)}, {s(S_L)}")
        if const: self.I(f"s_add_u32 {s(out)}, {s(out)}, {const}")
    def signal(self, off_s, dev=False, val=S_EPOCH):
        self.I(f"v_mov_b32 v5, {s(val)}\ns_mov_b64 exec, 1")
        if dev:
            self.vm.issue(f"buffer_store_dword v5, off, {WS}, {s(off_s)} sc1", "flag")
        else:
            g = self.A.newlabel("sg"); j = self.A.newlabel("sj")
            self.I(f"s_cmp_lg_u32 {s(S_MODE)}, 0\ns_cbranch_scc1 {g}")
            self.vm.issue(f"buffer_store_dword v5, off, {WS}, {s(off_s)}", "flag")
            self.A.L(j)
            self.cold.append((g, j, f"buffer_wbl2 sc1\ns_waitcnt vmcnt(0)\nbuffer_store_dword v5, off, {WS}, {s(off_s)} sc1"))
        self.I("s_mov_b64 exec, -1")
    def poll(self, voff, off_s, dev=False, wide=False, pre=False):
        lab = self.A.newlabel("poll"); out = self.A.newlabel("pollx"); ent = self.A.newlabel("polle")
        self.I("s_mov_b32 s35, 0")
        if pre: self.I(f"s_branch {ent}")
        self.A.L(lab)
        if wide:
            self.I(f"buffer_load_dwordx4 v[156:159], {v(voff)}, {WS}, {s(off_s)} offen sc1")
        else:
            self.I(f"buffer_load_dword v5, {v(voff)}, {WS}, {s(off_s)} offen sc1")
        self.A.L(ent)
        self.I(f"s_add_u32 s35, s35, 1\ns_cmp_gt_u32 s35, 0x100000\ns_cbranch_scc1 {out}\ns_waitcnt vmcnt(0)")
        if wide:
            for k in range(4): self.I(f"v_xor_b32 v{156+k}, {s(S_TAG)}, v{156+k}")
            self.I("v_or3_b32 v156, v156, v157, v158\nv_or_b32 v156, v156, v159\nv_cmp_lt_u32 vcc, 7, v156")
        else:
            self.I(f"v_cmp_ne_u32 vcc, {s(S_EPOCH)}, v5")
        self.I(f"s_cbranch_vccnz {lab}")
        self.A.L(out)
        if not dev:
            g = self.A.newlabel("pg"); j = self.A.newlabel("pj")
            self.I(f"s_cmp_lg_u32 {s(S_MODE)}, 0\ns_cbranch_scc1 {g}")
            self.A.L(j)
            self.cold.append((g, j, "s_waitcnt vmcnt(0)\nbuffer_inv sc1\ns_waitcnt vmcnt(0)"))
        self.I("s_waitcnt vmcnt(0)")
        self.loops[lab] = 0
        self.vm.q = []
    def poll2(self, voff, off_s, dsts, dev=False):
        A = self.A
        lab = A.newlabel("poll"); out = A.newlabel("pollx")
        ld = lambda d: f"buffer_load_dword {v(d)}, {v(voff)}, {WS}, {s(off_s)} offen sc1"
        self.I(f"{ld(dsts[0])}\ns_mov_b32 s35, 0\ns_sleep {self.cfg.psl}")
        A.L(lab)
        for a_, b_ in ((0, 1), (1, 0)):
            self.I(f"""{ld(dsts[b_])}
            s_waitcnt vmcnt(1)
            v_cmp_ne_u32 vcc, {s(S_EPOCH)}, {v(dsts[a_])}
            s_cbranch_vccz {out}""")
        self.I(f"s_add_u32 s35, s35, 1\ns_cmp_lt_u32 s35, 0x80000\ns_cbranch_scc1 {lab}")
        A.L(out)
        if not dev:
            g = A.newlabel("pg"); j = A.newlabel("pj")
            self.I(f"s_cmp_lg_u32 {s(S_MODE)}, 0\ns_cbranch_scc1 {g}")
            A.L(j)
            self.cold.append((g, j, "s_waitcnt vmcnt(0)\nbuffer_inv sc1\ns_waitcnt vmcnt(0)"))
        self.loops[lab] = 0
        self.vm.q = ["poll"]
    cold = []
    def flag_x_off(self, base, out):
        self.lin(out, [(S_I, 128), (S_J, 32, 1, None), (S_WAVE, 8), (S_J, 4, 0, 1)], base)
    @staticmethod
    def units(raw):
        out = []
        for it in raw:
            if out and (it[1].startswith("s_cselect") or it[1].endswith(":")): out[-1].append(it)
            else: out.append([it])
        return out
    def code_touch(self, label, mask, vt, dst):
        return S_(f"""s_and_b32 s55, {s(S_WAVE)}, {mask}
        s_lshl_b32 s55, s55, 13
        s_add_u32 s55, s55, {label}-L_pc1
        v_lshl_add_u32 {v(vt)}, v0, 7, s55
        v_min_u32 {v(vt)}, L_end-L_pc1, {v(vt)}""") + [("v", f"global_load_dword {v(dst)}, {v(vt)}, s[42:43]", "ct")]
    def window(self, win, n1=6, fl=40):
        win = win if win is not None else []
        if self.cfg.diag != "noack":
            self.emit_list(self.take(win, n1))
            self.vm.wait("st")
        self.signal(fl)
        self.emit_list(win)
    @staticmethod
    def take(items, n):
        out = []
        while items and n > 0:
            it = items.pop(0); out.append(it)
            if it[0] == "v": n -= 1
        return out
    def emit_list(self, items):
        for it in items:
            if it[0] == "s": self.I(it[1])
            elif it[0] == "w": self.vm.wait(it[1])
            elif it[2] in self.cfg.skip: pass
            else: self.vm.issue(it[1], it[2])
    def collect(self, fn):
        keep = self.A; A2 = Asm(); self.A = A2
        fn(); self.A = keep
        return [("s", x.text) for x in A2.ins]
    def load_wfrags(self, regs, soff, tag):
        out = []
        for k, r in enumerate(regs):
            if k and k % 4 == 0: out.append(("s", f"s_add_u32 {s(soff)}, {s(soff)}, 4096"))
            out.append(("v", f"buffer_load_dwordx4 {R(r,4)}, v1, {WS}, {s(soff)} offen offset:{(k%4)*1024}", tag))
        return out
    def lin_dma(self, src_term, src_base, lds_base, n, sg, sl, tag):
        it = self.collect(lambda: (self.lin(sl, [(S_WAVE, n * 1024)], lds_base, layer=False, tmp=54),
                                   self.lin(sg, [src_term, (sl, 1)], src_base - lds_base + (1 << 32) if src_base < lds_base else src_base - lds_base, layer=False, tmp=54)))
        for k in range(n):
            if k and k % 4 == 0: it += [("s", f"s_add_u32 {s(sg)}, {s(sg)}, 4096"), ("s", f"s_add_u32 {s(sl)}, {s(sl)}, 4096")]
            it.append(("s", f"s_mov_b32 m0, {s(sl)}"))
            it.append(("v", f"buffer_load_dwordx4 v1, {WS}, {s(sg)} offen offset:{(k%4)*1024} lds", tag))
        return it
    def resid_setup(self, xbuf, statbuf, flagbuf):
        self.lin(38, [(S_G, L.GS), (S_I, 4 * L.XTS, 0, 3), (S_WAVE, L.XTS), (S_J, 5120, 1, None)], xbuf, layer=False)
        self.lin(39, [(S_J, 3072, 0, 1), (38, 1)], 0, layer=False)
        self.I(f"s_and_b32 s36, {s(S_J)}, 1\ns_lshl_b32 s36, s36, 3\ns_add_u32 s38, s38, s36")
        self.lin(41, [(S_G, L.GS), (S_I, 4 * 4096, 0, 3), (S_WAVE, 4096), (S_J, 2048, 0, 1), (S_J, 256, 1, None)], statbuf, layer=False)
        self.flag_x_off(flagbuf, 40)
        self.I("s_mov_b32 s66, 0x00003f80\ns_mov_b32 s67, 0x3f800000\ns_mov_b32 s68, 0x3f803f80")
        self.I("v_lshrrev_b32 v18, 1, v4\nv_lshlrev_b32 v18, 10, v18\nv_lshl_add_u32 v18, v3, 4, v18\nv_and_b32 v6, 1, v4\nv_lshl_add_u32 v18, v6, 3, v18")
    def resid_epilogue(self, acc, store=True, statreg=20):
        for i in range(10):
            self.I(f"v_dot2c_f32_bf16 {v(acc+2*i)}, s66, {v(XRES+i)}\nv_dot2c_f32_bf16 {v(acc+2*i+1)}, s67, {v(XRES+i)}")
        if store: self.I(f"v_mov_b32 {v(statreg)}, 0\nv_mov_b32 {v(statreg+1)}, 0")
        for i in range(10):
            self.I(f"v_cvt_pk_bf16_f32 {v(XRES+i)}, {v(acc+2*i)}, {v(acc+2*i+1)}")
            if store and i == 3: self.vm.issue(f"buffer_store_dwordx4 {v(XRES,4)}, v1, {WS}, s39 offen", "st")
            if store and i == 7: self.vm.issue(f"buffer_store_dwordx4 {v(XRES+4,4)}, v1, {WS}, s39 offen offset:1024", "st")
        if not store: return
        self.vm.issue(f"buffer_store_dwordx2 {v(XRES+8,2)}, v1, {WS}, s38 offen offset:2048", "st")
        for i in range(10):
            self.I(f"v_dot2c_f32_bf16 {v(statreg)}, s68, {v(XRES+i)}\nv_dot2c_f32_bf16 {v(statreg+1)}, {v(XRES+i)}, {v(XRES+i)}")
        self.vm.issue(f"buffer_store_dwordx2 {v(statreg,2)}, v18, {WS}, s41 offen", "st")
    def stat_loads(self, soff, voff, dst, tag):
        for n in range(4):
            self.vm.issue(f"buffer_load_dwordx4 {v(dst+4*n,4)}, v1, {WS}, {s(soff)} offen offset:{n*1024} sc1", tag)
    def stat_finish(self, src, dst, presummed=False, packed=True):
        if not packed:
            for n in range(8): self.I(f"v_add_f32 {v(src+n)}, {v(src+n)}, {v(src+8+n)}")
            for n in range(4): self.I(f"v_add_f32 {v(src+n)}, {v(src+n)}, {v(src+4+n)}")
            for n in range(2): self.I(f"v_add_f32 {v(src+n)}, {v(src+n)}, {v(src+2+n)}")
        elif not presummed:
            for n in range(4): self.I(f"v_pk_add_f32 {v(src+2*n,2)}, {v(src+2*n,2)}, {v(src+8+2*n,2)}")
            for n in range(2): self.I(f"v_pk_add_f32 {v(src+2*n,2)}, {v(src+2*n,2)}, {v(src+4+2*n,2)}")
            self.I(f"v_pk_add_f32 {v(src,2)}, {v(src,2)}, {v(src+2,2)}")
        emit_xg_reduce(self.A, [src, src + 1], src + 2)
        self.I(f"""v_mul_f32 {v(dst)}, {hexf(-1.0/640)}, {v(src)}
        v_mul_f32 {v(src+2)}, {v(dst)}, {v(dst)}
        v_mov_b32 {v(src+3)}, {hexf(1.0/640)}
        v_fma_f32 {v(src+1)}, {v(src+1)}, {v(src+3)}, -{v(src+2)}
        v_max_f32 {v(src+1)}, 0, {v(src+1)}
        v_add_f32 {v(src+1)}, {hexf(1e-5)}, {v(src+1)}
        v_rsq_f32 {v(dst+1)}, {v(src+1)}""")

    def csum_loads(self, reg, term, base, row, mask, tag):
        self.lin(36, [term, (S_WAVE, 5 * row)], base, layer=False, tmp=37)
        self.I(f"s_mov_b64 exec, {mask:#x}")
        for k in range(5): self.vm.issue(f"buffer_load_dwordx4 {v(reg+4*k,4)}, v1, {WS}, s36 offen offset:{k*row} sc1", tag)
        self.I("s_mov_b64 exec, -1")
    def csum_part(self, reg, slots, row, mask):
        for a_, b_ in ((0, 1), (2, 3), (0, 2), (0, 4)):
            for i in range(4): self.I(f"v_add_f32 {v(reg+4*a_+i)}, {v(reg+4*a_+i)}, {v(reg+4*b_+i)}")
        self.lin(36, [(S_WAVE, row)], slots, layer=False)
        self.I(f"v_add_u32 v7, s36, v1\ns_mov_b64 exec, {mask:#x}\nds_write_b128 v7, {v(reg,4)}\ns_mov_b64 exec, -1\ns_waitcnt lgkmcnt(0)")
    def csum_final(self, reg, slots, row, dst, mask):
        self.I(f"v_add_u32 v7, {slots}, v1\ns_mov_b64 exec, {mask:#x}")
        for w in range(4): self.I(f"ds_read_b128 {v(reg+4*w,4)}, v7 offset:{w*row}")
        self.I("s_waitcnt lgkmcnt(0)")
        for a_, b_ in ((0, 1), (2, 3), (0, 2)):
            for i in range(4): self.I(f"v_add_f32 {v(reg+4*a_+i)}, {v(reg+4*a_+i)}, {v(reg+4*b_+i)}")
        self.I(f"v_add_u32 v7, {dst}, v1\nds_write_b128 v7, {v(reg,4)}\ns_mov_b64 exec, -1\ns_waitcnt lgkmcnt(0)")
    def qkv_setup(self, l0):
        lo = 0 if l0 else L.LS
        self.lin(94, [(S_I, 2 * L.KVT), (S_WAVE, L.KVT, 1, None)], L.KVB + lo, layer=False)
        self.lin(95, [(S_I, 32), (S_J, 4)], L.FL_KV + lo, layer=False)
        if not l0:
            self.lin(96, [(S_G, L.GS), (S_I, 4 * L.XTS, 0, 3), (S_WAVE, L.XTS)], L.XIN, layer=False)
            self.lin(97, [(S_G, L.GS), (S_I, 4 * 4096, 0, 3), (S_WAVE, 4096)], L.STATIN, layer=False)
            self.lin(98, [(S_I, 128), (S_WAVE, 8)], L.FL_XIN + lo, layer=False)
            self.I("v_bfe_u32 v122, v0, 1, 2\nv_lshlrev_b32 v122, 5, v122\nv_and_b32 v123, 1, v0\nv_lshl_add_u32 v122, v123, 2, v122")
    def wq_round(self, n):
        it = self.collect(lambda: (self.lin(53, [(S_WAVE, 6144)], WQ_LDS + n * 24576, layer=False),
                                   self.lin(52, [(S_J, 120 * 1024), (53, 1)], L.WQF - WQ_LDS, layer=False)))
        for k in range(5):
            if k == 4: it += S_("s_add_u32 s52, s52, 4096\ns_add_u32 s53, s53, 4096")
            if k % 4 == 0: it.append(("s", "s_mov_b32 m0, s53"))
            it.append(("v", f"buffer_load_dwordx4 v1, {WS}, s52 offen offset:{(k%4)*1024} sc1 lds", ("r", n)))
        return it
    def wkv_frags(self):
        it = self.collect(lambda: (self.lin(53, [(S_WAVE, 5 * 6144)], WQ_LDS + 5120, layer=False),
                                   self.lin(52, [(S_J, 120 * 1024), (53, 1)], L.WQF - WQ_LDS, layer=False)))
        for k in range(5):
            if k: it += S_("s_add_u32 s52, s52, 6144\ns_add_u32 s53, s53, 6144")
            it += [("s", "s_mov_b32 m0, s53"), ("v", f"buffer_load_dwordx4 v1, {WS}, s52 offen sc1 lds", "kvw")]
        return it
    QX, QWB, QACC, QSL, QSTAT, QCS = 20, 100, 148, 196, 212, 216
    def qkv_sweep(self, tiles, ks, xwait=None, filler=None, first_reads=True):
        X, WB, ACC = self.QX, self.QWB, self.QACC
        n = len(tiles)
        seq = [(k, ft) for k in ks for ft in tiles]
        D = 8 if n > 1 else 6
        NB = 12
        def rd(i):
            k, ft = seq[i]
            self.I(f"ds_read_b128 {v(WB+4*(i%NB),4)}, v{240 + k//10} offset:{((k%10)*6+ft)*1024}")
        for i in range(min(D, len(seq))): rd(i)
        for i, (k, ft) in enumerate(seq):
            if xwait and ft == tiles[0]: xwait(k)
            self.I(f"s_waitcnt lgkmcnt({min(D - 1, len(seq) - 1 - i)})")
            d = ACC + 4 * ft
            self.I(f"v_mfma_f32_16x16x32_bf16 {v(d,4)}, {v(WB+4*(i%NB),4)}, {v(X+4*k,4)}, {'0' if k == 0 else v(d,4)}")
            if i + D < len(seq): rd(i + D)
            if filler: filler(i, k, ft)
    def cs_reads(self, tiles):
        self.I(f"v_lshlrev_b32 v6, 4, v4\nv_add_u32 v6, {M_CSQ}, v6")
        for ft in tiles: self.I(f"ds_read_b128 {v(self.QCS+4*ft,4)}, v6 offset:{ft*64}")
    def phase_qkv(self, l0):
        A, vm = self.A, self.vm
        X, WB, ACC, SL, ST, CS = self.QX, self.QWB, self.QACC, self.QSL, self.QSTAT, self.QCS
        if l0:
            self.I(f"v_add_u32 v240, {WQ_LDS}, v1\nv_add_u32 v241, {WQ_LDS + 61440}, v1")
            self.I(f"""v_lshrrev_b32 v5, 2, v0
            v_mul_u32_u24 v5, 40, v5
            v_and_b32 v6, 3, v0
            v_lshl_add_u32 v5, v6, 3, v5
            s_and_b32 s36, {s(S_J)}, 1
            s_lshl_b32 s36, s36, 5
            s_add_u32 s36, s36, {KV0_LDS}
            v_add_u32 v242, s36, v5""")
            self.lin(37, [(S_J, 128)], L.FL_WQ, layer=False)
            self.I("v_min_u32 v6, 19, v0\nv_lshlrev_b32 v6, 2, v6")
            def rd(k):
                for u in range(2): self.I(f"ds_read_b64_tr_b16 {v(WB+4*(k%6)+2*u,2)}, v242 offset:{L.xk(k//5, k%5, u)*40}")
            for k in range(4): rd(k)
            for k in range(20):
                c = lambda r_: '0' if k == 0 else v(r_, 4)
                self.I(f"v_mfma_f32_16x16x32_bf16 {v(SL,4)}, v[192:195], {v(X+4*k,4)}, {c(SL)}")
                self.I(f"v_mfma_f32_16x16x32_bf16 {v(SL+4,4)}, {v(X+4*k,4)}, {v(X+4*k,4)}, {c(SL+4)}")
            self.poll2(6, 37, (253, 254), dev=True) if self.cfg.pp else self.poll(6, 37, dev=True)
            self.stamp("p0.wq")
            self.csum_loads(216, (S_J, 20 * 384), L.CSQP, 384, 0xfffff, "cs")
            dm = self.wq_round(0) + self.wq_round(1) + self.wq_round(2)
            self.emit_list(self.take(dm, 5))
            for k in range(20):
                c = lambda r_: '0' if k == 0 else v(r_, 4)
                self.I(f"s_waitcnt lgkmcnt({min(6, 2*(19-k))})")
                self.I(f"v_mfma_f32_16x16x32_bf16 {v(ACC+20,4)}, {v(WB+4*(k%6),4)}, {v(X+4*k,4)}, {c(ACC+20)}")
                if k % 2 == 0: self.emit_list(self.take(dm, 1))
                self.I(f"v_mfma_f32_16x16x32_bf16 {v(CS+20,4)}, {v(WB+4*(k%6),4)}, v[192:195], {c(CS+20)}")
                if k + 4 < 20: rd(k + 4)
            assert not dm
            self.I(f"""v_and_b32 v5, 3, v3
            v_lshrrev_b32 v6, 2, v3
            v_cmp_eq_u32 vcc, 1, v5
            v_cmp_eq_u32 s[62:63], 2, v5
            v_cndmask_b32 {v(SL+4)}, {v(SL+4)}, {v(SL+5)}, vcc
            v_cmp_eq_u32 vcc, 3, v5
            v_cndmask_b32 {v(SL+4)}, {v(SL+4)}, {v(SL+6)}, s[62:63]
            v_cmp_eq_u32 s[62:63], v6, v4
            v_cndmask_b32 {v(SL+4)}, {v(SL+4)}, {v(SL+7)}, vcc
            v_mul_f32 {v(SL)}, 0.25, {v(SL)}
            v_cndmask_b32 {v(SL+1)}, 0, {v(SL+4)}, s[62:63]""")
            self.stat_finish(SL, ST, presummed=True)
            self.I(f"""v_lshlrev_b32 v6, 4, v4
            v_add_u32 v6, {M_CSQ + 320}, v6
            s_mov_b32 exec_lo, 0x00010001
            s_mov_b32 exec_hi, 0x00010001
            ds_write_b128 v6, {v(CS+20,4)}
            s_mov_b64 exec, -1""")
        else:
            nl = [0]
            def load():
                k = nl[0]; nl[0] += 1
                if k and k % 4 == 0: self.I("s_add_u32 s96, s96, 4096")
                vm.issue(f"buffer_load_dwordx4 {v(X+4*k,4)}, v1, {WS}, s96 offen offset:{(k%4)*1024} sc1", ("x", k))
            while nl[0] < 7: load()
            self.I(f"v_add_u32 v240, {WQ_LDS}, v1\nv_add_u32 v241, {WQ_LDS + 61440}, v1")
            self.cs_reads(range(6))
            self.I("s_waitcnt lgkmcnt(0)\ns_barrier")
            sh = self.collect(lambda: self.stat_finish(SL, ST, packed=False))
            tA = self.cfg.tA
            nA = len(tA)
            def fil(i, k, ft):
                if nl[0] < 20 and i % (nA - 1) == 0 + (nA > 2): load()
                if i == 2 * nA: self.stat_loads(97, 18, SL, "stat")
                if i == 10 * nA: vm.wait("stat")
                if i >= 10 * nA: self.emit_list(sh[:2 if nA > 2 else 3]); del sh[:2 if nA > 2 else 3]
            self.qkv_sweep(tA, range(20), xwait=lambda k: vm.wait(("x", k)), filler=fil)
            self.emit_list(sh)
        self.stamp("qkv.kv")
        self.I(f"v_mov_b32 {v(ST+2)}, {v(ST+1)}")
        KA = ACC + 20; KP = 172
        done = A.newlabel("kvdone"); vt = A.newlabel("kvv"); k1 = A.newlabel("kvk1"); jn = A.newlabel("kvj")
        self.I(f"s_lshr_b32 s36, {s(S_J)}, 2\ns_xor_b32 s48, s36, {s(S_WAVE)}\ns_and_b32 s48, s48, 1\ns_cbranch_scc1 {done}")
        for i in (0, 2): self.I(f"v_pk_fma_f32 {v(KA+i,2)}, {v(ST,2)}, {v(CS+20+i,2)}, {v(KA+i,2)} op_sel_hi:[0,1,1]")
        for i in (0, 2): self.I(f"v_pk_mul_f32 {v(KA+i,2)}, {v(ST+2,2)}, {v(KA+i,2)} op_sel_hi:[0,1]")
        self.I(f"v_cvt_pk_bf16_f32 {v(KP)}, {v(KA)}, {v(KA+1)}\nv_cvt_pk_bf16_f32 {v(KP+1)}, {v(KA+2)}, {v(KA+3)}")
        self.I(f"s_and_b32 s37, {s(S_WAVE)}, 1\ns_bitcmp1_b32 {s(S_J)}, 1\ns_cbranch_scc1 {vt}")
        self.I(f"s_lshl_b32 s37, s37, 4\nv_add_u32 v6, s37, v3\ns_bitcmp1_b32 {s(S_J)}, 0\ns_cbranch_scc1 {k1}")
        self.I(f"""v_lshrrev_b32 v7, 1, v4
        v_lshlrev_b32 v7, 9, v7
        v_lshl_add_u32 v7, v6, 4, v7
        v_and_b32 v6, 1, v4
        v_lshl_add_u32 v7, v6, 3, v7
        buffer_store_dwordx2 {v(KP,2)}, v7, {WS}, s94 offen sc1
        s_branch {jn}""")
        A.L(k1)
        self.I(f"""v_lshlrev_b32 v6, 3, v6
        s_mov_b64 exec, 0xffff
        buffer_store_dwordx2 {v(KP,2)}, v6, {WS}, s94 offen offset:1024 sc1
        s_mov_b64 exec, -1
        s_branch {jn}""")
        A.L(vt)
        self.I(f"""s_lshr_b32 s36, {s(S_WAVE)}, 1
        s_lshl_b32 s36, s36, 9
        s_add_u32 s36, s36, {M_VT}
        v_lshlrev_b32 v6, 7, v4
        v_lshl_add_u32 v6, v3, 1, v6
        v_add_u32 v6, s36, v6
        ds_write_b16 v6, {v(KP)}
        ds_write_b16_d16_hi v6, {v(KP)} offset:32
        ds_write_b16 v6, {v(KP+1)} offset:64
        ds_write_b16_d16_hi v6, {v(KP+1)} offset:96
        v_lshlrev_b32 v6, 5, v3
        v_lshl_add_u32 v6, v4, 3, v6
        v_add_u32 v6, s36, v6
        ds_read_b64 {v(KP+2,2)}, v6
        s_mul_i32 s37, s37, 768
        s_add_u32 s37, s94, s37
        s_and_b32 s36, {s(S_J)}, 1
        s_lshl_b32 s36, s36, 8
        s_add_u32 s37, s37, s36
        v_and_b32 v6, 1, v4
        v_mul_u32_u24 v6, 384, v6
        v_lshl_add_u32 v6, v3, 4, v6
        v_lshrrev_b32 v7, 1, v4
        v_lshl_add_u32 v6, v7, 3, v6
        s_cmp_lg_u32 s36, 0
        s_cselect_b32 s36, 4, 99
        s_cselect_b32 exec_lo, 0x00ff00ff, -1
        v_cmp_eq_u32 vcc, s36, v3
        v_mov_b32 v7, 0x3f803f80
        s_mov_b32 exec_hi, exec_lo
        s_waitcnt lgkmcnt(0)
        v_cndmask_b32 {v(KP+2)}, {v(KP+2)}, v7, vcc
        v_cndmask_b32 {v(KP+3)}, {v(KP+3)}, v7, vcc
        buffer_store_dwordx2 {v(KP+2,2)}, v6, {WS}, s37 offen offset:1280 sc1
        s_mov_b64 exec, -1""")
        self.I(f"s_branch {jn}")
        A.L(done)
        self.I(f"v_mov_b32 v6, {BIG}\nbuffer_store_dwordx2 {v(KP,2)}, v6, {WS}, 0 offen")
        A.L(jn)
        vm.q.append("kvst")
        self.stamp("qkv.kvst")
        if l0:
            later = {}
            it = self.wq_round(3) + self.wq_round(4)
            if self.cfg.pdma == 1: it += self.prep_dma_items()
            it2 = self.prep_dma_items() if self.cfg.pdma == 2 else []
            vm.wait(("r", 2))
            self.csum_part(216, M_CSQP, 384, 0xfffff)
            self.I("s_barrier")
            def filq(i, k, ft):
                if i % 2 == 1 and (i < 20 or i % 4 == 1): self.emit_list(self.take(it, 1))
                if i == self.cfg.kvi0:
                    vm.wait("kvst")
                    self.I("s_barrier")
                    sk = A.newlabel("kvsig")
                    self.I(f"s_cmp_lg_u32 {s(S_WAVE)}, 0\ns_cbranch_scc1 {sk}")
                    self.signal(95, dev=True, val=S_TAG); vm.q.pop()
                    A.L(sk)
            self.qkv_sweep([0, 1, 2, 3, 4], range(12), filler=filq)
            vm.wait(("r", 4))
            self.I("s_barrier")
            self.csum_final(216, M_CSQP, 384, M_CSQ, 0xfffff)
            self.qkv_sweep([0, 1, 2, 3, 4], range(12, 20), filler=lambda i, k, ft: self.emit_list(self.take(it2, 1)) if i % 4 == 1 else None)
            assert not it and not it2
            self.cs_reads(range(5))
            self.emit_list(later.get(5, []))
            self.I("s_waitcnt lgkmcnt(0)")
        else:
            def filb(i, k, ft):
                if i == self.cfg.kvi:
                    self.I("s_waitcnt vmcnt(0)\ns_barrier"); vm.q = []
                    sk = A.newlabel("kvsig")
                    self.I(f"s_cmp_lg_u32 {s(S_WAVE)}, 0\ns_cbranch_scc1 {sk}")
                    self.signal(95, dev=True, val=S_TAG)
                    A.L(sk)
            self.qkv_sweep([t_ for t_ in range(5) if t_ not in tA], range(20), filler=filb)
        self.stamp("qkv.mm")
        c = math.log2(math.e) / math.sqrt(20.0)
        self.I(f"v_mul_f32 {v(ST+2)}, {hexf(c)}, {v(ST+1)}")
        for i in range(0, 20, 2): self.I(f"v_pk_fma_f32 {v(ACC+i,2)}, {v(ST,2)}, {v(CS+i,2)}, {v(ACC+i,2)} op_sel_hi:[0,1,1]")
        for i in range(0, 20, 2): self.I(f"v_pk_mul_f32 {v(ACC+i,2)}, {v(ST+2,2)}, {v(ACC+i,2)} op_sel_hi:[0,1]")
        P = 176
        for i in range(8): self.I(f"v_cvt_pk_bf16_f32 {v(P+i)}, {v(ACC+2*i)}, {v(ACC+2*i+1)}")
        self.I(f"v_cvt_pk_bf16_f32 {v(P+8)}, {v(ACC+16)}, {v(ACC+17)}\nv_mov_b32 {v(P+9)}, 0")
        self.I(f"v_cvt_pk_bf16_f32 {v(P+10)}, {v(ACC+18)}, {v(ACC+19)}\nv_mov_b32 {v(P+11)}, 0")
        self.lin(36, [(S_WAVE, AT.QST_Q, 1, None)], QST, layer=False, tmp=37)
        self.I(f"""s_and_b32 s37, {s(S_WAVE)}, 1
        s_lshl_b32 s37, s37, 4
        v_add_u32 v6, s37, v3
        v_mul_u32_u24 v7, {2*AT.QST_Q}, v4
        v_add_u32 v7, s36, v7
        v_lshl_add_u32 v5, v6, 4, v7
        v_lshl_add_u32 v6, v6, 3, v7""")
        self.I(f"""ds_write_b128 v5, {v(P,4)}
        ds_write_b128 v5, {v(P+4,4)} offset:512
        ds_write_b64 v6, {v(P+8,2)} offset:1024
        ds_write_b64 v6, {v(P+10,2)} offset:{1024+256}""")
        self.I("s_waitcnt lgkmcnt(0)\ns_barrier")
        self.stamp("qkv.epi")

    def pieces(self, n16, magic, pitch, dst, cmax=None):
        self.I(f"s_movk_i32 s52, {magic}\ns_movk_i32 s53, {pitch}\ns_add_u32 s46, s46, s44")
        for q in range(n16 // 2):
            self.I(f"""v_add_u32 v5, {64*q}, v0
            v_mul_u32_u24 v6, s52, v5
            v_lshrrev_b32 v6, 16, v6
            v_mul_u32_u24 v7, {n16}, v6
            v_sub_u32 v5, v5, v7
            v_lshrrev_b32 v7, 4, v6
            v_mul_u32_u24 v18, s32, v7
            v_bfe_u32 v7, v6, 3, 1
            v_mad_u32_u24 v18, v7, s33, v18
            v_bfe_u32 v7, v6, 2, 1
            v_mad_u32_u24 v18, v7, s34, v18
            v_and_b32 v6, 3, v6
            v_add3_u32 v18, v18, v6, s31
            v_mul_u32_u24 v18, s53, v18
            v_lshl_add_u32 v18, v5, 4, v18""")
            if cmax is not None:
                self.I(f"v_cmp_le_u32 vcc, {s(cmax)}, v5\nv_mov_b32 v7, {BIG}\nv_cndmask_b32 v7, 0, v7, vcc\nv_add_u32 v18, v18, v7")
            self.I(f"v_add_u32 {v(dst+q)}, s46, v18")
    PA = 244
    def prep_dma_items(self):
        it = []
        for q in range(7):
            it += [("s", f"s_add_u32 m0, s{72 if q < 5 else 65}, {q*1024}"), ("v", f"buffer_load_dwordx4 {v(self.PA+q)}, {s(SRD_SRC,4)}, 0 offen lds", "prep")]
        if self.cfg.ptouch:
            it += [("s", "v_lshlrev_b32 v253, 7, v0"), ("v", f"buffer_load_dword v254, v253, {WS}, s70 offen", "prep")]
        return it
    def prep_issue(self):
        A = self.A
        lab = {k: A.newlabel("pp" + k) for k in ("w2", "w1", "none", "n10", "end", "pad")}
        self.I(f"""s_lshl_b32 s30, s2, 1
        s_and_b32 s31, {s(S_WAVE)}, 1
        s_add_u32 s30, s30, s31
        s_movk_i32 s31, 192
        s_cmp_lt_u32 s2, 160
        s_cselect_b32 s31, 608, s31
        s_cmp_lt_u32 {s(S_WAVE)}, 2
        s_cselect_b32 s31, s31, 0
        s_add_u32 s30, s30, s31
        s_cmp_ge_u32 s2, 208
        s_cselect_b32 s31, 1024, 0
        s_cmp_lt_u32 {s(S_WAVE)}, 2
        s_cselect_b32 s31, s31, 0
        s_add_u32 s30, s30, s31
        s_min_u32 s31, {s(S_WAVE)}, 2
        s_mul_i32 s72, s31, 7168
        s_cmp_eq_u32 {s(S_WAVE)}, 3
        s_cselect_b32 s31, 5120, 0
        s_add_u32 s72, s72, s31
        s_add_u32 s72, s72, {PREP_LDS}
        s_cmp_lt_u32 {s(S_WAVE)}, 2
        s_cselect_b32 s65, s72, {0xffffec00 if self.cfg.pdma != 9 else 83968 - 5120}""")
        for q in range(7): self.I(f"v_mov_b32 {v(self.PA+q)}, {BIG}")
        self.I(f"s_cmp_ge_u32 s30, 928\ns_cbranch_scc1 {lab['none']}\ns_cmp_ge_u32 s30, 608\ns_cbranch_scc1 {lab['w1']}\ns_cmp_ge_u32 s30, 160\ns_cbranch_scc1 {lab['w2']}")
        self.I(f"""s_lshr_b32 s47, s30, 3          ; ks
        s_and_b32 s48, s30, 7           ; j
        s_mul_i32 s49, s47, 52
        s_lshr_b32 s49, s49, 8          ; w = ks/5
        s_mul_i32 s50, s49, 5
        s_sub_u32 s50, s47, s50         ; s
        s_mul_i32 s31, s49, 160
        s_mul_i32 s32, s50, 40
        s_cmp_gt_u32 s50, 2
        s_cselect_b32 s33, 40, 0
        s_sub_u32 s32, s32, s33
        s_cmp_eq_u32 s50, 2
        s_cselect_b32 s32, 16, s32
        s_add_u32 s31, s31, s32
        s_cmp_eq_u32 s50, 2
        s_cselect_b32 s32, 80, 8
        s_cselect_b32 s33, 40, 20
        s_cselect_b32 s34, 20, 4
        s_mov_b32 s44, 0
        s_mov_b32 s45, 0
        s_mul_i32 s46, s48, 160
        s_mul_i32 s70, s48, 20
        s_add_u32 s70, s70, s47
        s_mul_i32 s70, s70, 5120
        s_add_u32 s70, s70, {L.WOF}
        s_mov_b32 {s(SRD_SRC)}, s96
        s_mov_b32 {s(SRD_SRC+1)}, s97
        s_mov_b32 {s(SRD_SRC+2)}, {640*640*2}
        s_branch {lab['n10']}""")
        A.L(lab['w2'])
        self.I(f"""s_sub_u32 s30, s30, 160
        s_lshr_b32 s47, s30, 3          ; r = w*14+s
        s_and_b32 s48, s30, 7           ; j
        s_mul_i32 s49, s47, 37
        s_lshr_b32 s49, s49, 8
        s_mul_i32 s50, s49, 7
        s_sub_u32 s50, s47, s50         ; sp
        s_lshl_b32 s49, s49, 1          ; 2q""")
        for u in range(2):
            self.I(f"""s_cmp_gt_u32 s50, 3
            s_cselect_b32 s52, 1, 0
            s_cselect_b32 s53, 4, 0
            s_sub_u32 s53, s50, s53
            s_lshl_b32 s53, s53, 1
            s_add_u32 s53, s53, {u}
            s_cmp_eq_u32 s50, 3
            s_cselect_b32 s52, {u}, s52
            s_cselect_b32 s53, 6, s53
            s_add_u32 s52, s52, s49""")
            emit_realtile(A, 52, 53, 31 + u, 44 + u, 54)
        self.I(f"""s_lshl_b32 s31, s31, 4
        s_lshl_b32 s32, s32, 4
        s_sub_u32 s32, s32, s31
        s_mov_b32 s33, 8
        s_mov_b32 s34, 4
        s_mul_i32 s46, s48, 160
        s_mul_i32 s70, s48, 56
        s_add_u32 s70, s70, s47
        s_mul_i32 s70, s70, 5120
        s_add_u32 s70, s70, {L.W2F}
        s_mov_b32 {s(SRD_SRC)}, s100
        s_mov_b32 {s(SRD_SRC+1)}, s101
        s_mov_b32 {s(SRD_SRC+2)}, {1728*640*2}""")
        A.L(lab['n10'])
        self.pieces(10, 6554, 1280, self.PA)
        self.I(f"s_mov_b32 s69, 5\ns_branch {lab['end']}")
        A.L(lab['w1'])
        self.I(f"""s_sub_u32 s30, s30, 608
        s_lshr_b32 s47, s30, 4          ; ks
        s_and_b32 s48, s30, 15          ; j'
        s_mul_i32 s49, s47, 52
        s_lshr_b32 s49, s49, 8
        s_mul_i32 s50, s49, 5
        s_sub_u32 s50, s47, s50""")
        emit_xk(A, 49, 50, 31, 32)
        self.I("s_mov_b32 s53, 0"); emit_realtile(A, 48, 53, 46, 44, 54)
        self.I(f"""s_lshl_b32 s46, s46, 5
        s_mov_b32 s33, 8
        s_mov_b32 s34, 4
        s_mov_b32 s44, 0
        s_mov_b32 s45, 0
        s_cmp_lt_u32 s48, 12
        s_cselect_b32 s54, 14, 12
        s_mul_i32 s70, s48, 20
        s_add_u32 s70, s70, s47
        s_mul_i32 s71, s70, 448
        s_add_u32 s71, s71, {L.CS1P}
        s_mul_i32 s70, s70, 7168
        s_add_u32 s70, s70, {L.W1F}
        s_mov_b32 {s(SRD_SRC)}, s98
        s_mov_b32 {s(SRD_SRC+1)}, s99
        s_mov_b32 {s(SRD_SRC+2)}, {640*1728*2}""")
        self.pieces(14, 4682, 3456, self.PA, cmax=54)
        self.I(f"s_mov_b32 s69, 7\ns_branch {lab['end']}")
        A.L(lab['none'])
        self.I(f"s_mov_b32 s69, 0\ns_mov_b32 s70, {BIG}")
        A.L(lab['end'])
    PF = 160
    def prep_read(self):
        A = self.A; F = self.PF
        l7 = A.newlabel("pf7"); end = A.newlabel("pfe"); l0_ = A.newlabel("pf0")
        self.I(f"s_waitcnt vmcnt(0)\ns_cmp_eq_u32 s69, 0\ns_cbranch_scc1 {l0_}\ns_cmp_eq_u32 s69, 7\ns_cbranch_scc1 {l7}")
        def body(n, P):
            self.I(f"v_lshrrev_b32 v5, 2, v0\nv_and_b32 v6, 3, v0\nv_mul_u32_u24 v5, {P}, v5\nv_lshl_add_u32 v5, v6, 3, v5\nv_add_u32 v5, s72, v5")
            for ft in range(n):
                for u in range(2): self.I(f"ds_read_b64_tr_b16 {v(F+4*ft+2*u,2)}, v5 offset:{u*16*P + ft*32}")
        body(5, 160)
        self.I(f"s_add_u32 s72, s70, 4096\ns_mov_b32 s69, {BIG}\ns_mov_b32 s71, {BIG}\ns_branch {end}")
        A.L(l0_)
        self.I(f"s_mov_b32 s70, {BIG}\ns_mov_b32 s72, {BIG}\ns_mov_b32 s69, {BIG}\ns_mov_b32 s71, {BIG}\ns_branch {end}")
        A.L(l7)
        body(7, 224)
        self.I("s_add_u32 s72, s70, 4096\ns_mov_b32 s69, s72\ns_waitcnt lgkmcnt(0)")
        for i in range(4): self.I(f"v_mov_b32 v{216+i}, 0x3f803f80")
        for ft in range(7): self.I(f"v_mfma_f32_16x16x32_bf16 {v(F+28+4*ft,4)}, {v(F+4*ft,4)}, v[216:219], 0")
        for ft in range(1, 7):
            self.I(f"s_mov_b32 exec_lo, {0x00010001 << ft:#x}\ns_mov_b32 exec_hi, {0x00010001 << ft:#x}")
            for i in range(4): self.I(f"v_mov_b32 {v(F+28+i)}, {v(F+28+4*ft+i)}")
        self.I("s_mov_b64 exec, -1")
        A.L(end)
        self.I(f"v_lshlrev_b32 v220, 6, v3\nv_lshl_add_u32 v220, v4, 4, v220\nv_mov_b32 v5, {BIG}\nv_cmp_lt_u32 vcc, 6, v3\nv_cndmask_b32 v220, v220, v5, vcc\ns_waitcnt lgkmcnt(0)")
    def prep_store_items(self):
        F = self.PF
        it = [("v", f"buffer_store_dwordx4 {v(F+4*ft,4)}, v1, {WS}, s{70 if ft < 4 else 72 if ft == 4 else 69} offen offset:{(ft%4)*1024} sc1", "pst") for ft in range(7)]
        return it + [("v", f"buffer_store_dwordx4 {v(F+28,4)}, v220, {WS}, s71 offen sc1", "pst")]
    def wq_unit_addr(self):
        self.I(f"""s_lshr_b32 s47, s2, 3
        s_and_b32 s48, s2, 7
        s_mul_i32 s49, s47, 52
        s_lshr_b32 s49, s49, 8
        s_mul_i32 s50, s49, 5
        s_sub_u32 s50, s47, s50""")
        emit_xk(self.A, 49, 50, 31, 32)
        self.I(f"""s_mov_b32 s33, 8
        s_mov_b32 s34, 4
        s_mov_b32 s44, 0
        s_mov_b32 s45, 0
        s_mul_i32 s46, s48, 160
        s_mul_i32 s67, s48, 20
        s_add_u32 s67, s67, s47
        s_mul_i32 s68, s67, 384
        s_add_u32 s68, s68, {L.CSQP}
        s_mul_i32 s67, s67, 6144
        s_add_u32 s67, s67, {L.WQF}
        s_lshl_b32 s66, s48, 5
        s_add_u32 s66, s66, s47
        s_lshl_b32 s66, s66, 2
        s_add_u32 s66, s66, {L.FL_WQ}""")
        self.pieces(10, 6554, 1280, 100)
    def wq_unit_issue(self):
        for q in range(5): self.I(f"s_mov_b32 m0, {WQP_LDS + q*1024}\nbuffer_load_dwordx4 {v(100+q)}, {s(SRD_WQ,4)}, 0 offen lds")
        self.I(f"""s_mul_i32 s31, s31, 40
        s_mul_i32 s32, s32, 40
        s_add_u32 s32, s32, s31
        s_mov_b32 m0, {WQP_LDS + 5120}
        s_nop 0
        buffer_load_dwordx4 v1, {s(SRD_KV,4)}, s31 offen lds
        s_mov_b32 m0, {WQP_LDS + 6144}
        s_nop 0
        buffer_load_dwordx4 v1, {s(SRD_KV,4)}, s32 offen lds""")
    def wq_unit_finish(self):
        F = 132
        self.I(f"""v_lshrrev_b32 v5, 2, v0
        v_and_b32 v6, 3, v0
        v_mul_u32_u24 v7, 160, v5
        v_mad_u32_u24 v7, v6, 40, v7
        v_add_u32 v7, {WQP_LDS}, v7
        v_mul_u32_u24 v5, 40, v5
        v_lshl_add_u32 v5, v6, 3, v5
        s_and_b32 s36, s2, 1
        s_lshl_b32 s36, s36, 5
        s_add_u32 s36, s36, {WQP_LDS + 5120}
        v_add_u32 v5, s36, v5""")
        for ft in range(5):
            for u in range(2): self.I(f"ds_read_b64_tr_b16 {v(F+4*ft+2*u,2)}, v7 offset:{u*16*160 + ft*8}")
        for u in range(2): self.I(f"ds_read_b64_tr_b16 {v(F+20+2*u,2)}, v5 offset:{u*1024}")
        for ft in range(6):
            self.I(f"s_waitcnt lgkmcnt({2*(5-ft)})")
            if ft == 4: self.I("s_add_u32 s67, s67, 4096")
            self.I(f"buffer_store_dwordx4 {v(F+4*ft,4)}, v1, {WS}, s67 offen offset:{(ft%4)*1024} sc1")
        for ft in range(6): self.I(f"v_mfma_f32_16x16x32_bf16 {v(F+24+4*ft,4)}, {v(F+4*ft,4)}, v[192:195], 0")
        self.I("v_lshlrev_b32 v5, 4, v4\ns_mov_b32 exec_lo, 0x00010001\ns_mov_b32 exec_hi, 0x00010001")
        for ft in range(6): self.I(f"buffer_store_dwordx4 {v(F+24+4*ft,4)}, v5, {WS}, s68 offen offset:{ft*64} sc1")
        self.I("s_mov_b64 exec, -1")
    def x0_issue(self):
        self.lin(30, [(S_I, 64 * 1280), (S_WAVE, 16 * 1280)], 0, layer=False, tmp=31)
        self.lin(64, [(S_WAVE, 20480)], X0_LDS, layer=False)
        for a_ in range(4):
            self.I(f"v_add_u32 v5, {4*a_}, v4\nv_and_b32 v5, {self.cfg.xm}, v5\nv_xor_b32 v5, v5, v3\nv_lshlrev_b32 v5, 4, v5\nv_mad_u32_u24 {v(100+a_)}, v4, s54, v5")
        self.I(f"s_lshl_b32 s31, {s(S_WAVE)}, 2\nv_add_u32 v5, s31, v4\nv_and_b32 v5, {self.cfg.xm}, v5\nv_xor_b32 v5, v5, v3\nv_lshlrev_b32 v5, 4, v5\nv_mad_u32_u24 v105, v4, s54, v5")
        self.I("s_waitcnt lgkmcnt(0)")
        srd(self.A, SRD_X, 36, 2048 * 640 * 2)
        self.I(f"""s_bitcmp1_b32 {s(S_J)}, 1
        s_cselect_b32 {s(SRD_KV2)}, s42, s40
        s_cselect_b32 {s(SRD_KV2+1)}, s43, s41
        s_mov_b32 {s(SRD_KV2+2)}, {640*20*2}
        s_mov_b32 {s(SRD_KV2+3)}, 0x20000""")
        if self.cfg.fine == "p": self.stamp("p.setup")
        self.I(f"s_cmp_eq_u32 {s(S_WAVE)}, 0\ns_cbranch_scc1 L_x0done") if self.cfg.fine != "p" else None
        if self.cfg.xtouch:
            self.lin(32, [(S_I, 64 * 1280), (S_J, 10240), (S_WAVE, 8192, 1, 1)], 0, layer=False)
            self.lin(33, [(S_C, 8192, 2, 3)], 0, layer=False)
            self.I(f"""v_lshlrev_b32 v5, 7, v0
            s_cmp_eq_u32 {s(S_WAVE)}, 3
            s_cbranch_scc1 L_xt3
            buffer_load_dword v254, v5, {s(SRD_X,4)}, s32 offen
            s_branch L_xt4""")
            self.A.L("L_xt3")
            self.I(f"buffer_load_dword v254, v5, {s(SRD_KV2,4)}, s33 offen")
            self.A.L("L_xt4")
        for a_ in range(4):
            for b_ in range(5):
                self.I(f"s_add_u32 m0, s64, {(a_*5+b_)*1024}\ns_add_u32 s32, s30, {a_*5120 + b_*256}")
                self.I(f"buffer_load_dwordx4 {v(100+a_)}, {s(SRD_X,4)}, s32 offen lds")
            if self.cfg.fine == "p": self.stamp(f"p.a{a_}")
        self.lin(30, [(S_I, 64 * 1280)], 0, layer=False)
        self.lin(31, [(S_WAVE, 5120)], 0, layer=False)
        for b_ in range(5):
            self.I(f"s_add_u32 m0, s31, {X0_LDS + b_*1024}\ns_add_u32 s32, s30, s31\ns_add_u32 s32, s32, {b_*256}")
            self.I(f"buffer_load_dwordx4 v105, {s(SRD_X,4)}, s32 offen lds")
        for n in range(2):
            self.I(f"s_lshl_b32 s31, {s(S_WAVE)}, 1\ns_add_u32 s31, s31, {n}\ns_sub_u32 s31, s31, 2\ns_min_u32 s31, s31, 4")
            self.I(f"s_lshl_b32 s32, s31, 10\ns_add_u32 m0, s32, {X0_LDS}\ns_lshl_b32 s32, s31, 8\ns_add_u32 s32, s32, s30")
            self.I(f"buffer_load_dwordx4 v100, {s(SRD_X,4)}, s32 offen lds")
        if self.cfg.fine == "p": self.stamp("p.t0")
        self.I(f"s_sub_u32 s31, {s(S_WAVE)}, 1\ns_mul_i32 s52, s31, 9216\ns_add_u32 s53, s52, {KV0_LDS}")
        for k in range(9):
            if k and k % 4 == 0: self.I("s_add_u32 s52, s52, 4096\ns_add_u32 s53, s53, 4096")
            if k % 4 == 0: self.I("s_mov_b32 m0, s53")
            self.I(f"buffer_load_dwordx4 v1, {s(SRD_KV2,4)}, s52 offen offset:{(k%4)*1024} lds")
        self.A.L("L_x0done")
    def x0_read(self, X, SL):
        self.I(f"""v_lshrrev_b32 v5, 1, v4
        v_xor_b32 v5, v5, v3
        v_lshlrev_b32 v5, 4, v5
        v_and_b32 v6, 1, v4
        v_lshl_add_u32 v5, v6, 3, v5
        v_lshrrev_b32 v6, 2, v3
        v_mul_u32_u24 v6, 5120, v6
        v_and_b32 v7, 3, v3
        v_lshl_add_u32 v6, v7, 8, v6
        v_add3_u32 v104, v5, v6, s64""")
        for c in range(1, 8): self.I(f"v_xor_b32 {v(104+c)}, {c*32}, v104")
        for k in range(20):
            for u in range(2):
                x = 2 * L.xk(k // 5, k % 5, u)
                self.I(f"ds_read_b64 {v(X+4*k+2*u,2)}, {v(104 + ((x >> 5) & 7))} offset:{(x >> 8) * 1024}")
        for ft in range(5):
            self.I(f"""s_mul_i32 s36, {s(S_J)}, 160
            s_add_u32 s36, s36, {32*ft}
            s_and_b32 s37, s36, 0xe0
            s_lshr_b32 s36, s36, 8
            s_lshl_b32 s36, s36, 10
            v_xor_b32 v5, s37, v104
            v_add_u32 v5, s36, v5
            ds_read_b64 {v(XRES+2*ft,2)}, v5""")
        self.I("s_waitcnt lgkmcnt(0)")
    def x0_stats(self, X, SL):
        it = S_(f"v_mov_b32 {v(SL)}, 0\nv_mov_b32 {v(SL+1)}, 0\nv_mov_b32 {v(SL+2)}, 0\nv_mov_b32 {v(SL+3)}, 0")
        for i in range(0, 80, 2):
            it += S_(f"""v_dot2c_f32_bf16 {v(SL)}, v192, {v(X+i)}
            v_dot2c_f32_bf16 {v(SL+1)}, {v(X+i)}, {v(X+i)}
            v_dot2c_f32_bf16 {v(SL+2)}, v192, {v(X+i+1)}
            v_dot2c_f32_bf16 {v(SL+3)}, {v(X+i+1)}, {v(X+i+1)}""")
        return it + S_(f"v_pk_add_f32 {v(SL,2)}, {v(SL,2)}, {v(SL+2,2)}")

    def phase_att(self):
        A, vm, cfg = self.A, self.vm, self.cfg
        r = AT.AttRegs(20, 256)
        assert r.end <= 156
        A.L("L_att")
        pk0 = A.newlabel("kvp0")
        self.I(f"s_add_u32 s31, {s(S_L)}, {L.FL_KV}\ns_cmp_lg_u32 {s(S_WAVE)}, 0\ns_cbranch_scc1 {pk0}\nbuffer_load_dwordx4 v[156:159], v1, {WS}, s31 offen sc1")
        A.L(pk0)
        self.I(f"s_mov_b32 s59, 384\ns_mov_b32 s58, 0x3f803f80\ns_add_u32 s56, {s(S_L)}, {L.KVB}")
        AT.emit_kv_addr(A, r, 0, S_WAVE, 56)
        AT.emit_att_pre(self, r, 0, S_WAVE, QST, RED_A)
        w1w = cfg.w1warm * 128
        wo1 = self.lin_dma((S_J, 100 * 1024), L.WOF, WO_LDS, 25, 52, 53, "wo") + self.lin_dma((S_JP, 140 * 1024), L.W1F, W1A_LDS, 5, 52, 53, "wo")
        n0 = [it[0] for it in wo1].index("v") - 1
        def late_code():
            self.lin(46, [(2, 4)], L.FL_PREP, layer=False)
            assert L.GS <= 128 * 7 * 2048 and L.GS % (128 * 128) == 0
            self.lin(47, [(S_G, L.GS), (S_C, 4 * 2048), (S_WAVE, 2048)], L.GBASE, layer=False)
            self.I(f"s_cmp_eq_u32 {s(S_L)}, 0\ns_cselect_b32 s47, s47, {BIG}")
            self.I(f"v_lshrrev_b32 v6, 1, v0\nv_lshlrev_b32 v6, 6, v6\nv_and_b32 v7, 1, v0\nv_lshl_add_u32 {v(r.t+5)}, v7, 2, v6")
            self.I(f"s_mov_b32 s48, {L.FL_PREP}")
            self.lin(50, [(S_J, 280 * 1024), (S_WAVE, 70 * 1024)], L.W2F, layer=False, tmp=54)
            self.emit_list(wo1[:n0])
            self.lin(51, [(S_JP, 140 * 1024), (S_C, 4 * w1w, 4, 1), (S_WAVE, w1w)], L.W1F + W1AA * 1024, layer=False, tmp=36)
            self.I("s_getpc_b64 s[42:43]"); self.A.L("L_pc1")
            self.lin(36, [(S_C, 4), (S_WAVE, 1)], 0, layer=False, tmp=37)
            self.I(f"s_and_b32 s36, s36, 15\ns_lshl_b32 s36, s36, 11\ns_add_u32 s36, s36, L_chain-L_pc1\nv_add_u32 {v(r.pf)}, s36, {v(r.t+5)}\nv_min_u32 {v(r.pf)}, L_end-L_pc1, {v(r.pf)}")
            self.lin(44, [(S_G, L.GS), (S_I, 4 * L.XTS, 0, 3), (S_J, 5120, 1, None)], L.OFB, layer=False)
            self.lin(45, [(S_J, 8, 0, 1), (S_WAVE, 256), (44, 1)], 2048, layer=False)
            self.I(f"v_bfe_u32 v6, v0, 4, 1\nv_lshrrev_b32 {v(r.t+3)}, 5, v0\nv_mul_u32_u24 v6, {L.XTS}, v6\nv_lshlrev_b32 {v(r.t+4)}, 4, v3\nv_add3_u32 {v(r.t+4)}, {v(r.t+4)}, v6, s45")
            self.lin(45, [(S_J, 3072, 0, 1), (S_WAVE, 1024, 1, None), (S_WAVE, 512, 0, 1), (44, 1)], 0, layer=False)
            self.I(f"v_lshlrev_b32 {v(r.t+3)}, 8, {v(r.t+3)}\nv_lshl_add_u32 {v(r.t+3)}, v3, 4, {v(r.t+3)}\nv_add3_u32 {v(r.t+3)}, {v(r.t+3)}, v6, s45")
            self.flag_x_off(L.FL_O, 49)
            self.I(f"s_mov_b32 s62, {hexf(2.0**-60)}\nv_mov_b32 {v(r.t+7)}, {hexf(2.0**60)}\nv_mov_b32 {v(r.t+6)}, 0x203")
            self.oproj_setup()
            self.mlp1_setup()
        raw = self.collect(late_code); wo1 = wo1[n0:]
        late = []
        for it in raw:
            if late and (it[1].startswith("s_cselect") or it[1].endswith(":")): late[-1].append(it)
            else: late.append([it])
        self.w2_items = self.load_wfrags([w2_reg(k) for k in range(70)], 50, "w2")
        w2a = self.take(self.w2_items, W2A)
        t16 = lambda sg, step, tag: [("v", f"buffer_load_dword v5, {v(r.t+5)}, {WS}, s{sg} offen", tag), ("s", f"s_add_u32 s{sg}, s{sg}, {step}")]
        warm = [t16(51, 2048, "pf51") for _ in range(-(-w1w // 2048))]
        p1 = []
        for n in range(63):
            p1 += self.take(w2a if (n % 2 == 0 and w2a) or not wo1 else wo1, 1)
            if n >= cfg.wstart and (n - cfg.wstart) % cfg.wstep == 0 and warm: p1 += warm.pop(0)
        p1 += w2a + wo1 + sum(warm, [])
        pk = A.newlabel("kvp")
        self.I(f"s_cmp_lg_u32 {s(S_WAVE)}, 0\ns_cbranch_scc1 {pk}")
        self.poll(1, 31, dev=True, wide=True, pre=True)
        self.I(f"""v_cmp_ne_u32 vcc, 0, v156
        s_lshl_b32 s36, {s(S_G)}, 3
        v_mov_b32 v6, {M_MODE}
        s_lshr_b64 s[64:65], vcc, s36
        s_and_b32 s64, s64, 0xff
        s_cselect_b32 s64, 1, {1 if cfg.force_global else 0}
        v_mov_b32 v7, s64
        ds_write_b32 v6, v7
        s_waitcnt lgkmcnt(0)""")
        A.L(pk)
        self.I("s_barrier")
        self.stamp("kv.poll")
        pf_ = A.newlabel('pfl'); ok = A.newlabel("prepok"); again = A.newlabel("prepagain"); l1 = A.newlabel("l1skip"); l2 = A.newlabel("l1skip")
        chk = S_(f"s_cmp_lg_u32 {s(S_L)}, 0\ns_cbranch_scc1 {l2}\ns_mov_b32 s35, 0\n{again}:\ns_waitcnt vmcnt(0)")
        chk += S_("\n".join(f"v_xor_b32 v{156+k}, {s(S_TAG)}, v{156+k}" for k in range(4)))
        chk += S_(f"""v_or3_b32 v156, v156, v157, v158
        v_or_b32 v156, v156, v159
        v_cmp_lt_u32 vcc, 7, v156
        s_add_u32 s35, s35, 1
        s_cmp_gt_u32 s35, 0x100000
        s_cbranch_scc1 {ok}
        s_cbranch_vccz {ok}
        buffer_load_dwordx4 v[156:159], v1, {WS}, s48 offen sc1
        s_branch {again}
        {ok}:
        {l2}:""")
        self.loops[again] = 0
        pos = lambda n: (1 + n // 16, n % 16)
        ev = {cfg.pflag: S_(f"s_cmp_lg_u32 {s(S_L)}, 0\ns_cbranch_scc1 {l1}\ns_waitcnt vmcnt(0)\ns_barrier\ns_cmp_lg_u32 {s(S_WAVE)}, 0\ns_cbranch_scc1 {pf_}\nv_mov_b32 v5, {s(S_TAG)}\ns_mov_b64 exec, 1\nbuffer_store_dword v5, off, {WS}, s46 sc1\ns_mov_b64 exec, -1\n{pf_}:\n{l1}:"),
              pos(cfg.pchk - 2): [("v", f"buffer_load_dwordx4 v[156:159], v1, {WS}, s48 offen sc1", "prepfl")],
              pos(cfg.pchk): chk}
        for n_, it_ in enumerate(self.prep_store_items()): ev[(0, cfg.pst * n_)] = [it_]
        ev2 = {cfg.ct2: [("v", f"global_load_dword v5, {v(r.pf)}, s[42:43]", "ct")]}
        if cfg.ct1: ev[cfg.ct1] = self.code_touch("L_p2", 1, r.aR if False else 7, 5)
        for key in cfg.tpos: ev2.setdefault(key, []).extend(t16(47, 128 * 2048, "touch"))
        AT.emit_att_main(self, r, 0, S_WAVE, QST, RED_A, 4, "sc1", cfg.nf, ev, ev2, p1, pos(cfg.pchk + 1), late)
        A.L("L_chain")
        vm.wait_all()
        self.stamp("att.main")
        self.I(f"v_mov_b32 v6, {M_BAD}\nds_read_b64 {v(r.Q2[0],2)}, v6")
        AT.emit_att_finish(self, r, 4, r.t + 3, r.t + 4, "", 2 * L.XTS)
        self.I(f"v_readfirstlane_b32 {s(S_MODE)}, {v(r.Q2[0]+1)}")
        self.stamp("att.fin")
        nb = A.newlabel("nobad"); bd = A.newlabel("bad")
        if self.cfg.force_bad: self.I(f"s_and_b32 s64, {s(S_WAVE)}, 1\ns_mov_b32 s65, 0")
        self.emit_list(self.take(self.w2_items, self.cfg.fin_w2))
        self.I(f"""s_cmp_lg_u32 {s(S_RETRY)}, 0
        s_cselect_b64 s[64:65], 0, s[64:65]
        s_cmp_lg_u64 s[64:65], 0
        s_cbranch_scc1 {bd}""")
        if self.cfg.diag != "noack": vm.wait("st")
        self.I(f"s_cmp_lg_u32 s57, 0\ns_cbranch_scc1 {nb}")
        self.signal(49); vm.q.pop()
        self.I(f"s_mov_b32 s57, {BIG}\ns_branch {nb}")
        A.L(bd)
        self.I("ds_write_b32 v6, v6")
        A.L(nb)
        self.I(f"s_waitcnt lgkmcnt(0)\ns_barrier\nds_read_b32 v7, v6")
        self.w1a = self.lin_dma((S_JP, 140 * 1024), L.W1F + W1AA * 1024, W1A_LDS + W1AA * 1024, 9, 46, 47, "w1")
        self.I(f"s_waitcnt lgkmcnt(0)\nv_readfirstlane_b32 s36, v7\ns_cmp_lg_u32 s36, 0\ns_cbranch_scc1 L_slow")
        self.I(f"s_mov_b32 {s(S_RETRY)}, 0")
        keep = self.A; A2 = Asm(); A2.uid = 100000; self.A = A2
        A2.L("L_slow")
        self.I(f"s_mov_b32 s69, {BIG}\ns_mov_b32 s70, {BIG}\ns_mov_b32 s71, {BIG}\ns_mov_b32 s72, {BIG}\nv_mov_b32 v220, 0")
        self.I(f"s_mov_b32 {s(S_RETRY)}, 1\ns_waitcnt vmcnt(0)\ns_barrier\nv_mov_b32 v7, 0\nds_write_b32 v6, v7")
        if self.cfg.diag == "att2": self.I("s_waitcnt lgkmcnt(0)\ns_barrier\ns_branch L_att")
        AT.emit_kv_addr(A2, r, 0, S_WAVE, 56)
        for k in range(AT.NT):
            for it in AT.kv_items(r, 4, "sc1", k): self.I(it[1])
            if k % 8 == 7: self.I("s_waitcnt vmcnt(0)")
        AT.emit_att_truemax(self, r, 0, S_WAVE, QST, RED_A)
        self.I("s_branch L_att")
        self.A = keep; self.slow = A2.ins
        self.emit_list(self.take(self.w1a, self.cfg.s1_w1a))

    def oproj_setup(self):
        self.lin(30, [(S_G, L.GS), (S_I, 4 * L.XTS, 0, 3), (S_WAVE, L.XTS)], L.OFB, layer=False)
        self.resid_setup(L.XMID, L.STATMID, L.FL_X1)
        self.lin(33, [(S_I, 128)], L.FL_O)
    def phase_oproj(self):
        vm = self.vm
        X, WB, ACC = 256, 68, 108
        sk = self.A.newlabel("cs1l")
        self.I(f"s_cmp_lg_u32 {s(S_L)}, 0\ns_cbranch_scc1 {sk}")
        self.csum_loads(24, (S_JP, 20 * 448), L.CS1P, 448, 0xfffffff, "cs")
        self.A.L(sk)
        self.I("v_bfe_u32 v66, v0, 2, 2\nv_lshlrev_b32 v66, 5, v66\nv_and_b32 v67, 3, v0\nv_lshl_add_u32 v66, v67, 2, v66")
        self.I(f"v_add_u32 v64, {WO_LDS}, v1\nv_add_u32 v65, {WO_LDS + 51200}, v1")
        self.I("v_and_b32 v6, 31, v0\nv_lshlrev_b32 v6, 2, v6")
        self.poll2(6, 33, (5, 7)) if self.cfg.pp else self.poll(6, 33)
        def load(k):
            if k and k % 4 == 0: self.I("s_add_u32 s30, s30, 4096")
            vm.issue(f"buffer_load_dwordx4 {R(X+4*k,4)}, v1, {WS}, s30 offen offset:{(k%4)*1024} sc1", ("x", k))
        nl = 0
        while nl < 7: load(nl); nl += 1
        self.stamp("o.poll")
        D, NB = self.cfg.odepth, 10
        nxt = []
        ow2 = self.take(self.w2_items, self.cfg.o_w2)
        def rd(i): self.I(f"ds_read_b128 {v(WB+4*(i%NB),4)}, v{64 + i//50} offset:{(i%50)*1024}")
        for i in range(D): rd(i)
        for i in range(100):
            k, ft = divmod(i, 5)
            if ft == 0: vm.wait(("x", k))
            self.I(f"s_waitcnt lgkmcnt({min(D - 1, 99 - i)})")
            d = ACC + 4 * ft
            self.I(f"v_mfma_f32_16x16x32_bf16 {v(d,4)}, {v(WB+4*(i%NB),4)}, {R(X+4*k,4)}, {'0' if k == 0 else v(d,4)}")
            if i + D < 100: rd(i + D)
            if i % 4 != 1 and i >= 8 and nxt: self.emit_list(nxt.pop(0))
            if i % 4 == 1:
                if nl < 20: load(nl); nl += 1
                elif self.w1a: self.emit_list(self.take(self.w1a, 1))
                else: self.emit_list(self.take(ow2, 1))
        self.emit_list(self.w1a + ow2 + sum(nxt, []))
        self.stamp("o.mm")
        self.resid_epilogue(ACC)
        self.I("s_barrier")
        b1 = self.cfg.b1n
        self.window(self.lin_dma((S_JP, 140 * 1024), L.W1F + 56 * 1024, W1B_LDS, b1, 52, 53, "w1b"), n1=self.cfg.s2_n1)
        self.w1b = self.lin_dma((S_JP, 140 * 1024), L.W1F + (56 + 4 * b1) * 1024, W1B_LDS + 4 * b1 * 1024, 21 - b1, 52, 53, "w1b")
        self.kbar = (56 + 4 * b1) // 7 - 1
        sk = self.A.newlabel("cs1a")
        self.I(f"s_cmp_lg_u32 {s(S_L)}, 0\ns_cbranch_scc1 {sk}")
        self.csum_part(24, M_CS1P, 448, 0xfffffff)
        self.A.L(sk)
        self.stamp("o.epi")

    def mlp1_setup(self):
        for e in range(2):
            self.lin(82 + e, [(S_IP, 8, 0, 1), (S_WAVE, 2)], e, layer=False)
            self.lin(80 + e, [(82 + e, L.XTS), (S_G, L.GS)], L.XMID, layer=False)
            self.lin(84 + e, [(82 + e, L.HTS), (S_G, L.GS), (S_JP, 7168, 1, None)], L.HFB, layer=False)
            self.lin(86 + e, [(S_JP, 4096, 0, 1), (84 + e, 1)], 0, layer=False)
            self.I(f"s_and_b32 s36, {s(S_JP)}, 1\ns_lshl_b32 s36, s36, 3\ns_add_u32 s{84+e}, s{84+e}, s36")
            self.lin(82 + e, [(82 + e, 4096), (S_G, L.GS)], L.STATMID, layer=False)
        self.lin(88, [(S_IP, 256), (S_WAVE, 128, 1, None), (S_JP, 8), (S_WAVE, 4, 0, 1)], L.FL_H)
        self.lin(89, [(S_IP, 256), (S_WAVE, 128, 1, None), (S_WAVE, 16, 0, 1)], L.FL_X1)
        self.I(f"s_mov_b32 s90, {hexf(math.log2(math.e))}\ns_mov_b32 s91, s90\ns_mov_b32 s92, {hexf(math.sqrt(0.5))}\ns_mov_b32 s93, s92")
    def phase_mlp1(self):
        A, vm = self.A, self.vm
        ACC, SL, ST, AD, XR, NXR, WB = 20, 76, 108, 116, 256, 8, 320
        self.poll2(66, 89, (5, 6))
        self.I(f"""v_add_u32 {v(AD)}, {W1A_LDS}, v1
        v_add_u32 {v(AD+1)}, {W1B_LDS}, v1
        v_add_u32 {v(AD+2)}, {W1B_LDS + 8*7168}, v1
        v_lshlrev_b32 {v(AD+3)}, 4, v4
        v_add_u32 {v(AD+3)}, {M_CS1}, {v(AD+3)}""")
        nxt = self.units(self.collect(self.mlp2_setup))
        def xr(k, e): return XR + 8 * (k % NXR) + 4 * e
        def load(k):
            for e in range(2):
                if k and k % 4 == 0: self.I(f"s_add_u32 s{80+e}, s{80+e}, 4096")
                vm.issue(f"buffer_load_dwordx4 {R(xr(k,e),4)}, v1, {WS}, s{80+e} offen offset:{(k%4)*1024} sc1", ("x", k))
        def wread(k, ft): return f"ds_read_b128 {R(WB + 28*(k%2) + 4*ft, 4)}, {v(AD + k//8)} offset:{(k%8)*7168 + ft*1024}"
        PD = 5
        nl = 0
        while nl < 4: load(nl); nl += 1
        self.I("s_barrier")
        self.stamp("x1.poll")
        w2_in_loop = self.take(self.w2_items, 32 - self.cfg.fin_w2 - self.cfg.o_w2)
        sl_items = []
        for e in range(2):
            for n in range(4):
                sl_items.append(("v", f"buffer_load_dwordx4 {v(SL+16*e+4*n,4)}, v1, {WS}, s{82+e} offen offset:{n*1024} sc1", "stat"))
        def stat_code():
            for e in range(2):
                self.stat_finish(SL + 16 * e, ST + 4 * e, packed=False)
                self.I(f"v_mov_b32 {v(ST+4*e+2)}, {v(ST+4*e+1)}")
        sh = self.collect(stat_code) if self.cfg.m1sh else []
        for ft in range(7): self.I(wread(0, ft))
        for k in range(20):
            vm.wait(("x", k))
            if k == self.kbar:
                vm.wait("w1b"); self.I("s_barrier")
            if k == 16 and sh: vm.wait("stat")
            self.I("s_waitcnt lgkmcnt(0)")
            n = 0
            for ft in range(7):
                for e in range(2):
                    d = ACC + 28 * e + 4 * ft
                    self.I(f"v_mfma_f32_16x16x32_bf16 {v(d,4)}, {R(WB+28*(k%2)+4*ft,4)}, {R(xr(k,e),4)}, {'0' if k == 0 else v(d,4)}")
                    if k + 1 < 20 and n < 7: self.I(wread(k + 1, n))
                    if n == 7 and nl < min(k + PD, 20): load(nl); nl += 1
                    if n == 9 and nl < min(k + 1 + PD, 20): load(nl); nl += 1
                    if n == 11 or (n == 8 and (nl == 20 or k % 2 == 0 or (self.w1b and self.kbar < 13))):
                        if self.w1b: self.emit_list(self.take(self.w1b, 1))
                        elif sl_items: self.emit_list(self.take(sl_items, 1))
                        else: self.emit_list(self.take(w2_in_loop, 1))
                    if n == 5 and nl == 20: self.emit_list(self.take(w2_in_loop, 1))
                    if k >= 16 and sh: self.emit_list(sh[:2]); sh = sh[2:]
                    if 4 <= k < 16 and nxt: self.emit_list(nxt.pop(0))
                    n += 1
            if k == 3:
                sk = A.newlabel("cs1b")
                self.I(f"s_cmp_lg_u32 {s(S_L)}, 0\ns_cbranch_scc1 {sk}")
                self.csum_final(120 - 4 * 0, M_CS1P, 448, M_CS1, 0xfffffff) if False else self.csum_final(SL + 16, M_CS1P, 448, M_CS1, 0xfffffff)
                A.L(sk)
            assert k < self.kbar - 2 or not self.w1b
            if k == self.cfg.ct3: self.emit_list(self.code_touch("L_mlp2", 1, 6, 5))
            if self.cfg.fine == "m" and k in (0, 4, 9, 14): self.stamp(f"m1.k{k}")
        assert not sh and not sl_items and not nxt
        self.w2_items = w2_in_loop + self.w2_items
        self.stamp("m1.mm")
        self.I("s_barrier")
        if not self.cfg.m1sh:
            vm.wait("stat"); stat_code()
        CB = SL; T = 120; PK = [[128, 116], [92, 96]]
        def cbread(ft):
            b = CB + 8 * (ft % 2)
            self.I(f"ds_read_b128 {v(b,4)}, v7 offset:{ft*64}\nds_read_b128 {v(b+4,4)}, v7 offset:{448+ft*64}")
        self.I(f"v_mov_b32 v7, {v(AD+3)}")
        cbread(0)
        if self.cfg.fine == "m": self.stamp("m1.stat")
        for ft in range(7):
            ch = [(e, h) for e in range(2) for h in range(2)]
            D = lambda c: ACC + 28 * c[0] + 4 * ft + 2 * c[1]
            Tt = lambda c: T + 4 * c[0] + 2 * c[1]
            b = CB + 8 * (ft % 2); q = ft // 2
            self.I("s_waitcnt lgkmcnt(0)")
            if ft + 1 < 7: cbread(ft + 1)
            for c in ch: self.I(f"v_pk_fma_f32 {v(D(c),2)}, {v(ST+4*c[0],2)}, {v(b+2*c[1],2)}, {v(D(c),2)} op_sel_hi:[0,1,1]")
            for c in ch: self.I(f"v_pk_fma_f32 {v(D(c),2)}, {v(D(c),2)}, {v(ST+4*c[0]+2,2)}, {v(b+4+2*c[1],2)} op_sel_hi:[1,0,1]")
            for c in ch: self.I(f"v_pk_fma_f32 {v(Tt(c),2)}, {v(D(c),2)}, s[90:91], -0.5 op_sel_hi:[1,1,0]")
            for c in ch: self.I(f"v_exp_f32 {v(Tt(c))}, {v(Tt(c))}\nv_exp_f32 {v(Tt(c)+1)}, {v(Tt(c)+1)}")
            for c in ch: self.I(f"v_pk_add_f32 {v(Tt(c),2)}, {v(Tt(c),2)}, s[92:93]")
            for c in ch: self.I(f"v_pk_fma_f32 {v(Tt(c),2)}, {v(Tt(c),2)}, {v(Tt(c),2)}, 0.5 op_sel_hi:[1,1,0]")
            for c in ch: self.I(f"v_rcp_f32 {v(Tt(c))}, {v(Tt(c))}\nv_rcp_f32 {v(Tt(c)+1)}, {v(Tt(c)+1)}")
            for c in ch: self.I(f"v_pk_fma_f32 {v(D(c),2)}, {v(D(c),2)}, {v(Tt(c),2)}, {v(D(c),2)} neg_lo:[1,0,0] neg_hi:[1,0,0]")
            for c in ch: self.I(f"v_cvt_pk_bf16_f32 {v(PK[c[0]][q%2]+2*(ft%2)+c[1])}, {v(D(c))}, {v(D(c)+1)}")
            if ft % 2 == 1:
                for e in range(2): vm.issue(f"buffer_store_dwordx4 {v(PK[e][q%2],4)}, v1, {WS}, s{86+e} offen offset:{q*1024} {self.cfg.hst}", "st")
            elif ft == 6:
                for e in range(2): vm.issue(f"buffer_store_dwordx2 {v(PK[e][q%2],2)}, v1, {WS}, s{84+e} offen offset:3072 {self.cfg.hst}", "st")
            elif ft < self.cfg.mish_ld:
                self.emit_list(self.take(self.w2_items, 2))
        if self.cfg.fine == "m": self.stamp("m1.mish")
        self.n_left = sum(1 for it in self.w2_items if it[0] == "v")
        self.wqa = self.lin_dma((S_J, 120 * 1024), L.WQF, WQ_LDS, 30, 52, 53, "wq")
        self.window(self.w2_items + self.take(self.wqa, self.cfg.s3_wq), n1=self.cfg.s3_n1, fl=88)
        self.stamp("m1.epi")

    def mlp2_setup(self):
        NS = 14
        for p in range(4):
            self.I(f"s_add_u32 s37, {s(S_WAVE)}, {p+1}\ns_and_b32 s37, s37, 3")
            self.lin(44 + p, [(37, 5120)], RED_K, layer=False)
            self.lin(30 + p, [(37, L.HTS), (S_G, L.GS), (S_I, 4 * L.HTS, 0, 3), (S_WAVE, NS * 1024)], L.HFB, layer=False)
        self.resid_setup(L.XIN, L.STATIN, L.FL_XIN + L.LS)
        self.lin(48, [(S_I, 128), (S_WAVE, 32)], L.FL_H)
    def phase_mlp2(self):
        A, vm = self.A, self.vm
        NS, XR, NR, accs, stage, PD, P0 = 14, 276, 25, [20, 40], 60, self.cfg.pd2, 6
        fine = self.cfg.fine == "h"
        self.I("v_and_b32 v120, 7, v0\nv_lshlrev_b32 v120, 2, v120")
        self.poll2(120, 48, (5, 121))
        nxt = self.units(self.collect(lambda: self.qkv_setup(False)))
        self.stamp("h.poll")
        if self.cfg.wb:
            sk = A.newlabel("wb")
            self.I(f"s_and_b32 s36, {s(S_C)}, {self.cfg.wb - 1}\ns_or_b32 s36, s36, {s(S_WAVE)}\ns_cbranch_scc1 {sk}\nbuffer_wbl2 sc1")
            A.L(sk)
        items = [(p, st) for p in range(4) for st in range(NS)]
        def xr(k): return XR + 4 * (k % NR)
        def load(k):
            p, st = items[k]
            if st % 4 == 0: self.I(f"s_add_u32 s34, s{30+p}, {(st//4)*4096}")
            vm.issue(f"buffer_load_dwordx4 {R(xr(k),4)}, v1, {WS}, s34 offen offset:{(st%4)*1024} {self.cfg.hld}", ("x", k))
        nl = 0
        while nl < P0: load(nl); nl += 1
        NM = 5 * NS; nwq = 0
        for k, (p, st) in enumerate(items):
            acc = accs[p % 2]
            if st == 0:
                fill = {}
                T0, T1 = stage + 20 * (p % 2), stage + 20 * ((p + 1) % 2)
                if p > 0:
                    prev = accs[(p - 1) % 2]
                    fill.setdefault(0, []).append(f"v_add_u32 v7, s{44+p-1}, v1")
                    if p > 1: fill.setdefault(3, []).append("s_waitcnt lgkmcnt(0)")
                    for ft in range(5):
                        m = 4 + 5 * ft
                        if p > 1:
                            for n in range(4): fill.setdefault(m + n // 2, []).append(f"v_add_f32 {v(T1+4*ft+n)}, {v(T1+4*ft+n)}, {v(prev+4*ft+n)}")
                        fill.setdefault(m + 2, []).append(f"ds_write_b128 v7, {v((T1 if p > 1 else prev)+4*ft,4)} offset:{ft*1024}")
                    fill.setdefault(38, []).append(f"s_waitcnt lgkmcnt(0)\ns_barrier\nv_add_u32 v6, s{44+p}, v1")
                    for ft in range(5): fill.setdefault(40 + 2 * ft, []).append(f"ds_read_b128 {v(T0+4*ft,4)}, v6 offset:{ft*1024}")
            vm.wait(("x", k))
            if fine and st == 0: self.stamp(f"k.g{p}")
            for ft in range(5):
                c = "0" if st == 0 else v(acc + 4 * ft, 4)
                self.I(f"v_mfma_f32_16x16x32_bf16 {v(acc+4*ft,4)}, {R(w2_reg(5*st+ft),4)}, {R(xr(k),4)}, {c}")
                for x in fill.get(5 * st + ft, []): self.I(x)
                if ft == 1 and k % 2 == 0 and nl < min(k + PD, len(items)): load(nl); nl += 1
                if ft == 3 and k >= 4 and nxt: self.emit_list(nxt.pop(0))
            if nl < min(k + 1 + PD, len(items)): load(nl); nl += 1
            elif k == len(items) - 10 and self.cfg.wb2:
                sk = A.newlabel("wb")
                self.I(f"s_and_b32 s36, {s(S_C)}, {self.cfg.wb2 - 1}\ns_or_b32 s36, s36, {s(S_WAVE)}\ns_cbranch_scc1 {sk}\ns_cmp_eq_u32 {s(S_L)}, 0\ns_cbranch_scc1 {sk}\nbuffer_wbl2 sc1")
                A.L(sk)
            elif nl == len(items) and nwq < self.cfg.wqn: self.emit_list(self.take(self.wqa, 2)); nwq += 2
        if fine: self.stamp("k.mend")
        self.I("s_waitcnt lgkmcnt(0)")
        for i in range(0, 20, 2): self.I(f"v_pk_add_f32 {v(accs[1]+i,2)}, {v(accs[1]+i,2)}, {v(stage+20+i,2)}")
        self.stamp("m2.mm")

    def init_lds_consts(self):
        A, vm = self.A, self.vm
        self.I("s_mov_b32 s53, 0"); emit_realtile(A, S_JP, 53, 54, 56, 58)
        self.I("s_mov_b32 s53, 6"); emit_realtile(A, S_JP, 53, 55, 57, 58)
        self.I(f"""s_lshl_b32 s54, s54, 5
        v_mov_b32 v6, s57
        v_cmp_lt_u32 vcc, 23, v0
        v_cndmask_b32 v6, 0, v6, vcc
        v_add_u32 v6, v6, v2""")
        vm.issue(f"buffer_load_dwordx2 v[252:253], v6, s[12:15], s54 offen", "b1")
    def init_lds_finish(self):
        self.I(f"""v_lshlrev_b32 v20, 16, v252
        v_and_b32 v21, 0xffff0000, v252
        v_lshlrev_b32 v22, 16, v253
        v_and_b32 v23, 0xffff0000, v253
        v_add_u32 v6, {M_B1}, v1
        s_mov_b64 exec, 0x0fffffff
        ds_write_b128 v6, v[20:23]
        s_mov_b64 exec, -1
        v_mov_b32 v6, {M_BAD}
        v_mov_b32 v7, 0
        ds_write_b32 v6, v7""")

def build_main(cfg):
    G = Gen(cfg); A = G.A; vm = G.vm
    Gen.cold = []
    G.I("s_cmp_ge_u32 s2, 256\ns_cbranch_scc1 L_end")
    if cfg.ctouch:
        G.I(f"s_cmp_ge_u32 s2, {8 * cfg.ctouch}\ns_cbranch_scc1 L_noct\ns_getpc_b64 s[62:63]")
        A.L("L_pc0")
        G.I(f"""s_lshr_b32 s30, s2, 3
        s_and_b32 s30, s30, 1
        s_lshl_b32 s30, s30, 15
        v_lshlrev_b32 v5, 7, v0
        v_add_u32 v5, s30, v5
        v_min_u32 v5, L_codeend-L_pc0-4, v5
        global_load_dword v255, v5, s[62:63]""")
        A.L("L_noct")
    G.I(f"""
    s_load_dwordx8 s[36:43], s[0:1], 0
    s_load_dwordx2 s[96:97], s[0:1], 32       ; wo
    s_load_dwordx2 s[98:99], s[0:1], 48       ; w1
    s_load_dwordx2 s[56:57], s[0:1], 56       ; b1
    s_load_dwordx2 s[100:101], s[0:1], 64     ; w2
    s_load_dwordx2 s[58:59], s[0:1], 72       ; out
    s_load_dwordx2 s[60:61], s[0:1], 88       ; ws
    v_lshrrev_b32 v2, 6, v0
    v_and_b32 v0, 63, v0
    v_readfirstlane_b32 {s(S_WAVE)}, v2
    v_lshlrev_b32 v1, 4, v0
    v_lshlrev_b32 v2, 3, v0
    v_and_b32 v3, 15, v0
    v_lshrrev_b32 v4, 4, v0
    s_and_b32 {s(S_G)}, s2, 7
    s_lshr_b32 {s(S_C)}, s2, 3
    s_lshl_b32 {s(S_I)}, {s(S_G)}, 2
    s_lshr_b32 s30, {s(S_C)}, 3
    s_add_u32 {s(S_I)}, {s(S_I)}, s30
    s_and_b32 {s(S_J)}, {s(S_C)}, 7
    s_lshl_b32 {s(S_IP)}, {s(S_G)}, 1
    s_lshr_b32 s30, {s(S_C)}, 4
    s_add_u32 {s(S_IP)}, {s(S_IP)}, s30
    s_and_b32 {s(S_JP)}, {s(S_C)}, 15
    s_mov_b32 {s(S_L)}, 0
    s_mov_b32 {s(S_MODE)}, 1
    s_mov_b32 {s(S_RETRY)}, 0
    s_getreg_b32 {s(S_TAG)}, hwreg(HW_REG_XCC_ID, 0, 3)
    """)
    if cfg.prof: G.I("s_mov_b32 s77, 0\nv_mov_b32 v19, 0\ns_memrealtime s[78:79]\ns_waitcnt lgkmcnt(0)\nv_writelane_b32 v19, s78, 62")
    G.stamp("start")
    G.I(f"s_cmp_lt_u32 s2, 160\ns_cselect_b32 s73, 0, 1\ns_or_b32 s73, s73, {s(S_WAVE)}\ns_cbranch_scc1 L_nowq1")
    G.wq_unit_addr()
    G.I("s_waitcnt lgkmcnt(0)")
    srd(A, SRD_WQ, 38, 640 * 640 * 2)
    G.I(f"""s_bitcmp1_b32 s2, 1
    s_cselect_b32 {s(SRD_KV)}, s42, s40
    s_cselect_b32 {s(SRD_KV+1)}, s43, s41
    s_mov_b32 {s(SRD_KV+2)}, {640*20*2}
    s_mov_b32 {s(SRD_KV+3)}, 0x20000""")
    G.wq_unit_issue()
    A.L("L_nowq1")
    G.I("s_movk_i32 s54, 1280")
    G.x0_issue()
    G.I(f"s_load_dword {s(S_EPOCH)}, s[60:61], {L.EPOCH}")
    srd(A, 4, 60, L.WS_USED); srd(A, 8, 58, 2048 * 640 * 2); srd(A, 12, 56, 1728 * 2); srd(A, SRD_SRC, 96, 640 * 640 * 2)
    G.I("v_mov_b32 v192, 0x3f803f80\nv_mov_b32 v193, 0x3f803f80\nv_mov_b32 v194, 0x3f803f80\nv_mov_b32 v195, 0x3f803f80")
    G.I(f"""s_cmp_ge_u32 s2, 160
    s_cselect_b32 s36, 0, 1
    s_or_b32 s36, s36, {s(S_WAVE)}
    s_cbranch_scc1 L_notouch
    s_sub_u32 s36, s2, 160
    s_lshl_b32 s37, s36, 13
    s_add_u32 s37, s37, {L.KVB}
    s_cmp_eq_u32 s36, {2 * L.LS // 8192 + 1}
    s_cselect_b32 s37, {L.FL_PREP}, s37
    s_cmp_gt_u32 s36, {2 * L.LS // 8192 + 1}
    s_cbranch_scc1 L_notouch
    v_lshlrev_b32 v5, 7, v0
    buffer_load_dword v254, v5, {WS}, s37 offen""")
    A.L("L_notouch")
    G.init_lds_consts()
    G.I(f"s_waitcnt lgkmcnt(0)\ns_mul_i32 {s(S_EPOCH)}, {s(S_EPOCH)}, 1664525\ns_add_u32 {s(S_EPOCH)}, {s(S_EPOCH)}, 1013904223")
    G.I(f"s_and_b32 s36, {s(S_EPOCH)}, 0xfffffff8\ns_or_b32 {s(S_TAG)}, {s(S_TAG)}, s36")
    G.stamp("p0.issue")
    G.prep_issue()
    G.I("s_cmp_lg_u32 s73, 0\ns_cbranch_scc1 L_nowq2\ns_waitcnt vmcnt(1)")
    G.wq_unit_finish()
    G.I("s_waitcnt vmcnt(0)")
    G.signal(66, dev=True)
    G.I("s_branch L_wq3")
    A.L("L_nowq2")
    G.I("s_waitcnt vmcnt(0)")
    A.L("L_wq3")
    vm.q = []
    G.stamp("p0.x")
    if cfg.wtouch:
        per = -(-(L.PROF - L.WOF) // (256 * 128)) * 128
        G.lin(36, [(2, per)], L.WOF, layer=False)
        G.I(f"s_cmp_lg_u32 {s(S_WAVE)}, {cfg.wtouch - 1}\ns_cbranch_scc1 L_nowt\nv_lshlrev_b32 v5, 7, v0")
        for n in range(-(-per // 8192)):
            G.I(f"buffer_load_dword v254, v5, {WS}, s36 offen\ns_add_u32 s36, s36, 8192")
        A.L("L_nowt")
    if cfg.pdma == 9: G.emit_list(G.prep_dma_items())
    G.qkv_setup(True)
    G.init_lds_finish()
    G.I("s_barrier")
    G.x0_read(20, 196)
    G.I("s_barrier")
    G.stamp("p0.read")
    G.phase_qkv(True)
    G.prep_read()
    G.stamp("prep")
    A.L("L_layer")
    G.I("s_mov_b32 s57, 0")
    G.phase_att()
    G.I(f"s_cmp_lg_u32 s2, 0\ns_cbranch_scc1 L_noep\nv_mov_b32 v5, {s(S_EPOCH)}\ns_mov_b32 s36, {L.EPOCH}\ns_mov_b64 exec, 1\nbuffer_store_dword v5, off, {WS}, s36\ns_mov_b64 exec, -1")
    A.L("L_noep")
    G.phase_oproj()
    G.phase_mlp1()
    A.L("L_mlp2")
    G.phase_mlp2()
    G.I(f"s_cmp_lg_u32 {s(S_L)}, 0\ns_cbranch_scc1 L_final")
    q0 = list(vm.q)
    G.resid_epilogue(40, statreg=60)
    G.window(G.wqa, n1=cfg.s4_n1)
    G.stamp("m2.epi")
    G.I(f"s_mov_b32 {s(S_L)}, {L.LS}")
    G.poll2(122, 98, (5, 7))
    G.stamp("xin.poll")
    G.phase_qkv(False)
    G.I(f"s_mov_b32 s69, {BIG}\ns_mov_b32 s70, {BIG}\ns_mov_b32 s71, {BIG}\ns_mov_b32 s72, {BIG}\nv_mov_b32 v220, 0")
    G.I("s_branch L_layer")
    A.L("L_final")
    if cfg.diag == "delay":
        G.I("s_memtime s[78:79]\ns_waitcnt lgkmcnt(0)\ns_add_u32 s74, s78, 40000")
        A.L("L_dly")
        G.I("s_memtime s[78:79]\ns_waitcnt lgkmcnt(0)\ns_sub_u32 s79, s78, s74\ns_cmp_lt_i32 s79, 0\ns_cbranch_scc1 L_dly")
        G.loops["L_dly"] = 0
    vm.q = q0
    G.lin(36, [(S_I, 64 * 1280), (S_WAVE, 16 * 1280), (S_J, 160)], 0, layer=False, tmp=37)
    G.I("v_mul_u32_u24 v6, 1280, v3\nv_lshl_add_u32 v6, v4, 3, v6")
    if cfg.fst:
        G.I("v_and_b32 v7, 1, v4\nv_mul_u32_u24 v7, 24, v7\nv_add_u32 v7, v6, v7")
    G.resid_epilogue(40, store=False)
    if cfg.fst:
        for pr in range(2):
            b_ = XRES + 4 * pr
            G.I(f"v_permlane16_swap_b32 {v(b_)}, {v(b_+2)}\nv_permlane16_swap_b32 {v(b_+1)}, {v(b_+3)}")
            G.I(f"buffer_store_dwordx4 {v(b_,4)}, v7, s[8:11], s36 offen offset:{pr*64}")
        G.I(f"buffer_store_dwordx2 {v(XRES+8,2)}, v6, s[8:11], s36 offen offset:128")
    else:
        for ft in range(5): G.I(f"buffer_store_dwordx2 {v(XRES+2*ft,2)}, v6, s[8:11], s36 offen offset:{ft*32} {cfg.outfl}")
    if cfg.prof:
        G.I("s_waitcnt vmcnt(0)"); G.stamp("end")
        G.I("s_memrealtime s[78:79]\ns_waitcnt lgkmcnt(0)\nv_writelane_b32 v19, s78, 63")
        G.I(f"s_lshl_b32 s36, s2, 2\ns_add_u32 s36, s36, {s(S_WAVE)}\ns_lshl_b32 s36, s36, 8\ns_add_u32 s36, s36, {L.PROF}\nv_lshlrev_b32 v6, 2, v0")
        G.I(f"buffer_store_dword v19, v6, {WS}, s36 offen")
        if cfg.dbg:
            G.I(f"""s_cmp_lg_u32 s2, {cfg.dbgwg}
            s_cbranch_scc1 L_end
            s_cmp_lg_u32 {s(S_WAVE)}, 0
            s_cbranch_scc1 L_end
            s_load_dwordx2 s[36:37], s[0:1], 80
            v_readlane_b32 s38, v19, 0
            s_waitcnt lgkmcnt(0)
            v_subrev_u32 v19, s38, v19
            s_mov_b64 exec, 0xffff
            global_store_dword v6, v19, s[36:37]""")
        cfg.names = G.names
    A.L("L_end")
    G.I("s_endpgm")
    for g, j, code in Gen.cold:
        A.L(g); G.I(code); G.I(f"s_branch {j}")
    A.ins += G.slow
    A.L("L_codeend")
    if os.environ.get('V'): print('w2 left for S3 window:', G.n_left)
    npad = A.pad_hazards()
    tr = trace_two_layers(A.ins, G.loops)
    errs = check_waits([x for x in tr if x.op not in ("s_memtime", "s_memrealtime")], "main")
    assert errs == 0 or cfg.skip != ("",) and cfg.skip
    return A.text(), npad

def trace_two_layers(ins, loops):
    labels = {x.label: i for i, x in enumerate(ins) if x.is_label}
    tr = []; j = 0; left = {}; layer = 0
    while j < len(ins):
        c = ins[j]; tr.append(c)
        if c.op == "s_endpgm": break
        if c.kind == "branch":
            t = labels[c.target]
            if c.op == "s_branch":
                if c.target == "L_layer": layer = 1
                j = t; continue
            if t <= j:
                k = left.get(j, loops.get(c.target, 1))
                if k > 0: left[j] = k - 1; j = t; continue
                left.pop(j, None)
            elif (c.target == "L_final" and layer == 1) or c.target.startswith("L_prepok") or (c.target.startswith("L_pollx") and c.op == "s_cbranch_vccz"):
                j = t; continue
        j += 1
    return tr

HEADER = open(f"cdna_kernels/{NAME}.s.ref").read().split("; Override launch")[0]

def build_all(cfg):
    body, npad = build_main(cfg)
    asm = HEADER
    asm += f"; @launch grid=(256,1,1) block=(256,1,1) lds={LDS_BYTES}\n"
    asm += '.amdgcn_target "amdgcn-amd-amdhsa--gfx950"\n'
    asm += wrap_kernel(NAME + "_kernel", body, vgpr=512, acc=256)
    return asm, npad

if __name__ == "__main__":
    cfg = Cfg()
    cfg.prof = "prof" in os.environ.get("XF", "")
    asm, npad = build_all(cfg)
    open("out.s", "w").write(asm)
    print("lines", len(asm.splitlines()), "bytes", len(asm), "pad", npad)
```

```python
from mbcommon import *
sys.path.insert(0, "gen")
from layout import bf16_round
def kern(name, var, iters):
    t = """
    s_load_dwordx4 s[4:7], s[0:1], 0
    v_and_b32 v1, 63, v0
    v_lshlrev_b32 v2, 4, v0
    v_lshlrev_b32 v5, 4, v1
    v_lshrrev_b32 v3, 6, v0
    s_nop 0
    v_readfirstlane_b32 s20, v3
    s_lshl_b32 s21, s2, 2
    s_add_u32 s21, s21, s20
    s_lshl_b32 s21, s21, 4
    v_mov_b32 v4, s21
    s_waitcnt lgkmcnt(0)
    s_mov_b32 s24, s6
    s_mov_b32 s25, s7
    s_mov_b32 s26, 0x100000
    s_mov_b32 s27, 0x20000
"""
    for k in range(56):
        t += f"    s_mov_b32 s30, {k*4096}\n    buffer_load_dwordx4 a[{4*k}:{4*k+3}], v2, s[24:27], s30 offen\n"
    t += "    s_waitcnt vmcnt(0)\n"
    for k in range(16):
        t += f"    s_mov_b32 s30, {(64+k)*4096}\n    s_lshl_b32 s31, s20, 10\n    s_add_u32 m0, s31, {k*4096}\n    s_nop 0\n    buffer_load_dwordx4 v2, s[24:27], s30 offen lds\n"
    t += "".join(f"    v_mov_b32 v{i}, 0\n" for i in range(20, 200))
    t += f"""    s_waitcnt vmcnt(0)
    s_barrier
    s_mov_b32 s10, {iters}
    s_memtime s[12:13]
    s_memrealtime s[16:17]
    s_waitcnt lgkmcnt(0)
.p2align 6
L_{name}:
"""
    if name.startswith("x"): t += "    s_nop 0\n"
    n = 0
    for k in range(8):
        if var == "reg":
            for st in range(4):
                for ft in range(5):
                    w = (k * 20 + st * 5 + ft) % 48
                    t += f"    v_mfma_f32_16x16x32_bf16 v[{20+4*ft}:{23+4*ft}], a[{4*w}:{4*w+3}], a[{192+4*((k+st)%8)}:{195+4*((k+st)%8)}], v[{20+4*ft}:{23+4*ft}]\n"; n += 1
        elif var == "lds2":
            t += "    s_waitcnt lgkmcnt(0)\n"
            for ft in range(7):
                for e in range(2):
                    d = 20 + 28 * e + 4 * ft; w = 100 + 28 * (k % 2) + 4 * ft
                    t += f"    v_mfma_f32_16x16x32_bf16 v[{d}:{d+3}], v[{w}:{w+3}], a[{8*k+4*e}:{8*k+4*e+3}], v[{d}:{d+3}]\n"; n += 1
                    i = 2 * ft + e
                    if i < 7: t += f"    ds_read_b128 v[{100+28*((k+1)%2)+4*i}:{103+28*((k+1)%2)+4*i}], v5 offset:{((k*7+i)%64)*1024}\n"
        elif var == "lds1":
            for i in range(10):
                j = k * 10 + i
                t += f"    s_waitcnt lgkmcnt(7)\n    v_mfma_f32_16x16x32_bf16 v[{20+4*(i%5)}:{23+4*(i%5)}], v[{100+4*(j%10)}:{103+4*(j%10)}], a[{4*(j//5)}:{4*(j//5)+3}], v[{20+4*(i%5)}:{23+4*(i%5)}]\n"; n += 1
                t += f"    ds_read_b128 v[{100+4*((j+8)%10)}:{103+4*((j+8)%10)}], v5 offset:{(j%64)*1024}\n"
        elif var == "big":
            for i in range(4):
                d = 20 + 16 * i
                t += f"    v_mfma_f32_32x32x16_bf16 v[{d}:{d+15}], a[{16*k+4*(i&1)}:{16*k+4*(i&1)+3}], a[{16*k+8+4*(i>>1)}:{16*k+11+4*(i>>1)}], v[{d}:{d+15}]\n"; n += 2
    t += f"""    s_sub_u32 s10, s10, 1
    s_cmp_lg_u32 s10, 0
    s_cbranch_scc1 L_{name}
    s_memtime s[14:15]
    s_memrealtime s[18:19]
    s_waitcnt lgkmcnt(0)
    s_sub_u32 s14, s14, s12
    s_sub_u32 s18, s18, s16
    v_mov_b32 v6, s14
    v_mov_b32 v7, s18
    v_mov_b32 v8, v20
    v_mov_b32 v9, v24
    s_mov_b64 exec, 1
    global_store_dwordx4 v4, v[6:9], s[4:5]
    s_waitcnt vmcnt(0)
"""
    return kernel_text(name, t, vgpr=512, acc=256), n * iters
cfgs = {}
for vv in ("reg", "lds2", "lds1", "big"):
    for tag, target in (("L", 1500),):
        per = {"reg": 160, "lds2": 112, "lds1": 80, "big": 64}[vv]
        cfgs[vv + tag] = (vv, max(1, target // per)); cfgs["x" + vv + tag] = (vv, max(1, target // per))
hdr = "".join(f"; @launch kernel={n}_kernel grid=(256,1,1) block=(256,1,1) lds=0\n" for n in cfgs)
asm = hdr + '.amdgcn_target "amdgcn-amd-amdhsa--gfx950"\n'
cnt = {}
for n, (vv, it) in cfgs.items():
    k, c = kern(n + "_kernel", vv, it); asm += k; cnt[n] = c
co = assemble(asm, "mb16", 12)
if not os.path.exists('/dev/kfd'):
    print("assembled"); sys.exit(0)
mod = Module(co)
out = cl.DeviceBuffer(1024 * 16)
rng = np.random.default_rng(0)
data = cl.DeviceBuffer.from_numpy(bf16_round(rng.standard_normal(1 << 19) * 0.3))
ka = cl.pack_ptr_kernargs([out.ptr, data.ptr] + [out.ptr] * 10)
res = {n: [] for n in cfgs}
for it in range(8):
    for n in cfgs:
        time.sleep(0.002)
        mod.launch(n + "_kernel", (256,1,1), (256,1,1), ka, lds=100000)
        sync()
        o = out.to_numpy(np.uint32, (1024, 4))
        res[n].append((np.median(o[:, 0]), np.median(o[:, 1]) * 10))
for n in cfgs:
    r = np.array(res[n][2:])
    print(f"{n:8s} mfma16-equiv {cnt[n]:5d} cycles {np.median(r[:,0]):8.0f} ns {np.median(r[:,1]):8.0f} clock {np.median(r[:,0]/r[:,1]):.3f} ns/mfma {np.median(r[:,1])/cnt[n]:.2f}  280 mfma = {280*np.median(r[:,1])/cnt[n]:.0f} ns")
```
